```python
import torch

def _softmax(x, axis=-1):
    return torch.softmax(x, dim=axis)
def _gelu(x):
    return torch.nn.functional.gelu(x, approximate="tanh")
def _silu(x):
    return torch.nn.functional.silu(x)
def _sigmoid(x):
    return torch.sigmoid(x)
def _layernorm(x, axis=-1, eps=1e-5):
    m = x.mean(dim=axis, keepdim=True)
    v = x.var(dim=axis, keepdim=True, unbiased=False)
    return (x - m) / torch.sqrt(v + eps)
def _scatter_add(tgt, idx, src, axis=0):
    return tgt.clone().index_add_(axis, idx, src)
def _segment_sum(src, seg, n):
    out = torch.zeros((n,) + src.shape[1:], dtype=src.dtype)
    return out.index_add_(0, seg, src)
def _pad(x, pw):
    flat = tuple(v for pair in reversed(pw) for v in pair)
    return torch.nn.functional.pad(x, flat)

kernel_name = 'concat_heads__softmax_full_mha__mha_block__prompt'

def setup_inputs():

    _w = (lambda a: (lambda t: t.to(torch.bfloat16) if t.is_floating_point() else t)(torch.as_tensor(a)))
    def _A_setup():
        B, S, D = 1, 2048, 448
        return {
            "x": _w((lambda *s: torch.randn(*s, dtype=torch.bfloat16) * 0.2)(B, S, D)),
            "wqkv": _w((lambda *s: torch.randn(*s, dtype=torch.bfloat16) * 0.2)(D, 3 * D)),
            "wo": _w((lambda *s: torch.randn(*s, dtype=torch.bfloat16) * 0.05)(D, D)),
        }
    _A_in = _A_setup()

    def _B_setup():
        B, S, D, H = 1, 2048, 448, 16
        return {
            "x": _w((lambda *s: torch.randn(*s, dtype=torch.bfloat16) * 0.2)(B, S, D)),
            "wqkv": _w((lambda *s: torch.randn(*s, dtype=torch.bfloat16) * 0.2)(D, 3 * D)),
            "wo": _w((lambda *s: torch.randn(*s, dtype=torch.bfloat16) * 0.05)(D, D)),
        }
    _B_in = _B_setup()

    return {
        "A_x": _A_in["x"],
        "A_wqkv": _A_in["wqkv"],
        "A_wo": _A_in["wo"],
        "B_x": _B_in["x"],
        "B_wqkv": _B_in["wqkv"],
        "B_wo": _B_in["wo"],
    }

def reference(A_x, A_wqkv, A_wo, B_x, B_wqkv, B_wo):
    def _A_ref(x, wqkv, wo):
        B, S, D = x.shape
        H = 16; Dh = D // H
        qkv = (lambda x, *d: x.permute(*d))((x @ wqkv).reshape(B, S, 3, H, Dh), 2, 0, 3, 1, 4)
        q, k, v = qkv[0], qkv[1], qkv[2]
        scale = Dh ** -0.5
        scores = torch.einsum("bhqd,bhkd->bhqk", q, k) * scale
        p = _softmax(scores, axis=-1)
        o = torch.einsum("bhqk,bhkd->bhqd", p, v)
        return (lambda x, *d: x.permute(*d))(o, 0, 2, 1, 3).reshape(B, S, D) @ wo

    def _B_ref(x, wqkv, wo):
        B, S, D = x.shape
        H = 16
        Dh = D // H
        qkv = (lambda x, *d: x.permute(*d))((x @ wqkv).reshape(B, S, 3, H, Dh), 2, 0, 3, 1, 4)
        q, k, v = qkv[0], qkv[1], qkv[2]
        scores = torch.einsum("bhqd,bhkd->bhqk", q, k) * (Dh ** -0.5)
        p = _softmax(scores, axis=-1)
        o = torch.einsum("bhqk,bhkd->bhqd", p, v)
        return (lambda x, *d: x.permute(*d))(o, 0, 2, 1, 3).reshape(B, S, D) @ wo

    a = _A_ref(A_x, A_wqkv, A_wo)
    b = _B_ref(B_x, B_wqkv, B_wo)
    return torch.concatenate([a, b], axis=-1)
```

```python
class Asm:
    def __init__(self):
        self.L = []
    def __call__(self, s):
        for line in s.strip("\n").split("\n"):
            line = line.strip()
            if not line: continue
            if line.endswith(":") or line.startswith("."):
                self.L.append(line)
            else:
                self.L.append("    " + line)
    def text(self):
        return "\n".join(self.L) + "\n"

def vr(a, n=1):
    return f"v{a}" if n == 1 else f"v[{a}:{a+n-1}]"
def sr(a, n=1):
    return f"s{a}" if n == 1 else f"s[{a}:{a+n-1}]"

def kdesc(name, vgpr, sgpr=96):
    acc = (vgpr + 3)//4*4
    return f""".section .rodata,"a"
.p2align 6
.amdhsa_kernel {name}
  .amdhsa_next_free_vgpr {vgpr}
  .amdhsa_next_free_sgpr {sgpr}
  .amdhsa_accum_offset {acc}
  .amdhsa_group_segment_fixed_size 0
  .amdhsa_kernarg_size 72
  .amdhsa_user_sgpr_count 2
  .amdhsa_user_sgpr_kernarg_segment_ptr 1
  .amdhsa_system_sgpr_workgroup_id_x 1
.end_amdhsa_kernel
.text
"""
def khead(name):
    return f""".text
.globl {name}
.p2align 8
.type {name},@function
{name}:
"""
```

```python
import sys, struct
from asmlib import *

QF_OFF = 0
KV_OFF = 4 << 20
OF_OFF = 12 << 20
WS_USED = 16 << 20
CSCALE = 28 ** -0.5 * 1.4426950408889634
def f2u(x): return struct.unpack("<I", struct.pack("<f", x))[0]

def load_ptrs(a):
    a("""
    s_load_dwordx16 s[4:19], s[0:1], 0
    s_load_dwordx2 s[20:21], s[0:1], 64
    """)

def gen_k1():
    a = Asm()
    N = "mha_qkv_kernel"
    a(khead(N))
    a(f"""
    s_cmp_ge_u32 s2, 256
    s_cbranch_scc1 {N}_end
    """)
    load_ptrs(a)
    a("""
    s_and_b32 s22, s2, 7          ; xcd
    s_lshr_b32 s23, s2, 3         ; r
    s_lshr_b32 s24, s22, 2        ; b
    s_bfe_u32 s25, s22, 0x10001   ; (xcd>>1)&1
    s_lshl_b32 s25, s25, 2
    s_and_b32 s26, s23, 3
    s_add_u32 s25, s25, s26       ; j
    s_and_b32 s26, s22, 1
    s_lshl_b32 s26, s26, 3
    s_lshr_b32 s27, s23, 2
    s_add_u32 s26, s26, s27       ; h
    v_lshrrev_b32 v1, 6, v0
    v_and_b32 v2, 63, v0          ; lane
    s_nop 0
    v_readfirstlane_b32 s27, v1   ; w
    s_waitcnt lgkmcnt(0)
    s_cmp_eq_u32 s24, 0
    s_cselect_b32 s28, s4, s10    ; x srd s[28:31]
    s_cselect_b32 s29, s5, s11
    s_mov_b32 s30, 1835008
    s_mov_b32 s31, 0x20000
    s_cselect_b32 s32, s6, s12    ; w srd s[32:35]
    s_cselect_b32 s33, s7, s13
    s_mov_b32 s34, 1204224
    s_mov_b32 s35, 0x20000
    s_mov_b32 s36, s20            ; ws srd s[36:39]
    s_mov_b32 s37, s21
    s_mov_b32 s38, %d
    s_mov_b32 s39, 0x20000
    """ % WS_USED)
    WB = 0
    XB = 86016
    a(f"""
    v_lshrrev_b32 v3, 3, v2
    v_and_b32 v4, 7, v2           ; piece'
    v_lshrrev_b32 v5, 4, v2       ; lane>>4
    v_xor_b32 v6, v4, v5
    v_xor_b32 v7, 4, v6
    s_lshl_b32 s40, s25, 8        ; j*256
    s_lshl_b32 s41, s27, 5        ; w*32
    s_add_u32 s40, s40, s41
    s_mul_i32 s40, s40, 896
    v_mul_u32_u24 v3, 896, v3
    v_add_u32 v3, s40, v3
    v_lshl_add_u32 v10, v6, 4, v3
    v_lshl_add_u32 v11, v7, 4, v3
    v_add_u32 v12, {2*6144}, v10
    v_add_u32 v13, {3*6144}, v11
    v_add_u32 v11, {1*6144}, v11
    """)
    a(f"""
    s_lshl_b32 s41, s27, 3        ; 8w
    s_mul_i32 s41, s41, 2688
    s_mul_i32 s42, s26, 56
    s_add_u32 s41, s41, s42       ; 8w*2688 + h*56
    """)
    for dst, add in ((14, 0), (15, 64)):
        a(f"""
        v_add_u32 v3, {add}, v2
        v_mul_u32_u24 v4, 43, v3
        v_lshrrev_b32 v4, 9, v4       ; k_local
        v_mul_u32_u24 v5, 12, v4
        v_sub_u32 v5, v3, v5          ; rem
        v_lshrrev_b32 v6, 2, v5       ; seg
        v_and_b32 v5, 3, v5           ; piece
        v_mul_u32_u24 v4, 2688, v4
        v_mul_u32_u24 v6, 896, v6
        v_lshlrev_b32 v5, 4, v5
        v_add3_u32 v3, v4, v5, v6
        v_add_u32 v{dst}, s41, v3
        """)
    a("v_subrev_u32 v15, 1024, v15")
    a(f"""
    s_lshl_b32 s43, s27, 13
    s_add_u32 s43, s43, {XB}
    s_mul_i32 s44, s27, 1536
    """)
    def dma_x(c):
        a(f"""
        s_add_u32 m0, s43, {(c&1)*4096}
        s_movk_i32 s45, {c*128}
        """)
        for i in range(4):
            a(f"buffer_load_dwordx4 v{10+i}, s[28:31], s45 offen offset:{i*1024} lds")
    def dma_w(c):
        a(f"""
        s_add_u32 m0, s44, {WB + c*12288}
        s_mov_b32 s45, {c*64*2688}
        buffer_load_dwordx4 v14, s[32:35], s45 offen lds
        s_mov_b32 exec_hi, 0
        buffer_load_dwordx4 v15, s[32:35], s45 offen offset:1024 lds
        s_mov_b32 exec_hi, -1
        """)
    dma_x(0); dma_w(0); dma_x(1); dma_w(1); dma_w(2)
    a(f"""
    v_and_b32 v3, 31, v2          ; m
    v_lshrrev_b32 v4, 5, v2       ; hh
    v_bfe_u32 v5, v2, 1, 3        ; z=(m>>1)&7
    v_xor_b32 v5, v4, v5          ; hh^z
    v_lshlrev_b32 v6, 7, v3
    v_add_u32 v6, s43, v6
    v_lshl_add_u32 v16, v5, 4, v6
    v_xor_b32 v7, 2, v5
    v_lshl_add_u32 v17, v7, 4, v6
    v_xor_b32 v7, 4, v5
    v_lshl_add_u32 v18, v7, 4, v6
    v_xor_b32 v7, 6, v5
    v_lshl_add_u32 v19, v7, 4, v6
    v_bfe_u32 v5, v2, 2, 2        ; r
    v_lshl_add_u32 v5, v4, 3, v5  ; 8hh + r
    v_mul_u32_u24 v5, 192, v5
    v_bfe_u32 v6, v2, 4, 1        ; nhalf
    v_lshl_add_u32 v5, v6, 5, v5
    v_and_b32 v6, 3, v2
    v_lshl_add_u32 v20, v6, 3, v5
    v_add_u32 v21, 49152, v20
    """)
    AQ, AK, AV = 32, 48, 64
    XF = 80
    WF = 112
    for r in range(AQ, AQ+48): a(f"v_mov_b32 v{r}, 0")
    def rd_x(c):
        for s in range(4):
            a(f"ds_read_b128 {vr(XF+(c&1)*16+4*s,4)}, v{16+s} offset:{(c&1)*4096}")
    def rd_w(t):
        c, s = divmod(t, 4)
        base = 20 if c < 4 else 21
        off0 = ((c if c < 4 else c-4)*64 + 16*s)*192
        for seg in range(3):
            for rd in range(2):
                a(f"ds_read_b64_tr_b16 {vr(WF+(t&1)*12+4*seg+2*rd,2)}, v{base} offset:{WB+off0+4*rd*192+seg*64}")
    vm = [8,8,8,8,8,6,0]
    def boundary(c):
        a(f"s_waitcnt vmcnt({vm[c]})")
        a("s_barrier")
        rd_x(c)
    boundary(0)
    rd_w(0)
    for t in range(28):
        c, s = divmod(t, 4)
        pre_x = False
        if s == 3 and c < 6:
            boundary(c+1); pre_x = True
        if t < 27: rd_w(t+1)
        n_after = (6 if t < 27 else 0) + (4 if pre_x else 0)
        a(f"s_waitcnt lgkmcnt({n_after})")
        if s == 0:
            if c+2 <= 6: dma_x(c+2)
            if c+3 <= 6: dma_w(c+3)
        xf = vr(XF+(c&1)*16+4*s,4)
        wf = lambda seg: vr(WF+(t&1)*12+4*seg,4)
        a(f"v_mfma_f32_32x32x16_bf16 {vr(AQ,16)}, {wf(0)}, {xf}, {vr(AQ,16)}")
        a(f"v_mfma_f32_32x32x16_bf16 {vr(AK,16)}, {wf(1)}, {xf}, {vr(AK,16)}")
        a(f"v_mfma_f32_32x32x16_bf16 {vr(AV,16)}, {xf}, {wf(2)}, {vr(AV,16)}")
    a(f"""
    s_lshl_b32 s40, s24, 4
    s_add_u32 s40, s40, s26       ; b*16+h
    s_lshl_b32 s40, s40, 6
    s_lshl_b32 s41, s25, 3
    s_add_u32 s41, s41, s27       ; tile = 8j+w
    s_add_u32 s40, s40, s41
    s_lshl_b32 s41, s40, 11
    s_lshl_b32 s42, s40, 12
    s_add_u32 s42, s42, {KV_OFF}
    v_lshlrev_b32 v3, 4, v2       ; lane*16
    v_and_b32 v4, 0x33, v2
    v_bfe_u32 v5, v2, 2, 1
    v_bfe_u32 v6, v2, 3, 1
    v_lshl_or_b32 v4, v5, 3, v4
    v_lshl_or_b32 v4, v6, 2, v4
    v_lshlrev_b32 v4, 4, v4       ; swap23(lane)*16
    s_mov_b32 s46, {hex(f2u(CSCALE))}
    v_cmp_gt_u32 vcc, 32, v2
    v_and_b32 v5, 31, v2
    v_cmp_gt_u32 s[48:49], 28, v5
    v_cmp_eq_u32 s[50:51], 28, v5
    v_mov_b32 v7, 0x3f803f80
    v_mov_b32 v8, 0x00003f80
    v_cndmask_b32 v9, 0, v7, s[50:51]
    """)
    PK = 80
    for i in range(16): a(f"v_mul_f32 v{AQ+i}, s46, v{AQ+i}")
    for i in range(8): a(f"v_cvt_pk_bf16_f32 v{PK+i}, v{AQ+2*i}, v{AQ+2*i+1}")
    a(f"v_cndmask_b32 v{PK+6}, 0, v{PK+6}, vcc")
    a(f"v_cndmask_b32 v{PK+7}, 0, v{PK+7}, vcc")
    a(f"buffer_store_dwordx4 {vr(PK,4)}, v3, s[36:39], s41 offen")
    a(f"buffer_store_dwordx4 {vr(PK+4,4)}, v3, s[36:39], s41 offen offset:1024")
    for i in range(8): a(f"v_cvt_pk_bf16_f32 v{PK+8+i}, v{AK+2*i}, v{AK+2*i+1}")
    a(f"v_cndmask_b32 v{PK+14}, v7, v{PK+14}, vcc")
    a(f"v_cndmask_b32 v{PK+15}, v8, v{PK+15}, vcc")
    a(f"buffer_store_dwordx4 {vr(PK+8,4)}, v4, s[36:39], s42 offen")
    a(f"buffer_store_dwordx4 {vr(PK+12,4)}, v4, s[36:39], s42 offen offset:1024")
    for i in range(8): a(f"v_cvt_pk_bf16_f32 v{PK+16+i}, v{AV+2*i}, v{AV+2*i+1}")
    for i in range(8): a(f"v_cndmask_b32 v{PK+16+i}, v9, v{PK+16+i}, s[48:49]")
    a(f"buffer_store_dwordx4 {vr(PK+16,4)}, v3, s[36:39], s42 offen offset:2048")
    a(f"buffer_store_dwordx4 {vr(PK+20,4)}, v3, s[36:39], s42 offen offset:3072")
    a(f"{N}_end:")
    a("s_endpgm")
    a(kdesc(N, 136))
    return a.text(), (N, 256, 512, XB + 65536)

def gen_k2():
    a = Asm()
    N = "mha_attn_kernel"
    a(khead(N))
    a(f"""
    s_cmp_ge_u32 s2, 256
    s_cbranch_scc1 {N}_end
    s_load_dwordx2 s[20:21], s[0:1], 64
    s_and_b32 s22, s2, 7
    s_lshr_b32 s23, s2, 3
    s_lshl_b32 s24, s22, 2
    s_lshr_b32 s25, s23, 3
    s_add_u32 s24, s24, s25       ; pair = b*16+h
    s_and_b32 s25, s23, 7         ; j
    v_lshrrev_b32 v1, 6, v0
    v_and_b32 v2, 63, v0
    s_nop 0
    v_readfirstlane_b32 s27, v1   ; w
    v_lshlrev_b32 v3, 4, v2       ; lane*16
    s_and_b32 s28, s27, 3         ; g
    s_lshr_b32 s29, s27, 2        ; kh
    s_waitcnt lgkmcnt(0)
    s_mov_b32 s36, s20
    s_mov_b32 s37, s21
    s_mov_b32 s38, {WS_USED}
    s_mov_b32 s39, 0x20000
    s_lshl_b32 s40, s24, 6
    s_lshl_b32 s41, s29, 5
    s_add_u32 s40, s40, s41
    s_add_u32 s40, s40, s28
    s_lshl_b32 s40, s40, 12
    s_add_u32 s40, s40, {KV_OFF}
    s_lshl_b32 s41, s27, 12
    s_lshl_b32 s42, s24, 6
    s_lshl_b32 s43, s25, 3
    s_add_u32 s42, s42, s43
    s_lshl_b32 s43, s28, 1
    s_add_u32 s42, s42, s43
    s_lshl_b32 s44, s42, 11
    """)
    Q = 8
    O = 32
    S = 64
    KF = 128
    VF = 144
    IDX = 4; VA = 5; VB = 6
    def dma(soff_reg, m0expr):
        a(m0expr)
        for q in range(4):
            a(f"buffer_load_dwordx4 v3, s[36:39], {soff_reg} offen offset:{q*1024} lds")
    a("s_mov_b32 s45, s40")
    dma("s45", "s_mov_b32 m0, s41\ns_nop 0")
    for i in range(4):
        a(f"buffer_load_dwordx4 {vr(Q+4*i,4)}, v3, s[36:39], s44 offen offset:{i*1024}")
    a("s_add_u32 s45, s40, 16384")
    dma("s45", "s_add_u32 m0, s41, 32768\ns_nop 0")
    a(f"""
    v_mov_b32 v{IDX}, 0xdddddddd
    s_lshl_b32 s46, s29, 14
    v_add_u32 v{VA}, s46, v3
    v_add_u32 v{VB}, 32768, v{VA}
    """)
    for r in range(O, O+32): a(f"v_mov_b32 v{r}, 0")
    for r in range(S+48, S+64): a(f"v_mov_b32 v{r}, 0")
    for r in range(VF+8, VF+16): a(f"v_mov_b32 v{r}, 0")
    a(f"""
    s_mov_b32 s47, 0
    s_mov_b32 s48, 65536
    s_add_u32 s45, s40, 32768
    s_waitcnt vmcnt(4)
    s_barrier
    ds_read_b128 {vr(KF,4)}, v{VA}
    ds_read_b128 {vr(KF+4,4)}, v{VA} offset:1024
    s_waitcnt lgkmcnt(0)
    v_mfma_f32_32x32x16_bf16 {vr(S,16)}, {vr(KF,4)}, {vr(Q,4)}, 0
    v_mfma_f32_32x32x16_bf16 {vr(S,16)}, {vr(KF+4,4)}, {vr(Q+4,4)}, {vr(S,16)}
    s_nop 15
    .p2align 6
    {N}_loop:
    """)
    for u in range(8):
        t = u >> 1
        cur = S + 16*(u & 3); nxt = S + 16*((u+1) & 3); prv = S + 16*((u-1) & 3)
        tn = (u+1) >> 1; subn = (u+1) & 1
        tp = (u-1) >> 1; subp = (u-1) & 1
        kf = KF + 8*(tn & 1); vf = VF + 8*(tp & 1)
        pre = []
        if u == 5:
            pre.append(f"""
            s_waitcnt vmcnt(0)
            s_barrier
            s_cmp_gt_u32 s47, 5
            s_cbranch_scc1 {N}_nodma
            s_add_u32 m0, s41, s48
            s_nop 0
            buffer_load_dwordx4 v3, s[36:39], s45 offen lds
            buffer_load_dwordx4 v3, s[36:39], s45 offen offset:1024 lds
            buffer_load_dwordx4 v3, s[36:39], s45 offen offset:2048 lds
            buffer_load_dwordx4 v3, s[36:39], s45 offen offset:3072 lds
            {N}_nodma:
            """)
        if (u & 1) == 0:
            kb = KF + 8*((t+1) & 1); vb = VF + 8*(t & 1)
            if t < 3:
                pre.append(f"ds_read_b128 {vr(kb,4)}, v{VA} offset:{(t+1)*4096}")
                pre.append(f"ds_read_b128 {vr(kb+4,4)}, v{VA} offset:{(t+1)*4096+1024}")
            else:
                pre.append(f"ds_read_b128 {vr(kb,4)}, v{VB}")
                pre.append(f"ds_read_b128 {vr(kb+4,4)}, v{VB} offset:1024")
            pre.append(f"ds_read_b128 {vr(vb,4)}, v{VA} offset:{t*4096+2048}")
            pre.append(f"ds_read_b128 {vr(vb+4,4)}, v{VA} offset:{t*4096+3072}")
        else:
            pre.append("s_waitcnt lgkmcnt(0)")
        for p in pre: a(p)
        qn = Q + 8*subn; op = O + 16*subp
        M = [f"v_mfma_f32_32x32x16_bf16 {vr(nxt,16)}, {vr(kf,4)}, {vr(qn,4)}, 0",
             f"v_mfma_f32_32x32x16_bf16 {vr(nxt,16)}, {vr(kf+4,4)}, {vr(qn+4,4)}, {vr(nxt,16)}",
             f"v_smfmac_f32_32x32x32_bf16 {vr(op,16)}, {vr(vf,4)}, {vr(prv,8)}, v{IDX}",
             f"v_smfmac_f32_32x32x32_bf16 {vr(op,16)}, {vr(vf+4,4)}, {vr(prv+8,8)}, v{IDX}"]
        for m in range(4):
            a(M[m])
            for e in range(4): a(f"v_exp_f32 v{cur+4*m+e}, v{cur+4*m+e}")
    a(f"""
    v_mov_b32 v{VA}, v{VB}
    s_add_u32 s49, s48, s46
    v_add_u32 v{VB}, s49, v3
    s_add_u32 s48, s48, 32768
    s_cmp_eq_u32 s48, 98304
    s_cselect_b32 s48, 0, s48
    s_add_u32 s45, s45, 16384
    s_add_u32 s47, s47, 1
    s_cmp_lt_u32 s47, 8
    s_cbranch_scc1 {N}_loop
    """)
    a(f"""
    s_nop 1
    v_smfmac_f32_32x32x32_bf16 {vr(O+16,16)}, {vr(VF+8,4)}, {vr(S+48,8)}, v{IDX}
    v_smfmac_f32_32x32x32_bf16 {vr(O+16,16)}, {vr(VF+12,4)}, {vr(S+56,8)}, v{IDX}
    s_lshl_b32 s46, s27, 12
    s_add_u32 s46, s46, 98304
    v_add_u32 v{VA}, s46, v3
    s_xor_b32 s46, s46, 16384
    v_add_u32 v{VB}, s46, v3
    s_cmp_eq_u32 s29, 0
    s_nop 7
    s_nop 7
    s_cbranch_scc1 {N}_kh0
    """)
    for q in range(4): a(f"ds_write_b128 v{VA}, {vr(O+4*q,4)} offset:{q*1024}")
    for r in range(16): a(f"v_mov_b32 v{S+r}, v{O+16+r}")
    a(f"s_branch {N}_join")
    a(f"{N}_kh0:")
    for q in range(4): a(f"ds_write_b128 v{VA}, {vr(O+16+4*q,4)} offset:{q*1024}")
    for r in range(16): a(f"v_mov_b32 v{S+r}, v{O+r}")
    a(f"{N}_join:")
    a("s_waitcnt lgkmcnt(0)")
    a("s_barrier")
    for q in range(4): a(f"ds_read_b128 {vr(S+16+4*q,4)}, v{VB} offset:{q*1024}")
    a(f"""
    s_lshr_b32 s46, s24, 4
    s_lshl_b32 s46, s46, 6
    s_lshl_b32 s47, s25, 3
    s_add_u32 s46, s46, s47
    s_lshl_b32 s47, s28, 1
    s_add_u32 s46, s46, s47
    s_add_u32 s46, s46, s29
    s_lshl_b32 s46, s46, 4
    s_and_b32 s47, s24, 15
    s_add_u32 s46, s46, s47
    s_lshl_b32 s46, s46, 11
    s_add_u32 s46, s46, {OF_OFF}
    v_cmp_gt_u32 vcc, 32, v2
    s_waitcnt lgkmcnt(0)
    """)
    for r in range(16): a(f"v_add_f32 v{S+r}, v{S+r}, v{S+16+r}")
    a(f"""
    v_mov_b32 v{S+32}, v{S+12}
    v_mov_b32 v{S+33}, v{S+12}
    s_nop 1
    v_permlane32_swap_b32 v{S+32}, v{S+33}
    s_nop 1
    v_rcp_f32 v{S+34}, v{S+33}
    s_nop 0
    """)
    for r in range(16): a(f"v_mul_f32 v{S+r}, v{S+r}, v{S+34}")
    for i in range(8): a(f"v_cvt_pk_bf16_f32 v{S+16+i}, v{S+2*i}, v{S+2*i+1}")
    a(f"v_cndmask_b32 v{S+22}, 0, v{S+22}, vcc")
    a(f"v_cndmask_b32 v{S+23}, 0, v{S+23}, vcc")
    a(f"buffer_store_dwordx4 {vr(S+16,4)}, v3, s[36:39], s46 offen")
    a(f"buffer_store_dwordx4 {vr(S+20,4)}, v3, s[36:39], s46 offen offset:1024")
    a(f"{N}_end:")
    a("s_endpgm")
    a(kdesc(N, 160))
    return a.text(), (N, 256, 512, 131072)

def gen_k3():
    a = Asm()
    N = "mha_out_kernel"
    a(khead(N))
    a(f"""
    s_cmp_ge_u32 s2, 224
    s_cbranch_scc1 {N}_end
    """)
    load_ptrs(a)
    a(f"""
    s_and_b32 s22, s2, 7
    s_lshr_b32 s23, s2, 3         ; r 0..27
    s_mul_i32 s24, s23, 37
    s_lshr_b32 s24, s24, 8        ; r/7
    s_mul_i32 s25, s24, 7
    s_sub_u32 s25, s23, s25       ; ct
    s_lshl_b32 s26, s22, 2
    s_add_u32 s24, s24, s26
    v_lshrrev_b32 v1, 6, v0
    v_and_b32 v2, 63, v0
    s_nop 0
    v_readfirstlane_b32 s27, v1
    v_lshlrev_b32 v3, 4, v2
    s_lshr_b32 s26, s24, 4        ; b
    s_waitcnt lgkmcnt(0)
    s_cmp_eq_u32 s26, 0
    s_cselect_b32 s28, s8, s14
    s_cselect_b32 s29, s9, s15
    s_mov_b32 s30, 401408
    s_mov_b32 s31, 0x20000
    s_mov_b32 s32, s16
    s_mov_b32 s33, s17
    s_mov_b32 s34, 3670016
    s_mov_b32 s35, 0x20000
    s_mov_b32 s36, s20
    s_mov_b32 s37, s21
    s_mov_b32 s38, {WS_USED}
    s_mov_b32 s39, 0x20000
    v_lshrrev_b32 v4, 3, v2       ; lane/8
    v_and_b32 v5, 7, v2
    v_bfe_u32 v6, v2, 4, 1
    v_lshlrev_b32 v6, 2, v6
    v_xor_b32 v5, v5, v6
    v_mul_u32_u24 v4, 896, v4
    v_lshl_add_u32 v4, v5, 4, v4
    s_mul_i32 s40, s27, {8*896}
    s_lshl_b32 s41, s25, 7
    s_add_u32 s40, s40, s41
    v_add_u32 v4, s40, v4
    s_lshl_b32 s41, s27, 10       ; w*1024
    s_lshl_b32 s42, s24, 2
    s_add_u32 s42, s42, s27
    s_lshl_b32 s43, s42, 15
    s_add_u32 s43, s43, {OF_OFF}
    """)
    OFR = 64
    for i in range(15):
        a(f"""
        s_add_u32 m0, s41, {i*4096}
        s_mov_b32 s44, {i*32*896}
        buffer_load_dwordx4 v4, s[28:31], s44 offen lds
        """)
    for i in range(32):
        if i % 4 == 0 and i: a(f"s_add_u32 s43, s43, 4096")
        a(f"buffer_load_dwordx4 {vr(OFR+4*i,4)}, v3, s[36:39], s43 offen offset:{(i%4)*1024}")
    a(f"""
    v_lshrrev_b32 v5, 5, v2       ; hh
    v_bfe_u32 v6, v2, 2, 2        ; r
    v_lshl_add_u32 v7, v5, 2, v6  ; 4hh + r
    v_lshlrev_b32 v7, 7, v7
    v_bfe_u32 v8, v2, 4, 1        ; nhalf
    v_lshl_add_u32 v7, v8, 5, v7
    v_and_b32 v8, 3, v2
    v_lshl_add_u32 v7, v8, 3, v7
    v_bfe_u32 v8, v2, 3, 1        ; r>>1
    v_lshl_add_u32 v10, v8, 6, v7 ; ctile 0
    v_xor_b32 v11, 64, v10        ; ctile 1
    """)
    ACC = 16; WF = 48
    for r in range(ACC, ACC+32): a(f"v_mov_b32 v{r}, 0")
    def rd(t):
        head, s = divmod(t, 2)
        for ctile in range(2):
            for eh in range(2):
                a(f"ds_read_b64_tr_b16 {vr(WF+8*(t&1)+4*ctile+2*eh,2)}, v{10+ctile} offset:{(head*28+16*s+8*eh)*128}")
    a("s_waitcnt vmcnt(32)")
    a("s_barrier")
    rd(0)
    for t in range(32):
        if t < 31: rd(t+1)
        a(f"s_waitcnt vmcnt({31-t}) lgkmcnt({4 if t < 31 else 0})")
        for ctile in range(2):
            a(f"v_mfma_f32_32x32x16_bf16 {vr(ACC+16*ctile,16)}, {vr(WF+8*(t&1)+4*ctile,4)}, {vr(OFR+4*t,4)}, {vr(ACC+16*ctile,16)}")
    a(f"""
    s_and_b32 s42, s42, 63
    s_lshl_b32 s42, s42, 5
    v_and_b32 v6, 31, v2
    v_add_u32 v6, s42, v6
    v_mul_u32_u24 v6, 1792, v6
    v_lshl_add_u32 v6, v5, 4, v6
    s_mul_i32 s44, s26, 896
    s_lshl_b32 s45, s25, 7
    s_add_u32 s44, s44, s45
    s_nop 7
    """)
    for ctile in range(2):
        P = 64 + 8*ctile
        for i in range(8): a(f"v_cvt_pk_bf16_f32 v{P+i}, v{ACC+16*ctile+2*i}, v{ACC+16*ctile+2*i+1}")
        a("s_nop 1")
        for gp in range(2):
            a(f"v_permlane32_swap_b32 v{P+4*gp}, v{P+4*gp+2}")
            a(f"v_permlane32_swap_b32 v{P+4*gp+1}, v{P+4*gp+3}")
        for gp in range(2):
            a(f"buffer_store_dwordx4 {vr(P+4*gp,4)}, v6, s[32:35], s44 offen offset:{ctile*64+gp*32}")
    a(f"{N}_end:")
    a("s_endpgm")
    a(kdesc(N, 192))
    return a.text(), (N, 224, 256, 61440)

def main(out):
    parts = [gen_k1(), gen_k2(), gen_k3()]
    hdr = ""
    for _, (n, g, b, l) in parts:
        hdr += f"; @launch kernel={n} grid=({g},1,1) block=({b},1,1) lds={l}\n"
    hdr += '.amdgcn_target "amdgcn-amd-amdhsa--gfx950"\n'
    open(out, "w").write(hdr + "".join(p[0] for p in parts))
if __name__ == "__main__":
    main(sys.argv[1])
```

```python
import sys, struct
from asmlib import *

KV_OFF = 0
OF_OFF = 8 << 20
FL_OFF = 12 << 20
FO_OFF = (12 << 20) + 65536
WS_USED = 13 << 20
ST_OFF = 32 << 20
CSCALE = 28 ** -0.5 * 1.4426950408889634
def f2u(x): return struct.unpack("<I", struct.pack("<f", x))[0]
ARGS = sys.argv[2:]
def opt(name): return ("--" + name) in ARGS
STAMP = opt("stamp")
N = "concat_heads__softmax_full_mha__mha_block__prompt_kernel"
SC = "sc1"
SCIN = "" if opt("plainin") else ("sc1" if opt("sc1in") else "nt")
SPIN_MAX = 100000

P1_SLOT = 45056
QST_L = 45056
RING0 = 61440
SLOT = 32768
LDS_BYTES = RING0 + 3 * SLOT

a = Asm()
FINE_DONE = [False]
def stamp(idx):
    if not STAMP: return
    if opt("fine") and idx >= 9 and FINE_DONE[0]: return
    a(f"""
    s_memtime s[64:65]
    s_memrealtime s[66:67]
    s_waitcnt lgkmcnt(0)
    s_mov_b32 s{70+2*idx}, s64
    s_mov_b32 s{71+2*idx}, s66
    """)
def stamp_flush(n):
    if not STAMP: return
    a(f"""
    s_lshl_b32 s66, s2, 4
    s_add_u32 s66, s66, s27
    s_lshl_b32 s66, s66, 7
    s_add_u32 s66, s66, {ST_OFF}
    s_add_u32 s64, s20, s66
    s_addc_u32 s65, s21, 0
    v_mov_b32 v0, 0
    s_mov_b64 exec, 1
    """)
    for i in range(n):
        a(f"""
        v_mov_b32 v4, s{70+2*i}
        v_mov_b32 v5, s{71+2*i}
        global_store_dwordx2 v0, v[4:5], s[64:65] offset:{8*i}
        s_nop 1
        """)
NSTAMP = 14

sB, sJ, sH, sW, sG, sKH, sPAIR = 24, 25, 26, 27, 48, 49, 52
X_SRD, W_SRD, WS_SRD, WO_SRD, OUT_SRD = "s[28:31]", "s[32:35]", "s[36:39]", "s[40:43]", "s[44:47]"
TAG = 50
IDX, VA, VB = 4, 5, 6
Q, O, S, KF, VF = 8, 32, 64, 128, 144
TMP = 160

def tag_check(lbl):
    a(f"""
    s_mov_b32 s53, {SPIN_MAX}
    {lbl}_chk:
    v_readfirstlane_b32 s{TAG}, v{TMP}
    v_readfirstlane_b32 s{TAG+1}, v{TMP+1}
    s_nop 1
    s_cmp_lg_u64 s[{TAG}:{TAG+1}], 0
    s_cbranch_scc1 {lbl}_ok
    s_sub_u32 s53, s53, 1
    s_cbranch_scc1 {lbl}_ok
    global_load_dwordx2 v[{TMP}:{TMP+1}], v7, s[18:19] {SC}
    s_waitcnt vmcnt(0)
    s_branch {lbl}_chk
    {lbl}_ok:
    """)

def poll_issue(vaddr, soff):
    a(f"""
    s_mov_b64 exec, 0xff
    buffer_load_dwordx2 v[{TMP}:{TMP+1}], v{vaddr}, {WS_SRD}, {soff} offen {SC}
    s_mov_b64 exec, -1
    """)
def poll_check(lbl, vaddr, soff):
    a(f"""
    s_mov_b32 s53, {SPIN_MAX}
    {lbl}_chk:
    s_waitcnt vmcnt(0)
    v_cmp_eq_u64 vcc, s[{TAG}:{TAG+1}], v[{TMP}:{TMP+1}]
    s_nop 1
    s_and_b32 s54, vcc_lo, 0xff
    s_cmp_eq_u32 s54, 0xff
    s_cbranch_scc1 {lbl}_ok
    s_sub_u32 s53, s53, 1
    s_cbranch_scc1 {lbl}_ok
    """)
    poll_issue(vaddr, soff)
    a(f"""
    s_branch {lbl}_chk
    {lbl}_ok:
    """)
def flag_store(soff):
    a(f"""
    v_mov_b32 v{TMP+2}, s{TAG}
    v_mov_b32 v{TMP+3}, s{TAG+1}
    s_mov_b64 exec, 1
    buffer_store_dwordx2 v[{TMP+2}:{TMP+3}], v7, {WS_SRD}, {soff} offen {SC}
    s_mov_b64 exec, -1
    """)

def prologue():
    a(khead(N))
    a(f"""
    s_cmp_ge_u32 s2, 256
    s_cbranch_scc1 L_end
    """)
    stamp(0)
    a(f"""
    s_load_dwordx16 s[4:19], s[0:1], 0
    s_load_dwordx2 s[20:21], s[0:1], 64
    s_and_b32 s22, s2, 7          ; xcd
    s_lshr_b32 s23, s2, 3         ; r
    s_lshr_b32 s{sB}, s22, 2
    s_bfe_u32 s25, s22, 0x10001
    s_lshl_b32 s25, s25, 2
    s_and_b32 s53, s23, 3
    s_add_u32 s{sJ}, s25, s53
    s_and_b32 s26, s22, 1
    s_lshl_b32 s26, s26, 3
    s_lshr_b32 s54, s23, 2
    s_add_u32 s{sH}, s26, s54
    s_lshl_b32 s53, s53, 1
    s_add_u32 s54, s54, s53
    s_sub_u32 s53, s54, 7
    s_cmp_ge_u32 s54, 7
    s_cselect_b32 s54, s53, s54
    s_lshl_b32 s{sPAIR}, s{sB}, 4
    s_add_u32 s{sPAIR}, s{sPAIR}, s{sH}
    v_lshrrev_b32 v1, 6, v0
    v_and_b32 v2, 63, v0          ; lane
    v_mov_b32 v7, 0
    v_readfirstlane_b32 s{sW}, v1
    v_lshlrev_b32 v3, 4, v2       ; lane*16
    s_waitcnt lgkmcnt(0)
    s_cmp_eq_u32 s{sB}, 0
    s_cselect_b32 s28, s4, s10
    s_cselect_b32 s29, s5, s11
    s_mov_b32 s30, 1835008
    s_mov_b32 s31, 0x20000
    s_cselect_b32 s32, s6, s12
    s_cselect_b32 s33, s7, s13
    s_mov_b32 s34, 1204224
    s_mov_b32 s35, 0x20000
    s_mov_b32 s36, s20
    s_mov_b32 s37, s21
    s_mov_b32 s38, {WS_USED}
    s_mov_b32 s39, 0x20000
    s_cselect_b32 s40, s8, s14
    s_cselect_b32 s41, s9, s15
    s_mov_b32 s42, 401408
    s_mov_b32 s43, 0x20000
    s_mov_b32 s44, s16
    s_mov_b32 s45, s17
    s_mov_b32 s46, 3670016
    s_mov_b32 s47, 0x20000
    s_and_b32 s{sG}, s{sW}, 3
    s_lshr_b32 s{sKH}, s{sW}, 2
    s_cmp_eq_u32 s{sKH}, 0
    s_cbranch_scc1 L_compute
    """)
    if opt("norot"): a("s_mov_b32 s54, 0")
    if opt("rot3"):
        a("""
        s_mul_i32 s53, s54, 86
        s_lshr_b32 s53, s53, 8
        s_mul_i32 s53, s53, 3
        s_sub_u32 s54, s54, s53
        """)
    if opt("rot2"): a("s_and_b32 s54, s54, 1")
    if opt("rot4"): a("s_and_b32 s54, s54, 3")

def loader():
    if opt("fine"): stamp(9)
    a(f"""
    v_lshrrev_b32 v8, 3, v2       ; lane/8
    v_and_b32 v9, 7, v2
    v_lshrrev_b32 v14, 4, v2
    v_xor_b32 v9, v9, v14
    v_xor_b32 v14, 4, v9
    s_lshl_b32 s55, s{sJ}, 8
    s_lshl_b32 s56, s{sG}, 6
    s_add_u32 s55, s55, s56
    s_mul_i32 s55, s55, 896
    v_mul_u32_u24 v8, 896, v8
    v_add_u32 v8, s55, v8
    v_lshl_add_u32 v10, v9, 4, v8
    v_lshl_add_u32 v11, v14, 4, v8
    v_add_u32 v12, {2*6144}, v10
    v_add_u32 v13, {3*6144}, v11
    v_add_u32 v11, {6144}, v11
    s_lshl_b32 s55, s{sG}, 13
    s_mul_i32 s56, s{sG}, 3072
    s_add_u32 s56, s56, 32768
    """)
    def dma_x(slot, half):
        for q in range(4): a(f"buffer_load_dwordx4 v{10+q}, {X_SRD}, s57 offen offset:{q*1024} {SCIN} lds" if not opt("nox") else f"buffer_load_dwordx4 v3, {X_SRD}, 0 offen offset:{q*1024} {SCIN} lds")
    def dma_chunk(i, waddr=None):
        slot = (i % 3) * P1_SLOT
        a(f"""
        s_lshl_b32 s57, s54, 7
        s_add_u32 m0, s55, {slot}
        s_mul_i32 s58, s54, {64*2688}
        """)
        if waddr and opt("fine"): stamp(10)
        dma_x(slot, 0)
        if waddr and opt("fine"): stamp(11)
        if waddr: waddr()
        a(f"""
        s_add_u32 m0, s56, {slot}
        s_add_u32 s57, s57, {32*896}
        """)
        for q in range(3): a(f"buffer_load_dwordx4 v{14+q}, {W_SRD}, s58 offen offset:{q*1024} {SCIN} lds" if not opt("now") else f"buffer_load_dwordx4 v3, {W_SRD}, 0 offen offset:{q*1024} {SCIN} lds")
        a(f"""
        s_add_u32 m0, s55, {slot+4096}
        s_add_u32 s54, s54, 1
        """)
        dma_x(slot, 1)
        a("""
        s_cmp_eq_u32 s54, 7
        s_cselect_b32 s54, 0, s54
        """)
    def waddr():
        a(f"""
        s_mul_i32 s59, s{sG}, {16*2688}
        s_mul_i32 s60, s{sH}, 56
        s_add_u32 s59, s59, s60
        """)
        for i in range(3):
            a(f"""
            v_add_u32 v8, {64*i}, v2
            v_mul_u32_u24 v9, 171, v8
            v_lshrrev_b32 v9, 11, v9      ; k_local
            v_mul_u32_u24 v17, 12, v9
            v_sub_u32 v17, v8, v17        ; rem
            v_lshrrev_b32 v18, 2, v17
            v_and_b32 v17, 3, v17
            v_mul_u32_u24 v9, 2688, v9
            v_mul_u32_u24 v18, 896, v18
            v_lshlrev_b32 v17, 4, v17
            v_add3_u32 v8, v9, v17, v18
            v_add_u32 v{14+i}, s59, v8
            """)
            if i: a(f"v_subrev_u32 v{14+i}, {1024*i}, v{14+i}")
    dma_chunk(0, waddr)
    if opt("fine"): stamp(12)
    dma_chunk(1)
    stamp(1)
    for i in range(7):
        a(f"s_waitcnt vmcnt({11 if i < 6 else 0})")
        a("s_barrier")
        if i == 0: stamp(2)
        if i <= 4: dma_chunk(i+2)
        if i == 4:
            for r in range(O, O+32): a(f"v_mov_b32 v{r}, 0")
        if i == 5: a(f"global_load_dwordx2 v[{TMP}:{TMP+1}], v7, s[18:19] {SC}")
    tag_check("L_tagl")
    stamp(3)
    a(f"""
    s_lshl_b32 s55, s{sG}, 12
    s_add_u32 s55, s55, {QST_L}
    v_add_u32 v{TMP+4}, s55, v3
    s_barrier
    """)
    for i in range(4): a(f"ds_read_b128 {vr(Q+4*i,4)}, v{TMP+4} offset:{i*1024}")
    a("s_branch L_attn")

def compute():
    FINE_DONE[0] = True
    XA = 24
    ACC = 32
    FB = 128
    a("L_compute:")
    if not opt("nopf"):
        PF = "nt" if opt("pfnt") else ("sc1" if opt("pfsc1") else "")
        a(f"""
        s_cmp_lg_u32 s{sW}, 0
        s_cbranch_scc1 L_nopf
        s_cmp_ge_u32 s23, 28
        s_cbranch_scc1 L_nopf
        s_cmp_ge_u32 s23, 16
        s_cbranch_scc1 L_pfw
        s_and_b32 s55, s{sJ}, 4
        s_lshl_b32 s55, s55, 2
        s_add_u32 s55, s55, s23
        s_mul_i32 s55, s55, {64*896}
        v_mul_u32_u24 v8, 896, v2
        """)
        for c in range(7): a(f"buffer_load_dword v{176+c}, v8, {X_SRD}, s55 offen offset:{c*128} {PF}")
        a(f"""
        s_branch L_nopf
        L_pfw:
        s_sub_u32 s55, s23, 16
        s_lshl_b32 s55, s55, 6
        v_add_u32 v8, s55, v2            ; q
        v_mul_u32_u24 v9, 2731, v8
        v_lshrrev_b32 v9, 15, v9         ; q/12
        v_mul_u32_u24 v10, 12, v9
        v_sub_u32 v10, v8, v10
        v_lshrrev_b32 v11, 2, v10
        v_and_b32 v10, 3, v10
        v_mul_u32_u24 v9, 2688, v9
        v_mul_u32_u24 v11, 896, v11
        v_lshlrev_b32 v10, 7, v10
        v_add3_u32 v8, v9, v10, v11
        s_and_b32 s55, s22, 1
        s_mul_i32 s55, s55, 384
        """)
        for c in range(7):
            a(f"buffer_load_dword v{176+c}, v8, {W_SRD}, s55 offen {PF}")
            a(f"s_add_u32 s55, s55, {64*2688}")
        a("L_nopf:")
    a(f"""
    s_cmp_lg_u32 s2, 0
    s_cbranch_scc1 L_notag
    s_cmp_lg_u32 s{sW}, 0
    s_cbranch_scc1 L_notag
    s_memrealtime s[60:61]
    s_waitcnt lgkmcnt(0)
    s_or_b32 s60, s60, 1
    v_mov_b32 v18, s60
    v_mov_b32 v19, s61
    s_mov_b64 exec, 1
    global_store_dwordx2 v7, v[18:19], s[18:19] {SC}
    s_mov_b64 exec, -1
    L_notag:
    v_and_b32 v8, 31, v2          ; m
    v_lshrrev_b32 v9, 5, v2       ; hh
    v_bfe_u32 v10, v2, 1, 3       ; z
    v_xor_b32 v10, v9, v10
    s_lshl_b32 s55, s{sG}, 13
    v_lshlrev_b32 v11, 7, v8
    v_add_u32 v11, s55, v11
    v_lshl_add_u32 v{XA}, v10, 4, v11
    v_xor_b32 v12, 2, v10
    v_lshl_add_u32 v{XA+1}, v12, 4, v11
    v_xor_b32 v12, 4, v10
    v_lshl_add_u32 v{XA+2}, v12, 4, v11
    v_xor_b32 v12, 6, v10
    v_lshl_add_u32 v{XA+3}, v12, 4, v11
    v_bfe_u32 v10, v2, 2, 2
    v_lshl_add_u32 v10, v9, 3, v10
    v_mul_u32_u24 v10, 192, v10
    v_bfe_u32 v11, v2, 4, 1
    v_lshl_add_u32 v10, v11, 5, v10
    v_and_b32 v11, 3, v2
    v_lshl_add_u32 v10, v11, 3, v10
    v_add_u32 v{XA+4}, 32768, v10
    v_and_b32 v29, 0x33, v2
    v_bfe_u32 v10, v2, 2, 1
    v_bfe_u32 v11, v2, 3, 1
    v_lshl_or_b32 v29, v10, 3, v29
    v_lshl_or_b32 v29, v11, 2, v29
    v_lshlrev_b32 v29, 4, v29     ; swap23(lane)*16
    v_cmp_gt_u32 s[56:57], 28, v8
    v_cmp_eq_u32 s[58:59], 28, v8
    v_mov_b32 v30, 0x3f803f80
    v_mov_b32 v31, 0x00003f80
    v_cndmask_b32 v1, 0, v30, s[58:59]
    s_lshl_b32 s55, s{sPAIR}, 6
    s_lshl_b32 s60, s{sJ}, 3
    s_add_u32 s55, s55, s60
    s_lshl_b32 s60, s{sG}, 1
    s_add_u32 s55, s55, s60
    s_lshl_b32 s55, s55, 12
    s_lshl_b32 s60, s{sG}, 13
    s_add_u32 s60, s60, {RING0}
    v_add_u32 v168, s60, v29
    v_add_u32 v169, s60, v3
    s_lshl_b32 s60, s{sG}, 12
    s_add_u32 s60, s60, {QST_L}
    v_add_u32 v170, s60, v3
    """)
    def reads(t):
        c, s = divmod(t, 4)
        b = FB + 20*(t & 1)
        R = [f"ds_read_b128 {vr(b,4)}, v{XA+s}"]
        for seg in (1, 2, 0):
            for rd in range(2):
                R.append(f"ds_read_b64_tr_b16 {vr(b+8+4*seg+2*rd,2)}, v{XA+4} offset:{(16*s+4*rd)*192+seg*64}")
        R.insert(5, f"ds_read_b128 {vr(b+4,4)}, v{XA+s} offset:4096")
        return R
    def advance(c):
        d = P1_SLOT if (c+1) % 3 else -2*P1_SLOT
        L = []
        for i in range(5):
            L.append(f"v_add_u32 v{XA+i}, {d & 0xffffffff}, v{XA+i}")
        return L
    stamp(1)
    a("s_barrier")
    stamp(2)
    for r in reads(0): a(r)
    for t in range(28):
        c, s = divmod(t, 4)
        b = FB + 20*(t & 1)
        M = []
        for i in range(2):
            x = vr(b+4*i, 4); w = lambda seg: vr(b+8+4*seg, 4)
            A = ACC + 48*i
            cin = lambda r: ("0" if t == 0 else vr(r, 16))
            M += [f"v_mfma_f32_32x32x16_bf16 {vr(A+16,16)}, {w(1)}, {x}, {cin(A+16)}",
                  f"v_mfma_f32_32x32x16_bf16 {vr(A+32,16)}, {x}, {w(2)}, {cin(A+32)}",
                  f"v_mfma_f32_32x32x16_bf16 {vr(A,16)}, {w(0)}, {x}, {cin(A)}"]
        if t == 27: M = [M[0], M[1], M[3], M[4], M[2], M[5]]
        R = reads(t+1) if t < 27 else []
        a("s_waitcnt lgkmcnt(0)")
        if s == 3 and c < 6:
            a(M[0])
            for l in advance(c): a(l)
            a(M[1]); a("s_barrier")
            for m in range(2, 6):
                for r in R[2*(m-2):2*(m-2)+2]: a(r)
                a(M[m])
        else:
            for m in range(6):
                a(M[m])
                for r in R[2*m:2*m+2]: a(r)
        if t == 17: a(f"global_load_dwordx2 v[{TMP+10+2}:{TMP+10+3}], v7, s[18:19] {SC}")
    stamp(3)
    a(f"""
    v_cmp_gt_u32 vcc, 32, v2
    s_mov_b32 s61, {hex(f2u(CSCALE))}
    s_nop 4
    """)
    PK = 128
    for i in range(2):
        A = ACC + 48*i
        P = PK + 16*i
        for k in range(8): a(f"v_cvt_pk_bf16_f32 v{P+k}, v{A+16+2*k}, v{A+16+2*k+1}")
        a(f"v_cndmask_b32 v{P+6}, v30, v{P+6}, vcc")
        a(f"v_cndmask_b32 v{P+7}, v31, v{P+7}, vcc")
        a(f"buffer_store_dwordx4 {vr(P,4)}, v29, {WS_SRD}, s55 offen {SC}")
        a(f"buffer_store_dwordx4 {vr(P+4,4)}, v29, {WS_SRD}, s55 offen offset:1024 {SC}")
        for k in range(8): a(f"v_cvt_pk_bf16_f32 v{P+8+k}, v{A+32+2*k}, v{A+32+2*k+1}")
        for k in range(8): a(f"v_cndmask_b32 v{P+8+k}, v1, v{P+8+k}, s[56:57]")
        a(f"buffer_store_dwordx4 {vr(P+8,4)}, v3, {WS_SRD}, s55 offen offset:2048 {SC}")
        a(f"buffer_store_dwordx4 {vr(P+12,4)}, v3, {WS_SRD}, s55 offen offset:3072 {SC}")
        if i == 0: a("s_add_u32 s55, s55, 4096")
    for i in range(2):
        P = PK + 16*i
        a(f"ds_write_b128 v168, {vr(P,4)} offset:{4096*i}")
        a(f"ds_write_b128 v168, {vr(P+4,4)} offset:{4096*i+1024}")
        a(f"ds_write_b128 v169, {vr(P+8,4)} offset:{4096*i+2048}")
        a(f"ds_write_b128 v169, {vr(P+12,4)} offset:{4096*i+3072}")
    for i in range(2):
        A = ACC + 48*i
        for k in range(16): a(f"v_mul_f32 v{A+k}, s61, v{A+k}")
        for k in range(8): a(f"v_cvt_pk_bf16_f32 v{Q+8*i+k}, v{A+2*k}, v{A+2*k+1}")
        a(f"v_cndmask_b32 v{Q+8*i+6}, 0, v{Q+8*i+6}, vcc")
        a(f"v_cndmask_b32 v{Q+8*i+7}, 0, v{Q+8*i+7}, vcc")
        a(f"ds_write_b128 v170, {vr(Q+8*i,4)} offset:{2048*i}")
        a(f"ds_write_b128 v170, {vr(Q+8*i+4,4)} offset:{2048*i+1024}")
    for r in range(O, O+32): a(f"v_mov_b32 v{r}, 0")
    a(f"""
    s_waitcnt vmcnt(8)
    v_mov_b32 v{TMP}, v{TMP+12}
    v_mov_b32 v{TMP+1}, v{TMP+13}
    s_nop 0
    """)
    tag_check("L_tagc")
    a("""
    s_waitcnt lgkmcnt(0)
    s_barrier
    """)

def unit(u, first_stage=False, hooks=None):
    t = u >> 1
    cur = S + 16*(u & 3); nxt = S + 16*((u+1) & 3); prv = S + 16*((u-1) & 3)
    tn = (u+1) >> 1; subn = (u+1) & 1
    tp = (u-1) >> 1; subp = (u-1) & 1
    kf = KF + 8*(tn & 1); vf = VF + 8*(tp & 1)
    R = []
    if (u & 1) == 0:
        kb = KF + 8*((t+1) & 1); vb = VF + 8*(t & 1)
        if t < 3:
            R.append(f"ds_read_b128 {vr(kb,4)}, v{VA} offset:{(t+1)*4096}")
            R.append(f"ds_read_b128 {vr(kb+4,4)}, v{VA} offset:{(t+1)*4096+1024}")
        elif not first_stage:
            R.append(f"ds_read_b128 {vr(kb,4)}, v{VB}")
            R.append(f"ds_read_b128 {vr(kb+4,4)}, v{VB} offset:1024")
        R.append(f"ds_read_b128 {vr(vb,4)}, v{VA} offset:{t*4096+2048}")
        R.append(f"ds_read_b128 {vr(vb+4,4)}, v{VA} offset:{t*4096+3072}")
    else:
        a("s_waitcnt lgkmcnt(0)")
    if opt("bunch"):
        for r in R: a(r)
    qn = Q + 8*subn; op = O + 16*subp
    M = [f"v_mfma_f32_32x32x16_bf16 {vr(nxt,16)}, {vr(kf,4)}, {vr(qn,4)}, 0",
         f"v_mfma_f32_32x32x16_bf16 {vr(nxt,16)}, {vr(kf+4,4)}, {vr(qn+4,4)}, {vr(nxt,16)}",
         f"v_smfmac_f32_32x32x32_bf16 {vr(op,16)}, {vr(vf,4)}, {vr(prv,8)}, v{IDX}",
         f"v_smfmac_f32_32x32x32_bf16 {vr(op,16)}, {vr(vf+4,4)}, {vr(prv+8,8)}, v{IDX}"]
    if first_stage and u == 0: M[2] = M[3] = None
    if first_stage and u == 7: M[0] = M[1] = None
    for m in range(4):
        if M[m]: a(M[m])
        for e in range(4):
            a(f"v_exp_f32 v{cur+4*m+e}, v{cur+4*m+e}")
            if e == 1 and m < len(R) and not opt("bunch"): a(R[m])

def kv_dma(m0expr):
    a(m0expr)
    for q in range(4): a(f"buffer_load_dwordx4 v3, {WS_SRD}, s57 offen offset:{q*1024} {SC} lds")

def next_chunk():
    a(f"""
    s_add_u32 s56, s56, 1
    s_and_b32 s56, s56, 7
    s_lshl_b32 s57, s56, 15
    s_add_u32 s57, s57, s55
    """)

def attention():
    a("L_attn:")
    a(f"""
    v_mov_b32 v{IDX}, 0xdddddddd
    s_lshl_b32 s58, s{sKH}, 14
    s_add_u32 s58, s58, {RING0}
    v_add_u32 v{VA}, s58, v3
    v_add_u32 v{VB}, {SLOT}, v{VA}
    ds_read_b128 {vr(KF,4)}, v{VA}
    ds_read_b128 {vr(KF+4,4)}, v{VA} offset:1024
    s_lshl_b32 s55, s{sPAIR}, 6
    s_add_u32 s55, s55, s{sW}
    s_lshl_b32 s55, s55, 12
    s_mov_b32 s56, s{sJ}
    s_lshl_b32 s59, s{sW}, 12
    s_add_u32 s59, s59, {RING0}
    s_lshl_b32 s60, s{sPAIR}, 8
    s_add_u32 s60, s60, {FL_OFF}
    s_lshl_b32 s61, s{sG}, 6
    s_add_u32 s61, s61, s60
    s_lshl_b32 s62, s{sJ}, 3
    s_add_u32 s61, s61, s62
    s_lshr_b32 s62, s{sW}, 1
    s_lshl_b32 s62, s62, 6
    s_add_u32 s60, s60, s62
    v_lshlrev_b32 v{TMP+4}, 3, v2
    s_mul_i32 s62, s23, 37
    s_lshr_b32 s62, s62, 8                ; r/7
    s_mul_i32 s63, s62, 7
    s_sub_u32 s63, s23, s63               ; ct
    s_lshl_b32 s22, s22, 2
    s_add_u32 s22, s22, s62
    v_lshrrev_b32 v{TMP+5}, 3, v2
    v_and_b32 v{TMP+6}, 7, v2
    v_bfe_u32 v{TMP+7}, v2, 4, 1
    v_lshlrev_b32 v{TMP+7}, 2, v{TMP+7}
    v_xor_b32 v{TMP+6}, v{TMP+6}, v{TMP+7}
    v_mul_u32_u24 v{TMP+5}, 896, v{TMP+5}
    v_lshl_add_u32 v{TMP+5}, v{TMP+6}, 4, v{TMP+5}
    s_mul_i32 s62, s{sW}, {8*896}
    s_lshl_b32 s68, s63, 7
    s_add_u32 s62, s62, s68
    v_add_u32 v{TMP+5}, s62, v{TMP+5}
    s_waitcnt lgkmcnt(0)
    v_mfma_f32_32x32x16_bf16 {vr(S,16)}, {vr(KF,4)}, {vr(Q,4)}, 0
    v_mfma_f32_32x32x16_bf16 {vr(S,16)}, {vr(KF+4,4)}, {vr(Q+4,4)}, {vr(S,16)}
    s_nop 15
    """)
    stamp(4)
    for u in range(8):
        unit(u, first_stage=True)
        if u == 1:
            a(f"""
            s_cmp_lg_u32 s{sKH}, 0
            s_cbranch_scc1 L_noflag
            s_waitcnt vmcnt(0)
            """)
            flag_store("s61")
            a("L_noflag:")
        if u == 3:
            poll_issue(TMP+4, "s60")
        if u == 5:
            stamp(5)
            poll_check("L_kvp", TMP+4, "s60")
            stamp(6)
            next_chunk()
            kv_dma(f"s_add_u32 m0, s59, {SLOT}\ns_nop 0")
            next_chunk()
            kv_dma(f"s_add_u32 m0, s59, {2*SLOT}\ns_nop 0")
    a(f"""
    s_mov_b32 s68, 1                ; stage
    s_mov_b32 s69, 0
    s_mov_b32 s62, 0
    s_lshl_b32 s54, s{sW}, 10
    v_mov_b32 v{VA}, v{VB}
    v_add_u32 v{VB}, {SLOT}, v{VA}
    s_waitcnt vmcnt(4)
    s_barrier
    ds_read_b128 {vr(KF,4)}, v{VA}
    ds_read_b128 {vr(KF+4,4)}, v{VA} offset:1024
    s_waitcnt lgkmcnt(0)
    v_mfma_f32_32x32x16_bf16 {vr(S,16)}, {vr(KF,4)}, {vr(Q,4)}, 0
    v_mfma_f32_32x32x16_bf16 {vr(S,16)}, {vr(KF+4,4)}, {vr(Q+4,4)}, {vr(S,16)}
    s_nop 15
    """)
    stamp(7)
    a(".p2align 6")
    a("L_loop:")
    for u in range(8):
        if opt("prio") and (u & 1) == 0: a(f"s_setprio {[2,1,0,3][u//2]}")
        if u == 6:
            a(f"""
            s_waitcnt vmcnt(0)
            s_barrier
            s_mov_b32 m0, s54
            s_add_u32 s54, s54, 8192
            buffer_load_dwordx4 v{TMP+5}, {WO_SRD}, s62 offen {SCIN} lds
            s_add_u32 s62, s62, {64*896}
            s_cmp_gt_u32 s68, 5
            s_cbranch_scc1 L_nodma
            """)
            next_chunk()
            kv_dma("s_add_u32 m0, s59, s69\ns_nop 0")
            a("L_nodma:")
        unit(u)
    a(f"""
    v_mov_b32 v{VA}, v{VB}
    s_add_u32 s53, s69, s58
    v_add_u32 v{VB}, s53, v3
    s_add_u32 s69, s69, {SLOT}
    s_cmp_eq_u32 s69, {3*SLOT}
    s_cselect_b32 s69, 0, s69
    s_add_u32 s68, s68, 1
    s_cmp_lt_u32 s68, 8
    s_cbranch_scc1 L_loop
    """)
    if opt("prio"): a("s_setprio 0")
    stamp(8)
    EX = RING0 + 2*SLOT
    a(f"""
    v_smfmac_f32_32x32x32_bf16 {vr(O+16,16)}, {vr(VF+8,4)}, {vr(S+48,8)}, v{IDX}
    v_smfmac_f32_32x32x32_bf16 {vr(O+16,16)}, {vr(VF+12,4)}, {vr(S+56,8)}, v{IDX}
    s_lshl_b32 s53, s{sW}, 12
    s_add_u32 s54, s53, {EX}
    v_add_u32 v{VA}, s54, v3
    s_xor_b32 s53, s53, 16384
    s_add_u32 s53, s53, {EX}
    v_add_u32 v{VB}, s53, v3
    v_lshlrev_b32 v{TMP+6}, 3, v2
    v_mov_b32 v{TMP+8}, 0
    v_mov_b32 v{TMP+9}, 0
    ds_write_b64 v{TMP+6}, v[{TMP+8}:{TMP+9}] offset:57344
    s_cmp_eq_u32 s{sKH}, 0
    s_nop 4
    s_cbranch_scc1 L_kh0
    """)
    for q in range(4): a(f"ds_write_b128 v{VA}, {vr(O+4*q,4)} offset:{q*1024}")
    for r in range(16): a(f"v_mov_b32 v{S+r}, v{O+16+r}")
    for r in range(8): a(f"v_mov_b32 v{Q+r}, v{Q+8+r}")
    a("s_branch L_join")
    a("L_kh0:")
    for q in range(4): a(f"ds_write_b128 v{VA}, {vr(O+16+4*q,4)} offset:{q*1024}")
    for r in range(16): a(f"v_mov_b32 v{S+r}, v{O+r}")
    a("L_join:")
    a("s_waitcnt vmcnt(0) lgkmcnt(0)")
    a("s_barrier")
    for q in range(4): a(f"ds_read_b128 {vr(S+16+4*q,4)}, v{VB} offset:{q*1024}")
    a(f"""
    s_lshl_b32 s53, s{sB}, 6
    s_lshl_b32 s54, s{sJ}, 3
    s_add_u32 s53, s53, s54
    s_lshl_b32 s54, s{sG}, 1
    s_add_u32 s53, s53, s54
    s_add_u32 s53, s53, s{sKH}       ; b*64 + tile
    s_lshl_b32 s53, s53, 4
    s_add_u32 s53, s53, s{sH}
    s_lshl_b32 s61, s53, 3
    s_add_u32 s61, s61, {FO_OFF}
    s_lshl_b32 s60, s53, 11
    s_add_u32 s60, s60, {OF_OFF}
    s_mov_b32 s54, 0x2f800000        ; 2^-32
    s_mov_b32 s62, 0x57800000        ; 2^48
    s_waitcnt lgkmcnt(0)
    """)
    for r in range(16): a(f"v_add_f32 v{S+r}, v{S+r}, v{S+16+r}")
    a("L_norm:")
    a(f"""
    v_mov_b32 v{S+32}, v{S+12}
    v_mov_b32 v{S+33}, v{S+12}
    s_nop 1
    v_permlane32_swap_b32 v{S+32}, v{S+33}
    s_nop 1
    v_rcp_f32 v{S+34}, v{S+33}
    v_cmp_ge_f32 vcc, v{S+33}, s54
    v_cmp_le_f32 s[56:57], v{S+33}, s62
    s_nop 1
    s_and_b64 s[56:57], s[56:57], vcc
    s_cmp_eq_u64 s[56:57], -1
    s_cbranch_scc0 L_fallback
    L_norm2:
    v_cmp_gt_u32 vcc, 32, v2
    """)
    for r in range(16): a(f"v_mul_f32 v{S+r}, v{S+r}, v{S+34}")
    for i in range(8): a(f"v_cvt_pk_bf16_f32 v{S+16+i}, v{S+2*i}, v{S+2*i+1}")
    a(f"v_cndmask_b32 v{S+22}, 0, v{S+22}, vcc")
    a(f"v_cndmask_b32 v{S+23}, 0, v{S+23}, vcc")
    a(f"buffer_store_dwordx4 {vr(S+16,4)}, v3, {WS_SRD}, s60 offen {SC}")
    a(f"buffer_store_dwordx4 {vr(S+20,4)}, v3, {WS_SRD}, s60 offen offset:1024 {SC}")

def p3():
    OFR = 64; ACC = 16; WF = 128
    a(f"""
    s_lshl_b32 s12, s22, 2
    s_add_u32 s12, s12, s{sG}
    s_lshl_b32 s54, s12, 7
    s_lshl_b32 s56, s{sKH}, 6
    s_add_u32 s54, s54, s56
    s_add_u32 s60, s54, {FO_OFF}
    s_lshl_b32 s55, s12, 15
    s_lshl_b32 s56, s{sKH}, 14
    s_add_u32 s55, s55, s56
    s_add_u32 s55, s55, {OF_OFF}
    v_lshrrev_b32 v5, 5, v2       ; hh
    v_bfe_u32 v6, v2, 2, 2        ; r
    v_lshl_add_u32 v8, v5, 2, v6
    v_lshlrev_b32 v8, 7, v8
    v_bfe_u32 v9, v2, 4, 1
    v_lshl_add_u32 v8, v9, 5, v8
    v_and_b32 v9, 3, v2
    v_lshl_add_u32 v8, v9, 3, v8
    v_bfe_u32 v9, v2, 3, 1
    v_lshl_add_u32 v8, v9, 6, v8
    s_mul_i32 s56, s{sKH}, {8*28*128}
    v_add_u32 v8, s56, v8
    s_waitcnt vmcnt(0)
    """)
    flag_store("s61")
    stamp(9)
    a(f"""
    s_cmp_ge_u32 s23, 28
    s_cbranch_scc1 L_fin
    """)
    poll_issue(TMP+4, "s60")
    for i in range(8):
        a(f"""
        s_add_u32 s56, s63, {i}
        s_and_b32 s56, s56, 7
        s_lshl_b32 s{4+i}, s56, 11
        s_add_u32 s{4+i}, s{4+i}, s55
        s_mul_i32 s56, s56, {28*128}
        v_add_u32 v{144+2*i}, s56, v8
        v_xor_b32 v{145+2*i}, 64, v{144+2*i}
        """)
    poll_check("L_op", TMP+4, "s60")
    stamp(10)
    for t in range(16):
        a(f"buffer_load_dwordx4 {vr(OFR+4*t,4)}, v3, {WS_SRD}, s{4+t//2} offen offset:{(t%2)*1024} {SC}")
    def rd(t):
        i, s = divmod(t, 2)
        for ctile in range(2):
            for eh in range(2):
                a(f"ds_read_b64_tr_b16 {vr(WF+8*(t&1)+4*ctile+2*eh,2)}, v{144+2*i+ctile} offset:{(16*s+8*eh)*128}")
    rd(0)
    for t in range(16):
        if t < 15: rd(t+1)
        a(f"s_waitcnt vmcnt({15-t}) lgkmcnt({4 if t < 15 else 0})")
        for ctile in range(2):
            acc = vr(ACC+16*ctile, 16)
            a(f"v_mfma_f32_32x32x16_bf16 {acc}, {vr(WF+8*(t&1)+4*ctile,4)}, {vr(OFR+4*t,4)}, {'0' if t == 0 else acc}")
    stamp(11)
    EX = RING0
    a(f"""
    s_lshl_b32 s54, s{sW}, 12
    s_add_u32 s56, s54, {EX}
    v_add_u32 v{VA+100}, s56, v3
    s_xor_b32 s54, s54, 16384
    s_add_u32 s54, s54, {EX}
    v_add_u32 v{VB+100}, s54, v3
    s_and_b32 s53, s12, 63
    s_lshl_b32 s53, s53, 5
    v_and_b32 v6, 31, v2
    v_add_u32 v6, s53, v6
    v_mul_u32_u24 v6, 1792, v6
    v_lshl_add_u32 v6, v5, 4, v6
    s_mul_i32 s54, s{sB}, 896
    s_lshl_b32 s56, s63, 7
    s_add_u32 s54, s54, s56
    s_lshl_b32 s56, s{sKH}, 6
    s_add_u32 s54, s54, s56
    s_cmp_eq_u32 s{sKH}, 0
    s_cbranch_scc1 L_p3kh0
    """)
    for q in range(4): a(f"ds_write_b128 v{VA+100}, {vr(ACC+4*q,4)} offset:{q*1024}")
    for r in range(16): a(f"v_mov_b32 v{64+r}, v{ACC+16+r}")
    a("s_branch L_p3join")
    a("L_p3kh0:")
    for q in range(4): a(f"ds_write_b128 v{VA+100}, {vr(ACC+16+4*q,4)} offset:{q*1024}")
    for r in range(16): a(f"v_mov_b32 v{64+r}, v{ACC+r}")
    a("L_p3join:")
    a("s_waitcnt lgkmcnt(0)")
    a("s_barrier")
    for q in range(4): a(f"ds_read_b128 {vr(80+4*q,4)}, v{VB+100} offset:{q*1024}")
    a("s_waitcnt lgkmcnt(0)")
    for r in range(16): a(f"v_add_f32 v{64+r}, v{64+r}, v{80+r}")
    P = 96
    for i in range(8): a(f"v_cvt_pk_bf16_f32 v{P+i}, v{64+2*i}, v{64+2*i+1}")
    a("s_nop 1")
    for gp in range(2):
        a(f"v_permlane32_swap_b32 v{P+4*gp}, v{P+4*gp+2}")
        a(f"v_permlane32_swap_b32 v{P+4*gp+1}, v{P+4*gp+3}")
    for gp in range(2):
        a(f"buffer_store_dwordx4 {vr(P+4*gp,4)}, v6, {OUT_SRD}, s54 offen offset:{gp*32}")
    a("L_fin:")
    if STAMP: a("s_waitcnt vmcnt(0)")
    stamp(12)
    stamp_flush(13)
    a("L_end:")
    a("s_endpgm")

def fallback():
    T = S + 16
    K0 = KF; M = S + 35
    a("L_fallback:")
    a(f"""
    s_lshl_b32 s58, s{sPAIR}, 18
    s_mov_b32 s59, 64
    v_mov_b32 v{M}, 0xff800000
    L_fb1:
    buffer_load_dwordx4 {vr(K0,4)}, v3, {WS_SRD}, s58 offen {SC}
    buffer_load_dwordx4 {vr(K0+4,4)}, v3, {WS_SRD}, s58 offen offset:1024 {SC}
    s_waitcnt vmcnt(0)
    v_mfma_f32_32x32x16_bf16 {vr(T,16)}, {vr(K0,4)}, {vr(Q,4)}, 0
    v_mfma_f32_32x32x16_bf16 {vr(T,16)}, {vr(K0+4,4)}, {vr(Q+4,4)}, {vr(T,16)}
    s_add_u32 s58, s58, 4096
    s_sub_u32 s59, s59, 1
    s_nop 15
    """)
    for i in range(8): a(f"v_max3_f32 v{M}, v{M}, v{T+2*i}, v{T+2*i+1}")
    a(f"""
    s_cmp_lg_u32 s59, 0
    s_cbranch_scc1 L_fb1
    v_mov_b32 v{M+1}, v{M}
    s_nop 1
    v_permlane32_swap_b32 v{M}, v{M+1}
    s_nop 1
    v_max_f32 v{M}, v{M}, v{M+1}
    v_sub_f32 v{M}, 0, v{M}                ; -max
    v_and_b32 v{M+1}, 0xffff0000, v{M}     ; hi
    v_sub_f32 v{M+2}, v{M}, v{M+1}
    v_and_b32 v{M+3}, 0xffff0000, v{M+2}   ; mid
    v_sub_f32 v{M+2}, v{M+2}, v{M+3}       ; lo
    v_lshrrev_b32 v{M+1}, 16, v{M+1}
    v_or_b32 v{M+1}, v{M+1}, v{M+3}
    v_lshrrev_b32 v{M+2}, 16, v{M+2}
    v_cmp_gt_u32 vcc, 32, v2
    s_lshl_b32 s58, s{sPAIR}, 18
    s_mov_b32 s59, 64
    v_cndmask_b32 v{Q+6}, v{M+1}, v{Q+6}, vcc
    v_cndmask_b32 v{Q+7}, v{M+2}, v{Q+7}, vcc
    """)
    for r in range(16): a(f"v_mov_b32 v{S+r}, 0")
    a(f"""
    L_fb2:
    buffer_load_dwordx4 {vr(K0,4)}, v3, {WS_SRD}, s58 offen {SC}
    buffer_load_dwordx4 {vr(K0+4,4)}, v3, {WS_SRD}, s58 offen offset:1024 {SC}
    buffer_load_dwordx4 {vr(K0+8,4)}, v3, {WS_SRD}, s58 offen offset:2048 {SC}
    buffer_load_dwordx4 {vr(K0+12,4)}, v3, {WS_SRD}, s58 offen offset:3072 {SC}
    s_waitcnt vmcnt(0)
    v_mfma_f32_32x32x16_bf16 {vr(T,16)}, {vr(K0,4)}, {vr(Q,4)}, 0
    v_mfma_f32_32x32x16_bf16 {vr(T,16)}, {vr(K0+4,4)}, {vr(Q+4,4)}, {vr(T,16)}
    s_add_u32 s58, s58, 4096
    s_sub_u32 s59, s59, 1
    s_nop 15
    """)
    for i in range(16): a(f"v_exp_f32 v{T+i}, v{T+i}")
    a(f"""
    s_nop 1
    v_smfmac_f32_32x32x32_bf16 {vr(S,16)}, {vr(K0+8,4)}, {vr(T,8)}, v{IDX}
    v_smfmac_f32_32x32x32_bf16 {vr(S,16)}, {vr(K0+12,4)}, {vr(T+8,8)}, v{IDX}
    s_cmp_lg_u32 s59, 0
    s_cbranch_scc1 L_fb2
    s_nop 15
    v_mov_b32 v{S+32}, v{S+12}
    v_mov_b32 v{S+33}, v{S+12}
    s_nop 1
    v_permlane32_swap_b32 v{S+32}, v{S+33}
    s_nop 1
    v_rcp_f32 v{S+34}, v{S+33}
    s_branch L_norm2
    """)

prologue(); loader(); compute(); attention(); p3(); fallback()
a(kdesc(N, 184, 102))
hdr = f"; @launch grid=(256,1,1) block=(512,1,1) lds={LDS_BYTES}\n" + '.amdgcn_target "amdgcn-amd-amdhsa--gfx950"\n'
open(sys.argv[1], "w").write(hdr + a.text())
```

```python
import sys, struct
from asmlib import *

KV_OFF = 0
OF_OFF = 8 << 20
FL_OFF = 12 << 20
FO_OFF = (12 << 20) + 65536
WS_USED = 13 << 20
ST_OFF = 32 << 20
CSCALE = 28 ** -0.5 * 1.4426950408889634
def f2u(x): return struct.unpack("<I", struct.pack("<f", x))[0]
ARGS = sys.argv[2:]
def opt(name): return ("--" + name) in ARGS
STAMP = opt("stamp")
N = "concat_heads__softmax_full_mha__mha_block__prompt_kernel"
SC = "sc1"
SCIN = "" if opt("plainin") else ("nt" if opt("ntin") else "sc1")
SPIN_MAX = 100000
SLEEP = int(ARGS[ARGS.index('--sleep')+1]) if opt('sleep') else 2

P1_SLOT = 45056
QST_L = 45056
RING0 = 61440
SLOT = 32768
LDS_BYTES = RING0 + 3 * SLOT

a = Asm()
FINE_DONE = [False]
def stamp(idx):
    if not STAMP: return
    if opt("fine") and idx >= 9 and FINE_DONE[0]: return
    a(f"""
    s_memtime s[64:65]
    s_memrealtime s[66:67]
    s_waitcnt lgkmcnt(0)
    s_mov_b32 s{70+2*idx}, s64
    s_mov_b32 s{71+2*idx}, s66
    """)
def stamp_flush(n):
    if not STAMP: return
    a(f"""
    s_lshl_b32 s66, s2, 4
    s_add_u32 s66, s66, s27
    s_lshl_b32 s66, s66, 7
    s_add_u32 s66, s66, {ST_OFF}
    s_add_u32 s64, s20, s66
    s_addc_u32 s65, s21, 0
    v_mov_b32 v0, 0
    s_mov_b64 exec, 1
    """)
    for i in range(n):
        a(f"""
        v_mov_b32 v4, s{70+2*i}
        v_mov_b32 v5, s{71+2*i}
        global_store_dwordx2 v0, v[4:5], s[64:65] offset:{8*i}
        s_nop 1
        """)
NSTAMP = 14

sB, sJ, sH, sW, sG, sKH, sPAIR = 24, 25, 26, 27, 48, 49, 52
X_SRD, W_SRD, WS_SRD, WO_SRD, OUT_SRD = "s[28:31]", "s[32:35]", "s[36:39]", "s[40:43]", "s[44:47]"
TAG = 50
IDX, VA, VB = 4, 5, 6
Q, O, S, KF, VF = 8, 176, 64, 128, 144
TMP = 160

def tag_check(lbl):
    a(f"""
    s_mov_b32 s53, {SPIN_MAX}
    {lbl}_chk:
    v_readfirstlane_b32 s{TAG}, v{TMP}
    v_readfirstlane_b32 s{TAG+1}, v{TMP+1}
    s_nop 1
    s_cmp_lg_u64 s[{TAG}:{TAG+1}], 0
    s_cbranch_scc1 {lbl}_ok
    s_sub_u32 s53, s53, 1
    s_cbranch_scc1 {lbl}_ok
    global_load_dwordx2 v[{TMP}:{TMP+1}], v7, s[18:19] {SC}
    s_waitcnt vmcnt(0)
    s_branch {lbl}_chk
    {lbl}_ok:
    """)

def poll_issue(vaddr, soff):
    a(f"""
    s_mov_b64 exec, 0xff
    buffer_load_dwordx2 v[{TMP}:{TMP+1}], v{vaddr}, {WS_SRD}, {soff} offen {SC}
    s_mov_b64 exec, -1
    """)
def poll_check(lbl, vaddr, soff, t0=53, t1=54):
    a(f"""
    s_mov_b32 s{t0}, {SPIN_MAX}
    {lbl}_chk:
    s_waitcnt vmcnt(0)
    v_cmp_eq_u64 vcc, s[{TAG}:{TAG+1}], v[{TMP}:{TMP+1}]
    s_nop 1
    s_and_b32 s{t1}, vcc_lo, 0xff
    s_cmp_eq_u32 s{t1}, 0xff
    s_cbranch_scc1 {lbl}_ok
    s_sub_u32 s{t0}, s{t0}, 1
    s_cbranch_scc1 {lbl}_ok
    s_sleep {SLEEP}
    """)
    poll_issue(vaddr, soff)
    a(f"""
    s_branch {lbl}_chk
    {lbl}_ok:
    """)
def flag_store(soff):
    a(f"""
    v_mov_b32 v{TMP+2}, s{TAG}
    v_mov_b32 v{TMP+3}, s{TAG+1}
    s_mov_b64 exec, 1
    buffer_store_dwordx2 v[{TMP+2}:{TMP+3}], v7, {WS_SRD}, {soff} offen {SC}
    s_mov_b64 exec, -1
    """)

def prologue():
    a(khead(N))
    a(f"""
    s_cmp_ge_u32 s2, 256
    s_cbranch_scc1 L_end
    """)
    stamp(0)
    a(f"""
    s_load_dwordx16 s[4:19], s[0:1], 0
    s_load_dwordx2 s[20:21], s[0:1], 64
    s_and_b32 s22, s2, 7          ; xcd
    s_lshr_b32 s23, s2, 3         ; r
    {"s_xor_b32 s22, s22, 4" if opt("swapb") else ""}
    s_lshr_b32 s{sB}, s22, 2
    s_bfe_u32 s25, s22, 0x10001
    s_lshl_b32 s25, s25, 2
    s_and_b32 s53, s23, 3
    s_add_u32 s{sJ}, s25, s53
    s_and_b32 s26, s22, 1
    s_lshl_b32 s26, s26, 3
    s_lshr_b32 s54, s23, 2
    s_add_u32 s{sH}, s26, s54
    s_lshl_b32 s53, s53, 1
    s_add_u32 s54, s54, s53
    s_sub_u32 s53, s54, 7
    s_cmp_ge_u32 s54, 7
    s_cselect_b32 s54, s53, s54
    s_lshl_b32 s{sPAIR}, s{sB}, 4
    s_add_u32 s{sPAIR}, s{sPAIR}, s{sH}
    v_lshrrev_b32 v1, 6, v0
    v_and_b32 v2, 63, v0          ; lane
    v_mov_b32 v7, 0
    v_readfirstlane_b32 s{sW}, v1
    v_lshlrev_b32 v3, 4, v2       ; lane*16
    s_waitcnt lgkmcnt(0)
    s_cmp_eq_u32 s{sB}, 0
    s_cselect_b32 s28, s4, s10
    s_cselect_b32 s29, s5, s11
    s_mov_b32 s30, 1835008
    s_mov_b32 s31, 0x20000
    s_cselect_b32 s32, s6, s12
    s_cselect_b32 s33, s7, s13
    s_mov_b32 s34, 1204224
    s_mov_b32 s35, 0x20000
    s_mov_b32 s36, s20
    s_mov_b32 s37, s21
    s_mov_b32 s38, {WS_USED}
    s_mov_b32 s39, 0x20000
    s_cselect_b32 s40, s8, s14
    s_cselect_b32 s41, s9, s15
    s_mov_b32 s42, 401408
    s_mov_b32 s43, 0x20000
    s_mov_b32 s44, s16
    s_mov_b32 s45, s17
    s_mov_b32 s46, 3670016
    s_mov_b32 s47, 0x20000
    s_and_b32 s{sG}, s{sW}, 3
    s_lshr_b32 s{sKH}, s{sW}, 2
    s_cmp_eq_u32 s{sKH}, 0
    s_cbranch_scc1 L_compute
    """)
    if opt("norot"): a("s_mov_b32 s54, 0")
    if opt("rot3"):
        a("""
        s_mul_i32 s53, s54, 86
        s_lshr_b32 s53, s53, 8
        s_mul_i32 s53, s53, 3
        s_sub_u32 s54, s54, s53
        """)
    if opt("rot2"): a("s_and_b32 s54, s54, 1")
    if opt("rot4"): a("s_and_b32 s54, s54, 3")

PA, WOA, EXA, EXB, P3A, OUTA = 208, 209, 210, 211, 212, 213
def setup():
    EX = RING0 + 2*SLOT
    a(f"""
    v_mov_b32 v{IDX}, 0xdddddddd
    s_lshl_b32 s7, s{sKH}, 14
    s_add_u32 s7, s7, {RING0}
    v_add_u32 v{VA}, s7, v3
    v_add_u32 v{VB}, {SLOT}, v{VA}
    s_lshl_b32 s4, s{sPAIR}, 6
    s_add_u32 s4, s4, s{sW}
    s_lshl_b32 s4, s4, 12
    s_mov_b32 s5, s{sJ}
    s_lshl_b32 s8, s{sW}, 12
    s_add_u32 s8, s8, {RING0}
    s_lshl_b32 s9, s{sPAIR}, 8
    s_add_u32 s9, s9, {FL_OFF}
    s_lshl_b32 s10, s{sG}, 6
    s_add_u32 s10, s10, s9
    s_lshl_b32 s62, s{sJ}, 3
    s_add_u32 s10, s10, s62
    s_lshr_b32 s62, s{sW}, 1
    s_lshl_b32 s62, s62, 6
    s_add_u32 s9, s9, s62
    v_lshlrev_b32 v{PA}, 3, v2
    s_mul_i32 s62, s23, 37
    s_lshr_b32 s62, s62, 8                ; r/7
    s_mul_i32 s3, s62, 7
    s_sub_u32 s3, s23, s3                 ; ct
    s_lshl_b32 s12, s22, 2
    s_add_u32 s12, s12, s62               ; rowgrp
    s_lshl_b32 s12, s12, 2
    s_add_u32 s12, s12, s{sG}
    v_lshrrev_b32 v{WOA}, 3, v2
    v_and_b32 v{EXA}, 7, v2
    v_bfe_u32 v{EXB}, v2, 4, 1
    v_lshlrev_b32 v{EXB}, 2, v{EXB}
    v_xor_b32 v{EXA}, v{EXA}, v{EXB}
    v_mul_u32_u24 v{WOA}, 896, v{WOA}
    v_lshl_add_u32 v{WOA}, v{EXA}, 4, v{WOA}
    s_mul_i32 s62, s{sW}, {8*896}
    s_lshl_b32 s63, s3, 7
    s_add_u32 s62, s62, s63
    v_add_u32 v{WOA}, s62, v{WOA}
    s_mov_b32 s11, 0
    s_lshl_b32 s13, s{sW}, 10
    s_lshl_b32 s62, s{sW}, 12
    s_add_u32 s63, s62, {EX}
    v_add_u32 v{EXA}, s63, v3
    s_xor_b32 s62, s62, 16384
    s_add_u32 s62, s62, {EX}
    v_add_u32 v{EXB}, s62, v3
    s_lshl_b32 s62, s{sB}, 6
    s_lshl_b32 s63, s{sJ}, 3
    s_add_u32 s62, s62, s63
    s_lshl_b32 s63, s{sG}, 1
    s_add_u32 s62, s62, s63
    s_add_u32 s62, s62, s{sKH}
    s_lshl_b32 s62, s62, 4
    s_add_u32 s62, s62, s{sH}
    s_lshl_b32 s15, s62, 3
    s_add_u32 s15, s15, {FO_OFF}
    s_lshl_b32 s14, s62, 11
    s_add_u32 s14, s14, {OF_OFF}
    s_lshl_b32 s16, s12, 7
    s_lshl_b32 s62, s{sKH}, 6
    s_add_u32 s16, s16, s62
    s_add_u32 s16, s16, {FO_OFF}
    s_lshl_b32 s17, s12, 15
    s_lshl_b32 s62, s{sKH}, 14
    s_add_u32 s17, s17, s62
    s_add_u32 s17, s17, {OF_OFF}
    v_lshrrev_b32 v214, 5, v2             ; hh
    v_bfe_u32 v215, v2, 2, 2
    v_lshl_add_u32 v{P3A}, v214, 2, v215
    v_lshlrev_b32 v{P3A}, 7, v{P3A}
    v_bfe_u32 v215, v2, 4, 1
    v_lshl_add_u32 v{P3A}, v215, 5, v{P3A}
    v_and_b32 v215, 3, v2
    v_lshl_add_u32 v{P3A}, v215, 3, v{P3A}
    v_bfe_u32 v215, v2, 3, 1
    v_lshl_add_u32 v{P3A}, v215, 6, v{P3A}
    s_mul_i32 s62, s{sKH}, {8*28*128}
    v_add_u32 v{P3A}, s62, v{P3A}
    s_and_b32 s62, s12, 63
    s_lshl_b32 s62, s62, 5
    v_and_b32 v215, 31, v2
    v_add_u32 v215, s62, v215
    v_mul_u32_u24 v215, 1792, v215
    v_lshl_add_u32 v{OUTA}, v214, 4, v215
    s_mul_i32 s62, s{sB}, 896
    s_lshl_b32 s63, s3, 7
    s_add_u32 s62, s62, s63
    s_lshl_b32 s63, s{sKH}, 6
    s_add_u32 s62, s62, s63
    v_add_u32 v{OUTA}, s62, v{OUTA}
    s_mov_b32 s68, 1
    s_mov_b32 s69, 0
    """)
    for r in range(O, O+32): a(f"v_mov_b32 v{r}, 0")

def loader():
    if opt("fine"): stamp(9)
    a(f"""
    v_lshrrev_b32 v8, 3, v2       ; lane/8
    v_and_b32 v9, 7, v2
    v_lshrrev_b32 v14, 4, v2
    v_xor_b32 v9, v9, v14
    v_xor_b32 v14, 4, v9
    s_lshl_b32 s55, s{sJ}, 8
    s_lshl_b32 s56, s{sG}, 6
    s_add_u32 s55, s55, s56
    s_mul_i32 s55, s55, 896
    v_mul_u32_u24 v8, 896, v8
    v_add_u32 v8, s55, v8
    v_lshl_add_u32 v10, v9, 4, v8
    v_lshl_add_u32 v11, v14, 4, v8
    v_add_u32 v12, {2*6144}, v10
    v_add_u32 v13, {3*6144}, v11
    v_add_u32 v11, {6144}, v11
    s_lshl_b32 s55, s{sG}, 13
    s_mul_i32 s56, s{sG}, 3072
    s_add_u32 s56, s56, 32768
    """)
    def dma_x(slot, half):
        for q in range(4): a(f"buffer_load_dwordx4 v{10+q}, {X_SRD}, s57 offen offset:{q*1024} {SCIN} lds" if not opt("nox") else f"buffer_load_dwordx4 v3, {X_SRD}, 0 offen offset:{q*1024} {SCIN} lds")
    def dma_chunk(i, waddr=None):
        slot = (i % 3) * P1_SLOT
        a(f"""
        s_lshl_b32 s57, s54, 7
        s_add_u32 m0, s55, {slot}
        s_mul_i32 s58, s54, {64*2688}
        """)
        if waddr and opt("fine"): stamp(10)
        dma_x(slot, 0)
        if waddr and opt("fine"): stamp(11)
        if waddr: waddr()
        a(f"""
        s_add_u32 m0, s56, {slot}
        s_add_u32 s57, s57, {32*896}
        """)
        for q in range(3): a(f"buffer_load_dwordx4 v{14+q}, {W_SRD}, s58 offen offset:{q*1024} {SCIN} lds" if not opt("now") else f"buffer_load_dwordx4 v3, {W_SRD}, 0 offen offset:{q*1024} {SCIN} lds")
        a(f"""
        s_add_u32 m0, s55, {slot+4096}
        s_add_u32 s54, s54, 1
        """)
        dma_x(slot, 1)
        a("""
        s_cmp_eq_u32 s54, 7
        s_cselect_b32 s54, 0, s54
        """)
    def waddr():
        a(f"""
        s_mul_i32 s59, s{sG}, {16*2688}
        s_mul_i32 s60, s{sH}, 56
        s_add_u32 s59, s59, s60
        """)
        for i in range(3):
            a(f"""
            v_add_u32 v8, {64*i}, v2
            v_mul_u32_u24 v9, 171, v8
            v_lshrrev_b32 v9, 11, v9      ; k_local
            v_mul_u32_u24 v17, 12, v9
            v_sub_u32 v17, v8, v17        ; rem
            v_lshrrev_b32 v18, 2, v17
            v_and_b32 v17, 3, v17
            v_mul_u32_u24 v9, 2688, v9
            v_mul_u32_u24 v18, 896, v18
            v_lshlrev_b32 v17, 4, v17
            v_add3_u32 v8, v9, v17, v18
            v_add_u32 v{14+i}, s59, v8
            """)
            if i: a(f"v_subrev_u32 v{14+i}, {1024*i}, v{14+i}")
    dma_chunk(0, waddr)
    if opt("fine"): stamp(12)
    dma_chunk(1)
    stamp(1)
    for i in range(7):
        a(f"s_waitcnt vmcnt({11 if i < 6 else 0})")
        a("s_barrier")
        if i == 0: stamp(2)
        if i <= 4: dma_chunk(i+2)
        if i == 4: setup()
        if i == 5: a(f"global_load_dwordx2 v[{TMP}:{TMP+1}], v7, s[18:19] {SC}")
    tag_check("L_tagl")
    stamp(3)
    a(f"""
    s_lshl_b32 s55, s{sG}, 12
    s_add_u32 s55, s55, {QST_L}
    v_add_u32 v{TMP+4}, s55, v3
    s_barrier
    """)
    for i in range(4): a(f"ds_read_b128 {vr(Q+4*i,4)}, v{TMP+4} offset:{i*1024}")
    a("s_branch L_attn")

def compute():
    FINE_DONE[0] = True
    XA = 24
    ACC = 32
    FB = 128
    a("L_compute:")
    if not opt("nopf"):
        PF = "nt" if opt("pfnt") else ("sc1" if opt("pfsc1") else "")
        a(f"""
        s_cmp_lg_u32 s{sW}, 0
        s_cbranch_scc1 L_nopf
        s_cmp_ge_u32 s23, 28
        s_cbranch_scc1 L_nopf
        s_cmp_ge_u32 s23, 16
        s_cbranch_scc1 L_pfw
        s_and_b32 s55, s{sJ}, 4
        s_lshl_b32 s55, s55, 2
        s_add_u32 s55, s55, s23
        s_mul_i32 s55, s55, {64*896}
        v_mul_u32_u24 v8, 896, v2
        """)
        for c in range(7): a(f"buffer_load_dword v{208+c}, v8, {X_SRD}, s55 offen offset:{c*128} {PF}")
        a(f"""
        s_branch L_nopf
        L_pfw:
        s_sub_u32 s55, s23, 16
        s_lshl_b32 s55, s55, 6
        v_add_u32 v8, s55, v2            ; q
        v_mul_u32_u24 v9, 2731, v8
        v_lshrrev_b32 v9, 15, v9         ; q/12
        v_mul_u32_u24 v10, 12, v9
        v_sub_u32 v10, v8, v10
        v_lshrrev_b32 v11, 2, v10
        v_and_b32 v10, 3, v10
        v_mul_u32_u24 v9, 2688, v9
        v_mul_u32_u24 v11, 896, v11
        v_lshlrev_b32 v10, 7, v10
        v_add3_u32 v8, v9, v10, v11
        s_and_b32 s55, s22, 1
        s_mul_i32 s55, s55, 384
        """)
        for c in range(7):
            a(f"buffer_load_dword v{208+c}, v8, {W_SRD}, s55 offen {PF}")
            a(f"s_add_u32 s55, s55, {64*2688}")
        a("L_nopf:")
    a(f"""
    s_cmp_lg_u32 s2, 0
    s_cbranch_scc1 L_notag
    s_cmp_lg_u32 s{sW}, 0
    s_cbranch_scc1 L_notag
    s_memrealtime s[60:61]
    s_waitcnt lgkmcnt(0)
    s_or_b32 s60, s60, 1
    v_mov_b32 v18, s60
    v_mov_b32 v19, s61
    s_mov_b64 exec, 1
    global_store_dwordx2 v7, v[18:19], s[18:19] {SC}
    s_mov_b64 exec, -1
    L_notag:
    v_and_b32 v8, 31, v2          ; m
    v_lshrrev_b32 v9, 5, v2       ; hh
    v_bfe_u32 v10, v2, 1, 3       ; z
    v_xor_b32 v10, v9, v10
    s_lshl_b32 s55, s{sG}, 13
    v_lshlrev_b32 v11, 7, v8
    v_add_u32 v11, s55, v11
    v_lshl_add_u32 v{XA}, v10, 4, v11
    v_xor_b32 v12, 2, v10
    v_lshl_add_u32 v{XA+1}, v12, 4, v11
    v_xor_b32 v12, 4, v10
    v_lshl_add_u32 v{XA+2}, v12, 4, v11
    v_xor_b32 v12, 6, v10
    v_lshl_add_u32 v{XA+3}, v12, 4, v11
    v_bfe_u32 v10, v2, 2, 2
    v_lshl_add_u32 v10, v9, 3, v10
    v_mul_u32_u24 v10, 192, v10
    v_bfe_u32 v11, v2, 4, 1
    v_lshl_add_u32 v10, v11, 5, v10
    v_and_b32 v11, 3, v2
    v_lshl_add_u32 v10, v11, 3, v10
    v_add_u32 v{XA+4}, 32768, v10
    v_and_b32 v29, 0x33, v2
    v_bfe_u32 v10, v2, 2, 1
    v_bfe_u32 v11, v2, 3, 1
    v_lshl_or_b32 v29, v10, 3, v29
    v_lshl_or_b32 v29, v11, 2, v29
    v_lshlrev_b32 v29, 4, v29     ; swap23(lane)*16
    v_cmp_gt_u32 s[56:57], 28, v8
    v_cmp_eq_u32 s[58:59], 28, v8
    v_mov_b32 v30, 0x3f803f80
    v_mov_b32 v31, 0x00003f80
    v_cndmask_b32 v1, 0, v30, s[58:59]
    s_lshl_b32 s55, s{sPAIR}, 6
    s_lshl_b32 s60, s{sJ}, 3
    s_add_u32 s55, s55, s60
    s_lshl_b32 s60, s{sG}, 1
    s_add_u32 s55, s55, s60
    s_lshl_b32 s55, s55, 12
    s_lshl_b32 s60, s{sG}, 13
    s_add_u32 s60, s60, {RING0}
    v_add_u32 v168, s60, v29
    v_add_u32 v169, s60, v3
    s_lshl_b32 s60, s{sG}, 12
    s_add_u32 s60, s60, {QST_L}
    v_add_u32 v170, s60, v3
    """)
    def reads(t):
        c, s = divmod(t, 4)
        b = FB + 20*(t & 1)
        R = [f"ds_read_b128 {vr(b,4)}, v{XA+s}"]
        for seg in (1, 2, 0):
            for rd in range(2):
                R.append(f"ds_read_b64_tr_b16 {vr(b+8+4*seg+2*rd,2)}, v{XA+4} offset:{(16*s+4*rd)*192+seg*64}")
        R.insert(5, f"ds_read_b128 {vr(b+4,4)}, v{XA+s} offset:4096")
        return R
    def advance(c):
        d = P1_SLOT if (c+1) % 3 else -2*P1_SLOT
        L = []
        for i in range(5):
            L.append(f"v_add_u32 v{XA+i}, {d & 0xffffffff}, v{XA+i}")
        return L
    setup()
    stamp(1)
    a("s_barrier")
    stamp(2)
    for r in reads(0): a(r)
    for t in range(28):
        c, s = divmod(t, 4)
        b = FB + 20*(t & 1)
        M = []
        for i in range(2):
            x = vr(b+4*i, 4); w = lambda seg: vr(b+8+4*seg, 4)
            A = ACC + 48*i
            cin = lambda r: ("0" if t == 0 else vr(r, 16))
            M += [f"v_mfma_f32_32x32x16_bf16 {vr(A+16,16)}, {w(1)}, {x}, {cin(A+16)}",
                  f"v_mfma_f32_32x32x16_bf16 {vr(A+32,16)}, {x}, {w(2)}, {cin(A+32)}",
                  f"v_mfma_f32_32x32x16_bf16 {vr(A,16)}, {w(0)}, {x}, {cin(A)}"]
        if t == 27: M = [M[0], M[1], M[3], M[4], M[2], M[5]]
        R = reads(t+1) if t < 27 else []
        a("s_waitcnt lgkmcnt(0)")
        if s == 3 and c < 6:
            a(M[0])
            for l in advance(c): a(l)
            a(M[1]); a("s_barrier")
            for m in range(2, 6):
                for r in R[2*(m-2):2*(m-2)+2]: a(r)
                a(M[m])
        else:
            for m in range(6):
                a(M[m])
                for r in R[2*m:2*m+2]: a(r)
        if t == 17: a(f"global_load_dwordx2 v[{TMP+10+2}:{TMP+10+3}], v7, s[18:19] {SC}")
    stamp(3)
    a(f"""
    v_cmp_gt_u32 vcc, 32, v2
    s_mov_b32 s60, {hex(f2u(CSCALE))}
    s_mov_b32 s61, s60
    s_nop 3
    """)
    PK = 128
    for i in range(2):
        A = ACC + 48*i
        P = PK + 16*i
        for k in range(8): a(f"v_cvt_pk_bf16_f32 v{P+k}, v{A+16+2*k}, v{A+16+2*k+1}")
        a(f"v_cndmask_b32 v{P+6}, v30, v{P+6}, vcc")
        a(f"v_cndmask_b32 v{P+7}, v31, v{P+7}, vcc")
        a(f"buffer_store_dwordx4 {vr(P,4)}, v29, {WS_SRD}, s55 offen {SC}")
        a(f"buffer_store_dwordx4 {vr(P+4,4)}, v29, {WS_SRD}, s55 offen offset:1024 {SC}")
        for k in range(8): a(f"v_cvt_pk_bf16_f32 v{P+8+k}, v{A+32+2*k}, v{A+32+2*k+1}")
        for k in range(8): a(f"v_cndmask_b32 v{P+8+k}, v1, v{P+8+k}, s[56:57]")
        a(f"buffer_store_dwordx4 {vr(P+8,4)}, v3, {WS_SRD}, s55 offen offset:2048 {SC}")
        a(f"buffer_store_dwordx4 {vr(P+12,4)}, v3, {WS_SRD}, s55 offen offset:3072 {SC}")
        if i == 0: a("s_add_u32 s55, s55, 4096")
    for i in range(2):
        P = PK + 16*i
        a(f"ds_write_b128 v168, {vr(P,4)} offset:{4096*i}")
        a(f"ds_write_b128 v168, {vr(P+4,4)} offset:{4096*i+1024}")
        a(f"ds_write_b128 v169, {vr(P+8,4)} offset:{4096*i+2048}")
        a(f"ds_write_b128 v169, {vr(P+12,4)} offset:{4096*i+3072}")
    for i in range(2):
        A = ACC + 48*i
        for k in range(8): a(f"v_pk_mul_f32 {vr(A+2*k,2)}, {vr(A+2*k,2)}, s[60:61]")
        for k in range(8): a(f"v_cvt_pk_bf16_f32 v{Q+8*i+k}, v{A+2*k}, v{A+2*k+1}")
        a(f"v_cndmask_b32 v{Q+8*i+6}, 0, v{Q+8*i+6}, vcc")
        a(f"v_cndmask_b32 v{Q+8*i+7}, 0, v{Q+8*i+7}, vcc")
        a(f"ds_write_b128 v170, {vr(Q+8*i,4)} offset:{2048*i}")
        a(f"ds_write_b128 v170, {vr(Q+8*i+4,4)} offset:{2048*i+1024}")
    a(f"""
    s_waitcnt vmcnt(8)
    v_mov_b32 v{TMP}, v{TMP+12}
    v_mov_b32 v{TMP+1}, v{TMP+13}
    s_nop 0
    """)
    tag_check("L_tagc")
    if not opt("lateflag"):
        a("s_waitcnt vmcnt(0)")
        flag_store("s10")
    a("""
    s_waitcnt lgkmcnt(0)
    s_barrier
    """)

def unit(u, first_stage=False, hooks=None):
    t = u >> 1
    cur = S + 16*(u & 3); nxt = S + 16*((u+1) & 3); prv = S + 16*((u-1) & 3)
    tn = (u+1) >> 1; subn = (u+1) & 1
    tp = (u-1) >> 1; subp = (u-1) & 1
    kf = KF + 8*(tn & 1); vf = VF + 8*(tp & 1)
    R = []
    if (u & 1) == 0:
        kb = KF + 8*((t+1) & 1); vb = VF + 8*(t & 1)
        if t < 3:
            R.append(f"ds_read_b128 {vr(kb,4)}, v{VA} offset:{(t+1)*4096}")
            R.append(f"ds_read_b128 {vr(kb+4,4)}, v{VA} offset:{(t+1)*4096+1024}")
        elif not first_stage:
            R.append(f"ds_read_b128 {vr(kb,4)}, v{VB}")
            R.append(f"ds_read_b128 {vr(kb+4,4)}, v{VB} offset:1024")
        R.append(f"ds_read_b128 {vr(vb,4)}, v{VA} offset:{t*4096+2048}")
        R.append(f"ds_read_b128 {vr(vb+4,4)}, v{VA} offset:{t*4096+3072}")
    else:
        a("s_waitcnt lgkmcnt(0)")
    if opt("bunch"):
        for r in R: a(r)
    qn = Q + 8*subn; op = O + 16*subp
    M = [f"v_mfma_f32_32x32x16_bf16 {vr(nxt,16)}, {vr(kf,4)}, {vr(qn,4)}, 0",
         f"v_mfma_f32_32x32x16_bf16 {vr(nxt,16)}, {vr(kf+4,4)}, {vr(qn+4,4)}, {vr(nxt,16)}",
         f"v_smfmac_f32_32x32x32_bf16 {vr(op,16)}, {vr(vf,4)}, {vr(prv,8)}, v{IDX}",
         f"v_smfmac_f32_32x32x32_bf16 {vr(op,16)}, {vr(vf+4,4)}, {vr(prv+8,8)}, v{IDX}"]
    if first_stage and u == 0: M[2] = M[3] = None
    if first_stage and u == 7: M[0] = M[1] = None
    for m in range(4):
        if M[m]: a(M[m])
        for e in range(4):
            a(f"v_exp_f32 v{cur+4*m+e}, v{cur+4*m+e}")
            if e == 1 and m < len(R) and not opt("bunch"): a(R[m])

def kv_dma(m0expr):
    a(m0expr)
    for q in range(4): a(f"buffer_load_dwordx4 v3, {WS_SRD}, s6 offen offset:{q*1024} {SC} lds")

def next_chunk():
    a(f"""
    s_add_u32 s5, s5, 1
    s_and_b32 s5, s5, 7
    s_lshl_b32 s6, s5, 15
    s_add_u32 s6, s6, s4
    """)

def attention():
    PU = int(ARGS[ARGS.index('--pu')+1]) if opt('pu') else 2
    CU_ = int(ARGS[ARGS.index('--cu')+1]) if opt('cu') else 4
    a("L_attn:")
    a(f"""
    ds_read_b128 {vr(KF,4)}, v{VA}
    ds_read_b128 {vr(KF+4,4)}, v{VA} offset:1024
    s_waitcnt lgkmcnt(0)
    v_mfma_f32_32x32x16_bf16 {vr(S,16)}, {vr(KF,4)}, {vr(Q,4)}, 0
    v_mfma_f32_32x32x16_bf16 {vr(S,16)}, {vr(KF+4,4)}, {vr(Q+4,4)}, {vr(S,16)}
    s_nop 11
    """)
    stamp(4)
    for u in range(8):
        if opt("prio") and (u & 1) == 0: a(f"s_setprio {[3,2,1,0][u//2]}")
        unit(u, first_stage=True)
        if u == 1 and opt("lateflag"):
            a(f"""
            s_cmp_lg_u32 s{sKH}, 0
            s_cbranch_scc1 L_noflag
            s_waitcnt vmcnt(0)
            """)
            flag_store("s10")
            a("L_noflag:")
        if u == PU:
            poll_issue(PA, "s9")
        if u == CU_:
            stamp(5)
            poll_check("L_kvp", PA, "s9")
            stamp(6)
            next_chunk()
            kv_dma(f"s_add_u32 m0, s8, {SLOT}\ns_nop 0")
            next_chunk()
            kv_dma(f"s_add_u32 m0, s8, {2*SLOT}\ns_nop 0")
    a(f"""
    v_mov_b32 v{VA}, v{VB}
    v_add_u32 v{VB}, {SLOT}, v{VA}
    s_waitcnt vmcnt(4)
    s_barrier
    ds_read_b128 {vr(KF,4)}, v{VA}
    ds_read_b128 {vr(KF+4,4)}, v{VA} offset:1024
    s_waitcnt lgkmcnt(0)
    v_mfma_f32_32x32x16_bf16 {vr(S,16)}, {vr(KF,4)}, {vr(Q,4)}, 0
    v_mfma_f32_32x32x16_bf16 {vr(S,16)}, {vr(KF+4,4)}, {vr(Q+4,4)}, {vr(S,16)}
    s_nop 11
    """)
    stamp(7)
    a(".p2align 6")
    a("L_loop:")
    for u in range(8):
        if opt("prio") and (u & 1) == 0: a(f"s_setprio {[2,1,0,3][u//2]}")
        if u == 6:
            a(f"""
            s_waitcnt vmcnt(0)
            s_barrier
            s_mov_b32 m0, s13
            s_add_u32 s13, s13, 8192
            buffer_load_dwordx4 v{WOA}, {WO_SRD}, s11 offen {SCIN} lds
            s_add_u32 s11, s11, {64*896}
            s_cmp_gt_u32 s68, 5
            s_cbranch_scc1 L_nodma
            """)
            next_chunk()
            kv_dma("s_add_u32 m0, s8, s69\ns_nop 0")
            a("L_nodma:")
        unit(u)
    a(f"""
    v_mov_b32 v{VA}, v{VB}
    s_add_u32 s53, s69, s7
    v_add_u32 v{VB}, s53, v3
    s_add_u32 s69, s69, {SLOT}
    s_cmp_eq_u32 s69, {3*SLOT}
    s_cselect_b32 s69, 0, s69
    s_add_u32 s68, s68, 1
    s_cmp_lt_u32 s68, 8
    s_cbranch_scc1 L_loop
    """)
    if opt("prio"): a("s_setprio 0")
    stamp(8)
    a(f"""
    v_smfmac_f32_32x32x32_bf16 {vr(O+16,16)}, {vr(VF+8,4)}, {vr(S+48,8)}, v{IDX}
    v_smfmac_f32_32x32x32_bf16 {vr(O+16,16)}, {vr(VF+12,4)}, {vr(S+56,8)}, v{IDX}
    s_cmp_eq_u32 s{sKH}, 0
    s_cbranch_scc1 L_kh0
    """)
    for q in range(4): a(f"ds_write_b128 v{EXA}, {vr(O+4*q,4)} offset:{q*1024}")
    for r in range(8): a(f"v_mov_b32 v{Q+r}, v{Q+8+r}")
    a("s_waitcnt vmcnt(0) lgkmcnt(0)")
    a("s_barrier")
    for q in range(4): a(f"ds_read_b128 {vr(S+16+4*q,4)}, v{EXB} offset:{q*1024}")
    a("s_waitcnt lgkmcnt(0)")
    for r in range(8): a(f"v_pk_add_f32 {vr(S+2*r,2)}, {vr(O+16+2*r,2)}, {vr(S+16+2*r,2)}")
    a("s_branch L_norm")
    a("L_kh0:")
    a(f"""
    v_mov_b32 v{TMP+8}, 0
    v_mov_b32 v{TMP+9}, 0
    ds_write_b64 v{PA}, v[{TMP+8}:{TMP+9}] offset:57344
    s_nop 7
    """)
    for q in range(4): a(f"ds_write_b128 v{EXA}, {vr(O+16+4*q,4)} offset:{q*1024}")
    a("s_waitcnt vmcnt(0) lgkmcnt(0)")
    a("s_barrier")
    for q in range(4): a(f"ds_read_b128 {vr(S+16+4*q,4)}, v{EXB} offset:{q*1024}")
    a("s_waitcnt lgkmcnt(0)")
    for r in range(8): a(f"v_pk_add_f32 {vr(S+2*r,2)}, {vr(O+2*r,2)}, {vr(S+16+2*r,2)}")
    a("L_norm:")
    a(f"""
    v_mov_b32 v{S+32}, v{S+12}
    v_mov_b32 v{S+33}, v{S+12}
    s_mov_b32 s54, 0x2f800000        ; 2^-32
    s_mov_b32 s62, 0x57800000        ; 2^48
    v_permlane32_swap_b32 v{S+32}, v{S+33}
    s_nop 1
    v_rcp_f32 v{S+34}, v{S+33}
    v_cmp_ge_f32 vcc, v{S+33}, s54
    v_cmp_le_f32 s[56:57], v{S+33}, s62
    s_nop 1
    s_and_b64 s[56:57], s[56:57], vcc
    s_cmp_eq_u64 s[56:57], -1
    s_cbranch_scc0 L_fallback
    L_norm2:
    v_cmp_gt_u32 vcc, 32, v2
    """)
    for r in range(8): a(f"v_pk_mul_f32 {vr(S+2*r,2)}, {vr(S+2*r,2)}, {vr(S+34,2)} op_sel_hi:[1,0]")
    for i in range(4): a(f"v_cvt_pk_bf16_f32 v{S+16+i}, v{S+2*i}, v{S+2*i+1}")
    a(f"buffer_store_dwordx4 {vr(S+16,4)}, v3, {WS_SRD}, s14 offen {SC}")
    for i in range(4, 8): a(f"v_cvt_pk_bf16_f32 v{S+16+i}, v{S+2*i}, v{S+2*i+1}")
    a(f"v_cndmask_b32 v{S+22}, 0, v{S+22}, vcc")
    a(f"v_cndmask_b32 v{S+23}, 0, v{S+23}, vcc")
    a(f"buffer_store_dwordx4 {vr(S+20,4)}, v3, {WS_SRD}, s14 offen offset:1024 {SC}")

def p3():
    OFR = 96; ACC = 16; WF = 48; WA = 160+16-16
    WA = 56+8
    for i in range(8):
        a(f"""
        s_add_u32 s62, s3, {i}
        s_and_b32 s62, s62, 7
        s_lshl_b32 s{54+i}, s62, 11
        s_add_u32 s{54+i}, s{54+i}, s17
        s_mul_i32 s62, s62, {28*128}
        v_add_u32 v{WA+2*i}, s62, v{P3A}
        v_xor_b32 v{WA+1+2*i}, 64, v{WA+2*i}
        """)
    a("s_waitcnt vmcnt(0)")
    flag_store("s15")
    stamp(9)
    a(f"""
    s_cmp_ge_u32 s23, 28
    s_cbranch_scc1 L_fin
    """)
    if not opt("nobar9"): a("s_barrier")
    poll_issue(PA, "s16")
    def rd(t):
        i, s = divmod(t, 2)
        for ctile in range(2):
            for eh in range(2):
                a(f"ds_read_b64_tr_b16 {vr(WF+8*(t&1)+4*ctile+2*eh,2)}, v{WA+2*i+ctile} offset:{(16*s+8*eh)*128}")
    rd(0)
    poll_check("L_op", PA, "s16", 62, 63)
    stamp(10)
    for t in range(16):
        a(f"buffer_load_dwordx4 {vr(OFR+4*t,4)}, v3, {WS_SRD}, s{54+t//2} offen offset:{(t%2)*1024} {SC}")
    for t in range(16):
        if t < 15: rd(t+1)
        a(f"s_waitcnt vmcnt({15-t}) lgkmcnt({4 if t < 15 else 0})")
        order = (0, 1)
        for ctile in order:
            acc = vr(ACC+16*ctile, 16)
            a(f"v_mfma_f32_32x32x16_bf16 {acc}, {vr(WF+8*(t&1)+4*ctile,4)}, {vr(OFR+4*t,4)}, {'0' if t == 0 else acc}")
    stamp(11)
    D = -2*SLOT
    a(f"""
    v_subrev_u32 v{EXA}, {2*SLOT}, v{EXA}
    v_subrev_u32 v{EXB}, {2*SLOT}, v{EXB}
    s_cmp_eq_u32 s{sKH}, 0
    s_nop 8
    s_cbranch_scc1 L_p3kh0
    """)
    for q in range(4): a(f"ds_write_b128 v{EXA}, {vr(ACC+4*q,4)} offset:{q*1024}")
    a("s_waitcnt lgkmcnt(0)")
    a("s_barrier")
    for q in range(4): a(f"ds_read_b128 {vr(80+4*q,4)}, v{EXB} offset:{q*1024}")
    a("s_waitcnt lgkmcnt(0)")
    for r in range(8): a(f"v_pk_add_f32 {vr(64+2*r,2)}, {vr(ACC+16+2*r,2)}, {vr(80+2*r,2)}")
    a("s_branch L_p3join")
    a("L_p3kh0:")
    for q in range(4): a(f"ds_write_b128 v{EXA}, {vr(ACC+16+4*q,4)} offset:{q*1024}")
    a("s_waitcnt lgkmcnt(0)")
    a("s_barrier")
    for q in range(4): a(f"ds_read_b128 {vr(80+4*q,4)}, v{EXB} offset:{q*1024}")
    a("s_waitcnt lgkmcnt(0)")
    for r in range(8): a(f"v_pk_add_f32 {vr(64+2*r,2)}, {vr(ACC+2*r,2)}, {vr(80+2*r,2)}")
    a("L_p3join:")
    P = 96
    OS = "sc1" if opt("outsc1") else ("nt" if opt("outnt") else "")
    for i in range(8): a(f"v_cvt_pk_bf16_f32 v{P+i}, v{64+2*i}, v{64+2*i+1}")
    a("s_nop 1")
    for gp in range(2):
        a(f"v_permlane32_swap_b32 v{P+4*gp}, v{P+4*gp+2}")
        a(f"v_permlane32_swap_b32 v{P+4*gp+1}, v{P+4*gp+3}")
    for gp in range(2):
        a(f"buffer_store_dwordx4 {vr(P+4*gp,4)}, v{OUTA}, {OUT_SRD}, 0 offen offset:{gp*32} {OS}")
    a("L_fin:")
    if STAMP: a("s_waitcnt vmcnt(0)")
    stamp(12)
    stamp_flush(13)
    a("L_end:")
    a("s_endpgm")

def fallback():
    T = S + 16
    K0 = KF; M = S + 35
    a("L_fallback:")
    a(f"""
    s_lshl_b32 s58, s{sPAIR}, 18
    s_mov_b32 s59, 64
    v_mov_b32 v{M}, 0xff800000
    L_fb1:
    buffer_load_dwordx4 {vr(K0,4)}, v3, {WS_SRD}, s58 offen {SC}
    buffer_load_dwordx4 {vr(K0+4,4)}, v3, {WS_SRD}, s58 offen offset:1024 {SC}
    s_waitcnt vmcnt(0)
    v_mfma_f32_32x32x16_bf16 {vr(T,16)}, {vr(K0,4)}, {vr(Q,4)}, 0
    v_mfma_f32_32x32x16_bf16 {vr(T,16)}, {vr(K0+4,4)}, {vr(Q+4,4)}, {vr(T,16)}
    s_add_u32 s58, s58, 4096
    s_sub_u32 s59, s59, 1
    s_nop 15
    """)
    for i in range(8): a(f"v_max3_f32 v{M}, v{M}, v{T+2*i}, v{T+2*i+1}")
    a(f"""
    s_cmp_lg_u32 s59, 0
    s_cbranch_scc1 L_fb1
    v_mov_b32 v{M+1}, v{M}
    s_nop 1
    v_permlane32_swap_b32 v{M}, v{M+1}
    s_nop 1
    v_max_f32 v{M}, v{M}, v{M+1}
    v_sub_f32 v{M}, 0, v{M}                ; -max
    v_and_b32 v{M+1}, 0xffff0000, v{M}     ; hi
    v_sub_f32 v{M+2}, v{M}, v{M+1}
    v_and_b32 v{M+3}, 0xffff0000, v{M+2}   ; mid
    v_sub_f32 v{M+2}, v{M+2}, v{M+3}       ; lo
    v_lshrrev_b32 v{M+1}, 16, v{M+1}
    v_or_b32 v{M+1}, v{M+1}, v{M+3}
    v_lshrrev_b32 v{M+2}, 16, v{M+2}
    v_cmp_gt_u32 vcc, 32, v2
    s_lshl_b32 s58, s{sPAIR}, 18
    s_mov_b32 s59, 64
    v_cndmask_b32 v{Q+6}, v{M+1}, v{Q+6}, vcc
    v_cndmask_b32 v{Q+7}, v{M+2}, v{Q+7}, vcc
    """)
    for r in range(16): a(f"v_mov_b32 v{S+r}, 0")
    a(f"""
    L_fb2:
    buffer_load_dwordx4 {vr(K0,4)}, v3, {WS_SRD}, s58 offen {SC}
    buffer_load_dwordx4 {vr(K0+4,4)}, v3, {WS_SRD}, s58 offen offset:1024 {SC}
    buffer_load_dwordx4 {vr(K0+8,4)}, v3, {WS_SRD}, s58 offen offset:2048 {SC}
    buffer_load_dwordx4 {vr(K0+12,4)}, v3, {WS_SRD}, s58 offen offset:3072 {SC}
    s_waitcnt vmcnt(0)
    v_mfma_f32_32x32x16_bf16 {vr(T,16)}, {vr(K0,4)}, {vr(Q,4)}, 0
    v_mfma_f32_32x32x16_bf16 {vr(T,16)}, {vr(K0+4,4)}, {vr(Q+4,4)}, {vr(T,16)}
    s_add_u32 s58, s58, 4096
    s_sub_u32 s59, s59, 1
    s_nop 15
    """)
    for i in range(16): a(f"v_exp_f32 v{T+i}, v{T+i}")
    a(f"""
    s_nop 1
    v_smfmac_f32_32x32x32_bf16 {vr(S,16)}, {vr(K0+8,4)}, {vr(T,8)}, v{IDX}
    v_smfmac_f32_32x32x32_bf16 {vr(S,16)}, {vr(K0+12,4)}, {vr(T+8,8)}, v{IDX}
    s_cmp_lg_u32 s59, 0
    s_cbranch_scc1 L_fb2
    s_nop 15
    v_mov_b32 v{S+32}, v{S+12}
    v_mov_b32 v{S+33}, v{S+12}
    s_nop 1
    v_permlane32_swap_b32 v{S+32}, v{S+33}
    s_nop 1
    v_rcp_f32 v{S+34}, v{S+33}
    s_branch L_norm2
    """)

prologue(); loader(); compute(); attention(); p3(); fallback()
a(kdesc(N, 216, 102))
hdr = f"; @launch grid=(256,1,1) block=(512,1,1) lds={LDS_BYTES}\n" + '.amdgcn_target "amdgcn-amd-amdhsa--gfx950"\n'
open(sys.argv[1], "w").write(hdr + a.text())
```

```python
import sys, struct
from asmlib import *

KV_OFF = 0
OF_OFF = 8 << 20
FL_OFF = 12 << 20
FO_OFF = (12 << 20) + 65536
WS_USED = 13 << 20
ST_OFF = 32 << 20
CSCALE = 28 ** -0.5 * 1.4426950408889634
def f2u(x): return struct.unpack("<I", struct.pack("<f", x))[0]
ARGS = sys.argv[2:]
def opt(name): return ("--" + name) in ARGS
STAMP = opt("stamp")
N = "concat_heads__softmax_full_mha__mha_block__prompt_kernel"
SC = "sc1"
SCIN = "" if opt("plainin") else ("nt" if opt("ntin") else "sc1")
SPIN_MAX = 100000
SLEEP = int(ARGS[ARGS.index('--sleep')+1]) if opt('sleep') else 2

P1_SLOT = 45056
QST_L = 45056
RING0 = 61440
SLOT = 32768
LDS_BYTES = RING0 + 3 * SLOT

a = Asm()
FINE_DONE = [False]
def stamp(idx):
    if not STAMP: return
    if opt("fine") and idx >= 9 and FINE_DONE[0]: return
    a(f"""
    s_memtime s[64:65]
    s_memrealtime s[66:67]
    s_waitcnt lgkmcnt(0)
    s_mov_b32 s{70+2*idx}, s64
    s_mov_b32 s{71+2*idx}, s66
    """)
def stamp_flush(n):
    if not STAMP: return
    if opt("dbgstamp"):
        a("""
        v_mov_b32 v0, 0
        s_mov_b64 exec, 1
        s_not_b32 s64, s71
        v_mov_b32 v4, s64
        global_atomic_umax v0, v4, s[18:19] offset:8
        s_cmp_ge_u32 s23, 28
        s_cbranch_scc1 L_end
        """)
        for i in range(n):
            a(f"""
            v_mov_b32 v{5+i}, s{71+2*i}
            global_atomic_umax v0, v{5+i}, s[18:19] offset:{12+4*i}
            """)
        return
    a(f"""
    s_lshl_b32 s66, s2, 4
    s_add_u32 s66, s66, s27
    s_lshl_b32 s66, s66, 7
    s_add_u32 s66, s66, {ST_OFF}
    s_add_u32 s64, s20, s66
    s_addc_u32 s65, s21, 0
    v_mov_b32 v0, 0
    s_mov_b64 exec, 1
    """)
    for i in range(n):
        a(f"""
        v_mov_b32 v4, s{70+2*i}
        v_mov_b32 v5, s{71+2*i}
        global_store_dwordx2 v0, v[4:5], s[64:65] offset:{8*i}
        s_nop 1
        """)
NSTAMP = 14

sB, sJ, sH, sW, sG, sKH, sPAIR = 24, 25, 26, 27, 48, 49, 52
X_SRD, W_SRD, WS_SRD, WO_SRD, OUT_SRD = "s[28:31]", "s[32:35]", "s[36:39]", "s[40:43]", "s[44:47]"
TAG = 50
IDX, VA, VB = 4, 5, 6
Q, O, S, KF, VF = 8, 176, 64, 128, 144
TMP = 160

def tag_check(lbl):
    a(f"""
    s_mov_b32 s53, {SPIN_MAX}
    {lbl}_chk:
    v_readfirstlane_b32 s{TAG}, v{TMP}
    v_readfirstlane_b32 s{TAG+1}, v{TMP+1}
    s_nop 1
    s_cmp_lg_u64 s[{TAG}:{TAG+1}], 0
    s_cbranch_scc1 {lbl}_ok
    s_sub_u32 s53, s53, 1
    s_cbranch_scc1 {lbl}_ok
    global_load_dwordx2 v[{TMP}:{TMP+1}], v7, s[18:19] {SC}
    s_waitcnt vmcnt(0)
    s_branch {lbl}_chk
    {lbl}_ok:
    """)

def poll_issue(vaddr, soff):
    a(f"""
    s_mov_b64 exec, 0xff
    buffer_load_dwordx2 v[{TMP}:{TMP+1}], v{vaddr}, {WS_SRD}, {soff} offen {SC}
    s_mov_b64 exec, -1
    """)
def poll_check(lbl, vaddr, soff, t0=53, t1=54):
    a(f"""
    s_mov_b32 s{t0}, {SPIN_MAX}
    {lbl}_chk:
    s_waitcnt vmcnt(0)
    v_cmp_eq_u64 vcc, s[{TAG}:{TAG+1}], v[{TMP}:{TMP+1}]
    s_nop 1
    s_and_b32 s{t1}, vcc_lo, 0xff
    s_cmp_eq_u32 s{t1}, 0xff
    s_cbranch_scc1 {lbl}_ok
    s_sub_u32 s{t0}, s{t0}, 1
    s_cbranch_scc1 {lbl}_ok
    s_sleep {SLEEP}
    """)
    poll_issue(vaddr, soff)
    a(f"""
    s_branch {lbl}_chk
    {lbl}_ok:
    """)
def flag_store(soff):
    a(f"""
    v_mov_b32 v{TMP+2}, s{TAG}
    v_mov_b32 v{TMP+3}, s{TAG+1}
    s_mov_b64 exec, 1
    buffer_store_dwordx2 v[{TMP+2}:{TMP+3}], v7, {WS_SRD}, {soff} offen {SC}
    s_mov_b64 exec, -1
    """)

def prologue():
    a(khead(N))
    a(f"""
    s_cmp_ge_u32 s2, 256
    s_cbranch_scc1 L_end
    """)
    stamp(0)
    a(f"""
    s_load_dwordx16 s[4:19], s[0:1], 0
    s_load_dwordx2 s[20:21], s[0:1], 64
    s_and_b32 s22, s2, 7          ; xcd
    s_lshr_b32 s23, s2, 3         ; r
    {"s_xor_b32 s22, s22, 4" if opt("swapb") else ""}
    s_lshr_b32 s{sB}, s22, 2
    s_bfe_u32 s25, s22, 0x10001
    s_lshl_b32 s25, s25, 2
    s_and_b32 s53, s23, 3
    s_add_u32 s{sJ}, s25, s53
    s_and_b32 s26, s22, 1
    s_lshl_b32 s26, s26, 3
    s_lshr_b32 s54, s23, 2
    s_add_u32 s{sH}, s26, s54
    s_lshl_b32 s53, s53, 1
    s_add_u32 s54, s54, s53
    s_sub_u32 s53, s54, 7
    s_cmp_ge_u32 s54, 7
    s_cselect_b32 s54, s53, s54
    s_lshl_b32 s{sPAIR}, s{sB}, 4
    s_add_u32 s{sPAIR}, s{sPAIR}, s{sH}
    v_lshrrev_b32 v1, 6, v0
    v_and_b32 v2, 63, v0          ; lane
    v_mov_b32 v7, 0
    v_readfirstlane_b32 s{sW}, v1
    v_lshlrev_b32 v3, 4, v2       ; lane*16
    s_waitcnt lgkmcnt(0)
    s_cmp_eq_u32 s{sB}, 0
    s_cselect_b32 s28, s4, s10
    s_cselect_b32 s29, s5, s11
    s_mov_b32 s30, 1835008
    s_mov_b32 s31, 0x20000
    s_cselect_b32 s32, s6, s12
    s_cselect_b32 s33, s7, s13
    s_mov_b32 s34, 1204224
    s_mov_b32 s35, 0x20000
    s_mov_b32 s36, s20
    s_mov_b32 s37, s21
    s_mov_b32 s38, {WS_USED}
    s_mov_b32 s39, 0x20000
    s_cselect_b32 s40, s8, s14
    s_cselect_b32 s41, s9, s15
    s_mov_b32 s42, 401408
    s_mov_b32 s43, 0x20000
    s_mov_b32 s44, s16
    s_mov_b32 s45, s17
    s_mov_b32 s46, 3670016
    s_mov_b32 s47, 0x20000
    s_and_b32 s{sG}, s{sW}, 3
    s_lshr_b32 s{sKH}, s{sW}, 2
    s_cmp_eq_u32 s{sKH}, 0
    s_cbranch_scc1 L_compute
    """)
    if opt("norot"): a("s_mov_b32 s54, 0")
    if opt("rot3"):
        a("""
        s_mul_i32 s53, s54, 86
        s_lshr_b32 s53, s53, 8
        s_mul_i32 s53, s53, 3
        s_sub_u32 s54, s54, s53
        """)
    if opt("rot2"): a("s_and_b32 s54, s54, 1")
    if opt("rot4"): a("s_and_b32 s54, s54, 3")

PA, WOA, EXA, EXB, P3A, OUTA = 208, 209, 210, 211, 212, 213
def setup():
    EX = RING0 + 2*SLOT
    a(f"""
    v_mov_b32 v{IDX}, 0xdddddddd
    s_lshl_b32 s7, s{sKH}, 14
    s_add_u32 s7, s7, {RING0}
    v_add_u32 v{VA}, s7, v3
    v_add_u32 v{VB}, {SLOT}, v{VA}
    s_lshl_b32 s4, s{sPAIR}, 6
    s_add_u32 s4, s4, s{sW}
    s_lshl_b32 s4, s4, 12
    s_mov_b32 s5, s{sJ}
    s_lshl_b32 s8, s{sW}, 12
    s_add_u32 s8, s8, {RING0}
    s_lshl_b32 s9, s{sPAIR}, 8
    s_add_u32 s9, s9, {FL_OFF}
    s_lshl_b32 s10, s{sG}, 6
    s_add_u32 s10, s10, s9
    s_lshl_b32 s62, s{sJ}, 3
    s_add_u32 s10, s10, s62
    s_lshr_b32 s62, s{sW}, 1
    s_lshl_b32 s62, s62, 6
    s_add_u32 s9, s9, s62
    v_lshlrev_b32 v{PA}, 3, v2
    s_mul_i32 s62, s23, 37
    s_lshr_b32 s62, s62, 8                ; r/7
    s_mul_i32 s3, s62, 7
    s_sub_u32 s3, s23, s3                 ; ct
    s_lshl_b32 s12, s22, 2
    s_add_u32 s12, s12, s62               ; rowgrp
    s_lshl_b32 s12, s12, 2
    s_add_u32 s12, s12, s{sG}
    v_lshrrev_b32 v{WOA}, 3, v2
    v_and_b32 v{EXA}, 7, v2
    v_bfe_u32 v{EXB}, v2, 4, 1
    v_lshlrev_b32 v{EXB}, 2, v{EXB}
    v_xor_b32 v{EXA}, v{EXA}, v{EXB}
    v_mul_u32_u24 v{WOA}, 896, v{WOA}
    v_lshl_add_u32 v{WOA}, v{EXA}, 4, v{WOA}
    s_mul_i32 s62, s{sW}, {8*896}
    s_lshl_b32 s63, s3, 7
    s_add_u32 s62, s62, s63
    v_add_u32 v{WOA}, s62, v{WOA}
    s_mov_b32 s11, 0
    s_lshl_b32 s13, s{sW}, 10
    s_lshl_b32 s62, s{sW}, 12
    s_add_u32 s63, s62, {EX}
    v_add_u32 v{EXA}, s63, v3
    s_xor_b32 s62, s62, 16384
    s_add_u32 s62, s62, {EX}
    v_add_u32 v{EXB}, s62, v3
    s_lshl_b32 s62, s{sB}, 6
    s_lshl_b32 s63, s{sJ}, 3
    s_add_u32 s62, s62, s63
    s_lshl_b32 s63, s{sG}, 1
    s_add_u32 s62, s62, s63
    s_add_u32 s62, s62, s{sKH}
    s_lshl_b32 s62, s62, 4
    s_add_u32 s62, s62, s{sH}
    s_lshl_b32 s15, s62, 3
    s_add_u32 s15, s15, {FO_OFF}
    s_lshl_b32 s14, s62, 11
    s_add_u32 s14, s14, {OF_OFF}
    s_lshl_b32 s16, s12, 7
    s_lshl_b32 s62, s{sKH}, 6
    s_add_u32 s16, s16, s62
    s_add_u32 s16, s16, {FO_OFF}
    s_lshl_b32 s17, s12, 15
    s_lshl_b32 s62, s{sKH}, 14
    s_add_u32 s17, s17, s62
    s_add_u32 s17, s17, {OF_OFF}
    v_lshrrev_b32 v214, 5, v2             ; hh
    v_bfe_u32 v215, v2, 2, 2
    v_lshl_add_u32 v{P3A}, v214, 2, v215
    v_lshlrev_b32 v{P3A}, 7, v{P3A}
    v_bfe_u32 v215, v2, 4, 1
    v_lshl_add_u32 v{P3A}, v215, 5, v{P3A}
    v_and_b32 v215, 3, v2
    v_lshl_add_u32 v{P3A}, v215, 3, v{P3A}
    v_bfe_u32 v215, v2, 3, 1
    v_lshl_add_u32 v{P3A}, v215, 6, v{P3A}
    s_mul_i32 s62, s{sKH}, {8*28*128}
    v_add_u32 v{P3A}, s62, v{P3A}
    s_and_b32 s62, s12, 63
    s_lshl_b32 s62, s62, 5
    v_and_b32 v215, 31, v2
    v_add_u32 v215, s62, v215
    v_mul_u32_u24 v215, 1792, v215
    v_lshl_add_u32 v{OUTA}, v214, 4, v215
    s_mul_i32 s62, s{sB}, 896
    s_lshl_b32 s63, s3, 7
    s_add_u32 s62, s62, s63
    s_lshl_b32 s63, s{sKH}, 6
    s_add_u32 s62, s62, s63
    v_add_u32 v{OUTA}, s62, v{OUTA}
    s_mov_b32 s68, 1
    s_mov_b32 s69, 0
    """)
    for r in range(O, O+32): a(f"v_mov_b32 v{r}, 0")

def loader():
    if opt("fine"): stamp(9)
    a(f"""
    v_lshrrev_b32 v8, 3, v2       ; lane/8
    v_and_b32 v9, 7, v2
    v_lshrrev_b32 v14, 4, v2
    v_xor_b32 v9, v9, v14
    v_xor_b32 v14, 4, v9
    s_lshl_b32 s55, s{sJ}, 8
    s_lshl_b32 s56, s{sG}, 6
    s_add_u32 s55, s55, s56
    s_mul_i32 s55, s55, 896
    v_mul_u32_u24 v8, 896, v8
    v_add_u32 v8, s55, v8
    v_lshl_add_u32 v10, v9, 4, v8
    v_lshl_add_u32 v11, v14, 4, v8
    v_add_u32 v12, {2*6144}, v10
    v_add_u32 v13, {3*6144}, v11
    v_add_u32 v11, {6144}, v11
    s_lshl_b32 s55, s{sG}, 13
    s_mul_i32 s56, s{sG}, 3072
    s_add_u32 s56, s56, 32768
    """)
    def dma_x(slot, half):
        for q in range(4): a(f"buffer_load_dwordx4 v{10+q}, {X_SRD}, s57 offen offset:{q*1024} {SCIN} lds" if not opt("nox") else f"buffer_load_dwordx4 v3, {X_SRD}, 0 offen offset:{q*1024} {SCIN} lds")
    def dma_chunk(i, waddr=None):
        slot = (i % 3) * P1_SLOT
        a(f"""
        s_lshl_b32 s57, s54, 7
        s_add_u32 m0, s55, {slot}
        s_mul_i32 s58, s54, {64*2688}
        """)
        if waddr and opt("fine"): stamp(10)
        dma_x(slot, 0)
        if waddr and opt("fine"): stamp(11)
        if waddr: waddr()
        a(f"""
        s_add_u32 m0, s56, {slot}
        s_add_u32 s57, s57, {32*896}
        """)
        for q in range(3): a(f"buffer_load_dwordx4 v{14+q}, {W_SRD}, s58 offen offset:{q*1024} {SCIN} lds" if not opt("now") else f"buffer_load_dwordx4 v3, {W_SRD}, 0 offen offset:{q*1024} {SCIN} lds")
        a(f"""
        s_add_u32 m0, s55, {slot+4096}
        s_add_u32 s54, s54, 1
        """)
        dma_x(slot, 1)
        a("""
        s_cmp_eq_u32 s54, 7
        s_cselect_b32 s54, 0, s54
        """)
    def waddr():
        a(f"""
        s_mul_i32 s59, s{sG}, {16*2688}
        s_mul_i32 s60, s{sH}, 56
        s_add_u32 s59, s59, s60
        """)
        for i in range(3):
            a(f"""
            v_add_u32 v8, {64*i}, v2
            v_mul_u32_u24 v9, 171, v8
            v_lshrrev_b32 v9, 11, v9      ; k_local
            v_mul_u32_u24 v17, 12, v9
            v_sub_u32 v17, v8, v17        ; rem
            v_lshrrev_b32 v18, 2, v17
            v_and_b32 v17, 3, v17
            v_mul_u32_u24 v9, 2688, v9
            v_mul_u32_u24 v18, 896, v18
            v_lshlrev_b32 v17, 4, v17
            v_add3_u32 v8, v9, v17, v18
            v_add_u32 v{14+i}, s59, v8
            """)
            if i: a(f"v_subrev_u32 v{14+i}, {1024*i}, v{14+i}")
    dma_chunk(0, waddr)
    if opt("fine"): stamp(12)
    dma_chunk(1)
    stamp(1)
    for i in range(7):
        a(f"s_waitcnt vmcnt({11 if i < 6 else 0})")
        a("s_barrier")
        if i == 0: stamp(2)
        if i <= 4: dma_chunk(i+2)
        if i == 4: setup()
        if i == 5: a(f"global_load_dwordx2 v[{TMP}:{TMP+1}], v7, s[18:19] {SC}")
    tag_check("L_tagl")
    stamp(3)
    a(f"""
    s_lshl_b32 s55, s{sG}, 12
    s_add_u32 s55, s55, {QST_L}
    v_add_u32 v{TMP+4}, s55, v3
    s_barrier
    """)
    for i in range(4): a(f"ds_read_b128 {vr(Q+4*i,4)}, v{TMP+4} offset:{i*1024}")
    a("s_branch L_attn")

def compute():
    FINE_DONE[0] = True
    XA = 24
    ACC = 32
    FB = 128
    a("L_compute:")
    if not opt("nopf"):
        PF = "nt" if opt("pfnt") else ("sc1" if opt("pfsc1") else "")
        a(f"""
        s_cmp_lg_u32 s{sW}, 0
        s_cbranch_scc1 L_nopf
        s_cmp_ge_u32 s23, 28
        s_cbranch_scc1 L_nopf
        s_cmp_ge_u32 s23, 16
        s_cbranch_scc1 L_pfw
        s_and_b32 s55, s{sJ}, 4
        s_lshl_b32 s55, s55, 2
        s_add_u32 s55, s55, s23
        s_mul_i32 s55, s55, {64*896}
        v_mul_u32_u24 v8, 896, v2
        """)
        for c in range(7): a(f"buffer_load_dword v{208+c}, v8, {X_SRD}, s55 offen offset:{c*128} {PF}")
        a(f"""
        s_branch L_nopf
        L_pfw:
        s_sub_u32 s55, s23, 16
        s_lshl_b32 s55, s55, 6
        v_add_u32 v8, s55, v2            ; q
        v_mul_u32_u24 v9, 2731, v8
        v_lshrrev_b32 v9, 15, v9         ; q/12
        v_mul_u32_u24 v10, 12, v9
        v_sub_u32 v10, v8, v10
        v_lshrrev_b32 v11, 2, v10
        v_and_b32 v10, 3, v10
        v_mul_u32_u24 v9, 2688, v9
        v_mul_u32_u24 v11, 896, v11
        v_lshlrev_b32 v10, 7, v10
        v_add3_u32 v8, v9, v10, v11
        s_and_b32 s55, s22, 1
        s_mul_i32 s55, s55, 384
        """)
        for c in range(7):
            a(f"buffer_load_dword v{208+c}, v8, {W_SRD}, s55 offen {PF}")
            a(f"s_add_u32 s55, s55, {64*2688}")
        a("L_nopf:")
    a(f"""
    s_cmp_lg_u32 s2, 0
    s_cbranch_scc1 L_notag
    s_cmp_lg_u32 s{sW}, 0
    s_cbranch_scc1 L_notag
    s_memrealtime s[60:61]
    s_waitcnt lgkmcnt(0)
    s_or_b32 s60, s60, 1
    v_mov_b32 v18, s60
    v_mov_b32 v19, s61
    s_mov_b64 exec, 1
    global_store_dwordx2 v7, v[18:19], s[18:19] {SC}
    s_mov_b64 exec, -1
    L_notag:
    v_and_b32 v8, 31, v2          ; m
    v_lshrrev_b32 v9, 5, v2       ; hh
    v_bfe_u32 v10, v2, 1, 3       ; z
    v_xor_b32 v10, v9, v10
    s_lshl_b32 s55, s{sG}, 13
    v_lshlrev_b32 v11, 7, v8
    v_add_u32 v11, s55, v11
    v_lshl_add_u32 v{XA}, v10, 4, v11
    v_xor_b32 v12, 2, v10
    v_lshl_add_u32 v{XA+1}, v12, 4, v11
    v_xor_b32 v12, 4, v10
    v_lshl_add_u32 v{XA+2}, v12, 4, v11
    v_xor_b32 v12, 6, v10
    v_lshl_add_u32 v{XA+3}, v12, 4, v11
    v_bfe_u32 v10, v2, 2, 2
    v_lshl_add_u32 v10, v9, 3, v10
    v_mul_u32_u24 v10, 192, v10
    v_bfe_u32 v11, v2, 4, 1
    v_lshl_add_u32 v10, v11, 5, v10
    v_and_b32 v11, 3, v2
    v_lshl_add_u32 v10, v11, 3, v10
    v_add_u32 v{XA+4}, 32768, v10
    v_and_b32 v29, 0x33, v2
    v_bfe_u32 v10, v2, 2, 1
    v_bfe_u32 v11, v2, 3, 1
    v_lshl_or_b32 v29, v10, 3, v29
    v_lshl_or_b32 v29, v11, 2, v29
    v_lshlrev_b32 v29, 4, v29     ; swap23(lane)*16
    v_cmp_gt_u32 s[56:57], 28, v8
    v_cmp_eq_u32 s[58:59], 28, v8
    v_mov_b32 v30, 0x3f803f80
    v_mov_b32 v31, 0x00003f80
    v_cndmask_b32 v1, 0, v30, s[58:59]
    s_lshl_b32 s55, s{sPAIR}, 6
    s_lshl_b32 s60, s{sJ}, 3
    s_add_u32 s55, s55, s60
    s_lshl_b32 s60, s{sG}, 1
    s_add_u32 s55, s55, s60
    s_lshl_b32 s55, s55, 12
    s_lshl_b32 s60, s{sG}, 13
    s_add_u32 s60, s60, {RING0}
    v_add_u32 v168, s60, v29
    v_add_u32 v169, s60, v3
    s_lshl_b32 s60, s{sG}, 12
    s_add_u32 s60, s60, {QST_L}
    v_add_u32 v170, s60, v3
    """)
    def reads(t):
        c, s = divmod(t, 4)
        b = FB + 20*(t & 1)
        R = [f"ds_read_b128 {vr(b,4)}, v{XA+s}"]
        for seg in (1, 2, 0):
            for rd in range(2):
                R.append(f"ds_read_b64_tr_b16 {vr(b+8+4*seg+2*rd,2)}, v{XA+4} offset:{(16*s+4*rd)*192+seg*64}")
        R.insert(5, f"ds_read_b128 {vr(b+4,4)}, v{XA+s} offset:4096")
        return R
    def advance(c):
        d = P1_SLOT if (c+1) % 3 else -2*P1_SLOT
        L = []
        for i in range(5):
            L.append(f"v_add_u32 v{XA+i}, {d & 0xffffffff}, v{XA+i}")
        return L
    setup()
    stamp(1)
    a("s_barrier")
    stamp(2)
    for r in reads(0): a(r)
    for t in range(28):
        c, s = divmod(t, 4)
        b = FB + 20*(t & 1)
        M = []
        for i in range(2):
            x = vr(b+4*i, 4); w = lambda seg: vr(b+8+4*seg, 4)
            A = ACC + 48*i
            cin = lambda r: ("0" if t == 0 else vr(r, 16))
            M += [f"v_mfma_f32_32x32x16_bf16 {vr(A+16,16)}, {w(1)}, {x}, {cin(A+16)}",
                  f"v_mfma_f32_32x32x16_bf16 {vr(A+32,16)}, {x}, {w(2)}, {cin(A+32)}",
                  f"v_mfma_f32_32x32x16_bf16 {vr(A,16)}, {w(0)}, {x}, {cin(A)}"]
        if t == 27: M = [M[0], M[1], M[3], M[4], M[2], M[5]]
        R = reads(t+1) if t < 27 else []
        a("s_waitcnt lgkmcnt(0)")
        if s == 3 and c < 6:
            a(M[0])
            for l in advance(c): a(l)
            a(M[1]); a("s_barrier")
            for m in range(2, 6):
                for r in R[2*(m-2):2*(m-2)+2]: a(r)
                a(M[m])
        else:
            for m in range(6):
                a(M[m])
                for r in R[2*m:2*m+2]: a(r)
        if t == 17: a(f"global_load_dwordx2 v[{TMP+10+2}:{TMP+10+3}], v7, s[18:19] {SC}")
    stamp(3)
    a(f"""
    v_cmp_gt_u32 vcc, 32, v2
    s_mov_b32 s60, {hex(f2u(CSCALE))}
    s_mov_b32 s61, s60
    s_nop 3
    """)
    PK = 128
    for i in range(2):
        A = ACC + 48*i
        P = PK + 16*i
        for k in range(8): a(f"v_cvt_pk_bf16_f32 v{P+k}, v{A+16+2*k}, v{A+16+2*k+1}")
        a(f"v_cndmask_b32 v{P+6}, v30, v{P+6}, vcc")
        a(f"v_cndmask_b32 v{P+7}, v31, v{P+7}, vcc")
        a(f"buffer_store_dwordx4 {vr(P,4)}, v29, {WS_SRD}, s55 offen {SC}")
        a(f"buffer_store_dwordx4 {vr(P+4,4)}, v29, {WS_SRD}, s55 offen offset:1024 {SC}")
        for k in range(8): a(f"v_cvt_pk_bf16_f32 v{P+8+k}, v{A+32+2*k}, v{A+32+2*k+1}")
        for k in range(8): a(f"v_cndmask_b32 v{P+8+k}, v1, v{P+8+k}, s[56:57]")
        a(f"buffer_store_dwordx4 {vr(P+8,4)}, v3, {WS_SRD}, s55 offen offset:2048 {SC}")
        a(f"buffer_store_dwordx4 {vr(P+12,4)}, v3, {WS_SRD}, s55 offen offset:3072 {SC}")
        if i == 0: a("s_add_u32 s55, s55, 4096")
    for i in range(2):
        P = PK + 16*i
        a(f"ds_write_b128 v168, {vr(P,4)} offset:{4096*i}")
        a(f"ds_write_b128 v168, {vr(P+4,4)} offset:{4096*i+1024}")
        a(f"ds_write_b128 v169, {vr(P+8,4)} offset:{4096*i+2048}")
        a(f"ds_write_b128 v169, {vr(P+12,4)} offset:{4096*i+3072}")
    for i in range(2):
        A = ACC + 48*i
        for k in range(8): a(f"v_pk_mul_f32 {vr(A+2*k,2)}, {vr(A+2*k,2)}, s[60:61]")
        for k in range(8): a(f"v_cvt_pk_bf16_f32 v{Q+8*i+k}, v{A+2*k}, v{A+2*k+1}")
        a(f"v_cndmask_b32 v{Q+8*i+6}, 0, v{Q+8*i+6}, vcc")
        a(f"v_cndmask_b32 v{Q+8*i+7}, 0, v{Q+8*i+7}, vcc")
        a(f"ds_write_b128 v170, {vr(Q+8*i,4)} offset:{2048*i}")
        a(f"ds_write_b128 v170, {vr(Q+8*i+4,4)} offset:{2048*i+1024}")
    a(f"""
    s_waitcnt vmcnt(8)
    v_mov_b32 v{TMP}, v{TMP+12}
    v_mov_b32 v{TMP+1}, v{TMP+13}
    s_nop 0
    """)
    tag_check("L_tagc")
    if not opt("lateflag"):
        a("s_waitcnt vmcnt(0)")
        flag_store("s10")
    a("""
    s_waitcnt lgkmcnt(0)
    s_barrier
    """)

def unit(u, first_stage=False, hooks=None):
    t = u >> 1
    cur = S + 16*(u & 3); nxt = S + 16*((u+1) & 3); prv = S + 16*((u-1) & 3)
    tn = (u+1) >> 1; subn = (u+1) & 1
    tp = (u-1) >> 1; subp = (u-1) & 1
    kf = KF + 8*(tn & 1); vf = VF + 8*(tp & 1)
    R = []
    if (u & 1) == 0:
        kb = KF + 8*((t+1) & 1); vb = VF + 8*(t & 1)
        if t < 3:
            R.append(f"ds_read_b128 {vr(kb,4)}, v{VA} offset:{(t+1)*4096}")
            R.append(f"ds_read_b128 {vr(kb+4,4)}, v{VA} offset:{(t+1)*4096+1024}")
        elif not first_stage:
            R.append(f"ds_read_b128 {vr(kb,4)}, v{VB}")
            R.append(f"ds_read_b128 {vr(kb+4,4)}, v{VB} offset:1024")
        R.append(f"ds_read_b128 {vr(vb,4)}, v{VA} offset:{t*4096+2048}")
        R.append(f"ds_read_b128 {vr(vb+4,4)}, v{VA} offset:{t*4096+3072}")
    else:
        a("s_waitcnt lgkmcnt(0)")
    if opt("bunch"):
        for r in R: a(r)
    qn = Q + 8*subn; op = O + 16*subp
    M = [f"v_mfma_f32_32x32x16_bf16 {vr(nxt,16)}, {vr(kf,4)}, {vr(qn,4)}, 0",
         f"v_mfma_f32_32x32x16_bf16 {vr(nxt,16)}, {vr(kf+4,4)}, {vr(qn+4,4)}, {vr(nxt,16)}",
         f"v_smfmac_f32_32x32x32_bf16 {vr(op,16)}, {vr(vf,4)}, {vr(prv,8)}, v{IDX}",
         f"v_smfmac_f32_32x32x32_bf16 {vr(op,16)}, {vr(vf+4,4)}, {vr(prv+8,8)}, v{IDX}"]
    if first_stage and u == 0: M[2] = M[3] = None
    if first_stage and u == 7: M[0] = M[1] = None
    for m in range(4):
        if M[m]: a(M[m])
        for e in range(4):
            a(f"v_exp_f32 v{cur+4*m+e}, v{cur+4*m+e}")
            if e == 1 and m < len(R) and not opt("bunch"): a(R[m])

def kv_dma(m0expr):
    a(m0expr)
    for q in range(4): a(f"buffer_load_dwordx4 v3, {WS_SRD}, s6 offen offset:{q*1024} {SC} lds")

def next_chunk():
    a(f"""
    s_add_u32 s5, s5, 1
    s_and_b32 s5, s5, 7
    s_lshl_b32 s6, s5, 15
    s_add_u32 s6, s6, s4
    """)

def attention():
    PU = int(ARGS[ARGS.index('--pu')+1]) if opt('pu') else 2
    CU_ = int(ARGS[ARGS.index('--cu')+1]) if opt('cu') else 4
    a("L_attn:")
    a(f"""
    ds_read_b128 {vr(KF,4)}, v{VA}
    ds_read_b128 {vr(KF+4,4)}, v{VA} offset:1024
    s_waitcnt lgkmcnt(0)
    v_mfma_f32_32x32x16_bf16 {vr(S,16)}, {vr(KF,4)}, {vr(Q,4)}, 0
    v_mfma_f32_32x32x16_bf16 {vr(S,16)}, {vr(KF+4,4)}, {vr(Q+4,4)}, {vr(S,16)}
    s_nop 11
    """)
    stamp(4)
    for u in range(8):
        if opt("prio") and (u & 1) == 0: a(f"s_setprio {[3,2,1,0][u//2]}")
        unit(u, first_stage=True)
        if u == 1 and opt("lateflag"):
            a(f"""
            s_cmp_lg_u32 s{sKH}, 0
            s_cbranch_scc1 L_noflag
            s_waitcnt vmcnt(0)
            """)
            flag_store("s10")
            a("L_noflag:")
        if u == PU:
            poll_issue(PA, "s9")
        if u == CU_:
            stamp(5)
            poll_check("L_kvp", PA, "s9")
            stamp(6)
            next_chunk()
            kv_dma(f"s_add_u32 m0, s8, {SLOT}\ns_nop 0")
            next_chunk()
            kv_dma(f"s_add_u32 m0, s8, {2*SLOT}\ns_nop 0")
    a(f"""
    v_mov_b32 v{VA}, v{VB}
    v_add_u32 v{VB}, {SLOT}, v{VA}
    s_waitcnt vmcnt(4)
    s_barrier
    ds_read_b128 {vr(KF,4)}, v{VA}
    ds_read_b128 {vr(KF+4,4)}, v{VA} offset:1024
    s_waitcnt lgkmcnt(0)
    v_mfma_f32_32x32x16_bf16 {vr(S,16)}, {vr(KF,4)}, {vr(Q,4)}, 0
    v_mfma_f32_32x32x16_bf16 {vr(S,16)}, {vr(KF+4,4)}, {vr(Q+4,4)}, {vr(S,16)}
    s_nop 11
    """)
    stamp(7)
    a(".p2align 6")
    a("L_loop:")
    for u in range(8):
        if opt("prio") and (u & 1) == 0: a(f"s_setprio {[2,1,0,3][u//2]}")
        if u == 6:
            a(f"""
            s_waitcnt vmcnt(0)
            s_barrier
            s_mov_b32 m0, s13
            s_add_u32 s13, s13, 8192
            buffer_load_dwordx4 v{WOA}, {WO_SRD}, s11 offen {SCIN} lds
            s_add_u32 s11, s11, {64*896}
            s_cmp_gt_u32 s68, 5
            s_cbranch_scc1 L_nodma
            """)
            next_chunk()
            kv_dma("s_add_u32 m0, s8, s69\ns_nop 0")
            a("L_nodma:")
        unit(u)
    a(f"""
    v_mov_b32 v{VA}, v{VB}
    s_add_u32 s53, s69, s7
    v_add_u32 v{VB}, s53, v3
    s_add_u32 s69, s69, {SLOT}
    s_cmp_eq_u32 s69, {3*SLOT}
    s_cselect_b32 s69, 0, s69
    s_add_u32 s68, s68, 1
    s_cmp_lt_u32 s68, 8
    s_cbranch_scc1 L_loop
    """)
    if opt("prio"): a("s_setprio 0")
    stamp(8)
    a(f"""
    v_smfmac_f32_32x32x32_bf16 {vr(O+16,16)}, {vr(VF+8,4)}, {vr(S+48,8)}, v{IDX}
    v_smfmac_f32_32x32x32_bf16 {vr(O+16,16)}, {vr(VF+12,4)}, {vr(S+56,8)}, v{IDX}
    s_cmp_eq_u32 s{sKH}, 0
    s_cbranch_scc1 L_kh0
    """)
    for q in range(4): a(f"ds_write_b128 v{EXA}, {vr(O+4*q,4)} offset:{q*1024}")
    for r in range(8): a(f"v_mov_b32 v{Q+r}, v{Q+8+r}")
    a("s_waitcnt vmcnt(0) lgkmcnt(0)")
    a("s_barrier")
    for q in range(4): a(f"ds_read_b128 {vr(S+16+4*q,4)}, v{EXB} offset:{q*1024}")
    a("s_waitcnt lgkmcnt(0)")
    for r in range(8): a(f"v_pk_add_f32 {vr(S+2*r,2)}, {vr(O+16+2*r,2)}, {vr(S+16+2*r,2)}")
    a("s_branch L_norm")
    a("L_kh0:")
    a(f"""
    v_mov_b32 v{TMP+8}, 0
    v_mov_b32 v{TMP+9}, 0
    ds_write_b64 v{PA}, v[{TMP+8}:{TMP+9}] offset:57344
    s_nop 7
    """)
    for q in range(4): a(f"ds_write_b128 v{EXA}, {vr(O+16+4*q,4)} offset:{q*1024}")
    a("s_waitcnt vmcnt(0) lgkmcnt(0)")
    a("s_barrier")
    for q in range(4): a(f"ds_read_b128 {vr(S+16+4*q,4)}, v{EXB} offset:{q*1024}")
    a("s_waitcnt lgkmcnt(0)")
    for r in range(8): a(f"v_pk_add_f32 {vr(S+2*r,2)}, {vr(O+2*r,2)}, {vr(S+16+2*r,2)}")
    a("L_norm:")
    a(f"""
    v_mov_b32 v{S+32}, v{S+12}
    v_mov_b32 v{S+33}, v{S+12}
    s_mov_b32 s54, 0x2f800000        ; 2^-32
    s_mov_b32 s62, 0x57800000        ; 2^48
    v_permlane32_swap_b32 v{S+32}, v{S+33}
    s_nop 1
    v_rcp_f32 v{S+34}, v{S+33}
    v_cmp_ge_f32 vcc, v{S+33}, s54
    v_cmp_le_f32 s[56:57], v{S+33}, s62
    s_nop 1
    s_and_b64 s[56:57], s[56:57], vcc
    s_cmp_eq_u64 s[56:57], -1
    s_cbranch_scc0 L_fallback
    L_norm2:
    v_cmp_gt_u32 vcc, 32, v2
    """)
    for r in range(8): a(f"v_pk_mul_f32 {vr(S+2*r,2)}, {vr(S+2*r,2)}, {vr(S+34,2)} op_sel_hi:[1,0]")
    for i in range(4): a(f"v_cvt_pk_bf16_f32 v{S+16+i}, v{S+2*i}, v{S+2*i+1}")
    a(f"buffer_store_dwordx4 {vr(S+16,4)}, v3, {WS_SRD}, s14 offen {SC}")
    for i in range(4, 8): a(f"v_cvt_pk_bf16_f32 v{S+16+i}, v{S+2*i}, v{S+2*i+1}")
    a(f"v_cndmask_b32 v{S+22}, 0, v{S+22}, vcc")
    a(f"v_cndmask_b32 v{S+23}, 0, v{S+23}, vcc")
    a(f"buffer_store_dwordx4 {vr(S+20,4)}, v3, {WS_SRD}, s14 offen offset:1024 {SC}")

def p3():
    OFR = 96; ACC = 16; WF = 48; WA = 160+16-16
    WA = 56+8
    for i in range(8):
        a(f"""
        s_add_u32 s62, s3, {i}
        s_and_b32 s62, s62, 7
        s_lshl_b32 s{54+i}, s62, 11
        s_add_u32 s{54+i}, s{54+i}, s17
        s_mul_i32 s62, s62, {28*128}
        v_add_u32 v{WA+2*i}, s62, v{P3A}
        v_xor_b32 v{WA+1+2*i}, 64, v{WA+2*i}
        """)
    a("s_waitcnt vmcnt(0)")
    flag_store("s15")
    stamp(9)
    a(f"""
    s_cmp_ge_u32 s23, 28
    s_cbranch_scc1 L_fin
    """)
    if not opt("nobar9"): a("s_barrier")
    poll_issue(PA, "s16")
    def rd(t):
        i, s = divmod(t, 2)
        for ctile in range(2):
            for eh in range(2):
                a(f"ds_read_b64_tr_b16 {vr(WF+8*(t&1)+4*ctile+2*eh,2)}, v{WA+2*i+ctile} offset:{(16*s+8*eh)*128}")
    rd(0)
    poll_check("L_op", PA, "s16", 62, 63)
    stamp(10)
    for t in range(16):
        a(f"buffer_load_dwordx4 {vr(OFR+4*t,4)}, v3, {WS_SRD}, s{54+t//2} offen offset:{(t%2)*1024} {SC}")
    for t in range(16):
        if t < 15: rd(t+1)
        a(f"s_waitcnt vmcnt({15-t}) lgkmcnt({4 if t < 15 else 0})")
        order = (0, 1)
        for ctile in order:
            acc = vr(ACC+16*ctile, 16)
            a(f"v_mfma_f32_32x32x16_bf16 {acc}, {vr(WF+8*(t&1)+4*ctile,4)}, {vr(OFR+4*t,4)}, {'0' if t == 0 else acc}")
    stamp(11)
    D = -2*SLOT
    a(f"""
    v_subrev_u32 v{EXA}, {2*SLOT}, v{EXA}
    v_subrev_u32 v{EXB}, {2*SLOT}, v{EXB}
    s_cmp_eq_u32 s{sKH}, 0
    s_nop 8
    s_cbranch_scc1 L_p3kh0
    """)
    for q in range(4): a(f"ds_write_b128 v{EXA}, {vr(ACC+4*q,4)} offset:{q*1024}")
    a("s_waitcnt lgkmcnt(0)")
    a("s_barrier")
    for q in range(4): a(f"ds_read_b128 {vr(80+4*q,4)}, v{EXB} offset:{q*1024}")
    a("s_waitcnt lgkmcnt(0)")
    for r in range(8): a(f"v_pk_add_f32 {vr(64+2*r,2)}, {vr(ACC+16+2*r,2)}, {vr(80+2*r,2)}")
    a("s_branch L_p3join")
    a("L_p3kh0:")
    for q in range(4): a(f"ds_write_b128 v{EXA}, {vr(ACC+16+4*q,4)} offset:{q*1024}")
    a("s_waitcnt lgkmcnt(0)")
    a("s_barrier")
    for q in range(4): a(f"ds_read_b128 {vr(80+4*q,4)}, v{EXB} offset:{q*1024}")
    a("s_waitcnt lgkmcnt(0)")
    for r in range(8): a(f"v_pk_add_f32 {vr(64+2*r,2)}, {vr(ACC+2*r,2)}, {vr(80+2*r,2)}")
    a("L_p3join:")
    P = 96
    OS = "sc1" if opt("outsc1") else ("nt" if opt("outnt") else "")
    for i in range(8): a(f"v_cvt_pk_bf16_f32 v{P+i}, v{64+2*i}, v{64+2*i+1}")
    a("s_nop 1")
    for gp in range(2):
        a(f"v_permlane32_swap_b32 v{P+4*gp}, v{P+4*gp+2}")
        a(f"v_permlane32_swap_b32 v{P+4*gp+1}, v{P+4*gp+3}")
    for gp in range(2):
        a(f"buffer_store_dwordx4 {vr(P+4*gp,4)}, v{OUTA}, {OUT_SRD}, 0 offen offset:{gp*32} {OS}")
    a("L_fin:")
    if STAMP: a("s_waitcnt vmcnt(0)")
    stamp(12)
    stamp_flush(13)
    a("L_end:")
    a("s_endpgm")

def fallback():
    T = S + 16
    K0 = KF; M = S + 35
    a("L_fallback:")
    a(f"""
    s_lshl_b32 s58, s{sPAIR}, 18
    s_mov_b32 s59, 64
    v_mov_b32 v{M}, 0xff800000
    L_fb1:
    buffer_load_dwordx4 {vr(K0,4)}, v3, {WS_SRD}, s58 offen {SC}
    buffer_load_dwordx4 {vr(K0+4,4)}, v3, {WS_SRD}, s58 offen offset:1024 {SC}
    s_waitcnt vmcnt(0)
    v_mfma_f32_32x32x16_bf16 {vr(T,16)}, {vr(K0,4)}, {vr(Q,4)}, 0
    v_mfma_f32_32x32x16_bf16 {vr(T,16)}, {vr(K0+4,4)}, {vr(Q+4,4)}, {vr(T,16)}
    s_add_u32 s58, s58, 4096
    s_sub_u32 s59, s59, 1
    s_nop 15
    """)
    for i in range(8): a(f"v_max3_f32 v{M}, v{M}, v{T+2*i}, v{T+2*i+1}")
    a(f"""
    s_cmp_lg_u32 s59, 0
    s_cbranch_scc1 L_fb1
    v_mov_b32 v{M+1}, v{M}
    s_nop 1
    v_permlane32_swap_b32 v{M}, v{M+1}
    s_nop 1
    v_max_f32 v{M}, v{M}, v{M+1}
    v_sub_f32 v{M}, 0, v{M}                ; -max
    v_and_b32 v{M+1}, 0xffff0000, v{M}     ; hi
    v_sub_f32 v{M+2}, v{M}, v{M+1}
    v_and_b32 v{M+3}, 0xffff0000, v{M+2}   ; mid
    v_sub_f32 v{M+2}, v{M+2}, v{M+3}       ; lo
    v_lshrrev_b32 v{M+1}, 16, v{M+1}
    v_or_b32 v{M+1}, v{M+1}, v{M+3}
    v_lshrrev_b32 v{M+2}, 16, v{M+2}
    v_cmp_gt_u32 vcc, 32, v2
    s_lshl_b32 s58, s{sPAIR}, 18
    s_mov_b32 s59, 64
    v_cndmask_b32 v{Q+6}, v{M+1}, v{Q+6}, vcc
    v_cndmask_b32 v{Q+7}, v{M+2}, v{Q+7}, vcc
    """)
    for r in range(16): a(f"v_mov_b32 v{S+r}, 0")
    a(f"""
    L_fb2:
    buffer_load_dwordx4 {vr(K0,4)}, v3, {WS_SRD}, s58 offen {SC}
    buffer_load_dwordx4 {vr(K0+4,4)}, v3, {WS_SRD}, s58 offen offset:1024 {SC}
    buffer_load_dwordx4 {vr(K0+8,4)}, v3, {WS_SRD}, s58 offen offset:2048 {SC}
    buffer_load_dwordx4 {vr(K0+12,4)}, v3, {WS_SRD}, s58 offen offset:3072 {SC}
    s_waitcnt vmcnt(0)
    v_mfma_f32_32x32x16_bf16 {vr(T,16)}, {vr(K0,4)}, {vr(Q,4)}, 0
    v_mfma_f32_32x32x16_bf16 {vr(T,16)}, {vr(K0+4,4)}, {vr(Q+4,4)}, {vr(T,16)}
    s_add_u32 s58, s58, 4096
    s_sub_u32 s59, s59, 1
    s_nop 15
    """)
    for i in range(16): a(f"v_exp_f32 v{T+i}, v{T+i}")
    a(f"""
    s_nop 1
    v_smfmac_f32_32x32x32_bf16 {vr(S,16)}, {vr(K0+8,4)}, {vr(T,8)}, v{IDX}
    v_smfmac_f32_32x32x32_bf16 {vr(S,16)}, {vr(K0+12,4)}, {vr(T+8,8)}, v{IDX}
    s_cmp_lg_u32 s59, 0
    s_cbranch_scc1 L_fb2
    s_nop 15
    v_mov_b32 v{S+32}, v{S+12}
    v_mov_b32 v{S+33}, v{S+12}
    s_nop 1
    v_permlane32_swap_b32 v{S+32}, v{S+33}
    s_nop 1
    v_rcp_f32 v{S+34}, v{S+33}
    s_branch L_norm2
    """)

prologue(); loader(); compute(); attention(); p3(); fallback()
a(kdesc(N, 216, 102))
hdr = f"; @launch grid=(256,1,1) block=(512,1,1) lds={LDS_BYTES}\n" + '.amdgcn_target "amdgcn-amd-amdhsa--gfx950"\n'
open(sys.argv[1], "w").write(hdr + a.text())
```

```python
import sys, struct
from asmlib import *

KV_OFF = 0
OF_OFF = 8 << 20
FL_OFF = 12 << 20
FO_OFF = (12 << 20) + 65536
WS_USED = 13 << 20
ST_OFF = 32 << 20
CSCALE = 28 ** -0.5 * 1.4426950408889634
def f2u(x): return struct.unpack("<I", struct.pack("<f", x))[0]
ARGS = sys.argv[2:]
def opt(name): return ("--" + name) in ARGS
def val(name, d): return int(ARGS[ARGS.index("--" + name) + 1]) if opt(name) else d
STAMP = opt("stamp")
N = "concat_heads__softmax_full_mha__mha_block__prompt_kernel"
SC = "sc1"
SPIN_MAX = 100000
SLEEP = val("sleep", 2)

WR0 = 114688
A0, A1, A2 = 65536, 98304, 131072
LDS_BYTES = 163840
def wslot(i): return WR0 + ((i + 2) % 3) * 16384

a = Asm()
def stamp(idx):
    if not STAMP: return
    a(f"""
    s_memtime s[64:65]
    s_memrealtime s[66:67]
    s_waitcnt lgkmcnt(0)
    s_mov_b32 s{70+2*idx}, s64
    s_mov_b32 s{71+2*idx}, s66
    """)
def stamp_flush(n):
    if not STAMP: return
    a(f"""
    s_lshl_b32 s66, s2, 4
    s_add_u32 s66, s66, s27
    s_lshl_b32 s66, s66, 7
    s_add_u32 s66, s66, {ST_OFF}
    s_add_u32 s64, s20, s66
    s_addc_u32 s65, s21, 0
    v_mov_b32 v0, 0
    s_mov_b64 exec, 1
    """)
    for i in range(n):
        a(f"""
        v_mov_b32 v4, s{70+2*i}
        v_mov_b32 v5, s{71+2*i}
        global_store_dwordx2 v0, v[4:5], s[64:65] offset:{8*i}
        s_nop 1
        """)

sB, sJ, sHP, sW, sG, sKH, sHD = 24, 25, 26, 27, 48, 49, 52
X_SRD, W_SRD, WS_SRD, WO_SRD, OUT_SRD = "s[28:31]", "s[32:35]", "s[36:39]", "s[40:43]", "s[44:47]"
TAG = 50
IDX, VA, VC = 4, 5, 6
Q, O, S, KF, VF = 8, 176, 64, 128, 144
TMP = 160
PA, WOA, EXA, EXB, P3A, OUTA, PWA, PRA = 208, 209, 210, 211, 212, 213, 214, 215
NV = 256

def tag_check(lbl, v):
    a(f"""
    s_mov_b32 s53, {SPIN_MAX}
    {lbl}_chk:
    v_readfirstlane_b32 s{TAG}, v{v}
    v_readfirstlane_b32 s{TAG+1}, v{v+1}
    s_nop 1
    s_cmp_lg_u64 s[{TAG}:{TAG+1}], 0
    s_cbranch_scc1 {lbl}_ok
    s_sub_u32 s53, s53, 1
    s_cbranch_scc1 {lbl}_ok
    global_load_dwordx2 v[{v}:{v+1}], v7, s[18:19] {SC}
    s_waitcnt vmcnt(0)
    s_branch {lbl}_chk
    {lbl}_ok:
    """)
def poll_issue(soff, mask):
    a(f"""
    s_mov_b64 exec, {hex(mask)}
    buffer_load_dwordx2 v[{TMP}:{TMP+1}], v{PA}, {WS_SRD}, {soff} offen {SC}
    s_mov_b64 exec, -1
    """)
def poll_check(lbl, soff, mask, t0=53, t1=54):
    a(f"""
    s_mov_b32 s{t0}, {SPIN_MAX}
    {lbl}_chk:
    s_waitcnt vmcnt(0)
    v_cmp_eq_u64 vcc, s[{TAG}:{TAG+1}], v[{TMP}:{TMP+1}]
    s_nop 1
    s_and_b32 s{t1}, vcc_lo, {hex(mask)}
    s_cmp_eq_u32 s{t1}, {hex(mask)}
    s_cbranch_scc1 {lbl}_ok
    s_sub_u32 s{t0}, s{t0}, 1
    s_cbranch_scc1 {lbl}_ok
    s_sleep {SLEEP}
    """)
    poll_issue(soff, mask)
    a(f"""
    s_branch {lbl}_chk
    {lbl}_ok:
    """)
def flag_store(soff, v=TMP+2):
    a(f"""
    v_mov_b32 v{v}, s{TAG}
    v_mov_b32 v{v+1}, s{TAG+1}
    s_mov_b64 exec, 1
    buffer_store_dwordx2 v[{v}:{v+1}], v7, {WS_SRD}, {soff} offen {SC}
    s_mov_b64 exec, -1
    """)

def prologue():
    a(khead(N))
    a(f"""
    s_cmp_ge_u32 s2, 256
    s_cbranch_scc1 L_end
    """)
    stamp(0)
    a(f"""
    s_load_dwordx16 s[4:19], s[0:1], 0
    s_load_dwordx2 s[20:21], s[0:1], 64
    s_and_b32 s22, s2, 7          ; xcd
    s_lshr_b32 s23, s2, 3         ; r
    s_lshr_b32 s{sB}, s22, 2
    s_bfe_u32 s25, s22, 0x10001
    s_lshl_b32 s25, s25, 3
    s_and_b32 s53, s23, 7
    s_add_u32 s{sJ}, s25, s53     ; jj
    s_and_b32 s26, s22, 1
    s_lshl_b32 s26, s26, 2
    s_lshr_b32 s54, s23, 3
    s_add_u32 s{sHP}, s26, s54    ; hp
    s_lshl_b32 s54, s54, 1
    s_add_u32 s54, s54, s53       ; 0..13
    s_sub_u32 s53, s54, 7
    s_cmp_ge_u32 s54, 7
    s_cselect_b32 s54, s53, s54
    v_lshrrev_b32 v1, 6, v0
    v_and_b32 v2, 63, v0          ; lane
    v_mov_b32 v7, 0
    v_readfirstlane_b32 s{sW}, v1
    v_lshlrev_b32 v3, 4, v2       ; lane*16
    s_waitcnt lgkmcnt(0)
    s_cmp_eq_u32 s{sB}, 0
    s_cselect_b32 s28, s4, s10
    s_cselect_b32 s29, s5, s11
    s_mov_b32 s30, 1835008
    s_mov_b32 s31, 0x20000
    s_cselect_b32 s32, s6, s12
    s_cselect_b32 s33, s7, s13
    s_mov_b32 s34, 1204224
    s_mov_b32 s35, 0x20000
    s_mov_b32 s36, s20
    s_mov_b32 s37, s21
    s_mov_b32 s38, {WS_USED}
    s_mov_b32 s39, 0x20000
    s_cselect_b32 s40, s8, s14
    s_cselect_b32 s41, s9, s15
    s_mov_b32 s42, 401408
    s_mov_b32 s43, 0x20000
    s_mov_b32 s44, s16
    s_mov_b32 s45, s17
    s_mov_b32 s46, 3670016
    s_mov_b32 s47, 0x20000
    s_and_b32 s{sG}, s{sW}, 3
    s_lshr_b32 s{sKH}, s{sW}, 2
    s_cmp_eq_u32 s{sKH}, 0
    s_cbranch_scc1 L_compute
    """)

def setup():
    a(f"""
    v_mov_b32 v{IDX}, 0xdddddddd
    s_lshl_b32 s62, s{sB}, 3
    s_add_u32 s62, s62, s{sHP}            ; b*8+hp
    s_lshl_b32 s9, s62, 9
    s_add_u32 s9, s9, {FL_OFF}
    s_lshl_b32 s62, s62, 1                ; b*16 + 2hp
    s_lshr_b32 s63, s{sG}, 1              ; hd
    s_add_u32 s{sHD}, s62, s63
    s_lshl_b32 s7, s63, 14
    s_lshl_b32 s63, s{sKH}, 13
    s_add_u32 s7, s7, s63
    s_add_u32 s7, s7, {A0}
    v_add_u32 v{VA}, s7, v3
    v_add_u32 v{VC}, {A2-A0}, v{VA}
    s_add_u32 s62, s62, s{sKH}
    s_lshl_b32 s4, s62, 6
    s_add_u32 s4, s4, s{sG}
    s_lshl_b32 s4, s4, 12
    s_and_b32 s5, s{sJ}, 8
    s_sub_u32 s5, s5, 1
    {f"s_mov_b32 s5, s{sJ}" if opt("ownrot") else ""}
    s_lshl_b32 s8, s{sW}, 12
    s_lshl_b32 s10, s{sG}, 7
    s_add_u32 s10, s10, s9
    s_lshl_b32 s62, s{sJ}, 3
    s_add_u32 s10, s10, s62
    s_lshr_b32 s62, s{sW}, 1
    s_lshl_b32 s62, s62, 7
    s_add_u32 s9, s9, s62
    v_lshlrev_b32 v{PA}, 3, v2
    s_mul_i32 s62, s23, 37
    s_lshr_b32 s62, s62, 8                ; r/7
    s_mul_i32 s3, s62, 7
    s_sub_u32 s3, s23, s3                 ; ct
    s_lshl_b32 s12, s22, 2
    s_add_u32 s12, s12, s62
    s_lshl_b32 s12, s12, 2
    s_add_u32 s12, s12, s{sG}
    v_lshrrev_b32 v{WOA}, 3, v2
    v_and_b32 v{EXA}, 7, v2
    v_bfe_u32 v{EXB}, v2, 4, 1
    v_lshlrev_b32 v{EXB}, 2, v{EXB}
    v_xor_b32 v{EXA}, v{EXA}, v{EXB}
    v_mul_u32_u24 v{WOA}, 896, v{WOA}
    v_lshl_add_u32 v{WOA}, v{EXA}, 4, v{WOA}
    s_mul_i32 s62, s{sW}, {8*896}
    s_lshl_b32 s63, s3, 7
    s_add_u32 s62, s62, s63
    v_add_u32 v{WOA}, s62, v{WOA}
    s_mov_b32 s11, 0
    s_lshl_b32 s13, s{sW}, 10
    s_add_u32 s69, s13, {7*8192}
    s_lshl_b32 s62, s{sW}, 12
    s_add_u32 s63, s62, {A0}
    v_add_u32 v{EXA}, s63, v3
    s_xor_b32 s62, s62, 16384
    s_add_u32 s62, s62, {A0}
    v_add_u32 v{EXB}, s62, v3
    s_lshl_b32 s62, s{sB}, 4
    s_add_u32 s62, s62, s{sJ}
    s_lshl_b32 s62, s62, 1
    s_and_b32 s63, s{sG}, 1
    s_add_u32 s62, s62, s63
    s_lshl_b32 s62, s62, 1
    s_add_u32 s62, s62, s{sKH}
    s_lshl_b32 s62, s62, 4
    s_and_b32 s63, s{sHD}, 15
    s_add_u32 s62, s62, s63
    s_lshl_b32 s15, s62, 3
    s_add_u32 s15, s15, {FO_OFF}
    s_lshl_b32 s14, s62, 11
    s_add_u32 s14, s14, {OF_OFF}
    s_lshl_b32 s16, s12, 7
    s_lshl_b32 s62, s{sKH}, 6
    s_add_u32 s16, s16, s62
    s_add_u32 s16, s16, {FO_OFF}
    s_lshl_b32 s17, s12, 15
    s_lshl_b32 s62, s{sKH}, 14
    s_add_u32 s17, s17, s62
    s_add_u32 s17, s17, {OF_OFF}
    v_lshrrev_b32 v216, 5, v2             ; hh
    v_bfe_u32 v217, v2, 2, 2
    v_lshl_add_u32 v{P3A}, v216, 2, v217
    v_lshlrev_b32 v{P3A}, 7, v{P3A}
    v_bfe_u32 v217, v2, 4, 1
    v_lshl_add_u32 v{P3A}, v217, 5, v{P3A}
    v_and_b32 v217, 3, v2
    v_lshl_add_u32 v{P3A}, v217, 3, v{P3A}
    v_bfe_u32 v217, v2, 3, 1
    v_lshl_add_u32 v{P3A}, v217, 6, v{P3A}
    s_mul_i32 s62, s{sKH}, {8*28*128}
    v_add_u32 v{P3A}, s62, v{P3A}
    v_and_b32 v217, 31, v2
    v_and_b32 v218, 7, v2
    v_xor_b32 v218, v216, v218
    v_lshlrev_b32 v218, 4, v218
    v_lshl_add_u32 v{PWA}, v217, 8, v218
    s_lshl_b32 s62, s{sW}, 13
    s_add_u32 s62, s62, {A1}
    v_add_u32 v{PWA}, s62, v{PWA}
    v_lshrrev_b32 v217, 3, v2
    v_and_b32 v218, 7, v2
    v_lshlrev_b32 v219, 1, v218
    v_xor_b32 v219, v219, v217
    v_lshlrev_b32 v219, 4, v219
    v_lshl_add_u32 v{PRA}, v217, 8, v219
    s_lshl_b32 s62, s{sG}, 13
    s_lshl_b32 s63, s{sKH}, 12
    s_add_u32 s62, s62, s63
    s_add_u32 s62, s62, {A1}
    v_add_u32 v{PRA}, s62, v{PRA}
    s_and_b32 s62, s12, 63
    s_lshl_b32 s62, s62, 5
    s_lshl_b32 s63, s{sKH}, 4
    s_add_u32 s62, s62, s63
    v_add_u32 v217, s62, v217
    v_mul_u32_u24 v217, 1792, v217
    v_lshl_add_u32 v{OUTA}, v218, 4, v217
    s_mul_i32 s62, s{sB}, 896
    s_lshl_b32 s63, s3, 7
    s_add_u32 s62, s62, s63
    v_add_u32 v{OUTA}, s62, v{OUTA}
    s_mov_b32 s68, 0
    """)
    if not opt("oflags"):
        a(f"""
        s_lshl_b32 s15, s{sB}, 4
        s_add_u32 s15, s15, s{sJ}
        s_lshl_b32 s15, s15, 7
        s_lshl_b32 s62, s{sHP}, 3
        s_add_u32 s15, s15, s62
        s_add_u32 s15, s15, {FO_OFF}
        s_lshr_b32 s16, s12, 2
        s_lshl_b32 s16, s16, 7
        s_add_u32 s16, s16, {FO_OFF}
        s_cmp_eq_u32 s{sW}, 0
        s_cselect_b32 s98, 1, 99
        v_mov_b32 v220, -1
        v_mov_b32 v221, -1
        v_mov_b32 v222, -1
        v_mov_b32 v223, -1
        """)
    for r in range(O, O+32): a(f"v_mov_b32 v{r}, 0")

def loader():
    a(f"""
    v_lshrrev_b32 v8, 3, v2       ; lane/8
    v_and_b32 v9, 7, v2
    v_lshrrev_b32 v14, 4, v2
    v_xor_b32 v9, v9, v14
    v_xor_b32 v14, 4, v9
    s_lshl_b32 s55, s{sJ}, 7
    s_lshl_b32 s56, s{sG}, 5
    s_add_u32 s55, s55, s56
    s_mul_i32 s55, s55, 896
    v_mul_u32_u24 v8, 896, v8
    v_add_u32 v8, s55, v8
    v_lshl_add_u32 v10, v9, 4, v8
    v_lshl_add_u32 v11, v14, 4, v8
    v_add_u32 v12, {2*6144}, v10
    v_add_u32 v13, {3*6144}, v11
    v_add_u32 v11, {6144}, v11
    s_lshl_b32 s55, s{sG}, 12              ; g*4096
    s_lshl_b32 s57, s54, 7
    s_mov_b32 m0, s55
    s_mul_i32 s58, s54, {64*2688}
    """)
    for q in range(4): a(f"buffer_load_dwordx4 v{10+q}, {X_SRD}, s57 offen offset:{q*1024} {SC} lds")
    a(f"""
    v_lshrrev_b32 v8, 4, v2
    v_and_b32 v9, 15, v2
    v_lshlrev_b32 v20, 2, v8
    v_xor_b32 v9, v9, v20         ; P
    v_lshrrev_b32 v20, 3, v9      ; seg
    v_and_b32 v9, 7, v9
    v_min_u32 v9, 6, v9
    v_mul_u32_u24 v8, 2688, v8
    v_mul_u32_u24 v20, 896, v20
    v_lshlrev_b32 v9, 4, v9
    v_add3_u32 v8, v8, v9, v20
    s_mul_i32 s59, s{sG}, {16*2688}
    s_mul_i32 s60, s{sHP}, 112
    s_add_u32 s59, s59, s60
    s_add_u32 s60, s59, 896
    v_add_u32 v14, s60, v8
    v_add_u32 v15, {4*2688-1024}, v14
    v_add_u32 v16, {2*(4*2688-1024)}, v14
    v_add_u32 v17, {3*(4*2688-1024)}, v14
    """)
    def next_c():
        a("""
        s_add_u32 s54, s54, 1
        s_cmp_eq_u32 s54, 7
        s_cselect_b32 s54, 0, s54
        """)
    def item(i):
        if i < 7:
            if i:
                a(f"""
                s_lshl_b32 s57, s54, 7
                s_add_u32 m0, s55, {i*16384}
                s_mul_i32 s58, s54, {64*2688}
                """)
                for q in range(4): a(f"buffer_load_dwordx4 v{10+q}, {X_SRD}, s57 offen offset:{q*1024} {SC} lds")
            a(f"s_add_u32 m0, s55, {wslot(i)}")
            a("s_nop 0")
            for q in range(4): a(f"buffer_load_dwordx4 v{14+q}, {W_SRD}, s58 offen offset:{q*1024} {SC} lds")
            next_c()
        else:
            for d in range(2):
                if 2*(i-7)+d > 6: break
                a(f"""
                s_add_u32 m0, s56, {wslot(i) + d*8192}
                s_mul_i32 s58, s54, {64*2688}
                """)
                for q in range(2): a(f"buffer_load_dwordx4 v{18+q}, {W_SRD}, s58 offen offset:{q*1024} {SC} lds")
                next_c()
    item(0); item(1)
    a(f"""
    v_lshrrev_b32 v8, 3, v2
    v_and_b32 v9, 7, v2
    v_bfe_u32 v20, v2, 4, 1
    v_lshlrev_b32 v20, 2, v20
    v_xor_b32 v9, v9, v20
    v_min_u32 v9, 6, v9
    v_mul_u32_u24 v8, 2688, v8
    v_lshl_add_u32 v8, v9, 4, v8
    v_add_u32 v18, s59, v8
    v_add_u32 v19, {8*2688-1024}, v18
    s_lshl_b32 s56, s{sG}, 11
    """)
    stamp(1)
    cnt = lambda i: 8 if i < 7 else (4 if i < 10 else (2 if i == 10 else 0))
    for k in range(11):
        a(f"s_waitcnt vmcnt({cnt(k+1)})")
        a("s_barrier")
        if k == 0: stamp(2)
        if k + 2 <= 10: item(k+2)
        if k == 8: setup()
        if k == 9: a(f"global_load_dwordx2 v[{TMP}:{TMP+1}], v7, s[18:19] {SC}")
    tag_check("L_tagl", TMP)
    stamp(3); stamp(4)
    a(f"""
    s_lshl_b32 s55, s{sG}, 12
    v_add_u32 v{TMP+4}, s55, v3
    s_barrier
    """)
    for i in range(4): a(f"ds_read_b128 {vr(Q+4*i,4)}, v{TMP+4} offset:{i*1024}")
    a("s_branch L_attn")

def compute():
    XA = 24
    WK, WV, WQ = 28, 168, 169
    AK, AV, AQ = (32, 64), (48, 80), (96, 112)
    FB = 128
    PK = 32
    a("L_compute:")
    a(f"""
    s_cmp_lg_u32 s2, 0
    s_cbranch_scc1 L_notag
    s_cmp_lg_u32 s{sW}, 0
    s_cbranch_scc1 L_notag
    s_memrealtime s[60:61]
    s_waitcnt lgkmcnt(0)
    s_or_b32 s60, s60, 1
    v_mov_b32 v18, s60
    v_mov_b32 v19, s61
    s_mov_b64 exec, 1
    global_store_dwordx2 v7, v[18:19], s[18:19] {SC}
    s_mov_b64 exec, -1
    L_notag:
    v_and_b32 v8, 31, v2          ; m
    v_lshrrev_b32 v9, 5, v2       ; hh
    v_bfe_u32 v10, v2, 1, 3       ; z
    v_xor_b32 v10, v9, v10
    s_and_b32 s55, s{sG}, 1
    s_lshl_b32 s55, s55, 13
    v_lshlrev_b32 v11, 7, v8
    v_add_u32 v11, s55, v11
    v_lshl_add_u32 v{XA}, v10, 4, v11
    v_xor_b32 v12, 2, v10
    v_lshl_add_u32 v{XA+1}, v12, 4, v11
    v_xor_b32 v12, 4, v10
    v_lshl_add_u32 v{XA+2}, v12, 4, v11
    v_xor_b32 v12, 6, v10
    v_lshl_add_u32 v{XA+3}, v12, 4, v11
    v_bfe_u32 v10, v2, 2, 2       ; r
    v_bfe_u32 v11, v2, 4, 1       ; nhalf
    v_and_b32 v12, 3, v2          ; c4
    v_lshl_add_u32 v11, v11, 2, v12
    s_lshr_b32 s55, s{sG}, 1
    s_mul_i32 s55, s55, 7
    v_add_u32 v11, s55, v11       ; u
    v_lshrrev_b32 v12, 1, v11     ; piece
    v_and_b32 v11, 1, v11
    v_lshlrev_b32 v11, 3, v11     ; half*8
    v_lshl_add_u32 v13, v9, 3, v10      ; 8hh + r
    v_lshlrev_b32 v14, 2, v10
    v_xor_b32 v14, v12, v14             ; piece ^ (r<<2)
    v_lshl_add_u32 v14, v14, 4, v11
    v_lshl_add_u32 v14, v13, 8, v14
    v_add_u32 v{WK}, {WR0}, v14
    v_xor_b32 v{WV}, 128, v{WK}
    v_lshrrev_b32 v14, 1, v10
    v_lshlrev_b32 v14, 2, v14
    v_xor_b32 v14, v12, v14             ; piece ^ ((r>>1)<<2)
    v_lshl_add_u32 v14, v14, 4, v11
    v_lshl_add_u32 v14, v13, 7, v14
    v_add_u32 v{WQ}, {WR0}, v14
    v_and_b32 v29, 0x33, v2
    v_bfe_u32 v10, v2, 2, 1
    v_bfe_u32 v11, v2, 3, 1
    v_lshl_or_b32 v29, v10, 3, v29
    v_lshl_or_b32 v29, v11, 2, v29
    v_lshlrev_b32 v29, 4, v29     ; swap23(lane)*16
    v_cmp_gt_u32 s[56:57], 28, v8
    v_cmp_eq_u32 s[58:59], 28, v8
    v_mov_b32 v30, 0x3f803f80
    v_mov_b32 v31, 0x00003f80
    v_cndmask_b32 v1, 0, v30, s[58:59]
    s_lshl_b32 s60, s{sG}, 13
    s_add_u32 s60, s60, {A2}
    v_add_u32 v170, s60, v29
    v_add_u32 v171, s60, v3
    s_lshl_b32 s60, s{sG}, 12
    v_add_u32 v172, s60, v3
    """)
    setup()
    a(f"""
    s_lshl_b32 s55, s{sHD}, 6
    s_lshl_b32 s60, s{sJ}, 2
    s_add_u32 s55, s55, s60
    s_and_b32 s60, s{sG}, 1
    s_lshl_b32 s60, s60, 1
    s_add_u32 s55, s55, s60
    s_lshl_b32 s55, s55, 12
    s_mov_b32 s60, {hex(f2u(CSCALE))}
    s_mov_b32 s61, s60
    v_cmp_gt_u32 vcc, 32, v2
    """)
    def FB2(t): return (128, 140, 152)[t % 3] if t else 128
    def xoff(i): return (i if i < 4 else i-4) * 16384
    def reads1(t):
        i, s = divmod(t, 4); b = FB + 16*(t & 1); wo = wslot(i) - WR0
        R = [f"ds_read_b128 {vr(b,4)}, v{XA+s} offset:{xoff(i)}"]
        for rd in range(2): R.append(f"ds_read_b64_tr_b16 {vr(b+8+2*rd,2)}, v{WK} offset:{wo+(16*s+4*rd)*256}")
        for rd in range(2): R.append(f"ds_read_b64_tr_b16 {vr(b+12+2*rd,2)}, v{WV} offset:{wo+(16*s+4*rd)*256}")
        R.append(f"ds_read_b128 {vr(b+4,4)}, v{XA+s} offset:{xoff(i)+4096}")
        return R
    def reads2(t):
        i, s = divmod(t, 4); b = FB2(t); wo = wslot(7 + i//2) - WR0 + (i & 1)*8192
        R = [f"ds_read_b128 {vr(b,4)}, v{XA+s} offset:{xoff(i)}"]
        for rd in range(2): R.append(f"ds_read_b64_tr_b16 {vr(b+8+2*rd,2)}, v{WQ} offset:{wo+(16*s+4*rd)*128}")
        R.append(f"ds_read_b128 {vr(b+4,4)}, v{XA+s} offset:{xoff(i)+4096}")
        return R
    def shift(d): return [f"v_add_u32 v{XA+k}, {d & 0xffffffff}, v{XA+k}" for k in range(4)]
    PFQ = val("pfq", 0)
    a(f"""
    s_mul_i32 s62, s23, {14*2688}
    s_and_b32 s63, s22, 1
    s_mul_i32 s63, s63, 384
    s_add_u32 s62, s62, s63
    v_lshrrev_b32 v8, 2, v2
    v_mul_u32_u24 v8, 2688, v8
    v_and_b32 v9, 3, v2
    v_lshl_add_u32 v8, v9, 7, v8
    v_add_u32 v173, s62, v8
    """)
    def pfq():
        a(f"""
        s_cmp_lg_u32 s{sW}, 0
        s_cbranch_scc1 L_nopfq
        buffer_load_dword v167, v173, {W_SRD}, 0 offen {SC}
        L_nopfq:
        """)
    if PFQ == -1: pfq()
    stamp(1)
    a("s_barrier")
    stamp(2)
    for r in reads1(0): a(r)
    if PFQ == 0: pfq()
    for t in range(28):
        i, s = divmod(t, 4); b = FB + 16*(t & 1)
        cin = lambda r: ("0" if t == 0 else vr(r, 16))
        M = [f"v_mfma_f32_32x32x16_bf16 {vr(AK[0],16)}, {vr(b+8,4)}, {vr(b,4)}, {cin(AK[0])}",
             f"v_mfma_f32_32x32x16_bf16 {vr(AV[0],16)}, {vr(b,4)}, {vr(b+12,4)}, {cin(AV[0])}",
             f"v_mfma_f32_32x32x16_bf16 {vr(AK[1],16)}, {vr(b+8,4)}, {vr(b+4,4)}, {cin(AK[1])}",
             f"v_mfma_f32_32x32x16_bf16 {vr(AV[1],16)}, {vr(b+4,4)}, {vr(b+12,4)}, {cin(AV[1])}"]
        R = reads1(t+1) if t < 27 else reads2(0)
        a("s_waitcnt lgkmcnt(0)")
        if s == 3:
            a(M[0])
            if i == 3:
                for l in shift(65536): a(l)
            if i == 6:
                for l in shift(-65536): a(l)
            a("s_barrier")
            for m in range(1, 4):
                for r in R[2*(m-1):2*(m-1)+2]: a(r)
                a(M[m])
        else:
            for m in range(4):
                a(M[m])
                for r in R[2*m:2*m+2]: a(r)
        if t == 17: a(f"global_load_dwordx2 v[174:175], v7, s[18:19] {SC}")
        if PFQ >= 1 and t == 4*PFQ-1: pfq()
    stamp(3)
    side = []
    for i in range(2):
        for k in range(8): side.append(f"v_cvt_pk_bf16_f32 v{AK[i]+k}, v{AK[i]+2*k}, v{AK[i]+2*k+1}")
        side.append(f"v_cndmask_b32 v{AK[i]+6}, v30, v{AK[i]+6}, vcc")
        side.append(f"v_cndmask_b32 v{AK[i]+7}, v31, v{AK[i]+7}, vcc")
        side.append(f"buffer_store_dwordx4 {vr(AK[i],4)}, v29, {WS_SRD}, s55 offen {SC}")
        side.append(f"buffer_store_dwordx4 {vr(AK[i]+4,4)}, v29, {WS_SRD}, s55 offen offset:1024 {SC}")
        for k in range(8): side.append(f"v_cvt_pk_bf16_f32 v{AV[i]+k}, v{AV[i]+2*k}, v{AV[i]+2*k+1}")
        for k in range(8): side.append(f"v_cndmask_b32 v{AV[i]+k}, v1, v{AV[i]+k}, s[56:57]")
        side.append(f"buffer_store_dwordx4 {vr(AV[i],4)}, v3, {WS_SRD}, s55 offen offset:2048 {SC}")
        side.append(f"buffer_store_dwordx4 {vr(AV[i]+4,4)}, v3, {WS_SRD}, s55 offen offset:3072 {SC}")
        if i == 0: side.append("s_add_u32 s55, s55, 4096")
    PER = val("side", 8)
    if PER >= 100:
        a("s_nop 7")
        for l in side: a(l)
        side = []
    lw = []
    for i in range(2):
        lw += [f"ds_write_b128 v170, {vr(AK[i],4)} offset:{4096*i}", f"ds_write_b128 v170, {vr(AK[i]+4,4)} offset:{4096*i+1024}",
               f"ds_write_b128 v171, {vr(AV[i],4)} offset:{4096*i+2048}", f"ds_write_b128 v171, {vr(AV[i]+4,4)} offset:{4096*i+3072}"]
    FT = val("flagt", 22)
    for r in reads2(1): a(r)
    for t in range(28):
        i, s = divmod(t, 4); b = FB2(t)
        cin = lambda r: ("0" if t == 0 else vr(r, 16))
        M = [f"v_mfma_f32_32x32x16_bf16 {vr(AQ[0],16)}, {vr(b+8,4)}, {vr(b,4)}, {cin(AQ[0])}",
             f"v_mfma_f32_32x32x16_bf16 {vr(AQ[1],16)}, {vr(b+8,4)}, {vr(b+4,4)}, {cin(AQ[1])}"]
        R = reads2(t+2) if t+2 < 28 else []
        bar = (t+2) in (8, 16, 24)
        nw = 2 if t >= 25 else 0
        if bar: a("s_waitcnt lgkmcnt(0)")
        else: a(f"s_waitcnt lgkmcnt({(4 if t < 27 else 0) + nw})")
        a(M[0])
        if t+2 == 16:
            for l in shift(65536): a(l)
        if bar: a("s_barrier")
        for r in R: a(r)
        for l in side[:PER//2]: a(l)
        side = side[PER//2:]
        a(M[1])
        for l in side[:PER//2]: a(l)
        side = side[PER//2:]
        if t >= 24:
            for l in lw[2*(t-24):2*(t-24)+2]: a(l)
        if t == FT:
            assert not side
            a("s_waitcnt vmcnt(8)")
            tag_check("L_tagc", 174)
            a("s_waitcnt vmcnt(0)")
            flag_store("s10", 174)
            stamp(4)
    a("s_nop 7")
    a("s_nop 1")
    for i in range(2):
        A = AQ[i]
        for k in range(8): a(f"v_pk_mul_f32 {vr(A+2*k,2)}, {vr(A+2*k,2)}, s[60:61]")
        for k in range(8): a(f"v_cvt_pk_bf16_f32 v{Q+8*i+k}, v{A+2*k}, v{A+2*k+1}")
        a(f"v_cndmask_b32 v{Q+8*i+6}, 0, v{Q+8*i+6}, vcc")
        a(f"v_cndmask_b32 v{Q+8*i+7}, 0, v{Q+8*i+7}, vcc")
        a(f"ds_write_b128 v172, {vr(Q+8*i,4)} offset:{2048*i}")
        a(f"ds_write_b128 v172, {vr(Q+8*i+4,4)} offset:{2048*i+1024}")
    if FT >= 28:
        a("s_waitcnt vmcnt(8)")
        tag_check("L_tagc", 174)
        a("s_waitcnt vmcnt(0)")
        flag_store("s10", 174)
        stamp(4)
    a("""
    s_waitcnt lgkmcnt(0)
    s_barrier
    """)

def slot_addr(sl):
    return (VA, 0) if sl == 0 else ((VA, 32768) if sl == 1 else (VC, 0))

PEND = []
def unit(u, sl, first=False, hook=None):
    cur = S + 16*(u & 3); nxt = S + 16*((u+1) & 3); prv = S + 16*((u-1) & 3)
    tn = ((u+1) >> 1) & 1; subn = (u+1) & 1
    tp = ((u-1) >> 1) & 1; subp = (u-1) & 1
    kf = KF + 8*tn; vf = VF + 8*tp
    va, off = slot_addr(sl)
    qn = Q + 8*subn; op = O + 16*subp
    M = [f"v_mfma_f32_32x32x16_bf16 {vr(nxt,16)}, {vr(kf,4)}, {vr(qn,4)}, 0",
         f"v_mfma_f32_32x32x16_bf16 {vr(nxt,16)}, {vr(kf+4,4)}, {vr(qn+4,4)}, {vr(nxt,16)}",
         f"v_smfmac_f32_32x32x32_bf16 {vr(op,16)}, {vr(vf,4)}, {vr(prv,8)}, v{IDX}",
         f"v_smfmac_f32_32x32x32_bf16 {vr(op,16)}, {vr(vf+4,4)}, {vr(prv+8,8)}, v{IDX}"]
    E = [f"v_exp_f32 v{cur+e}, v{cur+e}" for e in range(16)]
    if u == 0:
        a(f"ds_read_b128 {vr(KF+8,4)}, v{va} offset:{off+4096}")
        a(f"ds_read_b128 {vr(KF+12,4)}, v{va} offset:{off+4096+1024}")
        a(f"ds_read_b128 {vr(VF,4)}, v{va} offset:{off+2048}")
        a(f"ds_read_b128 {vr(VF+4,4)}, v{va} offset:{off+3072}")
        if first: M[2] = M[3] = None
    elif u == 2:
        a(f"ds_read_b128 {vr(VF+8,4)}, v{va} offset:{off+4096+2048}")
        a(f"ds_read_b128 {vr(VF+12,4)}, v{va} offset:{off+4096+3072}")
    elif u == 1:
        a("s_waitcnt lgkmcnt(0)")
    if u == 3:
        if first:
            seq = ["s_waitcnt lgkmcnt(0)", M[2]] + E[:8] + [M[3]] + E[8:]
        else:
            H = hook()
            seq = [M[2]] + E[:4] + ["s_waitcnt lgkmcnt(0)", M[0]] + E[4:6] + [M[1]] + E[6:8] + [M[3]]
            mode = val("hmode", 2)
            if mode == 0:
                seq += H + E[8:]
            elif mode == 2:
                nb = [i for i, l in enumerate(H) if l.startswith("buffer")]
                cut = nb[-3]
                PEND[:] = H[cut:]
                H = H[:cut]
                k = 0
                for e in range(8):
                    n = (len(H) * (e + 1)) // 8
                    seq += H[k:n] + [E[8+e]]; k = n
            else:
                k = 0
                for e in range(8):
                    n = (len(H) * (e + 1)) // 8
                    seq += H[k:n] + [E[8+e]]; k = n
        for l in seq: a(l)
        return
    for m in range(4):
        if M[m]: a(M[m])
        for e in E[4*m:4*m+4]: a(e)
        if m == val("dpos", 1) and PEND and not first: a(PEND.pop(0))

def kv_dma_list(base, src="s4"):
    L = ["s_add_u32 s5, s5, 1", "s_and_b32 s5, s5, 15", f"s_cmp_eq_u32 s5, s{sJ}", "s_addc_u32 s5, s5, 0", "s_and_b32 s5, s5, 15",
         "s_lshl_b32 s6, s5, 14", f"s_add_u32 m0, s8, {base}", f"s_add_u32 s6, s6, {src}"]
    if opt("ownrot"): L = L[:2] + L[5:]
    return L + [f"buffer_load_dwordx4 v3, {WS_SRD}, s6 offen offset:{q*1024} {SC} lds" for q in range(4)]
def kv_dma(base):
    for l in kv_dma_list(base): a(l)

def attention():
    PU = val("pu", 0); CU_ = val("cu", 1)
    PR = {3: 3, 0: 2, 1: 1, 2: 0}
    if opt("pr2"): PR = {3: 1, 0: 1, 1: 0, 2: 0}
    a("L_attn:")
    poll_issue("s9", 0xffff) if PU < 0 else None
    a(f"""
    ds_read_b128 {vr(KF,4)}, v{VC}
    ds_read_b128 {vr(KF+4,4)}, v{VC} offset:1024
    s_waitcnt lgkmcnt(0)
    v_mfma_f32_32x32x16_bf16 {vr(S,16)}, {vr(KF,4)}, {vr(Q,4)}, 0
    v_mfma_f32_32x32x16_bf16 {vr(S,16)}, {vr(KF+4,4)}, {vr(Q+4,4)}, {vr(S,16)}
    s_nop 11
    """)
    stamp(5)
    for u in range(4):
        a(f"s_setprio {3-u}")
        unit(u, 2, first=True)
        if u == PU: poll_issue("s9", 0xffff)
        if u == CU_:
            poll_check("L_kvp", "s9", 0xffff)
            stamp(6)
            kv_dma(A0); kv_dma(A1)
    a(f"""
    s_waitcnt vmcnt(4) lgkmcnt(0)
    s_barrier
    ds_read_b128 {vr(KF,4)}, v{VA}
    ds_read_b128 {vr(KF+4,4)}, v{VA} offset:1024
    """)
    if val("hmode", 2) == 2:
        for l in kv_dma_list(A2)[:-3]: a(l)
    else: kv_dma(A2)
    if not opt("oflags"):
        a(f"buffer_store_dwordx4 v[220:223], v3, {WS_SRD}, s14 offen {SC}")
        a(f"buffer_store_dwordx4 v[220:223], v3, {WS_SRD}, s14 offen offset:1024 {SC}")
    a(f"""
    s_waitcnt lgkmcnt(0)
    v_mfma_f32_32x32x16_bf16 {vr(S,16)}, {vr(KF,4)}, {vr(Q,4)}, 0
    v_mfma_f32_32x32x16_bf16 {vr(S,16)}, {vr(KF+4,4)}, {vr(Q+4,4)}, {vr(S,16)}
    s_nop 11
    """)
    stamp(7)
    if val("hmode", 2) == 2:
        PEND[:] = [f"buffer_load_dwordx4 v3, {WS_SRD}, s6 offen offset:{q*1024} {SC} lds" for q in range(1, 4)]
    a(".p2align 6")
    a("L_loop:")
    for sl in range(3):
        def hook(sl=sl):
            nva, noff = slot_addr((sl+1) % 3)
            a(f"""
            s_waitcnt vmcnt(4) lgkmcnt(0)
            {"" if opt("xnobar") else "s_barrier"}
            ds_read_b128 {vr(KF,4)}, v{nva} offset:{noff}
            ds_read_b128 {vr(KF+4,4)}, v{nva} offset:{noff+1024}
            """)
            L = []
            if sl < 2:
                L += ["s_min_u32 m0, s13, s69", "s_add_u32 s13, s13, 8192",
                      f"buffer_load_dwordx4 v{WOA}, {WO_SRD}, s11 offen {SC} lds", f"s_add_u32 s11, s11, {64*896}"]
            L = L + kv_dma_list([A0, A1, A2][sl], "s63")
            if opt("xnodma"): L = [l for l in L if not l.startswith("buffer")]
            if opt("xnosalu"): L = [l for l in L if l.startswith("buffer")]
            return L
        for u in range(4):
            if not opt("noprio"): a(f"s_setprio {PR[u]}")
            if sl == 0 and u == 0:
                a(f"""
                s_cmp_eq_u32 s68, 4
                s_cselect_b32 s63, {0x40000000}, s4
                """)
                if not opt("oflags"):
                    a("""
                    s_cmp_lg_u32 s68, s98
                    s_cbranch_scc1 L_noclean
                    """)
                    flag_store("s15")
                    a("L_noclean:")
            unit(u, sl, hook=hook)
    a(f"""
    s_add_u32 s68, s68, 1
    s_cmp_lt_u32 s68, 5
    s_cbranch_scc1 L_loop
    s_setprio 0
    """)
    stamp(8)
    if not opt("oflags"): poll_issue("s16", 0xff)
    a(f"""
    v_smfmac_f32_32x32x32_bf16 {vr(O+16,16)}, {vr(VF+8,4)}, {vr(S+48,8)}, v{IDX}
    v_smfmac_f32_32x32x32_bf16 {vr(O+16,16)}, {vr(VF+12,4)}, {vr(S+56,8)}, v{IDX}
    s_cmp_eq_u32 s{sKH}, 0
    s_cbranch_scc1 L_kh0
    s_nop 1
    """)
    for q in range(4): a(f"ds_write_b128 v{EXA}, {vr(O+4*q,4)} offset:{q*1024}")
    for r in range(8): a(f"v_mov_b32 v{Q+r}, v{Q+8+r}")
    a("s_waitcnt vmcnt(1) lgkmcnt(0)")
    a("s_barrier")
    for q in range(4): a(f"ds_read_b128 {vr(S+16+4*q,4)}, v{EXB} offset:{q*1024}")
    a("s_waitcnt lgkmcnt(0)")
    for r in range(8): a(f"v_pk_add_f32 {vr(S+2*r,2)}, {vr(O+16+2*r,2)}, {vr(S+16+2*r,2)}")
    a("s_branch L_norm")
    a("L_kh0:")
    a("s_nop 9")
    for q in range(4): a(f"ds_write_b128 v{EXA}, {vr(O+16+4*q,4)} offset:{q*1024}")
    a("s_waitcnt vmcnt(1) lgkmcnt(0)")
    a("s_barrier")
    for q in range(4): a(f"ds_read_b128 {vr(S+16+4*q,4)}, v{EXB} offset:{q*1024}")
    a("s_waitcnt lgkmcnt(0)")
    for r in range(8): a(f"v_pk_add_f32 {vr(S+2*r,2)}, {vr(O+2*r,2)}, {vr(S+16+2*r,2)}")
    a("L_norm:")
    a(f"""
    v_mov_b32 v{S+32}, v{S+12}
    v_mov_b32 v{S+33}, v{S+12}
    s_mov_b32 s54, 0x2f800000        ; 2^-32
    s_mov_b32 s62, 0x57800000        ; 2^48
    v_permlane32_swap_b32 v{S+32}, v{S+33}
    s_nop 1
    v_rcp_f32 v{S+34}, v{S+33}
    v_cmp_ge_f32 vcc, v{S+33}, s54
    v_cmp_le_f32 s[56:57], v{S+33}, s62
    s_nop 1
    s_and_b64 s[56:57], s[56:57], vcc
    s_cmp_eq_u64 s[56:57], -1
    s_cbranch_scc0 L_fallback
    L_norm2:
    v_cmp_gt_u32 vcc, 32, v2
    """)
    for r in range(8): a(f"v_pk_mul_f32 {vr(S+2*r,2)}, {vr(S+2*r,2)}, {vr(S+34,2)} op_sel_hi:[1,0]")
    for i in range(4): a(f"v_cvt_pk_bf16_f32 v{S+16+i}, v{S+2*i}, v{S+2*i+1}")
    a(f"buffer_store_dwordx4 {vr(S+16,4)}, v3, {WS_SRD}, s14 offen {SC}")
    for i in range(4, 8): a(f"v_cvt_pk_bf16_f32 v{S+16+i}, v{S+2*i}, v{S+2*i+1}")
    a(f"v_cndmask_b32 v{S+22}, 0, v{S+22}, vcc")
    a(f"v_cndmask_b32 v{S+23}, 0, v{S+23}, vcc")
    a(f"buffer_store_dwordx4 {vr(S+20,4)}, v3, {WS_SRD}, s14 offen offset:1024 {SC}")

def p3():
    OFR = 96; ACC = 16; WA = 64
    pool = [48, 56] + list(range(164, 204, 8)) + list(range(224, 256, 8))
    NPRE = len(pool)
    def WFt(t): return pool[t] if t < NPRE else pool[t - NPRE]
    for i in range(8):
        a(f"""
        s_add_u32 s62, s3, {i}
        s_and_b32 s62, s62, 7
        s_lshl_b32 s{54+i}, s62, 11
        s_add_u32 s{54+i}, s{54+i}, s17
        s_mul_i32 s62, s62, {28*128}
        v_add_u32 v{WA+2*i}, s62, v{P3A}
        v_xor_b32 v{WA+1+2*i}, 64, v{WA+2*i}
        """)
    def rd(t):
        i, s = divmod(t, 2)
        for ctile in range(2):
            for eh in range(2):
                a(f"ds_read_b64_tr_b16 {vr(WFt(t)+4*ctile+2*eh,2)}, v{WA+2*i+ctile} offset:{(16*s+8*eh)*128}")
    def ld(t): a(f"buffer_load_dwordx4 {vr(OFR+4*t,4)}, v3, {WS_SRD}, s{54+t//2} offen offset:{(t%2)*1024} {SC}")
    def mf(t):
        for ctile in range(2):
            acc = vr(ACC+16*ctile, 16)
            a(f"v_mfma_f32_32x32x16_bf16 {acc}, {vr(WFt(t)+4*ctile,4)}, {vr(OFR+4*t,4)}, {'0' if t == 0 else acc}")
    if opt("oflags"):
        a("s_waitcnt vmcnt(0)")
        flag_store("s15")
        stamp(9)
        a(f"""
        s_cmp_ge_u32 s23, 28
        s_cbranch_scc1 L_fin
        s_barrier
        """)
        poll_issue("s16", 0xff)
        for t in range(NPRE): rd(t)
        poll_check("L_op", "s16", 0xff, 62, 63)
        stamp(10)
        for t in range(16): ld(t)
    else:
        stamp(9)
        a(f"""
        s_cmp_ge_u32 s23, 28
        s_cbranch_scc1 L_fin
        s_waitcnt vmcnt({0 if opt("odelay") else 2})
        v_cmp_eq_u64 vcc, s[{TAG}:{TAG+1}], v[{TMP}:{TMP+1}]
        s_nop 1
        s_and_b32 s63, vcc_lo, 0xff
        s_cmp_eq_u32 s63, 0xff
        s_cbranch_scc1 L_op_ok
        """)
        poll_check("L_op", "s16", 0xff, 62, 63)
        stamp(10)
        for t in range(16): ld(t)
        for t in range(NPRE): rd(t)
    for k in range(1, 4): a(f"v_xor_b32 v{8+k}, {32*k}, v{PWA}")
    a(f"v_xor_b32 v12, 16, v{PRA}")
    a(f"s_mov_b32 s62, {SPIN_MAX}")
    if opt("diag"): a("s_mov_b32 s76, 0\ns_mov_b32 s73, 0\ns_mov_b32 s75, 0\ns_mov_b32 s78, 99")
    for t in range(16):
        if opt("oflags"):
            a(f"s_waitcnt vmcnt({15-t})")
        else:
            if t % 2 == 0:
                B = OFR + 4*t
                a(f"""
                s_waitcnt vmcnt({14-t})
                L_mk{t}:
                v_max3_u32 v13, v{B}, v{B+3}, v{B+4}
                v_max_u32 v13, v13, v{B+7}
                v_cmp_eq_u32 vcc, -1, v13
                s_nop 1
                s_cmp_eq_u64 vcc, 0
                s_cbranch_scc0 L_retry{t}
                L_go{t}:
                """)
        if t == 0 or t == NPRE: a("s_waitcnt lgkmcnt(0)")
        mf(t)
        if t + NPRE < 16: rd(t + NPRE)
    a(f"s_mov_b32 s62, {8*1792}")
    stamp(11)
    a("s_nop 10")
    for c in range(2):
        for g in range(4):
            ad = PWA if g == 0 else 8+g
            a(f"ds_write_b128 v{ad}, {vr(ACC+16*c+4*g,4)} offset:{c*128}")
    a("s_waitcnt lgkmcnt(0)")
    a("s_barrier")
    for h8 in range(2):
        for p in range(2):
            for i in range(2):
                a(f"ds_read_b128 {vr(64+16*h8+8*p+4*i,4)}, v{PRA if i == 0 else 12} offset:{h8*2048+p*32768}")
    OS = "" if opt("outplain") else "sc1"
    for h8 in range(2):
        B = 64 + 16*h8
        a(f"s_waitcnt lgkmcnt({4 if h8 == 0 else 0})")
        for r in range(4): a(f"v_pk_add_f32 {vr(B+2*r,2)}, {vr(B+2*r,2)}, {vr(B+8+2*r,2)}")
        for r in range(4): a(f"v_cvt_pk_bf16_f32 v{96+4*h8+r}, v{B+2*r}, v{B+2*r+1}")
        a(f"buffer_store_dwordx4 {vr(96+4*h8,4)}, v{OUTA}, {OUT_SRD}, {'0' if h8 == 0 else 's62'} offen {OS}")
    a("L_fin:")
    if STAMP: a("s_waitcnt vmcnt(0)")
    stamp(12)
    stamp_flush(13)
    a("L_end:")
    a("s_endpgm")

def retries():
    if opt("oflags"): return
    OFR = 96
    for t in range(0, 16, 2):
        a(f"""
        L_retry{t}:
        s_mov_b32 s99, {t}
        s_branch L_refresh
        """)
    a("L_refresh:")
    a("s_waitcnt vmcnt(0)")
    if opt("diag"):
        a("""
        s_cmp_lg_u32 s76, 0
        s_cbranch_scc1 L_diag1
        """)
        stamp(1)
        a("""
        s_mov_b32 s78, s99
        L_diag1:
        s_add_u32 s76, s76, 1
        """)
    a("s_mov_b32 s63, 0")
    for t in range(0, 16, 2):
        B = OFR + 4*t
        a(f"""
        v_max3_u32 v13, v{B}, v{B+3}, v{B+4}
        v_max_u32 v13, v13, v{B+7}
        v_cmp_eq_u32 vcc, -1, v13
        s_nop 1
        s_cmp_eq_u64 vcc, 0
        s_cbranch_scc1 L_fresh{t}
        buffer_load_dwordx4 {vr(B,4)}, v3, {WS_SRD}, s{54+t//2} offen {SC}
        buffer_load_dwordx4 {vr(B+4,4)}, v3, {WS_SRD}, s{54+t//2} offen offset:1024 {SC}
        s_mov_b32 s63, 1
        L_fresh{t}:
        """)
    a(f"""
    s_cmp_eq_u32 s63, 0
    s_cbranch_scc1 L_refreshed
    s_sub_u32 s62, s62, 1
    s_cbranch_scc0 L_refresh
    s_mov_b32 s62, 0
    s_waitcnt vmcnt(0)
    L_refreshed:
    """)
    if opt("diag"): stamp(2)
    for t in range(0, 14, 2):
        a(f"""
        s_cmp_eq_u32 s99, {t}
        s_cbranch_scc1 L_go{t}
        """)
    a("s_branch L_go14")

def fallback():
    T = S + 16; K0 = KF; M = S + 35
    a("L_fallback:")
    a(f"""
    s_lshl_b32 s58, s{sHD}, 18
    s_mov_b32 s59, 64
    v_mov_b32 v{M}, 0xff800000
    L_fb1:
    buffer_load_dwordx4 {vr(K0,4)}, v3, {WS_SRD}, s58 offen {SC}
    buffer_load_dwordx4 {vr(K0+4,4)}, v3, {WS_SRD}, s58 offen offset:1024 {SC}
    s_waitcnt vmcnt(0)
    v_mfma_f32_32x32x16_bf16 {vr(T,16)}, {vr(K0,4)}, {vr(Q,4)}, 0
    v_mfma_f32_32x32x16_bf16 {vr(T,16)}, {vr(K0+4,4)}, {vr(Q+4,4)}, {vr(T,16)}
    s_add_u32 s58, s58, 4096
    s_sub_u32 s59, s59, 1
    s_nop 15
    """)
    for i in range(8): a(f"v_max3_f32 v{M}, v{M}, v{T+2*i}, v{T+2*i+1}")
    a(f"""
    s_cmp_lg_u32 s59, 0
    s_cbranch_scc1 L_fb1
    v_mov_b32 v{M+1}, v{M}
    s_nop 1
    v_permlane32_swap_b32 v{M}, v{M+1}
    s_nop 1
    v_max_f32 v{M}, v{M}, v{M+1}
    v_sub_f32 v{M}, 0, v{M}
    v_and_b32 v{M+1}, 0xffff0000, v{M}
    v_sub_f32 v{M+2}, v{M}, v{M+1}
    v_and_b32 v{M+3}, 0xffff0000, v{M+2}
    v_sub_f32 v{M+2}, v{M+2}, v{M+3}
    v_lshrrev_b32 v{M+1}, 16, v{M+1}
    v_or_b32 v{M+1}, v{M+1}, v{M+3}
    v_lshrrev_b32 v{M+2}, 16, v{M+2}
    v_cmp_gt_u32 vcc, 32, v2
    s_lshl_b32 s58, s{sHD}, 18
    s_mov_b32 s59, 64
    v_cndmask_b32 v{Q+6}, v{M+1}, v{Q+6}, vcc
    v_cndmask_b32 v{Q+7}, v{M+2}, v{Q+7}, vcc
    """)
    for r in range(16): a(f"v_mov_b32 v{S+r}, 0")
    a(f"""
    L_fb2:
    buffer_load_dwordx4 {vr(K0,4)}, v3, {WS_SRD}, s58 offen {SC}
    buffer_load_dwordx4 {vr(K0+4,4)}, v3, {WS_SRD}, s58 offen offset:1024 {SC}
    buffer_load_dwordx4 {vr(K0+8,4)}, v3, {WS_SRD}, s58 offen offset:2048 {SC}
    buffer_load_dwordx4 {vr(K0+12,4)}, v3, {WS_SRD}, s58 offen offset:3072 {SC}
    s_waitcnt vmcnt(0)
    v_mfma_f32_32x32x16_bf16 {vr(T,16)}, {vr(K0,4)}, {vr(Q,4)}, 0
    v_mfma_f32_32x32x16_bf16 {vr(T,16)}, {vr(K0+4,4)}, {vr(Q+4,4)}, {vr(T,16)}
    s_add_u32 s58, s58, 4096
    s_sub_u32 s59, s59, 1
    s_nop 15
    """)
    for i in range(16): a(f"v_exp_f32 v{T+i}, v{T+i}")
    a(f"""
    s_nop 1
    v_smfmac_f32_32x32x32_bf16 {vr(S,16)}, {vr(K0+8,4)}, {vr(T,8)}, v{IDX}
    v_smfmac_f32_32x32x32_bf16 {vr(S,16)}, {vr(K0+12,4)}, {vr(T+8,8)}, v{IDX}
    s_cmp_lg_u32 s59, 0
    s_cbranch_scc1 L_fb2
    s_nop 15
    v_mov_b32 v{S+32}, v{S+12}
    v_mov_b32 v{S+33}, v{S+12}
    s_nop 1
    v_permlane32_swap_b32 v{S+32}, v{S+33}
    s_nop 1
    v_rcp_f32 v{S+34}, v{S+33}
    s_branch L_norm2
    """)

prologue(); loader(); compute(); attention(); p3(); retries(); fallback()
a(kdesc(N, NV, 102))
hdr = f"; @launch grid=(256,1,1) block=(512,1,1) lds={LDS_BYTES}\n" + '.amdgcn_target "amdgcn-amd-amdhsa--gfx950"\n'
open(sys.argv[1], "w").write(hdr + a.text())
```

```python
import sys, struct
from asmlib import *

KV_OFF = 0
OF_OFF = 8 << 20
FL_OFF = 12 << 20
FO_OFF = (12 << 20) + (256 << 10)
WS_USED = 13 << 20
ST_OFF = 32 << 20
CSCALE = 28 ** -0.5 * 1.4426950408889634
def f2u(x): return struct.unpack("<I", struct.pack("<f", x))[0]
ARGS = sys.argv[2:]
def opt(name): return ("--" + name) in ARGS
def val(name, d): return int(ARGS[ARGS.index("--" + name) + 1]) if opt(name) else d
STAMP = opt("stamp")
N = "concat_heads__softmax_full_mha__mha_block__prompt_kernel"
SC = "sc1"
SPIN_MAX = 100000
SLEEP = val("sleep", 2)

FSH = 7 if opt("spreadfl") else 3
WR0 = 114688
C0, C1, C2, C3 = 32768, 65536, 98304, 131072
A2 = C3
LDS_BYTES = 163840
def wslot(i): return WR0 + ((i + 2) % 3) * 16384

a = Asm()
def stamp(idx):
    if not STAMP: return
    a(f"""
    s_memtime s[64:65]
    s_memrealtime s[66:67]
    s_waitcnt lgkmcnt(0)
    s_mov_b32 s{70+2*idx}, s64
    s_mov_b32 s{71+2*idx}, s66
    """)
def stamp_flush(n):
    if not STAMP: return
    a(f"""
    s_lshl_b32 s66, s2, 4
    s_add_u32 s66, s66, s27
    s_lshl_b32 s66, s66, 7
    s_add_u32 s66, s66, {ST_OFF}
    s_add_u32 s64, s20, s66
    s_addc_u32 s65, s21, 0
    v_mov_b32 v0, 0
    s_mov_b64 exec, 1
    """)
    for i in range(n):
        a(f"""
        v_mov_b32 v4, s{70+2*i}
        v_mov_b32 v5, s{71+2*i}
        global_store_dwordx2 v0, v[4:5], s[64:65] offset:{8*i}
        s_nop 1
        """)

sB, sJ, sHP, sW, sG, sKH, sHD = 24, 25, 26, 27, 48, 49, 52
X_SRD, W_SRD, WS_SRD, WO_SRD, OUT_SRD = "s[28:31]", "s[32:35]", "s[36:39]", "s[40:43]", "s[44:47]"
TAG = 50
IDX, VA, VC = 4, 5, 6
Q, O, S, KF, VF = 8, 176, 64, 128, 144
TMP = 160
PA, WOA, EXA, EXB, P3A, OUTA, PWA, PRA = 208, 209, 210, 211, 212, 213, 214, 215
NV = 256

def tag_check(lbl, v):
    a(f"""
    s_mov_b32 s53, {SPIN_MAX}
    {lbl}_chk:
    v_readfirstlane_b32 s{TAG}, v{v}
    v_readfirstlane_b32 s{TAG+1}, v{v+1}
    s_nop 1
    s_cmp_lg_u64 s[{TAG}:{TAG+1}], 0
    s_cbranch_scc1 {lbl}_ok
    s_sub_u32 s53, s53, 1
    s_cbranch_scc1 {lbl}_ok
    global_load_dwordx2 v[{v}:{v+1}], v7, s[18:19] {SC}
    s_waitcnt vmcnt(0)
    s_branch {lbl}_chk
    {lbl}_ok:
    """)
def poll_issue(soff, mask):
    a(f"""
    s_mov_b64 exec, {hex(mask)}
    buffer_load_dwordx2 v[{TMP}:{TMP+1}], v{216 if mask == 0xffff else PA}, {WS_SRD}, {soff} offen {SC}
    s_mov_b64 exec, -1
    """)
def poll_check(lbl, soff, mask, t0=53, t1=54):
    a(f"""
    s_mov_b32 s{t0}, {SPIN_MAX}
    {lbl}_chk:
    s_waitcnt vmcnt(0)
    v_cmp_eq_u64 vcc, s[{TAG}:{TAG+1}], v[{TMP}:{TMP+1}]
    s_nop 1
    s_and_b32 s{t1}, vcc_lo, {hex(mask)}
    s_cmp_eq_u32 s{t1}, {hex(mask)}
    s_cbranch_scc1 {lbl}_ok
    s_sub_u32 s{t0}, s{t0}, 1
    s_cbranch_scc1 {lbl}_ok
    s_sleep {SLEEP}
    """)
    poll_issue(soff, mask)
    a(f"""
    s_branch {lbl}_chk
    {lbl}_ok:
    """)
def flag_store(soff, v=TMP+2):
    a(f"""
    v_mov_b32 v{v}, s{TAG}
    v_mov_b32 v{v+1}, s{TAG+1}
    s_mov_b64 exec, 1
    buffer_store_dwordx2 v[{v}:{v+1}], v7, {WS_SRD}, {soff} offen {SC}
    s_mov_b64 exec, -1
    """)

def prologue():
    a(khead(N))
    a(f"""
    s_cmp_ge_u32 s2, 256
    s_cbranch_scc1 L_end
    """)
    stamp(0)
    a(f"""
    s_load_dwordx16 s[4:19], s[0:1], 0
    s_load_dwordx2 s[20:21], s[0:1], 64
    s_and_b32 s22, s2, 7          ; xcd
    s_lshr_b32 s23, s2, 3         ; r
    s_lshr_b32 s{sB}, s22, 2
    s_bfe_u32 s25, s22, 0x10001
    s_lshl_b32 s25, s25, 3
    s_and_b32 s53, s23, 7
    s_add_u32 s{sJ}, s25, s53     ; jj
    s_and_b32 s26, s22, 1
    s_lshl_b32 s26, s26, 2
    s_lshr_b32 s54, s23, 3
    s_add_u32 s{sHP}, s26, s54    ; hp
    s_lshl_b32 s54, s54, 1
    s_add_u32 s54, s54, s53       ; 0..13
    s_sub_u32 s53, s54, 7
    s_cmp_ge_u32 s54, 7
    s_cselect_b32 s54, s53, s54   ; first K chunk
    """)
    RM = val("rotm", 1)
    if RM:
        a("""
        s_lshr_b32 s54, s23, 3
        s_add_u32 s54, s54, s23
        """)
        if RM == 1: a("s_and_b32 s54, s54, 3\ns_lshl_b32 s54, s54, 1")
        if RM == 3: a("s_and_b32 s54, s54, 1\ns_lshl_b32 s54, s54, 2")
        if RM == 2: a("s_and_b32 s54, s54, 3\ns_lshl_b32 s54, s54, 2\ns_lshr_b32 s54, 0x2520, s54\ns_and_b32 s54, s54, 15")
        if RM == 4: a("s_and_b32 s54, s54, 7\ns_lshl_b32 s54, s54, 2\ns_lshr_b32 s54, 0x53164200, s54\ns_and_b32 s54, s54, 15")
    a(f"""
    v_lshrrev_b32 v1, 6, v0
    v_and_b32 v2, 63, v0          ; lane
    v_mov_b32 v7, 0
    v_readfirstlane_b32 s{sW}, v1
    v_lshlrev_b32 v3, 4, v2       ; lane*16
    s_and_b32 s{sG}, s{sW}, 3
    s_lshr_b32 s{sKH}, s{sW}, 2
    s_cmp_eq_u32 s{sKH}, 0
    s_cbranch_scc1 L_compute
    """)

def srd_in():
    a(f"""
    s_waitcnt lgkmcnt(0)
    s_cmp_eq_u32 s{sB}, 0
    s_cselect_b32 s28, s4, s10
    s_cselect_b32 s29, s5, s11
    s_cselect_b32 s32, s6, s12
    s_cselect_b32 s33, s7, s13
    """)
def srd_const():
    a(f"""
    s_mov_b32 s30, 1835008
    s_mov_b32 s31, 0x20000
    s_mov_b32 s34, 1204224
    s_mov_b32 s35, 0x20000
    """)
def srd_rest():
    a(f"""
    s_cmp_eq_u32 s{sB}, 0
    s_mov_b32 s36, s20
    s_mov_b32 s37, s21
    s_mov_b32 s38, {WS_USED}
    s_mov_b32 s39, 0x20000
    s_cselect_b32 s40, s8, s14
    s_cselect_b32 s41, s9, s15
    s_mov_b32 s42, 401408
    s_mov_b32 s43, 0x20000
    s_mov_b32 s44, s16
    s_mov_b32 s45, s17
    s_mov_b32 s46, 3670016
    s_mov_b32 s47, 0x20000
    """)

def setup():
    srd_rest()
    a(f"""
    v_mov_b32 v{IDX}, 0xdddddddd
    s_lshl_b32 s62, s{sB}, 3
    s_add_u32 s62, s62, s{sHP}            ; b*8+hp
    s_lshl_b32 s9, s62, {FSH+6}
    s_add_u32 s9, s9, {FL_OFF}
    s_lshl_b32 s62, s62, 1                ; b*16 + 2hp
    s_lshr_b32 s63, s{sG}, 1              ; hd
    s_add_u32 s{sHD}, s62, s63
    s_lshl_b32 s7, s63, 14
    s_lshl_b32 s63, s{sKH}, 13
    s_add_u32 s7, s7, s63
    s_add_u32 s7, s7, {C0}
    v_add_u32 v{VC}, s7, v3
    v_add_u32 v{VA}, {C3-C0}, v{VC}
    s_add_u32 s62, s62, s{sKH}
    s_lshl_b32 s4, s62, 6
    s_add_u32 s4, s4, s{sG}
    s_lshl_b32 s4, s4, 12
    s_and_b32 s5, s{sJ}, 8
    s_sub_u32 s5, s5, 1
    {f"s_mov_b32 s5, s{sJ}" if opt("ownrot") else ""}
    s_lshl_b32 s8, s{sW}, 12
    s_lshl_b32 s10, s{sG}, {FSH+4}
    s_add_u32 s10, s10, s9
    s_lshl_b32 s62, s{sJ}, {FSH}
    s_add_u32 s10, s10, s62
    s_lshr_b32 s62, s{sW}, 1
    s_lshl_b32 s62, s62, {FSH+4}
    s_add_u32 s9, s9, s62
    v_lshlrev_b32 v{PA}, 3, v2
    s_mul_i32 s62, s23, 37
    s_lshr_b32 s62, s62, 8                ; r/7
    s_mul_i32 s3, s62, 7
    s_sub_u32 s3, s23, s3                 ; ct
    s_lshl_b32 s12, s22, 2
    s_add_u32 s12, s12, s62
    s_lshl_b32 s12, s12, 2
    s_add_u32 s12, s12, s{sG}
    v_lshrrev_b32 v{WOA}, 3, v2
    v_and_b32 v{EXA}, 7, v2
    v_bfe_u32 v{EXB}, v2, 4, 1
    v_lshlrev_b32 v{EXB}, 2, v{EXB}
    v_xor_b32 v{EXA}, v{EXA}, v{EXB}
    v_mul_u32_u24 v{WOA}, 896, v{WOA}
    v_lshl_add_u32 v{WOA}, v{EXA}, 4, v{WOA}
    s_mul_i32 s62, s{sG}, {8*896}
    s_mul_i32 s63, s{sKH}, {224*896}
    s_add_u32 s62, s62, s63
    s_lshl_b32 s63, s3, 7
    s_add_u32 s62, s62, s63
    v_add_u32 v{WOA}, s62, v{WOA}
    s_mul_i32 s13, s{sKH}, {C3-C0}
    s_lshl_b32 s62, s{sG}, 10
    s_add_u32 s13, s13, s62
    s_add_u32 s13, s13, {C0}
    s_lshl_b32 s62, s{sW}, 12
    v_add_u32 v{EXA}, s62, v3
    s_xor_b32 s62, s62, 16384
    v_add_u32 v{EXB}, s62, v3
    s_add_u32 s11, s8, {C1}
    s_add_u32 s69, s8, {C2}
    s_lshl_b32 s62, s{sB}, 4
    s_add_u32 s62, s62, s{sJ}
    s_lshl_b32 s62, s62, 1
    s_and_b32 s63, s{sG}, 1
    s_add_u32 s62, s62, s63
    s_lshl_b32 s62, s62, 1
    s_add_u32 s62, s62, s{sKH}
    s_lshl_b32 s62, s62, 4
    s_and_b32 s63, s{sHD}, 15
    s_add_u32 s62, s62, s63
    s_lshl_b32 s15, s62, 3
    s_add_u32 s15, s15, {FO_OFF}
    s_lshl_b32 s14, s62, 11
    s_add_u32 s14, s14, {OF_OFF}
    s_lshl_b32 s16, s12, 7
    s_lshl_b32 s62, s{sKH}, 6
    s_add_u32 s16, s16, s62
    s_add_u32 s16, s16, {FO_OFF}
    s_lshl_b32 s17, s12, 15
    s_lshl_b32 s62, s{sKH}, 14
    s_add_u32 s17, s17, s62
    s_add_u32 s17, s17, {OF_OFF}
    v_lshrrev_b32 v216, 5, v2             ; hh
    v_bfe_u32 v217, v2, 2, 2
    v_lshl_add_u32 v{P3A}, v216, 2, v217
    v_lshlrev_b32 v{P3A}, 7, v{P3A}
    v_bfe_u32 v217, v2, 4, 1
    v_lshl_add_u32 v{P3A}, v217, 5, v{P3A}
    v_and_b32 v217, 3, v2
    v_lshl_add_u32 v{P3A}, v217, 3, v{P3A}
    v_bfe_u32 v217, v2, 3, 1
    v_lshl_add_u32 v{P3A}, v217, 6, v{P3A}
    s_mul_i32 s62, s{sKH}, {C3-C0}
    s_add_u32 s62, s62, {C0}
    v_add_u32 v{P3A}, s62, v{P3A}
    v_and_b32 v217, 31, v2
    v_and_b32 v218, 7, v2
    v_xor_b32 v218, v216, v218
    v_lshlrev_b32 v218, 4, v218
    v_lshl_add_u32 v{PWA}, v217, 8, v218
    s_lshl_b32 s62, s{sW}, 13
    s_add_u32 s62, s62, {C1}
    v_add_u32 v{PWA}, s62, v{PWA}
    v_lshrrev_b32 v217, 3, v2
    v_and_b32 v218, 7, v2
    v_lshlrev_b32 v219, 1, v218
    v_xor_b32 v219, v219, v217
    v_lshlrev_b32 v219, 4, v219
    v_lshl_add_u32 v{PRA}, v217, 8, v219
    s_lshl_b32 s62, s{sG}, 13
    s_lshl_b32 s63, s{sKH}, 12
    s_add_u32 s62, s62, s63
    s_add_u32 s62, s62, {C1}
    v_add_u32 v{PRA}, s62, v{PRA}
    s_and_b32 s62, s12, 63
    s_lshl_b32 s62, s62, 5
    s_lshl_b32 s63, s{sKH}, 4
    s_add_u32 s62, s62, s63
    v_add_u32 v217, s62, v217
    v_mul_u32_u24 v217, 1792, v217
    v_lshl_add_u32 v{OUTA}, v218, 4, v217
    s_mul_i32 s62, s{sB}, 896
    s_lshl_b32 s63, s3, 7
    s_add_u32 s62, s62, s63
    v_add_u32 v{OUTA}, s62, v{OUTA}
    s_mov_b32 s68, 0
    v_lshlrev_b32 v216, {FSH}, v2
    """)
    if not opt("oflags"):
        a(f"""
        s_lshl_b32 s15, s{sB}, 4
        s_add_u32 s15, s15, s{sJ}
        s_lshl_b32 s15, s15, 7
        s_lshl_b32 s62, s{sHP}, 3
        s_add_u32 s15, s15, s62
        s_add_u32 s15, s15, {FO_OFF}
        s_lshr_b32 s16, s12, 2
        s_lshl_b32 s16, s16, 7
        s_add_u32 s16, s16, {FO_OFF}
        v_mov_b32 v220, -1
        v_mov_b32 v221, -1
        v_mov_b32 v222, -1
        v_mov_b32 v223, -1
        """)
    for r in range(O, O+32): a(f"v_mov_b32 v{r}, 0")

def loader():
    a(f"""
    v_lshrrev_b32 v8, 3, v2       ; lane/8
    v_and_b32 v9, 7, v2
    v_lshrrev_b32 v14, 4, v2
    v_xor_b32 v9, v9, v14
    v_xor_b32 v14, 4, v9
    s_lshl_b32 s55, s{sJ}, 7
    s_lshl_b32 s56, s{sG}, 5
    s_add_u32 s55, s55, s56
    s_mul_i32 s55, s55, 896
    v_mul_u32_u24 v8, 896, v8
    v_add_u32 v8, s55, v8
    v_lshl_add_u32 v10, v9, 4, v8
    v_lshl_add_u32 v11, v14, 4, v8
    v_add_u32 v12, {2*6144}, v10
    v_add_u32 v13, {3*6144}, v11
    v_add_u32 v11, {6144}, v11
    s_lshl_b32 s55, s{sG}, 12              ; g*4096
    s_lshl_b32 s57, s54, 7
    s_mov_b32 m0, s55
    s_mul_i32 s58, s54, {64*2688}
    """)
    srd_const()
    a(f"""
    v_lshrrev_b32 v8, 4, v2
    v_and_b32 v9, 15, v2
    v_lshlrev_b32 v20, 2, v8
    v_xor_b32 v9, v9, v20         ; P
    v_lshrrev_b32 v20, 3, v9      ; seg
    v_and_b32 v9, 7, v9
    v_min_u32 v9, 6, v9
    v_mul_u32_u24 v8, 2688, v8
    v_mul_u32_u24 v20, 896, v20
    v_lshlrev_b32 v9, 4, v9
    v_add3_u32 v8, v8, v9, v20
    s_mul_i32 s59, s{sG}, {16*2688}
    s_mul_i32 s60, s{sHP}, 112
    s_add_u32 s59, s59, s60
    s_add_u32 s60, s59, 896
    v_add_u32 v14, s60, v8
    v_add_u32 v15, {4*2688-1024}, v14
    v_add_u32 v16, {2*(4*2688-1024)}, v14
    v_add_u32 v17, {3*(4*2688-1024)}, v14
    """)
    srd_in()
    for q in range(4): a(f"buffer_load_dwordx4 v{10+q}, {X_SRD}, s57 offen offset:{q*1024} {SC} lds")
    def next_c():
        a("""
        s_add_u32 s54, s54, 1
        s_cmp_eq_u32 s54, 7
        s_cselect_b32 s54, 0, s54
        """)
    def item(i):
        if i < 7:
            if i:
                a(f"""
                s_lshl_b32 s57, s54, 7
                s_add_u32 m0, s55, {i*16384}
                s_mul_i32 s58, s54, {64*2688}
                """)
                for q in range(4): a(f"buffer_load_dwordx4 v{10+q}, {X_SRD}, s57 offen offset:{q*1024} {SC} lds")
            a(f"s_add_u32 m0, s55, {wslot(i)}")
            a("s_nop 0")
            for q in range(4): a(f"buffer_load_dwordx4 v{14+q}, {W_SRD}, s58 offen offset:{q*1024} {SC} lds")
            next_c()
        else:
            for d in range(2):
                if 2*(i-7)+d > 6: break
                a(f"""
                s_add_u32 m0, s56, {wslot(i) + d*8192}
                s_mul_i32 s58, s54, {64*2688}
                """)
                for q in range(2): a(f"buffer_load_dwordx4 v{18+q}, {W_SRD}, s58 offen offset:{q*1024} {SC} lds")
                next_c()
    item(0); item(1)
    a(f"""
    v_lshrrev_b32 v8, 3, v2
    v_and_b32 v9, 7, v2
    v_bfe_u32 v20, v2, 4, 1
    v_lshlrev_b32 v20, 2, v20
    v_xor_b32 v9, v9, v20
    v_min_u32 v9, 6, v9
    v_mul_u32_u24 v8, 2688, v8
    v_lshl_add_u32 v8, v9, 4, v8
    v_add_u32 v18, s59, v8
    v_add_u32 v19, {8*2688-1024}, v18
    s_lshl_b32 s56, s{sG}, 11
    """)
    stamp(1)
    cnt = lambda i: 8 if i < 7 else (4 if i < 10 else (2 if i == 10 else 0))
    for k in range(11):
        a(f"s_waitcnt vmcnt({0 if (opt('sfirst') and k == 7) else cnt(k+1)})")
        a("s_barrier")
        if k == 0: stamp(2)
        if opt("sfirst"):
            if k + 2 <= 7: item(k+2)
            if k == 7:
                a("s_barrier")
                item(8); item(9)
            if k == 8: item(10)
        elif k + 2 <= 10: item(k+2)
        if k == 8: setup()
        if k == 9: a(f"global_load_dwordx2 v[{TMP}:{TMP+1}], v7, s[18:19] {SC}")
    tag_check("L_tagl", TMP)
    stamp(3); stamp(4)
    a(f"""
    s_lshl_b32 s55, s{sG}, 12
    v_add_u32 v{TMP+4}, s55, v3
    s_barrier
    """)
    for i in range(4): a(f"ds_read_b128 {vr(Q+4*i,4)}, v{TMP+4} offset:{i*1024}")
    a("s_branch L_attn")

def compute():
    XA = 24
    WK, WV, WQ = 28, 168, 169
    AK, AV, AQ = (32, 64), (48, 80), (96, 112)
    FB = 128
    PK = 32
    a("L_compute:")
    srd_const(); srd_in()
    if not opt("nocodepf"):
        a(f"""
        s_getpc_b64 s[62:63]
        L_pc:
        s_and_b32 s55, s23, 7
        s_lshl_b32 s55, s55, 2
        s_add_u32 s55, s55, s{sW}
        s_lshl_b32 s55, s55, 10
        v_add_u32 v8, s55, v3
        v_min_u32 v8, L_code_end - L_pc - 16, v8
        global_load_dwordx4 v[164:167], v8, s[62:63]
        """)
    a(f"""
    s_cmp_lg_u32 s2, 0
    s_cbranch_scc1 L_notag
    s_cmp_lg_u32 s{sW}, 0
    s_cbranch_scc1 L_notag
    s_memrealtime s[60:61]
    s_waitcnt lgkmcnt(0)
    s_or_b32 s60, s60, 1
    v_mov_b32 v18, s60
    v_mov_b32 v19, s61
    s_mov_b64 exec, 1
    global_store_dwordx2 v7, v[18:19], s[18:19] {SC}
    s_mov_b64 exec, -1
    L_notag:
    v_and_b32 v8, 31, v2          ; m
    v_lshrrev_b32 v9, 5, v2       ; hh
    v_bfe_u32 v10, v2, 1, 3       ; z
    v_xor_b32 v10, v9, v10
    s_and_b32 s55, s{sG}, 1
    s_lshl_b32 s55, s55, 13
    v_lshlrev_b32 v11, 7, v8
    v_add_u32 v11, s55, v11
    v_lshl_add_u32 v{XA}, v10, 4, v11
    v_xor_b32 v12, 2, v10
    v_lshl_add_u32 v{XA+1}, v12, 4, v11
    v_xor_b32 v12, 4, v10
    v_lshl_add_u32 v{XA+2}, v12, 4, v11
    v_xor_b32 v12, 6, v10
    v_lshl_add_u32 v{XA+3}, v12, 4, v11
    v_bfe_u32 v10, v2, 2, 2       ; r
    v_bfe_u32 v11, v2, 4, 1       ; nhalf
    v_and_b32 v12, 3, v2          ; c4
    v_lshl_add_u32 v11, v11, 2, v12
    s_lshr_b32 s55, s{sG}, 1
    s_mul_i32 s55, s55, 7
    v_add_u32 v11, s55, v11       ; u
    v_lshrrev_b32 v12, 1, v11     ; piece
    v_and_b32 v11, 1, v11
    v_lshlrev_b32 v11, 3, v11     ; half*8
    v_lshl_add_u32 v13, v9, 3, v10      ; 8hh + r
    v_lshlrev_b32 v14, 2, v10
    v_xor_b32 v14, v12, v14             ; piece ^ (r<<2)
    v_lshl_add_u32 v14, v14, 4, v11
    v_lshl_add_u32 v14, v13, 8, v14
    v_add_u32 v{WK}, {WR0}, v14
    v_xor_b32 v{WV}, 128, v{WK}
    v_lshrrev_b32 v14, 1, v10
    v_lshlrev_b32 v14, 2, v14
    v_xor_b32 v14, v12, v14             ; piece ^ ((r>>1)<<2)
    v_lshl_add_u32 v14, v14, 4, v11
    v_lshl_add_u32 v14, v13, 7, v14
    v_add_u32 v{WQ}, {WR0}, v14
    v_and_b32 v29, 0x33, v2
    v_bfe_u32 v10, v2, 2, 1
    v_bfe_u32 v11, v2, 3, 1
    v_lshl_or_b32 v29, v10, 3, v29
    v_lshl_or_b32 v29, v11, 2, v29
    v_lshlrev_b32 v29, 4, v29     ; swap23(lane)*16
    v_cmp_gt_u32 s[56:57], 28, v8
    v_cmp_eq_u32 s[58:59], 28, v8
    v_mov_b32 v30, 0x3f803f80
    v_mov_b32 v31, 0x00003f80
    v_cndmask_b32 v1, 0, v30, s[58:59]
    s_lshl_b32 s60, s{sG}, 13
    s_add_u32 s60, s60, {A2}
    v_add_u32 v170, s60, v29
    v_add_u32 v171, s60, v3
    s_lshl_b32 s60, s{sG}, 12
    v_add_u32 v172, s60, v3
    """)
    setup()
    a(f"""
    s_lshl_b32 s55, s{sHD}, 6
    s_lshl_b32 s60, s{sJ}, 2
    s_add_u32 s55, s55, s60
    s_and_b32 s60, s{sG}, 1
    s_lshl_b32 s60, s60, 1
    s_add_u32 s55, s55, s60
    s_lshl_b32 s55, s55, 12       ; KV global offset of this wave's first tile
    s_mov_b32 s60, {hex(f2u(CSCALE))}
    s_mov_b32 s61, s60
    v_cmp_gt_u32 vcc, 32, v2
    """)
    def FB2(t): return (128, 140, 152)[t % 3] if t else 128
    def xoff(i): return (i if i < 4 else i-4) * 16384
    def reads1(t):
        i, s = divmod(t, 4); b = FB + 16*(t & 1); wo = wslot(i) - WR0
        R = [f"ds_read_b128 {vr(b,4)}, v{XA+s} offset:{xoff(i)}"]
        for rd in range(2): R.append(f"ds_read_b64_tr_b16 {vr(b+8+2*rd,2)}, v{WK} offset:{wo+(16*s+4*rd)*256}")
        for rd in range(2): R.append(f"ds_read_b64_tr_b16 {vr(b+12+2*rd,2)}, v{WV} offset:{wo+(16*s+4*rd)*256}")
        R.append(f"ds_read_b128 {vr(b+4,4)}, v{XA+s} offset:{xoff(i)+4096}")
        return R
    def reads2(t):
        i, s = divmod(t, 4); b = FB2(t); wo = wslot(7 + i//2) - WR0 + (i & 1)*8192
        R = [f"ds_read_b128 {vr(b,4)}, v{XA+s} offset:{xoff(i)}"]
        for rd in range(2): R.append(f"ds_read_b64_tr_b16 {vr(b+8+2*rd,2)}, v{WQ} offset:{wo+(16*s+4*rd)*128}")
        R.append(f"ds_read_b128 {vr(b+4,4)}, v{XA+s} offset:{xoff(i)+4096}")
        return R
    def shift(d): return [f"v_add_u32 v{XA+k}, {d & 0xffffffff}, v{XA+k}" for k in range(4)]
    stamp(1)
    a("s_barrier")
    stamp(2)
    for r in reads1(0): a(r)
    for t in range(28):
        i, s = divmod(t, 4); b = FB + 16*(t & 1)
        cin = lambda r: ("0" if t == 0 else vr(r, 16))
        M = [f"v_mfma_f32_32x32x16_bf16 {vr(AK[0],16)}, {vr(b+8,4)}, {vr(b,4)}, {cin(AK[0])}",
             f"v_mfma_f32_32x32x16_bf16 {vr(AV[0],16)}, {vr(b,4)}, {vr(b+12,4)}, {cin(AV[0])}",
             f"v_mfma_f32_32x32x16_bf16 {vr(AK[1],16)}, {vr(b+8,4)}, {vr(b+4,4)}, {cin(AK[1])}",
             f"v_mfma_f32_32x32x16_bf16 {vr(AV[1],16)}, {vr(b+4,4)}, {vr(b+12,4)}, {cin(AV[1])}"]
        R = reads1(t+1) if t < 27 else reads2(0)
        a("s_waitcnt lgkmcnt(0)")
        if s == 3:
            a(M[0])
            if i == 3:
                for l in shift(65536): a(l)
            if i == 6:
                for l in shift(-65536): a(l)
            a("s_barrier")
            for m in range(1, 4):
                for r in R[2*(m-1):2*(m-1)+2]: a(r)
                a(M[m])
        else:
            for m in range(4):
                a(M[m])
                for r in R[2*m:2*m+2]: a(r)
        if t == 17: a(f"global_load_dwordx2 v[174:175], v7, s[18:19] {SC}")
    stamp(3)
    side = []
    for i in range(2):
        for k in range(8): side.append(f"v_cvt_pk_bf16_f32 v{AK[i]+k}, v{AK[i]+2*k}, v{AK[i]+2*k+1}")
        side.append(f"v_cndmask_b32 v{AK[i]+6}, v30, v{AK[i]+6}, vcc")
        side.append(f"v_cndmask_b32 v{AK[i]+7}, v31, v{AK[i]+7}, vcc")
        side.append(f"buffer_store_dwordx4 {vr(AK[i],4)}, v29, {WS_SRD}, s55 offen {SC}")
        side.append(f"buffer_store_dwordx4 {vr(AK[i]+4,4)}, v29, {WS_SRD}, s55 offen offset:1024 {SC}")
        for k in range(8): side.append(f"v_cvt_pk_bf16_f32 v{AV[i]+k}, v{AV[i]+2*k}, v{AV[i]+2*k+1}")
        for k in range(8): side.append(f"v_cndmask_b32 v{AV[i]+k}, v1, v{AV[i]+k}, s[56:57]")
        side.append(f"buffer_store_dwordx4 {vr(AV[i],4)}, v3, {WS_SRD}, s55 offen offset:2048 {SC}")
        side.append(f"buffer_store_dwordx4 {vr(AV[i]+4,4)}, v3, {WS_SRD}, s55 offen offset:3072 {SC}")
        if i == 0: side.append("s_add_u32 s55, s55, 4096")
    PER = val("side", 8)
    if PER >= 100:
        a("s_nop 7")
        for l in side: a(l)
        side = []
        if opt("sfirst"): a("s_barrier")
    lw = []
    for i in range(2):
        lw += [f"ds_write_b128 v170, {vr(AK[i],4)} offset:{4096*i}", f"ds_write_b128 v170, {vr(AK[i]+4,4)} offset:{4096*i+1024}",
               f"ds_write_b128 v171, {vr(AV[i],4)} offset:{4096*i+2048}", f"ds_write_b128 v171, {vr(AV[i]+4,4)} offset:{4096*i+3072}"]
    FT = val("flagt", 22)
    for r in reads2(1): a(r)
    for t in range(28):
        i, s = divmod(t, 4); b = FB2(t)
        cin = lambda r: ("0" if t == 0 else vr(r, 16))
        M = [f"v_mfma_f32_32x32x16_bf16 {vr(AQ[0],16)}, {vr(b+8,4)}, {vr(b,4)}, {cin(AQ[0])}",
             f"v_mfma_f32_32x32x16_bf16 {vr(AQ[1],16)}, {vr(b+8,4)}, {vr(b+4,4)}, {cin(AQ[1])}"]
        R = reads2(t+2) if t+2 < 28 else []
        bar = (t+2) in (8, 16, 24)
        nw = 2 if t >= 25 else 0
        if bar: a("s_waitcnt lgkmcnt(0)")
        else: a(f"s_waitcnt lgkmcnt({(4 if t < 27 else 0) + nw})")
        a(M[0])
        if t+2 == 16:
            for l in shift(65536): a(l)
        if bar: a("s_barrier")
        for r in R: a(r)
        for l in side[:PER//2]: a(l)
        side = side[PER//2:]
        a(M[1])
        for l in side[:PER//2]: a(l)
        side = side[PER//2:]
        if t >= 24:
            for l in lw[2*(t-24):2*(t-24)+2]: a(l)
        if t == FT:
            assert not side
            a("s_waitcnt vmcnt(8)")
            tag_check("L_tagc", 174)
            a("s_waitcnt vmcnt(0)")
            flag_store("s10", 174)
            stamp(4)
    a("s_nop 7")
    a("s_nop 1")
    for i in range(2):
        A = AQ[i]
        for k in range(8): a(f"v_pk_mul_f32 {vr(A+2*k,2)}, {vr(A+2*k,2)}, s[60:61]")
        for k in range(8): a(f"v_cvt_pk_bf16_f32 v{Q+8*i+k}, v{A+2*k}, v{A+2*k+1}")
        a(f"v_cndmask_b32 v{Q+8*i+6}, 0, v{Q+8*i+6}, vcc")
        a(f"v_cndmask_b32 v{Q+8*i+7}, 0, v{Q+8*i+7}, vcc")
        a(f"ds_write_b128 v172, {vr(Q+8*i,4)} offset:{2048*i}")
        a(f"ds_write_b128 v172, {vr(Q+8*i+4,4)} offset:{2048*i+1024}")
    if FT >= 28:
        a("s_waitcnt vmcnt(8)")
        tag_check("L_tagc", 174)
        a("s_waitcnt vmcnt(0)")
        flag_store("s10", 174)
        stamp(4)
    a("""
    s_waitcnt lgkmcnt(0)
    s_barrier
    """)

def tile_addr(t):
    return (VA if t < 2 else VC, (t & 1) * 4096)

def unit(u, kind="loop", side=None, hook=None):
    side = side or {}
    cur = S + 16*(u & 3); nxt = S + 16*((u+1) & 3); prv = S + 16*((u-1) & 3)
    tn = ((u+1) >> 1) & 1; subn = (u+1) & 1
    tp = ((u-1) >> 1) & 1; subp = (u-1) & 1
    kf = KF + 8*tn; vf = VF + 8*tp
    qn = Q + 8*subn; op = O + 16*subp
    M = [f"v_mfma_f32_32x32x16_bf16 {vr(nxt,16)}, {vr(kf,4)}, {vr(qn,4)}, 0",
         f"v_mfma_f32_32x32x16_bf16 {vr(nxt,16)}, {vr(kf+4,4)}, {vr(qn+4,4)}, {vr(nxt,16)}",
         f"v_smfmac_f32_32x32x32_bf16 {vr(op,16)}, {vr(vf,4)}, {vr(prv,8)}, v{IDX}",
         f"v_smfmac_f32_32x32x32_bf16 {vr(op,16)}, {vr(vf+4,4)}, {vr(prv+8,8)}, v{IDX}"]
    E = [f"v_exp_f32 v{cur+e}, v{cur+e}" for e in range(16)]
    t = u >> 1
    if (u & 1) == 0:
        if t < 3 and not (kind == "first" and t == 1):
            va, off = tile_addr(t+1); kb = KF + 8*((t+1) & 1)
            a(f"ds_read_b128 {vr(kb,4)}, v{va} offset:{off}")
            a(f"ds_read_b128 {vr(kb+4,4)}, v{va} offset:{off+1024}")
        va, off = tile_addr(t); vb = VF + 8*(t & 1)
        a(f"ds_read_b128 {vr(vb,4)}, v{va} offset:{off+2048}")
        a(f"ds_read_b128 {vr(vb+4,4)}, v{va} offset:{off+3072}")
    elif not (u == 7 and hook):
        a("s_waitcnt lgkmcnt(0)")
    if kind == "first" and u == 0: M[2] = M[3] = None
    if (kind == "first" and u == 3) or (kind == "last" and u == 7): M[0] = M[1] = None
    if u == 7 and hook:
        H = hook()
        seq = [M[2]] + E[:6] + [M[3]] + E[6:8] + ["s_waitcnt lgkmcnt(0)", M[0]] + E[8:10] + [M[1]]
        k = 0
        for e in range(6):
            n = (len(H) * (e + 1)) // 6
            seq += H[k:n] + [E[10+e]]; k = n
        for l in seq: a(l)
        return
    for m in range(4):
        if M[m]: a(M[m])
        for e in E[4*m:4*m+4]: a(e)
        for l in side.get(m, []): a(l)

def chunk_salu(m0src):
    return ["s_add_u32 s5, s5, 1", "s_and_b32 s5, s5, 15", f"s_cmp_eq_u32 s5, s{sJ}", "s_addc_u32 s5, s5, 0", "s_and_b32 s5, s5, 15",
            "s_lshl_b32 s6, s5, 14", m0src, "s_add_u32 s6, s6, s4"]
def l2pf():
    return []
    return ["s_and_b32 s101, s98, 15", "s_lshl_b32 s101, s101, 14", "s_add_u32 s101, s101, s100", "s_mov_b64 exec, 0xff",
            f"buffer_load_dword v217, v216, {WS_SRD}, s101 offen {SC}", "s_mov_b64 exec, -1", "s_add_u32 s98, s98, 2"]
def piece(q): return f"buffer_load_dwordx4 v3, {WS_SRD}, s6 offen offset:{q*1024} {SC} lds"

def attention():
    PU = val("pu", 0); CU_ = val("cu", 1)
    PR = [3, 2, 2, 1, 1, 0, 0, 3]
    def hook():
        a(f"""
        v_xor_b32 v{VA}, {C1 ^ C3}, v{VA}
        v_xor_b32 v{VC}, {C0 ^ C2}, v{VC}
        s_waitcnt vmcnt(0) lgkmcnt(0)
        {"" if opt("xnobar") else "s_barrier"}
        ds_read_b128 {vr(KF,4)}, v{VA}
        ds_read_b128 {vr(KF+4,4)}, v{VA} offset:1024
        """)
        return [f"s_xor_b32 s11, s11, {C1 ^ C3}", f"s_xor_b32 s69, s69, {C0 ^ C2}"] + chunk_salu("s_mov_b32 m0, s11")
    restart = f"""
    s_waitcnt lgkmcnt(0)
    v_mfma_f32_32x32x16_bf16 {vr(S,16)}, {vr(KF,4)}, {vr(Q,4)}, 0
    v_mfma_f32_32x32x16_bf16 {vr(S,16)}, {vr(KF+4,4)}, {vr(Q+4,4)}, {vr(S,16)}
    s_nop 11
    """
    a("L_attn:")
    if PU < 0: poll_issue("s9", 0xffff)
    a(f"""
    ds_read_b128 {vr(KF,4)}, v{VA}
    ds_read_b128 {vr(KF+4,4)}, v{VA} offset:1024
    """)
    a(restart)
    stamp(5)
    for u in range(4):
        a(f"s_setprio {3-u}")
        unit(u, "first")
        if u == PU: poll_issue("s9", 0xffff)
        if u == CU_:
            poll_check("L_kvp", "s9", 0xffff)
            for l in chunk_salu(f"s_add_u32 m0, s8, {C0}") + [piece(q) for q in range(4)]: a(l)
            for l in chunk_salu("s_mov_b32 m0, s11") + [piece(q) for q in range(4)]: a(l)
    a(f"""
    s_waitcnt vmcnt(4)
    s_barrier
    ds_read_b128 {vr(KF,4)}, v{VC}
    ds_read_b128 {vr(KF+4,4)}, v{VC} offset:1024
    """)
    for l in chunk_salu("s_mov_b32 m0, s69") + [piece(q) for q in range(4)]: a(l)
    if not opt("oflags"):
        a(f"buffer_store_dwordx4 v[220:223], v3, {WS_SRD}, s14 offen {SC}")
        a(f"buffer_store_dwordx4 v[220:223], v3, {WS_SRD}, s14 offen offset:1024 {SC}")
    for l in l2pf(): a(l)
    a(restart)
    stamp(6)
    for u in range(4, 8):
        a(f"s_setprio {[2,1,0,3][u-4]}")
        unit(u, "second", hook=hook)
    if not opt("oflags"):
        a(f"""
        s_cmp_lg_u32 s{sW}, 0
        s_cbranch_scc1 L_noclean
        """)
        flag_store("s15")
        a("L_noclean:")
    stamp(7)
    DM = val("dm", 0)
    P = [piece(q) for q in range(4)]
    C2S = chunk_salu("s_mov_b32 m0, s69")
    if DM == 0:
        sides = {0: {0: [P[0]], 1: [P[1]], 2: [P[2]]}, 1: {0: [P[3]], 1: C2S + [P[0]], 2: [P[1]]}, 2: {0: [P[2]], 1: [P[3]]}}
    elif DM == 1:
        sides = {0: {0: [P[0]], 2: [P[1]]}, 1: {0: [P[2]], 2: [P[3]]}, 2: {0: C2S + [P[0]], 2: [P[1]]}, 3: {0: [P[2]], 2: [P[3]]}}
    else:
        sides = {0: {m: [P[m]] for m in range(4)}, 1: {0: C2S + [P[0]], 1: [P[1]], 2: [P[2]], 3: [P[3]]}}
    sides.setdefault(4 if DM == 1 else 3, {}).setdefault(0, []).extend(l2pf())
    PM = val("pm", 0)
    PRS = {0: {(1,-1): 2, (3,-1): 1, (5,-1): 0, (7,-1): 3},
           1: {(4,-1): 2, (5,-1): 1, (6,-1): 0, (7,-1): 3},
           2: {(5,-1): 2, (6,-1): 1, (6,1): 0, (7,-1): 3},
           3: {(5,1): 2, (6,0): 1, (6,2): 0, (7,-1): 3},
           4: {(6,0): 2, (6,1): 1, (6,2): 0, (7,-1): 3},
           5: {(3,-1): 2, (5,-1): 1, (6,1): 0, (7,-1): 3}}[PM]
    def with_prio(u, sd):
        sd = {m: list(v) for m, v in (sd or {}).items()}
        if (u, -1) in PRS and not opt("noprio"): a(f"s_setprio {PRS[(u,-1)]}")
        for m in range(4):
            if (u, m) in PRS: sd.setdefault(m, []).append(f"s_setprio {PRS[(u,m)]}")
        return sd
    a(".p2align 6")
    a("L_loop:")
    for u in range(8):
        unit(u, side=with_prio(u, sides.get(u)), hook=hook)
    a(f"""
    s_add_u32 s68, s68, 1
    s_cmp_lt_u32 s68, 6
    s_cbranch_scc1 L_loop
    """)
    WP = []
    for i in range(8):
        WP.append([f"s_add_u32 m0, s13, {i*4096}", f"s_mov_b32 s6, {i*32*896}", f"buffer_load_dwordx4 v{WOA}, {WO_SRD}, s6 offen {SC} lds"])
    wsides = {0: {0: WP[0], 1: WP[1], 2: WP[2]}, 1: {0: WP[3], 1: WP[4], 2: WP[5]}, 2: {0: WP[6], 1: WP[7]}}
    PRS = {(5,-1): 2, (6,1): 1, (7,1): 0} if PM else {(1,-1): 2, (3,-1): 1, (5,-1): 0}
    for u in range(8):
        unit(u, "last", side=with_prio(u, wsides.get(u)))
    a("s_setprio 0")
    stamp(8)
    if not opt("oflags"): poll_issue("s16", 0xff)
    a(f"""
    v_smfmac_f32_32x32x32_bf16 {vr(O+16,16)}, {vr(VF+8,4)}, {vr(S+48,8)}, v{IDX}
    v_smfmac_f32_32x32x32_bf16 {vr(O+16,16)}, {vr(VF+12,4)}, {vr(S+56,8)}, v{IDX}
    s_cmp_eq_u32 s{sKH}, 0
    s_cbranch_scc1 L_kh0
    s_nop 4
    """)
    for q in range(4): a(f"ds_write_b128 v{EXA}, {vr(O+4*q,4)} offset:{q*1024}")
    for r in range(8): a(f"v_mov_b32 v{Q+r}, v{Q+8+r}")
    a("s_waitcnt lgkmcnt(0)")
    a("s_barrier")
    for q in range(4): a(f"ds_read_b128 {vr(S+16+4*q,4)}, v{EXB} offset:{q*1024}")
    a("s_waitcnt lgkmcnt(0)")
    for r in range(8): a(f"v_pk_add_f32 {vr(S+2*r,2)}, {vr(O+16+2*r,2)}, {vr(S+16+2*r,2)}")
    a("s_branch L_norm")
    a("L_kh0:")
    a("s_nop 9")
    for q in range(4): a(f"ds_write_b128 v{EXA}, {vr(O+16+4*q,4)} offset:{q*1024}")
    a("s_waitcnt lgkmcnt(0)")
    a("s_barrier")
    for q in range(4): a(f"ds_read_b128 {vr(S+16+4*q,4)}, v{EXB} offset:{q*1024}")
    a("s_waitcnt lgkmcnt(0)")
    for r in range(8): a(f"v_pk_add_f32 {vr(S+2*r,2)}, {vr(O+2*r,2)}, {vr(S+16+2*r,2)}")
    a("L_norm:")
    a(f"""
    v_mov_b32 v{S+32}, v{S+12}
    v_mov_b32 v{S+33}, v{S+12}
    s_mov_b32 s54, 0x2f800000        ; 2^-32
    s_mov_b32 s62, 0x57800000        ; 2^48
    v_permlane32_swap_b32 v{S+32}, v{S+33}
    s_nop 1
    v_rcp_f32 v{S+34}, v{S+33}
    v_cmp_ge_f32 vcc, v{S+33}, s54
    v_cmp_le_f32 s[56:57], v{S+33}, s62
    s_nop 1
    s_and_b64 s[56:57], s[56:57], vcc
    s_cmp_eq_u64 s[56:57], -1
    s_cbranch_scc0 L_fallback
    L_norm2:
    v_cmp_gt_u32 vcc, 32, v2
    """)
    for r in range(8): a(f"v_pk_mul_f32 {vr(S+2*r,2)}, {vr(S+2*r,2)}, {vr(S+34,2)} op_sel_hi:[1,0]")
    for i in range(4): a(f"v_cvt_pk_bf16_f32 v{S+16+i}, v{S+2*i}, v{S+2*i+1}")
    a(f"buffer_store_dwordx4 {vr(S+16,4)}, v3, {WS_SRD}, s14 offen {SC}")
    for i in range(4, 8): a(f"v_cvt_pk_bf16_f32 v{S+16+i}, v{S+2*i}, v{S+2*i+1}")
    a(f"v_cndmask_b32 v{S+22}, 0, v{S+22}, vcc")
    a(f"v_cndmask_b32 v{S+23}, 0, v{S+23}, vcc")
    a(f"buffer_store_dwordx4 {vr(S+20,4)}, v3, {WS_SRD}, s14 offen offset:1024 {SC}")

def p3():
    OFR = 96; ACC = 16; WA = 64
    pool = [48, 56] + list(range(164, 204, 8)) + list(range(224, 256, 8))
    NPRE = len(pool)
    def WFt(t): return pool[t] if t < NPRE else pool[t - NPRE]
    for i in range(8):
        a(f"""
        s_add_u32 s62, s3, {i}
        s_and_b32 s62, s62, 7
        s_lshl_b32 s{54+i}, s62, 11
        s_add_u32 s{54+i}, s{54+i}, s17
        s_mul_i32 s62, s62, {28*128}
        v_add_u32 v{WA+2*i}, s62, v{P3A}
        v_xor_b32 v{WA+1+2*i}, 64, v{WA+2*i}
        """)
    def rd(t):
        i, s = divmod(t, 2)
        for ctile in range(2):
            for eh in range(2):
                a(f"ds_read_b64_tr_b16 {vr(WFt(t)+4*ctile+2*eh,2)}, v{WA+2*i+ctile} offset:{(16*s+8*eh)*128}")
    def ld(t): a(f"buffer_load_dwordx4 {vr(OFR+4*t,4)}, v3, {WS_SRD}, s{54+t//2} offen offset:{(t%2)*1024} {SC}")
    def mf(t):
        for ctile in range(2):
            acc = vr(ACC+16*ctile, 16)
            a(f"v_mfma_f32_32x32x16_bf16 {acc}, {vr(WFt(t)+4*ctile,4)}, {vr(OFR+4*t,4)}, {'0' if t == 0 else acc}")
    if opt("oflags"):
        a("s_waitcnt vmcnt(0)")
        flag_store("s15")
        stamp(9)
        a(f"""
        s_cmp_ge_u32 s23, 28
        s_cbranch_scc1 L_fin
        s_barrier
        """)
        poll_issue("s16", 0xff)
        for t in range(NPRE): rd(t)
        poll_check("L_op", "s16", 0xff, 62, 63)
        stamp(10)
        for t in range(16): ld(t)
    else:
        stamp(9)
        a(f"""
        s_cmp_ge_u32 s23, 28
        s_cbranch_scc1 L_fin
        s_waitcnt vmcnt({2 if opt("nodelay") else 0})
        s_barrier
        v_cmp_eq_u64 vcc, s[{TAG}:{TAG+1}], v[{TMP}:{TMP+1}]
        s_nop 1
        s_and_b32 s63, vcc_lo, 0xff
        s_cmp_eq_u32 s63, 0xff
        s_cbranch_scc1 L_op_ok
        """)
        poll_check("L_op", "s16", 0xff, 62, 63)
        stamp(10)
        for t in range(16): ld(t)
        for t in range(NPRE): rd(t)
    for k in range(1, 4): a(f"v_xor_b32 v{8+k}, {32*k}, v{PWA}")
    a(f"v_xor_b32 v12, 16, v{PRA}")
    a(f"s_mov_b32 s62, {SPIN_MAX}")
    if opt("diag"): a("s_mov_b32 s76, 0\ns_mov_b32 s73, 0\ns_mov_b32 s75, 0\ns_mov_b32 s78, 99")
    for t in range(16):
        if opt("oflags"):
            a(f"s_waitcnt vmcnt({15-t})")
        else:
            if t % 2 == 0:
                B = OFR + 4*t
                a(f"""
                s_waitcnt vmcnt({14-t})
                L_mk{t}:
                v_max3_u32 v13, v{B}, v{B+3}, v{B+4}
                v_max_u32 v13, v13, v{B+7}
                v_cmp_eq_u32 vcc, -1, v13
                s_nop 1
                s_cmp_eq_u64 vcc, 0
                s_cbranch_scc0 L_retry{t}
                L_go{t}:
                """)
        if t == 0 or t == NPRE: a("s_waitcnt lgkmcnt(0)")
        mf(t)
        if t + NPRE < 16: rd(t + NPRE)
    a(f"s_mov_b32 s62, {8*1792}")
    stamp(11)
    a("s_nop 10")
    for c in range(2):
        for g in range(4):
            ad = PWA if g == 0 else 8+g
            a(f"ds_write_b128 v{ad}, {vr(ACC+16*c+4*g,4)} offset:{c*128}")
    a("s_waitcnt lgkmcnt(0)")
    a("s_barrier")
    for h8 in range(2):
        for p in range(2):
            for i in range(2):
                a(f"ds_read_b128 {vr(64+16*h8+8*p+4*i,4)}, v{PRA if i == 0 else 12} offset:{h8*2048+p*32768}")
    OS = "" if opt("outplain") else "sc1"
    for h8 in range(2):
        B = 64 + 16*h8
        a(f"s_waitcnt lgkmcnt({4 if h8 == 0 else 0})")
        for r in range(4): a(f"v_pk_add_f32 {vr(B+2*r,2)}, {vr(B+2*r,2)}, {vr(B+8+2*r,2)}")
        for r in range(4): a(f"v_cvt_pk_bf16_f32 v{96+4*h8+r}, v{B+2*r}, v{B+2*r+1}")
        a(f"buffer_store_dwordx4 {vr(96+4*h8,4)}, v{OUTA}, {OUT_SRD}, {'0' if h8 == 0 else 's62'} offen {OS}")
    a("L_fin:")
    if STAMP: a("s_waitcnt vmcnt(0)")
    stamp(12)
    stamp_flush(13)
    a("L_end:")
    a("s_endpgm")

def retries():
    if opt("oflags"): return
    OFR = 96
    for t in range(0, 16, 2):
        a(f"""
        L_retry{t}:
        s_mov_b32 s99, {t}
        s_branch L_refresh
        """)
    a("L_refresh:")
    a("s_waitcnt vmcnt(0)")
    if opt("diag"):
        a("""
        s_cmp_lg_u32 s76, 0
        s_cbranch_scc1 L_diag1
        """)
        stamp(1)
        a("""
        s_mov_b32 s78, s99
        L_diag1:
        s_add_u32 s76, s76, 1
        """)
    a("s_mov_b32 s63, 0")
    for t in range(0, 16, 2):
        B = OFR + 4*t
        a(f"""
        v_max3_u32 v13, v{B}, v{B+3}, v{B+4}
        v_max_u32 v13, v13, v{B+7}
        v_cmp_eq_u32 vcc, -1, v13
        s_nop 1
        s_cmp_eq_u64 vcc, 0
        s_cbranch_scc1 L_fresh{t}
        buffer_load_dwordx4 {vr(B,4)}, v3, {WS_SRD}, s{54+t//2} offen {SC}
        buffer_load_dwordx4 {vr(B+4,4)}, v3, {WS_SRD}, s{54+t//2} offen offset:1024 {SC}
        s_mov_b32 s63, 1
        L_fresh{t}:
        """)
    a(f"""
    s_cmp_eq_u32 s63, 0
    s_cbranch_scc1 L_refreshed
    s_sub_u32 s62, s62, 1
    s_cbranch_scc0 L_refresh
    s_mov_b32 s62, 0
    s_waitcnt vmcnt(0)
    L_refreshed:
    """)
    if opt("diag"): stamp(2)
    for t in range(0, 14, 2):
        a(f"""
        s_cmp_eq_u32 s99, {t}
        s_cbranch_scc1 L_go{t}
        """)
    a("s_branch L_go14")

def fallback():
    T = S + 16; K0 = KF; M = S + 35
    a("L_fallback:")
    a(f"""
    s_lshl_b32 s58, s{sHD}, 18
    s_mov_b32 s59, 64
    v_mov_b32 v{M}, 0xff800000
    L_fb1:
    buffer_load_dwordx4 {vr(K0,4)}, v3, {WS_SRD}, s58 offen {SC}
    buffer_load_dwordx4 {vr(K0+4,4)}, v3, {WS_SRD}, s58 offen offset:1024 {SC}
    s_waitcnt vmcnt(0)
    v_mfma_f32_32x32x16_bf16 {vr(T,16)}, {vr(K0,4)}, {vr(Q,4)}, 0
    v_mfma_f32_32x32x16_bf16 {vr(T,16)}, {vr(K0+4,4)}, {vr(Q+4,4)}, {vr(T,16)}
    s_add_u32 s58, s58, 4096
    s_sub_u32 s59, s59, 1
    s_nop 15
    """)
    for i in range(8): a(f"v_max3_f32 v{M}, v{M}, v{T+2*i}, v{T+2*i+1}")
    a(f"""
    s_cmp_lg_u32 s59, 0
    s_cbranch_scc1 L_fb1
    v_mov_b32 v{M+1}, v{M}
    s_nop 1
    v_permlane32_swap_b32 v{M}, v{M+1}
    s_nop 1
    v_max_f32 v{M}, v{M}, v{M+1}
    v_sub_f32 v{M}, 0, v{M}
    v_and_b32 v{M+1}, 0xffff0000, v{M}
    v_sub_f32 v{M+2}, v{M}, v{M+1}
    v_and_b32 v{M+3}, 0xffff0000, v{M+2}
    v_sub_f32 v{M+2}, v{M+2}, v{M+3}
    v_lshrrev_b32 v{M+1}, 16, v{M+1}
    v_or_b32 v{M+1}, v{M+1}, v{M+3}
    v_lshrrev_b32 v{M+2}, 16, v{M+2}
    v_cmp_gt_u32 vcc, 32, v2
    s_lshl_b32 s58, s{sHD}, 18
    s_mov_b32 s59, 64
    v_cndmask_b32 v{Q+6}, v{M+1}, v{Q+6}, vcc
    v_cndmask_b32 v{Q+7}, v{M+2}, v{Q+7}, vcc
    """)
    for r in range(16): a(f"v_mov_b32 v{S+r}, 0")
    a(f"""
    L_fb2:
    buffer_load_dwordx4 {vr(K0,4)}, v3, {WS_SRD}, s58 offen {SC}
    buffer_load_dwordx4 {vr(K0+4,4)}, v3, {WS_SRD}, s58 offen offset:1024 {SC}
    buffer_load_dwordx4 {vr(K0+8,4)}, v3, {WS_SRD}, s58 offen offset:2048 {SC}
    buffer_load_dwordx4 {vr(K0+12,4)}, v3, {WS_SRD}, s58 offen offset:3072 {SC}
    s_waitcnt vmcnt(0)
    v_mfma_f32_32x32x16_bf16 {vr(T,16)}, {vr(K0,4)}, {vr(Q,4)}, 0
    v_mfma_f32_32x32x16_bf16 {vr(T,16)}, {vr(K0+4,4)}, {vr(Q+4,4)}, {vr(T,16)}
    s_add_u32 s58, s58, 4096
    s_sub_u32 s59, s59, 1
    s_nop 15
    """)
    for i in range(16): a(f"v_exp_f32 v{T+i}, v{T+i}")
    a(f"""
    s_nop 1
    v_smfmac_f32_32x32x32_bf16 {vr(S,16)}, {vr(K0+8,4)}, {vr(T,8)}, v{IDX}
    v_smfmac_f32_32x32x32_bf16 {vr(S,16)}, {vr(K0+12,4)}, {vr(T+8,8)}, v{IDX}
    s_cmp_lg_u32 s59, 0
    s_cbranch_scc1 L_fb2
    s_nop 15
    v_mov_b32 v{S+32}, v{S+12}
    v_mov_b32 v{S+33}, v{S+12}
    s_nop 1
    v_permlane32_swap_b32 v{S+32}, v{S+33}
    s_nop 1
    v_rcp_f32 v{S+34}, v{S+33}
    s_branch L_norm2
    """)

prologue(); loader(); compute(); attention(); p3(); retries(); fallback()
a("L_code_end:")
a(kdesc(N, NV, 102))
hdr = f"; @launch grid=(256,1,1) block=(512,1,1) lds={LDS_BYTES}\n" + '.amdgcn_target "amdgcn-amd-amdhsa--gfx950"\n'
open(sys.argv[1], "w").write(hdr + a.text())
```

```python
import sys, struct
from asmlib import *

KV_OFF = 0
OF_OFF = 8 << 20
FL_OFF = 12 << 20
FO_OFF = (12 << 20) + (256 << 10)
WS_USED = 13 << 20
ST_OFF = 32 << 20
CSCALE = 28 ** -0.5 * 1.4426950408889634
def f2u(x): return struct.unpack("<I", struct.pack("<f", x))[0]
ARGS = sys.argv[2:]
def opt(name): return ("--" + name) in ARGS
def val(name, d): return int(ARGS[ARGS.index("--" + name) + 1]) if opt(name) else d
STAMP = opt("stamp")
N = "concat_heads__softmax_full_mha__mha_block__prompt_kernel"
SC = "sc1"
SPIN_MAX = 100000
SLEEP = val("sleep", 2)

FSH = 7 if opt("spreadfl") else 3
WR0 = 114688
C0, C1, C2, C3 = 32768, 65536, 98304, 131072
A2 = C3
LDS_BYTES = 163840
def wslot(i): return WR0 + ((i + 2) % 3) * 16384

a = Asm()
def stamp(idx):
    if not STAMP: return
    a(f"""
    s_memtime s[64:65]
    s_memrealtime s[66:67]
    s_waitcnt lgkmcnt(0)
    s_mov_b32 s{70+2*idx}, s64
    s_mov_b32 s{71+2*idx}, s66
    """)
def stamp_flush(n):
    if not STAMP: return
    a(f"""
    s_lshl_b32 s66, s2, 4
    s_add_u32 s66, s66, s27
    s_lshl_b32 s66, s66, 7
    s_add_u32 s66, s66, {ST_OFF}
    s_add_u32 s64, s20, s66
    s_addc_u32 s65, s21, 0
    v_mov_b32 v0, 0
    s_mov_b64 exec, 1
    """)
    for i in range(n):
        a(f"""
        v_mov_b32 v4, s{70+2*i}
        v_mov_b32 v5, s{71+2*i}
        global_store_dwordx2 v0, v[4:5], s[64:65] offset:{8*i}
        s_nop 1
        """)

sB, sJ, sHP, sW, sG, sKH, sHD = 24, 25, 26, 27, 48, 49, 52
X_SRD, W_SRD, WS_SRD, WO_SRD, OUT_SRD = "s[28:31]", "s[32:35]", "s[36:39]", "s[40:43]", "s[44:47]"
TAG = 50
IDX, VA, VC = 4, 5, 6
Q, O, S, KF, VF = 8, 176, 64, 128, 144
TMP = 160
PA, WOA, EXA, EXB, P3A, OUTA, PWA, PRA = 208, 209, 210, 211, 212, 213, 214, 215
NV = 256

def tag_check(lbl, v):
    a(f"""
    s_mov_b32 s53, {SPIN_MAX}
    {lbl}_chk:
    v_readfirstlane_b32 s{TAG}, v{v}
    v_readfirstlane_b32 s{TAG+1}, v{v+1}
    s_nop 1
    s_cmp_lg_u64 s[{TAG}:{TAG+1}], 0
    s_cbranch_scc1 {lbl}_ok
    s_sub_u32 s53, s53, 1
    s_cbranch_scc1 {lbl}_ok
    global_load_dwordx2 v[{v}:{v+1}], v7, s[18:19] {SC}
    s_waitcnt vmcnt(0)
    s_branch {lbl}_chk
    {lbl}_ok:
    """)
def poll_issue(soff, mask):
    a(f"""
    s_mov_b64 exec, {hex(mask)}
    buffer_load_dwordx2 v[{TMP}:{TMP+1}], v{216 if mask == 0xffff else PA}, {WS_SRD}, {soff} offen {SC}
    s_mov_b64 exec, -1
    """)
def poll_check(lbl, soff, mask, t0=53, t1=54):
    a(f"""
    s_mov_b32 s{t0}, {SPIN_MAX}
    {lbl}_chk:
    s_waitcnt vmcnt(0)
    v_cmp_eq_u64 vcc, s[{TAG}:{TAG+1}], v[{TMP}:{TMP+1}]
    s_nop 1
    s_and_b32 s{t1}, vcc_lo, {hex(mask)}
    s_cmp_eq_u32 s{t1}, {hex(mask)}
    s_cbranch_scc1 {lbl}_ok
    s_sub_u32 s{t0}, s{t0}, 1
    s_cbranch_scc1 {lbl}_ok
    s_sleep {SLEEP}
    """)
    poll_issue(soff, mask)
    a(f"""
    s_branch {lbl}_chk
    {lbl}_ok:
    """)
def flag_store(soff, v=TMP+2):
    a(f"""
    v_mov_b32 v{v}, s{TAG}
    v_mov_b32 v{v+1}, s{TAG+1}
    s_mov_b64 exec, 1
    buffer_store_dwordx2 v[{v}:{v+1}], v7, {WS_SRD}, {soff} offen {SC}
    s_mov_b64 exec, -1
    """)

def prologue():
    a(khead(N))
    a(f"""
    s_cmp_ge_u32 s2, 256
    s_cbranch_scc1 L_end
    """)
    stamp(0)
    a(f"""
    s_load_dwordx16 s[4:19], s[0:1], 0
    s_load_dwordx2 s[20:21], s[0:1], 64
    s_and_b32 s22, s2, 7          ; xcd
    s_lshr_b32 s23, s2, 3         ; r
    s_lshr_b32 s{sB}, s22, 2
    s_bfe_u32 s25, s22, 0x10001
    s_lshl_b32 s25, s25, 3
    s_and_b32 s53, s23, 7
    s_add_u32 s{sJ}, s25, s53     ; jj
    s_and_b32 s26, s22, 1
    s_lshl_b32 s26, s26, 2
    s_lshr_b32 s54, s23, 3
    s_add_u32 s{sHP}, s26, s54    ; hp
    s_lshl_b32 s54, s54, 1
    s_add_u32 s54, s54, s53       ; 0..13
    s_sub_u32 s53, s54, 7
    s_cmp_ge_u32 s54, 7
    s_cselect_b32 s54, s53, s54   ; first K chunk
    """)
    RM = val("rotm", 1)
    if RM:
        a("""
        s_lshr_b32 s54, s23, 3
        s_add_u32 s54, s54, s23
        """)
        if RM == 1: a("s_and_b32 s54, s54, 3\ns_lshl_b32 s54, s54, 1")
        if RM == 3: a("s_and_b32 s54, s54, 1\ns_lshl_b32 s54, s54, 2")
        if RM == 2: a("s_and_b32 s54, s54, 3\ns_lshl_b32 s54, s54, 2\ns_lshr_b32 s54, 0x2520, s54\ns_and_b32 s54, s54, 15")
        if RM == 4: a("s_and_b32 s54, s54, 7\ns_lshl_b32 s54, s54, 2\ns_lshr_b32 s54, 0x53164200, s54\ns_and_b32 s54, s54, 15")
    a(f"""
    v_lshrrev_b32 v1, 6, v0
    v_and_b32 v2, 63, v0          ; lane
    v_mov_b32 v7, 0
    v_readfirstlane_b32 s{sW}, v1
    v_lshlrev_b32 v3, 4, v2       ; lane*16
    s_and_b32 s{sG}, s{sW}, 3
    s_lshr_b32 s{sKH}, s{sW}, 2
    s_cmp_eq_u32 s{sKH}, 0
    s_cbranch_scc1 L_compute
    """)

def srd_in():
    a(f"""
    s_waitcnt lgkmcnt(0)
    s_cmp_eq_u32 s{sB}, 0
    s_cselect_b32 s28, s4, s10
    s_cselect_b32 s29, s5, s11
    s_cselect_b32 s32, s6, s12
    s_cselect_b32 s33, s7, s13
    """)
def srd_const():
    a(f"""
    s_mov_b32 s30, 1835008
    s_mov_b32 s31, 0x20000
    s_mov_b32 s34, 1204224
    s_mov_b32 s35, 0x20000
    """)
def srd_rest():
    a(f"""
    s_cmp_eq_u32 s{sB}, 0
    s_mov_b32 s36, s20
    s_mov_b32 s37, s21
    s_mov_b32 s38, {WS_USED}
    s_mov_b32 s39, 0x20000
    s_cselect_b32 s40, s8, s14
    s_cselect_b32 s41, s9, s15
    s_mov_b32 s42, 401408
    s_mov_b32 s43, 0x20000
    s_mov_b32 s44, s16
    s_mov_b32 s45, s17
    s_mov_b32 s46, 3670016
    s_mov_b32 s47, 0x20000
    """)

def setup():
    srd_rest()
    a(f"""
    v_mov_b32 v{IDX}, 0xdddddddd
    s_lshl_b32 s62, s{sB}, 3
    s_add_u32 s62, s62, s{sHP}            ; b*8+hp
    s_lshl_b32 s9, s62, {FSH+6}
    s_add_u32 s9, s9, {FL_OFF}
    s_lshl_b32 s62, s62, 1                ; b*16 + 2hp
    s_lshr_b32 s63, s{sG}, 1              ; hd
    s_add_u32 s{sHD}, s62, s63
    s_lshl_b32 s7, s63, 14
    s_lshl_b32 s63, s{sKH}, 13
    s_add_u32 s7, s7, s63
    s_add_u32 s7, s7, {C0}
    v_add_u32 v{VC}, s7, v3
    v_add_u32 v{VA}, {C3-C0}, v{VC}
    s_add_u32 s62, s62, s{sKH}
    s_lshl_b32 s4, s62, 6
    s_add_u32 s4, s4, s{sG}
    s_lshl_b32 s4, s4, 12
    s_and_b32 s5, s{sJ}, 8
    s_sub_u32 s5, s5, 1
    {f"s_mov_b32 s5, s{sJ}" if opt("ownrot") else ""}
    s_lshl_b32 s8, s{sW}, 12
    s_lshl_b32 s10, s{sG}, {FSH+4}
    s_add_u32 s10, s10, s9
    s_lshl_b32 s62, s{sJ}, {FSH}
    s_add_u32 s10, s10, s62
    s_lshr_b32 s62, s{sW}, 1
    s_lshl_b32 s62, s62, {FSH+4}
    s_add_u32 s9, s9, s62
    v_lshlrev_b32 v{PA}, 3, v2
    s_mul_i32 s62, s23, 37
    s_lshr_b32 s62, s62, 8                ; r/7
    s_mul_i32 s3, s62, 7
    s_sub_u32 s3, s23, s3                 ; ct
    s_lshl_b32 s12, s22, 2
    s_add_u32 s12, s12, s62
    s_lshl_b32 s12, s12, 2
    s_add_u32 s12, s12, s{sG}
    v_lshrrev_b32 v{WOA}, 3, v2
    v_and_b32 v{EXA}, 7, v2
    v_bfe_u32 v{EXB}, v2, 4, 1
    v_lshlrev_b32 v{EXB}, 2, v{EXB}
    v_xor_b32 v{EXA}, v{EXA}, v{EXB}
    v_mul_u32_u24 v{WOA}, 896, v{WOA}
    v_lshl_add_u32 v{WOA}, v{EXA}, 4, v{WOA}
    s_mul_i32 s62, s{sG}, {8*896}
    s_mul_i32 s63, s{sKH}, {224*896}
    s_add_u32 s62, s62, s63
    s_lshl_b32 s63, s3, 7
    s_add_u32 s62, s62, s63
    v_add_u32 v{WOA}, s62, v{WOA}
    s_mul_i32 s13, s{sKH}, {C3-C0}
    s_lshl_b32 s62, s{sG}, 10
    s_add_u32 s13, s13, s62
    s_add_u32 s13, s13, {C0}
    s_lshl_b32 s62, s{sW}, 12
    v_add_u32 v{EXA}, s62, v3
    s_xor_b32 s62, s62, 16384
    v_add_u32 v{EXB}, s62, v3
    s_add_u32 s11, s8, {C1}
    s_add_u32 s69, s8, {C2}
    s_lshl_b32 s62, s{sB}, 4
    s_add_u32 s62, s62, s{sJ}
    s_lshl_b32 s62, s62, 1
    s_and_b32 s63, s{sG}, 1
    s_add_u32 s62, s62, s63
    s_lshl_b32 s62, s62, 1
    s_add_u32 s62, s62, s{sKH}
    s_lshl_b32 s62, s62, 4
    s_and_b32 s63, s{sHD}, 15
    s_add_u32 s62, s62, s63
    s_lshl_b32 s15, s62, 3
    s_add_u32 s15, s15, {FO_OFF}
    s_lshl_b32 s14, s62, 11
    s_add_u32 s14, s14, {OF_OFF}
    s_lshl_b32 s16, s12, 7
    s_lshl_b32 s62, s{sKH}, 6
    s_add_u32 s16, s16, s62
    s_add_u32 s16, s16, {FO_OFF}
    s_lshl_b32 s17, s12, 15
    s_lshl_b32 s62, s{sKH}, 14
    s_add_u32 s17, s17, s62
    s_add_u32 s17, s17, {OF_OFF}
    v_lshrrev_b32 v216, 5, v2             ; hh
    v_bfe_u32 v217, v2, 2, 2
    v_lshl_add_u32 v{P3A}, v216, 2, v217
    v_lshlrev_b32 v{P3A}, 7, v{P3A}
    v_bfe_u32 v217, v2, 4, 1
    v_lshl_add_u32 v{P3A}, v217, 5, v{P3A}
    v_and_b32 v217, 3, v2
    v_lshl_add_u32 v{P3A}, v217, 3, v{P3A}
    v_bfe_u32 v217, v2, 3, 1
    v_lshl_add_u32 v{P3A}, v217, 6, v{P3A}
    s_mul_i32 s62, s{sKH}, {C3-C0}
    s_add_u32 s62, s62, {C0}
    v_add_u32 v{P3A}, s62, v{P3A}
    v_and_b32 v217, 31, v2
    v_and_b32 v218, 7, v2
    v_xor_b32 v218, v216, v218
    v_lshlrev_b32 v218, 4, v218
    v_lshl_add_u32 v{PWA}, v217, 8, v218
    s_lshl_b32 s62, s{sW}, 13
    s_add_u32 s62, s62, {C1}
    v_add_u32 v{PWA}, s62, v{PWA}
    v_lshrrev_b32 v217, 3, v2
    v_and_b32 v218, 7, v2
    v_lshlrev_b32 v219, 1, v218
    v_xor_b32 v219, v219, v217
    v_lshlrev_b32 v219, 4, v219
    v_lshl_add_u32 v{PRA}, v217, 8, v219
    s_lshl_b32 s62, s{sG}, 13
    s_lshl_b32 s63, s{sKH}, 12
    s_add_u32 s62, s62, s63
    s_add_u32 s62, s62, {C1}
    v_add_u32 v{PRA}, s62, v{PRA}
    s_and_b32 s62, s12, 63
    s_lshl_b32 s62, s62, 5
    s_lshl_b32 s63, s{sKH}, 4
    s_add_u32 s62, s62, s63
    v_add_u32 v217, s62, v217
    v_mul_u32_u24 v217, 1792, v217
    v_lshl_add_u32 v{OUTA}, v218, 4, v217
    s_mul_i32 s62, s{sB}, 896
    s_lshl_b32 s63, s3, 7
    s_add_u32 s62, s62, s63
    v_add_u32 v{OUTA}, s62, v{OUTA}
    s_mov_b32 s68, 0
    v_lshlrev_b32 v216, {FSH}, v2
    """)
    if not opt("oflags"):
        a(f"""
        s_lshl_b32 s15, s{sB}, 4
        s_add_u32 s15, s15, s{sJ}
        s_lshl_b32 s15, s15, 7
        s_lshl_b32 s62, s{sHP}, 3
        s_add_u32 s15, s15, s62
        s_add_u32 s15, s15, {FO_OFF}
        s_lshr_b32 s16, s12, 2
        s_lshl_b32 s16, s16, 7
        s_add_u32 s16, s16, {FO_OFF}
        v_mov_b32 v220, -1
        v_mov_b32 v221, -1
        v_mov_b32 v222, -1
        v_mov_b32 v223, -1
        """)
    for r in range(O, O+32): a(f"v_mov_b32 v{r}, 0")

def loader():
    a(f"""
    v_lshrrev_b32 v8, 3, v2       ; lane/8
    v_and_b32 v9, 7, v2
    v_lshrrev_b32 v14, 4, v2
    v_xor_b32 v9, v9, v14
    v_xor_b32 v14, 4, v9
    s_lshl_b32 s55, s{sJ}, 7
    s_lshl_b32 s56, s{sG}, 5
    s_add_u32 s55, s55, s56
    s_mul_i32 s55, s55, 896
    v_mul_u32_u24 v8, 896, v8
    v_add_u32 v8, s55, v8
    v_lshl_add_u32 v10, v9, 4, v8
    v_lshl_add_u32 v11, v14, 4, v8
    v_add_u32 v12, {2*6144}, v10
    v_add_u32 v13, {3*6144}, v11
    v_add_u32 v11, {6144}, v11
    s_lshl_b32 s55, s{sG}, 12              ; g*4096
    s_lshl_b32 s57, s54, 7
    s_mov_b32 m0, s55
    s_mul_i32 s58, s54, {64*2688}
    """)
    srd_const()
    a(f"""
    v_lshrrev_b32 v8, 4, v2
    v_and_b32 v9, 15, v2
    v_lshlrev_b32 v20, 2, v8
    v_xor_b32 v9, v9, v20         ; P
    v_lshrrev_b32 v20, 3, v9      ; seg
    v_and_b32 v9, 7, v9
    v_min_u32 v9, 6, v9
    v_mul_u32_u24 v8, 2688, v8
    v_mul_u32_u24 v20, 896, v20
    v_lshlrev_b32 v9, 4, v9
    v_add3_u32 v8, v8, v9, v20
    s_mul_i32 s59, s{sG}, {16*2688}
    s_mul_i32 s60, s{sHP}, 112
    s_add_u32 s59, s59, s60
    s_add_u32 s60, s59, 896
    v_add_u32 v14, s60, v8
    v_add_u32 v15, {4*2688-1024}, v14
    v_add_u32 v16, {2*(4*2688-1024)}, v14
    v_add_u32 v17, {3*(4*2688-1024)}, v14
    """)
    srd_in()
    for q in range(4): a(f"buffer_load_dwordx4 v{10+q}, {X_SRD}, s57 offen offset:{q*1024} {SC} lds")
    def next_c():
        a("""
        s_add_u32 s54, s54, 1
        s_cmp_eq_u32 s54, 7
        s_cselect_b32 s54, 0, s54
        """)
    def item(i):
        if i < 7:
            if i:
                a(f"""
                s_lshl_b32 s57, s54, 7
                s_add_u32 m0, s55, {i*16384}
                s_mul_i32 s58, s54, {64*2688}
                """)
                for q in range(4): a(f"buffer_load_dwordx4 v{10+q}, {X_SRD}, s57 offen offset:{q*1024} {SC} lds")
            a(f"s_add_u32 m0, s55, {wslot(i)}")
            a("s_nop 0")
            for q in range(4): a(f"buffer_load_dwordx4 v{14+q}, {W_SRD}, s58 offen offset:{q*1024} {SC} lds")
            next_c()
        else:
            for d in range(2):
                if 2*(i-7)+d > 6: break
                a(f"""
                s_add_u32 m0, s56, {wslot(i) + d*8192}
                s_mul_i32 s58, s54, {64*2688}
                """)
                for q in range(2): a(f"buffer_load_dwordx4 v{18+q}, {W_SRD}, s58 offen offset:{q*1024} {SC} lds")
                next_c()
    item(0); item(1)
    a(f"""
    v_lshrrev_b32 v8, 3, v2
    v_and_b32 v9, 7, v2
    v_bfe_u32 v20, v2, 4, 1
    v_lshlrev_b32 v20, 2, v20
    v_xor_b32 v9, v9, v20
    v_min_u32 v9, 6, v9
    v_mul_u32_u24 v8, 2688, v8
    v_lshl_add_u32 v8, v9, 4, v8
    v_add_u32 v18, s59, v8
    v_add_u32 v19, {8*2688-1024}, v18
    s_lshl_b32 s56, s{sG}, 11
    """)
    stamp(1)
    cnt = lambda i: 8 if i < 7 else (4 if i < 10 else (2 if i == 10 else 0))
    for k in range(11):
        a(f"s_waitcnt vmcnt({0 if (opt('sfirst') and k == 7) else cnt(k+1)})")
        a("s_barrier")
        if k == 0: stamp(2)
        if opt("sfirst"):
            if k + 2 <= 7: item(k+2)
            if k == 7:
                a("s_barrier")
                item(8); item(9)
            if k == 8: item(10)
        elif k + 2 <= 10: item(k+2)
        if k == 8: setup()
        if k == 9: a(f"global_load_dwordx2 v[{TMP}:{TMP+1}], v7, s[18:19] {SC}")
    tag_check("L_tagl", TMP)
    stamp(3); stamp(4)
    a(f"""
    s_lshl_b32 s55, s{sG}, 12
    v_add_u32 v{TMP+4}, s55, v3
    s_barrier
    """)
    for i in range(4): a(f"ds_read_b128 {vr(Q+4*i,4)}, v{TMP+4} offset:{i*1024}")
    a("s_branch L_attn")

def compute():
    XA = 24
    WK, WV, WQ = 28, 168, 169
    AK, AV, AQ = (32, 64), (48, 80), (96, 112)
    FB = 128
    PK = 32
    a("L_compute:")
    srd_const(); srd_in()
    if not opt("nocodepf"):
        a(f"""
        s_getpc_b64 s[62:63]
        L_pc:
        s_and_b32 s55, s23, 7
        s_lshl_b32 s55, s55, 2
        s_add_u32 s55, s55, s{sW}
        s_lshl_b32 s55, s55, 10
        v_add_u32 v8, s55, v3
        v_min_u32 v8, L_code_end - L_pc - 16, v8
        global_load_dwordx4 v[164:167], v8, s[62:63]
        """)
    a(f"""
    s_cmp_lg_u32 s2, 0
    s_cbranch_scc1 L_notag
    s_cmp_lg_u32 s{sW}, 0
    s_cbranch_scc1 L_notag
    s_memrealtime s[60:61]
    s_waitcnt lgkmcnt(0)
    s_or_b32 s60, s60, 1
    v_mov_b32 v18, s60
    v_mov_b32 v19, s61
    s_mov_b64 exec, 1
    global_store_dwordx2 v7, v[18:19], s[18:19] {SC}
    s_mov_b64 exec, -1
    L_notag:
    v_and_b32 v8, 31, v2          ; m
    v_lshrrev_b32 v9, 5, v2       ; hh
    v_bfe_u32 v10, v2, 1, 3       ; z
    v_xor_b32 v10, v9, v10
    s_and_b32 s55, s{sG}, 1
    s_lshl_b32 s55, s55, 13
    v_lshlrev_b32 v11, 7, v8
    v_add_u32 v11, s55, v11
    v_lshl_add_u32 v{XA}, v10, 4, v11
    v_xor_b32 v12, 2, v10
    v_lshl_add_u32 v{XA+1}, v12, 4, v11
    v_xor_b32 v12, 4, v10
    v_lshl_add_u32 v{XA+2}, v12, 4, v11
    v_xor_b32 v12, 6, v10
    v_lshl_add_u32 v{XA+3}, v12, 4, v11
    v_bfe_u32 v10, v2, 2, 2       ; r
    v_bfe_u32 v11, v2, 4, 1       ; nhalf
    v_and_b32 v12, 3, v2          ; c4
    v_lshl_add_u32 v11, v11, 2, v12
    s_lshr_b32 s55, s{sG}, 1
    s_mul_i32 s55, s55, 7
    v_add_u32 v11, s55, v11       ; u
    v_lshrrev_b32 v12, 1, v11     ; piece
    v_and_b32 v11, 1, v11
    v_lshlrev_b32 v11, 3, v11     ; half*8
    v_lshl_add_u32 v13, v9, 3, v10      ; 8hh + r
    v_lshlrev_b32 v14, 2, v10
    v_xor_b32 v14, v12, v14             ; piece ^ (r<<2)
    v_lshl_add_u32 v14, v14, 4, v11
    v_lshl_add_u32 v14, v13, 8, v14
    v_add_u32 v{WK}, {WR0}, v14
    v_xor_b32 v{WV}, 128, v{WK}
    v_lshrrev_b32 v14, 1, v10
    v_lshlrev_b32 v14, 2, v14
    v_xor_b32 v14, v12, v14             ; piece ^ ((r>>1)<<2)
    v_lshl_add_u32 v14, v14, 4, v11
    v_lshl_add_u32 v14, v13, 7, v14
    v_add_u32 v{WQ}, {WR0}, v14
    v_and_b32 v29, 0x33, v2
    v_bfe_u32 v10, v2, 2, 1
    v_bfe_u32 v11, v2, 3, 1
    v_lshl_or_b32 v29, v10, 3, v29
    v_lshl_or_b32 v29, v11, 2, v29
    v_lshlrev_b32 v29, 4, v29     ; swap23(lane)*16
    v_cmp_gt_u32 s[56:57], 28, v8
    v_cmp_eq_u32 s[58:59], 28, v8
    v_mov_b32 v30, 0x3f803f80
    v_mov_b32 v31, 0x00003f80
    v_cndmask_b32 v1, 0, v30, s[58:59]
    s_lshl_b32 s60, s{sG}, 13
    s_add_u32 s60, s60, {A2}
    v_add_u32 v170, s60, v29
    v_add_u32 v171, s60, v3
    s_lshl_b32 s60, s{sG}, 12
    v_add_u32 v172, s60, v3
    """)
    setup()
    a(f"""
    s_lshl_b32 s55, s{sHD}, 6
    s_lshl_b32 s60, s{sJ}, 2
    s_add_u32 s55, s55, s60
    s_and_b32 s60, s{sG}, 1
    s_lshl_b32 s60, s60, 1
    s_add_u32 s55, s55, s60
    s_lshl_b32 s55, s55, 12       ; KV global offset of this wave's first tile
    s_mov_b32 s60, {hex(f2u(CSCALE))}
    s_mov_b32 s61, s60
    v_cmp_gt_u32 vcc, 32, v2
    """)
    def FB2(t): return (128, 140, 152)[t % 3] if t else 128
    def xoff(i): return (i if i < 4 else i-4) * 16384
    def reads1(t):
        i, s = divmod(t, 4); b = FB + 16*(t & 1); wo = wslot(i) - WR0
        R = [f"ds_read_b128 {vr(b,4)}, v{XA+s} offset:{xoff(i)}"]
        for rd in range(2): R.append(f"ds_read_b64_tr_b16 {vr(b+8+2*rd,2)}, v{WK} offset:{wo+(16*s+4*rd)*256}")
        for rd in range(2): R.append(f"ds_read_b64_tr_b16 {vr(b+12+2*rd,2)}, v{WV} offset:{wo+(16*s+4*rd)*256}")
        R.append(f"ds_read_b128 {vr(b+4,4)}, v{XA+s} offset:{xoff(i)+4096}")
        return R
    def reads2(t):
        i, s = divmod(t, 4); b = FB2(t); wo = wslot(7 + i//2) - WR0 + (i & 1)*8192
        R = [f"ds_read_b128 {vr(b,4)}, v{XA+s} offset:{xoff(i)}"]
        for rd in range(2): R.append(f"ds_read_b64_tr_b16 {vr(b+8+2*rd,2)}, v{WQ} offset:{wo+(16*s+4*rd)*128}")
        R.append(f"ds_read_b128 {vr(b+4,4)}, v{XA+s} offset:{xoff(i)+4096}")
        return R
    def shift(d): return [f"v_add_u32 v{XA+k}, {d & 0xffffffff}, v{XA+k}" for k in range(4)]
    stamp(1)
    a("s_barrier")
    stamp(2)
    for r in reads1(0): a(r)
    for t in range(28):
        i, s = divmod(t, 4); b = FB + 16*(t & 1)
        cin = lambda r: ("0" if t == 0 else vr(r, 16))
        M = [f"v_mfma_f32_32x32x16_bf16 {vr(AK[0],16)}, {vr(b+8,4)}, {vr(b,4)}, {cin(AK[0])}",
             f"v_mfma_f32_32x32x16_bf16 {vr(AV[0],16)}, {vr(b,4)}, {vr(b+12,4)}, {cin(AV[0])}",
             f"v_mfma_f32_32x32x16_bf16 {vr(AK[1],16)}, {vr(b+8,4)}, {vr(b+4,4)}, {cin(AK[1])}",
             f"v_mfma_f32_32x32x16_bf16 {vr(AV[1],16)}, {vr(b+4,4)}, {vr(b+12,4)}, {cin(AV[1])}"]
        R = reads1(t+1) if t < 27 else reads2(0)
        a("s_waitcnt lgkmcnt(0)")
        if s == 3:
            a(M[0])
            if i == 3:
                for l in shift(65536): a(l)
            if i == 6:
                for l in shift(-65536): a(l)
            a("s_barrier")
            for m in range(1, 4):
                for r in R[2*(m-1):2*(m-1)+2]: a(r)
                a(M[m])
        else:
            for m in range(4):
                a(M[m])
                for r in R[2*m:2*m+2]: a(r)
        if t == 17: a(f"global_load_dwordx2 v[174:175], v7, s[18:19] {SC}")
    stamp(3)
    side = []
    for i in range(2):
        for k in range(8): side.append(f"v_cvt_pk_bf16_f32 v{AK[i]+k}, v{AK[i]+2*k}, v{AK[i]+2*k+1}")
        side.append(f"v_cndmask_b32 v{AK[i]+6}, v30, v{AK[i]+6}, vcc")
        side.append(f"v_cndmask_b32 v{AK[i]+7}, v31, v{AK[i]+7}, vcc")
        side.append(f"buffer_store_dwordx4 {vr(AK[i],4)}, v29, {WS_SRD}, s55 offen {SC}")
        side.append(f"buffer_store_dwordx4 {vr(AK[i]+4,4)}, v29, {WS_SRD}, s55 offen offset:1024 {SC}")
        for k in range(8): side.append(f"v_cvt_pk_bf16_f32 v{AV[i]+k}, v{AV[i]+2*k}, v{AV[i]+2*k+1}")
        for k in range(8): side.append(f"v_cndmask_b32 v{AV[i]+k}, v1, v{AV[i]+k}, s[56:57]")
        side.append(f"buffer_store_dwordx4 {vr(AV[i],4)}, v3, {WS_SRD}, s55 offen offset:2048 {SC}")
        side.append(f"buffer_store_dwordx4 {vr(AV[i]+4,4)}, v3, {WS_SRD}, s55 offen offset:3072 {SC}")
        if i == 0: side.append("s_add_u32 s55, s55, 4096")
    PER = val("side", 8)
    if PER >= 100:
        a("s_nop 7")
        for l in side: a(l)
        side = []
        if opt("sfirst"): a("s_barrier")
    lw = []
    for i in range(2):
        lw += [f"ds_write_b128 v170, {vr(AK[i],4)} offset:{4096*i}", f"ds_write_b128 v170, {vr(AK[i]+4,4)} offset:{4096*i+1024}",
               f"ds_write_b128 v171, {vr(AV[i],4)} offset:{4096*i+2048}", f"ds_write_b128 v171, {vr(AV[i]+4,4)} offset:{4096*i+3072}"]
    FT = val("flagt", 22)
    for r in reads2(1): a(r)
    for t in range(28):
        i, s = divmod(t, 4); b = FB2(t)
        cin = lambda r: ("0" if t == 0 else vr(r, 16))
        M = [f"v_mfma_f32_32x32x16_bf16 {vr(AQ[0],16)}, {vr(b+8,4)}, {vr(b,4)}, {cin(AQ[0])}",
             f"v_mfma_f32_32x32x16_bf16 {vr(AQ[1],16)}, {vr(b+8,4)}, {vr(b+4,4)}, {cin(AQ[1])}"]
        R = reads2(t+2) if t+2 < 28 else []
        bar = (t+2) in (8, 16, 24)
        nw = 2 if t >= 25 else 0
        if bar: a("s_waitcnt lgkmcnt(0)")
        else: a(f"s_waitcnt lgkmcnt({(4 if t < 27 else 0) + nw})")
        a(M[0])
        if t+2 == 16:
            for l in shift(65536): a(l)
        if bar: a("s_barrier")
        for r in R: a(r)
        for l in side[:PER//2]: a(l)
        side = side[PER//2:]
        a(M[1])
        for l in side[:PER//2]: a(l)
        side = side[PER//2:]
        if t >= 24:
            for l in lw[2*(t-24):2*(t-24)+2]: a(l)
        if t == FT:
            assert not side
            a("s_waitcnt vmcnt(8)")
            tag_check("L_tagc", 174)
            a("s_waitcnt vmcnt(0)")
            flag_store("s10", 174)
            stamp(4)
    a("s_nop 7")
    a("s_nop 1")
    for i in range(2):
        A = AQ[i]
        for k in range(8): a(f"v_pk_mul_f32 {vr(A+2*k,2)}, {vr(A+2*k,2)}, s[60:61]")
        for k in range(8): a(f"v_cvt_pk_bf16_f32 v{Q+8*i+k}, v{A+2*k}, v{A+2*k+1}")
        a(f"v_cndmask_b32 v{Q+8*i+6}, 0, v{Q+8*i+6}, vcc")
        a(f"v_cndmask_b32 v{Q+8*i+7}, 0, v{Q+8*i+7}, vcc")
        a(f"ds_write_b128 v172, {vr(Q+8*i,4)} offset:{2048*i}")
        a(f"ds_write_b128 v172, {vr(Q+8*i+4,4)} offset:{2048*i+1024}")
    if FT >= 28:
        a("s_waitcnt vmcnt(8)")
        tag_check("L_tagc", 174)
        a("s_waitcnt vmcnt(0)")
        flag_store("s10", 174)
        stamp(4)
    a("""
    s_waitcnt lgkmcnt(0)
    s_barrier
    """)

def tile_addr(t):
    return (VA if t < 2 else VC, (t & 1) * 4096)

def unit(u, kind="loop", side=None, hook=None):
    side = side or {}
    cur = S + 16*(u & 3); nxt = S + 16*((u+1) & 3); prv = S + 16*((u-1) & 3)
    tn = ((u+1) >> 1) & 1; subn = (u+1) & 1
    tp = ((u-1) >> 1) & 1; subp = (u-1) & 1
    kf = KF + 8*tn; vf = VF + 8*tp
    qn = Q + 8*subn; op = O + 16*subp
    M = [f"v_mfma_f32_32x32x16_bf16 {vr(nxt,16)}, {vr(kf,4)}, {vr(qn,4)}, 0",
         f"v_mfma_f32_32x32x16_bf16 {vr(nxt,16)}, {vr(kf+4,4)}, {vr(qn+4,4)}, {vr(nxt,16)}",
         f"v_smfmac_f32_32x32x32_bf16 {vr(op,16)}, {vr(vf,4)}, {vr(prv,8)}, v{IDX}",
         f"v_smfmac_f32_32x32x32_bf16 {vr(op,16)}, {vr(vf+4,4)}, {vr(prv+8,8)}, v{IDX}"]
    E = [f"v_exp_f32 v{cur+e}, v{cur+e}" for e in range(16)]
    t = u >> 1
    if (u & 1) == 0:
        if t < 3 and not (kind == "first" and t == 1):
            va, off = tile_addr(t+1); kb = KF + 8*((t+1) & 1)
            a(f"ds_read_b128 {vr(kb,4)}, v{va} offset:{off}")
            a(f"ds_read_b128 {vr(kb+4,4)}, v{va} offset:{off+1024}")
        va, off = tile_addr(t); vb = VF + 8*(t & 1)
        a(f"ds_read_b128 {vr(vb,4)}, v{va} offset:{off+2048}")
        a(f"ds_read_b128 {vr(vb+4,4)}, v{va} offset:{off+3072}")
    elif not (u == 7 and hook):
        a("s_waitcnt lgkmcnt(0)")
    if kind == "first" and u == 0: M[2] = M[3] = None
    if (kind == "first" and u == 3) or (kind == "last" and u == 7): M[0] = M[1] = None
    if u == 7 and hook:
        H = hook()
        seq = [M[2]] + E[:6] + [M[3]] + E[6:8] + ["s_waitcnt lgkmcnt(0)", M[0]] + E[8:10] + [M[1]]
        k = 0
        for e in range(6):
            n = (len(H) * (e + 1)) // 6
            seq += H[k:n] + [E[10+e]]; k = n
        for l in seq: a(l)
        return
    for m in range(4):
        if M[m]: a(M[m])
        for e in E[4*m:4*m+4]: a(e)
        for l in side.get(m, []): a(l)

def chunk_salu(m0src):
    return ["s_add_u32 s5, s5, 1", "s_and_b32 s5, s5, 15", f"s_cmp_eq_u32 s5, s{sJ}", "s_addc_u32 s5, s5, 0", "s_and_b32 s5, s5, 15",
            "s_lshl_b32 s6, s5, 14", m0src, "s_add_u32 s6, s6, s4"]
def l2pf():
    return []
    return ["s_and_b32 s101, s98, 15", "s_lshl_b32 s101, s101, 14", "s_add_u32 s101, s101, s100", "s_mov_b64 exec, 0xff",
            f"buffer_load_dword v217, v216, {WS_SRD}, s101 offen {SC}", "s_mov_b64 exec, -1", "s_add_u32 s98, s98, 2"]
def piece(q): return f"buffer_load_dwordx4 v3, {WS_SRD}, s6 offen offset:{q*1024} {SC} lds"

def attention():
    PU = val("pu", 0); CU_ = val("cu", 1)
    PR = [3, 2, 2, 1, 1, 0, 0, 3]
    def hook():
        a(f"""
        v_xor_b32 v{VA}, {C1 ^ C3}, v{VA}
        v_xor_b32 v{VC}, {C0 ^ C2}, v{VC}
        s_waitcnt vmcnt(0) lgkmcnt(0)
        {"" if opt("xnobar") else "s_barrier"}
        ds_read_b128 {vr(KF,4)}, v{VA}
        ds_read_b128 {vr(KF+4,4)}, v{VA} offset:1024
        """)
        return [f"s_xor_b32 s11, s11, {C1 ^ C3}", f"s_xor_b32 s69, s69, {C0 ^ C2}"] + chunk_salu("s_mov_b32 m0, s11")
    restart = f"""
    s_waitcnt lgkmcnt(0)
    v_mfma_f32_32x32x16_bf16 {vr(S,16)}, {vr(KF,4)}, {vr(Q,4)}, 0
    v_mfma_f32_32x32x16_bf16 {vr(S,16)}, {vr(KF+4,4)}, {vr(Q+4,4)}, {vr(S,16)}
    s_nop 11
    """
    a("L_attn:")
    if PU < 0: poll_issue("s9", 0xffff)
    a(f"""
    ds_read_b128 {vr(KF,4)}, v{VA}
    ds_read_b128 {vr(KF+4,4)}, v{VA} offset:1024
    """)
    a(restart)
    stamp(5)
    for u in range(4):
        a(f"s_setprio {3-u}")
        unit(u, "first")
        if u == PU: poll_issue("s9", 0xffff)
        if u == CU_:
            poll_check("L_kvp", "s9", 0xffff)
            for l in chunk_salu(f"s_add_u32 m0, s8, {C0}") + [piece(q) for q in range(4)]: a(l)
            for l in chunk_salu("s_mov_b32 m0, s11") + [piece(q) for q in range(4)]: a(l)
    a(f"""
    s_waitcnt vmcnt(4)
    s_barrier
    ds_read_b128 {vr(KF,4)}, v{VC}
    ds_read_b128 {vr(KF+4,4)}, v{VC} offset:1024
    """)
    for l in chunk_salu("s_mov_b32 m0, s69") + [piece(q) for q in range(4)]: a(l)
    if not opt("oflags"):
        a(f"buffer_store_dwordx4 v[220:223], v3, {WS_SRD}, s14 offen {SC}")
        a(f"buffer_store_dwordx4 v[220:223], v3, {WS_SRD}, s14 offen offset:1024 {SC}")
    for l in l2pf(): a(l)
    a(restart)
    stamp(6)
    for u in range(4, 8):
        a(f"s_setprio {[2,1,0,3][u-4]}")
        unit(u, "second", hook=hook)
    if not opt("oflags"):
        a(f"""
        s_cmp_lg_u32 s{sW}, 0
        s_cbranch_scc1 L_noclean
        """)
        flag_store("s15")
        a("L_noclean:")
    stamp(7)
    DM = val("dm", 0)
    P = [piece(q) for q in range(4)]
    C2S = chunk_salu("s_mov_b32 m0, s69")
    if DM == 0:
        sides = {0: {0: [P[0]], 1: [P[1]], 2: [P[2]]}, 1: {0: [P[3]], 1: C2S + [P[0]], 2: [P[1]]}, 2: {0: [P[2]], 1: [P[3]]}}
    elif DM == 1:
        sides = {0: {0: [P[0]], 2: [P[1]]}, 1: {0: [P[2]], 2: [P[3]]}, 2: {0: C2S + [P[0]], 2: [P[1]]}, 3: {0: [P[2]], 2: [P[3]]}}
    else:
        sides = {0: {m: [P[m]] for m in range(4)}, 1: {0: C2S + [P[0]], 1: [P[1]], 2: [P[2]], 3: [P[3]]}}
    sides.setdefault(4 if DM == 1 else 3, {}).setdefault(0, []).extend(l2pf())
    PM = val("pm", 0)
    PRS = {0: {(1,-1): 2, (3,-1): 1, (5,-1): 0, (7,-1): 3},
           1: {(4,-1): 2, (5,-1): 1, (6,-1): 0, (7,-1): 3},
           2: {(5,-1): 2, (6,-1): 1, (6,1): 0, (7,-1): 3},
           3: {(5,1): 2, (6,0): 1, (6,2): 0, (7,-1): 3},
           4: {(6,0): 2, (6,1): 1, (6,2): 0, (7,-1): 3},
           5: {(3,-1): 2, (5,-1): 1, (6,1): 0, (7,-1): 3}}[PM]
    def with_prio(u, sd):
        sd = {m: list(v) for m, v in (sd or {}).items()}
        if (u, -1) in PRS and not opt("noprio"): a(f"s_setprio {PRS[(u,-1)]}")
        for m in range(4):
            if (u, m) in PRS: sd.setdefault(m, []).append(f"s_setprio {PRS[(u,m)]}")
        return sd
    a(".p2align 6")
    a("L_loop:")
    for u in range(8):
        unit(u, side=with_prio(u, sides.get(u)), hook=hook)
    a(f"""
    s_add_u32 s68, s68, 1
    s_cmp_lt_u32 s68, 6
    s_cbranch_scc1 L_loop
    """)
    if opt("xdummy"):
        a(f"s_mov_b32 s68, {val('xdummy', 4)}")
        a("L_dummy:")
        for u in range(8):
            d = 224 + 16*(u & 1); e = 224 + 16*((u+1) & 1)
            a(f"v_mfma_f32_32x32x16_bf16 {vr(e,16)}, {vr(KF,4)}, {vr(Q,4)}, 0")
            for k in range(4): a(f"v_exp_f32 v{d+k}, v{d+k}")
            a(f"v_mfma_f32_32x32x16_bf16 {vr(e,16)}, {vr(KF+4,4)}, {vr(Q+4,4)}, {vr(e,16)}")
            for k in range(4, 8): a(f"v_exp_f32 v{d+k}, v{d+k}")
            a(f"v_smfmac_f32_32x32x32_bf16 {vr(32,16)}, {vr(VF,4)}, {vr(S+48,8)}, v{IDX}")
            for k in range(8, 12): a(f"v_exp_f32 v{d+k}, v{d+k}")
            a(f"v_smfmac_f32_32x32x32_bf16 {vr(32,16)}, {vr(VF+4,4)}, {vr(S+56,8)}, v{IDX}")
            for k in range(12, 16): a(f"v_exp_f32 v{d+k}, v{d+k}")
        a("""
        s_sub_u32 s68, s68, 1
        s_cmp_lg_u32 s68, 0
        s_cbranch_scc1 L_dummy
        """)
    if opt("xspin"):
        a(f"""
        s_memrealtime s[60:61]
        s_waitcnt lgkmcnt(0)
        s_add_u32 s68, s60, {val('xspin', 500)}
        L_xspin:
        s_memrealtime s[60:61]
        s_waitcnt lgkmcnt(0)
        s_cmp_lt_u32 s60, s68
        s_cbranch_scc1 L_xspin
        """)
    WP = []
    for i in range(8):
        WP.append([f"s_add_u32 m0, s13, {i*4096}", f"s_mov_b32 s6, {i*32*896}", f"buffer_load_dwordx4 v{WOA}, {WO_SRD}, s6 offen {SC} lds"])
    wsides = {0: {0: WP[0], 1: WP[1], 2: WP[2]}, 1: {0: WP[3], 1: WP[4], 2: WP[5]}, 2: {0: WP[6], 1: WP[7]}}
    PRS = {(5,-1): 2, (6,1): 1, (7,1): 0} if PM else {(1,-1): 2, (3,-1): 1, (5,-1): 0}
    for u in range(8):
        unit(u, "last", side=with_prio(u, wsides.get(u)))
    a("s_setprio 0")
    stamp(8)
    if not opt("oflags"): poll_issue("s16", 0xff)
    a(f"""
    v_smfmac_f32_32x32x32_bf16 {vr(O+16,16)}, {vr(VF+8,4)}, {vr(S+48,8)}, v{IDX}
    v_smfmac_f32_32x32x32_bf16 {vr(O+16,16)}, {vr(VF+12,4)}, {vr(S+56,8)}, v{IDX}
    s_cmp_eq_u32 s{sKH}, 0
    s_cbranch_scc1 L_kh0
    s_nop 4
    """)
    for q in range(4): a(f"ds_write_b128 v{EXA}, {vr(O+4*q,4)} offset:{q*1024}")
    for r in range(8): a(f"v_mov_b32 v{Q+r}, v{Q+8+r}")
    a("s_waitcnt lgkmcnt(0)")
    a("s_barrier")
    for q in range(4): a(f"ds_read_b128 {vr(S+16+4*q,4)}, v{EXB} offset:{q*1024}")
    a("s_waitcnt lgkmcnt(0)")
    for r in range(8): a(f"v_pk_add_f32 {vr(S+2*r,2)}, {vr(O+16+2*r,2)}, {vr(S+16+2*r,2)}")
    a("s_branch L_norm")
    a("L_kh0:")
    a("s_nop 9")
    for q in range(4): a(f"ds_write_b128 v{EXA}, {vr(O+16+4*q,4)} offset:{q*1024}")
    a("s_waitcnt lgkmcnt(0)")
    a("s_barrier")
    for q in range(4): a(f"ds_read_b128 {vr(S+16+4*q,4)}, v{EXB} offset:{q*1024}")
    a("s_waitcnt lgkmcnt(0)")
    for r in range(8): a(f"v_pk_add_f32 {vr(S+2*r,2)}, {vr(O+2*r,2)}, {vr(S+16+2*r,2)}")
    a("L_norm:")
    a(f"""
    v_mov_b32 v{S+32}, v{S+12}
    v_mov_b32 v{S+33}, v{S+12}
    s_mov_b32 s54, 0x2f800000        ; 2^-32
    s_mov_b32 s62, 0x57800000        ; 2^48
    v_permlane32_swap_b32 v{S+32}, v{S+33}
    s_nop 1
    v_rcp_f32 v{S+34}, v{S+33}
    v_cmp_ge_f32 vcc, v{S+33}, s54
    v_cmp_le_f32 s[56:57], v{S+33}, s62
    s_nop 1
    s_and_b64 s[56:57], s[56:57], vcc
    s_cmp_eq_u64 s[56:57], -1
    s_cbranch_scc0 L_fallback
    L_norm2:
    v_cmp_gt_u32 vcc, 32, v2
    """)
    for r in range(8): a(f"v_pk_mul_f32 {vr(S+2*r,2)}, {vr(S+2*r,2)}, {vr(S+34,2)} op_sel_hi:[1,0]")
    for i in range(4): a(f"v_cvt_pk_bf16_f32 v{S+16+i}, v{S+2*i}, v{S+2*i+1}")
    a(f"buffer_store_dwordx4 {vr(S+16,4)}, v3, {WS_SRD}, s14 offen {SC}")
    for i in range(4, 8): a(f"v_cvt_pk_bf16_f32 v{S+16+i}, v{S+2*i}, v{S+2*i+1}")
    a(f"v_cndmask_b32 v{S+22}, 0, v{S+22}, vcc")
    a(f"v_cndmask_b32 v{S+23}, 0, v{S+23}, vcc")
    a(f"buffer_store_dwordx4 {vr(S+20,4)}, v3, {WS_SRD}, s14 offen offset:1024 {SC}")

def p3():
    OFR = 96; ACC = 16; WA = 64
    pool = [48, 56] + list(range(164, 204, 8)) + list(range(224, 256, 8))
    NPRE = len(pool)
    def WFt(t): return pool[t] if t < NPRE else pool[t - NPRE]
    for i in range(8):
        a(f"""
        s_add_u32 s62, s3, {i}
        s_and_b32 s62, s62, 7
        s_lshl_b32 s{54+i}, s62, 11
        s_add_u32 s{54+i}, s{54+i}, s17
        s_mul_i32 s62, s62, {28*128}
        v_add_u32 v{WA+2*i}, s62, v{P3A}
        v_xor_b32 v{WA+1+2*i}, 64, v{WA+2*i}
        """)
    def rd(t):
        i, s = divmod(t, 2)
        for ctile in range(2):
            for eh in range(2):
                a(f"ds_read_b64_tr_b16 {vr(WFt(t)+4*ctile+2*eh,2)}, v{WA+2*i+ctile} offset:{(16*s+8*eh)*128}")
    def ld(t): a(f"buffer_load_dwordx4 {vr(OFR+4*t,4)}, v3, {WS_SRD}, s{54+t//2} offen offset:{(t%2)*1024} {SC}")
    def mf(t):
        for ctile in range(2):
            acc = vr(ACC+16*ctile, 16)
            a(f"v_mfma_f32_32x32x16_bf16 {acc}, {vr(WFt(t)+4*ctile,4)}, {vr(OFR+4*t,4)}, {'0' if t == 0 else acc}")
    if opt("oflags"):
        a("s_waitcnt vmcnt(0)")
        flag_store("s15")
        stamp(9)
        a(f"""
        s_cmp_ge_u32 s23, 28
        s_cbranch_scc1 L_fin
        s_barrier
        """)
        poll_issue("s16", 0xff)
        for t in range(NPRE): rd(t)
        poll_check("L_op", "s16", 0xff, 62, 63)
        stamp(10)
        for t in range(16): ld(t)
    else:
        stamp(9)
        a(f"""
        s_cmp_ge_u32 s23, 28
        s_cbranch_scc1 L_fin
        s_waitcnt vmcnt({2 if opt("nodelay") else 0})
        s_barrier
        v_cmp_eq_u64 vcc, s[{TAG}:{TAG+1}], v[{TMP}:{TMP+1}]
        s_nop 1
        s_and_b32 s63, vcc_lo, 0xff
        s_cmp_eq_u32 s63, 0xff
        s_cbranch_scc1 L_op_ok
        """)
        poll_check("L_op", "s16", 0xff, 62, 63)
        stamp(10)
        for t in range(16): ld(t)
        for t in range(NPRE): rd(t)
    for k in range(1, 4): a(f"v_xor_b32 v{8+k}, {32*k}, v{PWA}")
    a(f"v_xor_b32 v12, 16, v{PRA}")
    a(f"s_mov_b32 s62, {SPIN_MAX}")
    if opt("diag"): a("s_mov_b32 s76, 0\ns_mov_b32 s73, 0\ns_mov_b32 s75, 0\ns_mov_b32 s78, 99")
    for t in range(16):
        if opt("oflags"):
            a(f"s_waitcnt vmcnt({15-t})")
        else:
            if t % 2 == 0:
                B = OFR + 4*t
                a(f"""
                s_waitcnt vmcnt({14-t})
                L_mk{t}:
                v_max3_u32 v13, v{B}, v{B+3}, v{B+4}
                v_max_u32 v13, v13, v{B+7}
                v_cmp_eq_u32 vcc, -1, v13
                s_nop 1
                s_cmp_eq_u64 vcc, 0
                s_cbranch_scc0 L_retry{t}
                L_go{t}:
                """)
        if t == 0 or t == NPRE: a("s_waitcnt lgkmcnt(0)")
        mf(t)
        if t + NPRE < 16: rd(t + NPRE)
    a(f"s_mov_b32 s62, {8*1792}")
    stamp(11)
    a("s_nop 10")
    for c in range(2):
        for g in range(4):
            ad = PWA if g == 0 else 8+g
            a(f"ds_write_b128 v{ad}, {vr(ACC+16*c+4*g,4)} offset:{c*128}")
    a("s_waitcnt lgkmcnt(0)")
    a("s_barrier")
    for h8 in range(2):
        for p in range(2):
            for i in range(2):
                a(f"ds_read_b128 {vr(64+16*h8+8*p+4*i,4)}, v{PRA if i == 0 else 12} offset:{h8*2048+p*32768}")
    OS = "" if opt("outplain") else "sc1"
    for h8 in range(2):
        B = 64 + 16*h8
        a(f"s_waitcnt lgkmcnt({4 if h8 == 0 else 0})")
        for r in range(4): a(f"v_pk_add_f32 {vr(B+2*r,2)}, {vr(B+2*r,2)}, {vr(B+8+2*r,2)}")
        for r in range(4): a(f"v_cvt_pk_bf16_f32 v{96+4*h8+r}, v{B+2*r}, v{B+2*r+1}")
        a(f"buffer_store_dwordx4 {vr(96+4*h8,4)}, v{OUTA}, {OUT_SRD}, {'0' if h8 == 0 else 's62'} offen {OS}")
    a("L_fin:")
    if STAMP: a("s_waitcnt vmcnt(0)")
    stamp(12)
    stamp_flush(13)
    a("L_end:")
    a("s_endpgm")

def retries():
    if opt("oflags"): return
    OFR = 96
    for t in range(0, 16, 2):
        a(f"""
        L_retry{t}:
        s_mov_b32 s99, {t}
        s_branch L_refresh
        """)
    a("L_refresh:")
    a("s_waitcnt vmcnt(0)")
    if opt("diag"):
        a("""
        s_cmp_lg_u32 s76, 0
        s_cbranch_scc1 L_diag1
        """)
        stamp(1)
        a("""
        s_mov_b32 s78, s99
        L_diag1:
        s_add_u32 s76, s76, 1
        """)
    a("s_mov_b32 s63, 0")
    for t in range(0, 16, 2):
        B = OFR + 4*t
        a(f"""
        v_max3_u32 v13, v{B}, v{B+3}, v{B+4}
        v_max_u32 v13, v13, v{B+7}
        v_cmp_eq_u32 vcc, -1, v13
        s_nop 1
        s_cmp_eq_u64 vcc, 0
        s_cbranch_scc1 L_fresh{t}
        buffer_load_dwordx4 {vr(B,4)}, v3, {WS_SRD}, s{54+t//2} offen {SC}
        buffer_load_dwordx4 {vr(B+4,4)}, v3, {WS_SRD}, s{54+t//2} offen offset:1024 {SC}
        s_mov_b32 s63, 1
        L_fresh{t}:
        """)
    a(f"""
    s_cmp_eq_u32 s63, 0
    s_cbranch_scc1 L_refreshed
    s_sub_u32 s62, s62, 1
    s_cbranch_scc0 L_refresh
    s_mov_b32 s62, 0
    s_waitcnt vmcnt(0)
    L_refreshed:
    """)
    if opt("diag"): stamp(2)
    for t in range(0, 14, 2):
        a(f"""
        s_cmp_eq_u32 s99, {t}
        s_cbranch_scc1 L_go{t}
        """)
    a("s_branch L_go14")

def fallback():
    T = S + 16; K0 = KF; M = S + 35
    a("L_fallback:")
    a(f"""
    s_lshl_b32 s58, s{sHD}, 18
    s_mov_b32 s59, 64
    v_mov_b32 v{M}, 0xff800000
    L_fb1:
    buffer_load_dwordx4 {vr(K0,4)}, v3, {WS_SRD}, s58 offen {SC}
    buffer_load_dwordx4 {vr(K0+4,4)}, v3, {WS_SRD}, s58 offen offset:1024 {SC}
    s_waitcnt vmcnt(0)
    v_mfma_f32_32x32x16_bf16 {vr(T,16)}, {vr(K0,4)}, {vr(Q,4)}, 0
    v_mfma_f32_32x32x16_bf16 {vr(T,16)}, {vr(K0+4,4)}, {vr(Q+4,4)}, {vr(T,16)}
    s_add_u32 s58, s58, 4096
    s_sub_u32 s59, s59, 1
    s_nop 15
    """)
    for i in range(8): a(f"v_max3_f32 v{M}, v{M}, v{T+2*i}, v{T+2*i+1}")
    a(f"""
    s_cmp_lg_u32 s59, 0
    s_cbranch_scc1 L_fb1
    v_mov_b32 v{M+1}, v{M}
    s_nop 1
    v_permlane32_swap_b32 v{M}, v{M+1}
    s_nop 1
    v_max_f32 v{M}, v{M}, v{M+1}
    v_sub_f32 v{M}, 0, v{M}
    v_and_b32 v{M+1}, 0xffff0000, v{M}
    v_sub_f32 v{M+2}, v{M}, v{M+1}
    v_and_b32 v{M+3}, 0xffff0000, v{M+2}
    v_sub_f32 v{M+2}, v{M+2}, v{M+3}
    v_lshrrev_b32 v{M+1}, 16, v{M+1}
    v_or_b32 v{M+1}, v{M+1}, v{M+3}
    v_lshrrev_b32 v{M+2}, 16, v{M+2}
    v_cmp_gt_u32 vcc, 32, v2
    s_lshl_b32 s58, s{sHD}, 18
    s_mov_b32 s59, 64
    v_cndmask_b32 v{Q+6}, v{M+1}, v{Q+6}, vcc
    v_cndmask_b32 v{Q+7}, v{M+2}, v{Q+7}, vcc
    """)
    for r in range(16): a(f"v_mov_b32 v{S+r}, 0")
    a(f"""
    L_fb2:
    buffer_load_dwordx4 {vr(K0,4)}, v3, {WS_SRD}, s58 offen {SC}
    buffer_load_dwordx4 {vr(K0+4,4)}, v3, {WS_SRD}, s58 offen offset:1024 {SC}
    buffer_load_dwordx4 {vr(K0+8,4)}, v3, {WS_SRD}, s58 offen offset:2048 {SC}
    buffer_load_dwordx4 {vr(K0+12,4)}, v3, {WS_SRD}, s58 offen offset:3072 {SC}
    s_waitcnt vmcnt(0)
    v_mfma_f32_32x32x16_bf16 {vr(T,16)}, {vr(K0,4)}, {vr(Q,4)}, 0
    v_mfma_f32_32x32x16_bf16 {vr(T,16)}, {vr(K0+4,4)}, {vr(Q+4,4)}, {vr(T,16)}
    s_add_u32 s58, s58, 4096
    s_sub_u32 s59, s59, 1
    s_nop 15
    """)
    for i in range(16): a(f"v_exp_f32 v{T+i}, v{T+i}")
    a(f"""
    s_nop 1
    v_smfmac_f32_32x32x32_bf16 {vr(S,16)}, {vr(K0+8,4)}, {vr(T,8)}, v{IDX}
    v_smfmac_f32_32x32x32_bf16 {vr(S,16)}, {vr(K0+12,4)}, {vr(T+8,8)}, v{IDX}
    s_cmp_lg_u32 s59, 0
    s_cbranch_scc1 L_fb2
    s_nop 15
    v_mov_b32 v{S+32}, v{S+12}
    v_mov_b32 v{S+33}, v{S+12}
    s_nop 1
    v_permlane32_swap_b32 v{S+32}, v{S+33}
    s_nop 1
    v_rcp_f32 v{S+34}, v{S+33}
    s_branch L_norm2
    """)

prologue(); loader(); compute(); attention(); p3(); retries(); fallback()
a("L_code_end:")
a(kdesc(N, NV, 102))
hdr = f"; @launch grid=(256,1,1) block=(512,1,1) lds={LDS_BYTES}\n" + '.amdgcn_target "amdgcn-amd-amdhsa--gfx950"\n'
open(sys.argv[1], "w").write(hdr + a.text())
```

```python
import sys, struct
from asmlib import *

KV_OFF = 0
OF_OFF = 8 << 20
FL_OFF = 12 << 20
FO_OFF = (12 << 20) + (256 << 10)
WS_USED = 13 << 20
ST_OFF = 32 << 20
CSCALE = 28 ** -0.5 * 1.4426950408889634
def f2u(x): return struct.unpack("<I", struct.pack("<f", x))[0]
ARGS = sys.argv[2:]
def opt(name): return ("--" + name) in ARGS
def val(name, d): return int(ARGS[ARGS.index("--" + name) + 1]) if opt(name) else d
STAMP = opt("stamp")
N = "concat_heads__softmax_full_mha__mha_block__prompt_kernel"
SC = "sc1"
SPIN_MAX = 100000
SLEEP = val("sleep", 2)

FSH = 7 if opt("spreadfl") else 3
WR0 = 114688
C0, C1, C2, C3 = 32768, 65536, 98304, 131072
A2 = C3
LDS_BYTES = 163840
def wslot(i): return WR0 + ((i + 2) % 3) * 16384

a = Asm()
def stamp(idx):
    if not STAMP: return
    a(f"""
    s_memtime s[64:65]
    s_memrealtime s[66:67]
    s_waitcnt lgkmcnt(0)
    s_mov_b32 s{70+2*idx}, s64
    s_mov_b32 s{71+2*idx}, s66
    """)
def stamp_flush(n):
    if not STAMP: return
    a(f"""
    s_lshl_b32 s66, s2, 4
    s_add_u32 s66, s66, s27
    s_lshl_b32 s66, s66, 7
    s_add_u32 s66, s66, {ST_OFF}
    s_add_u32 s64, s20, s66
    s_addc_u32 s65, s21, 0
    v_mov_b32 v0, 0
    s_mov_b64 exec, 1
    """)
    for i in range(n):
        a(f"""
        v_mov_b32 v4, s{70+2*i}
        v_mov_b32 v5, s{71+2*i}
        global_store_dwordx2 v0, v[4:5], s[64:65] offset:{8*i}
        s_nop 1
        """)

sB, sJ, sHP, sW, sG, sKH, sHD = 24, 25, 26, 27, 48, 49, 52
X_SRD, W_SRD, WS_SRD, WO_SRD, OUT_SRD = "s[28:31]", "s[32:35]", "s[36:39]", "s[40:43]", "s[44:47]"
TAG = 50
IDX, VA, VC = 4, 5, 6
Q, O, S, KF, VF = 8, 176, 64, 128, 144
TMP = 160
PA, WOA, EXA, EXB, P3A, OUTA, PWA, PRA = 208, 209, 210, 211, 212, 213, 214, 215
NV = 256

def tag_check(lbl, v):
    a(f"""
    s_mov_b32 s53, {SPIN_MAX}
    {lbl}_chk:
    v_readfirstlane_b32 s{TAG}, v{v}
    v_readfirstlane_b32 s{TAG+1}, v{v+1}
    s_nop 1
    s_cmp_lg_u64 s[{TAG}:{TAG+1}], 0
    s_cbranch_scc1 {lbl}_ok
    s_sub_u32 s53, s53, 1
    s_cbranch_scc1 {lbl}_ok
    global_load_dwordx2 v[{v}:{v+1}], v7, s[18:19] {SC}
    s_waitcnt vmcnt(0)
    s_branch {lbl}_chk
    {lbl}_ok:
    """)
def poll_issue(soff, mask):
    a(f"""
    s_mov_b64 exec, {hex(mask)}
    buffer_load_dwordx2 v[{TMP}:{TMP+1}], v{216 if mask == 0xffff else PA}, {WS_SRD}, {soff} offen {SC}
    s_mov_b64 exec, -1
    """)
def poll_check(lbl, soff, mask, t0=53, t1=54):
    a(f"""
    s_mov_b32 s{t0}, {SPIN_MAX}
    {lbl}_chk:
    s_waitcnt vmcnt(0)
    v_cmp_eq_u64 vcc, s[{TAG}:{TAG+1}], v[{TMP}:{TMP+1}]
    s_nop 1
    s_and_b32 s{t1}, vcc_lo, {hex(mask)}
    s_cmp_eq_u32 s{t1}, {hex(mask)}
    s_cbranch_scc1 {lbl}_ok
    s_sub_u32 s{t0}, s{t0}, 1
    s_cbranch_scc1 {lbl}_ok
    s_sleep {SLEEP}
    """)
    poll_issue(soff, mask)
    a(f"""
    s_branch {lbl}_chk
    {lbl}_ok:
    """)
def flag_store(soff, v=TMP+2):
    a(f"""
    v_mov_b32 v{v}, s{TAG}
    v_mov_b32 v{v+1}, s{TAG+1}
    s_mov_b64 exec, 1
    buffer_store_dwordx2 v[{v}:{v+1}], v7, {WS_SRD}, {soff} offen {SC}
    s_mov_b64 exec, -1
    """)

def prologue():
    a(khead(N))
    a(f"""
    s_cmp_ge_u32 s2, 256
    s_cbranch_scc1 L_end
    """)
    stamp(0)
    a(f"""
    s_load_dwordx16 s[4:19], s[0:1], 0
    s_load_dwordx2 s[20:21], s[0:1], 64
    s_and_b32 s22, s2, 7          ; xcd
    s_lshr_b32 s23, s2, 3         ; r
    s_lshr_b32 s{sB}, s22, 2
    s_bfe_u32 s25, s22, 0x10001
    s_lshl_b32 s25, s25, 3
    s_and_b32 s53, s23, 7
    s_add_u32 s{sJ}, s25, s53     ; jj
    s_and_b32 s26, s22, 1
    s_lshl_b32 s26, s26, 2
    s_lshr_b32 s54, s23, 3
    s_add_u32 s{sHP}, s26, s54    ; hp
    s_lshl_b32 s54, s54, 1
    s_add_u32 s54, s54, s53       ; 0..13
    s_sub_u32 s53, s54, 7
    s_cmp_ge_u32 s54, 7
    s_cselect_b32 s54, s53, s54   ; first K chunk
    """)
    RM = val("rotm", 1)
    if RM:
        a("""
        s_lshr_b32 s54, s23, 3
        s_add_u32 s54, s54, s23
        """)
        if RM == 1: a("s_and_b32 s54, s54, 3\ns_lshl_b32 s54, s54, 1")
        if RM == 3: a("s_and_b32 s54, s54, 1\ns_lshl_b32 s54, s54, 2")
        if RM == 2: a("s_and_b32 s54, s54, 3\ns_lshl_b32 s54, s54, 2\ns_lshr_b32 s54, 0x2520, s54\ns_and_b32 s54, s54, 15")
        if RM == 4: a("s_and_b32 s54, s54, 7\ns_lshl_b32 s54, s54, 2\ns_lshr_b32 s54, 0x53164200, s54\ns_and_b32 s54, s54, 15")
    a(f"""
    v_lshrrev_b32 v1, 6, v0
    v_and_b32 v2, 63, v0          ; lane
    v_mov_b32 v7, 0
    v_readfirstlane_b32 s{sW}, v1
    v_lshlrev_b32 v3, 4, v2       ; lane*16
    s_and_b32 s{sG}, s{sW}, 3
    s_lshr_b32 s{sKH}, s{sW}, 2
    s_cmp_eq_u32 s{sKH}, 0
    s_cbranch_scc1 L_compute
    """)

def srd_in():
    a(f"""
    s_waitcnt lgkmcnt(0)
    s_cmp_eq_u32 s{sB}, 0
    s_cselect_b32 s28, s4, s10
    s_cselect_b32 s29, s5, s11
    s_cselect_b32 s32, s6, s12
    s_cselect_b32 s33, s7, s13
    """)
def srd_const():
    a(f"""
    s_mov_b32 s30, 1835008
    s_mov_b32 s31, 0x20000
    s_mov_b32 s34, 1204224
    s_mov_b32 s35, 0x20000
    """)
def srd_rest():
    a(f"""
    s_cmp_eq_u32 s{sB}, 0
    s_mov_b32 s36, s20
    s_mov_b32 s37, s21
    s_mov_b32 s38, {WS_USED}
    s_mov_b32 s39, 0x20000
    s_cselect_b32 s40, s8, s14
    s_cselect_b32 s41, s9, s15
    s_mov_b32 s42, 401408
    s_mov_b32 s43, 0x20000
    s_mov_b32 s44, s16
    s_mov_b32 s45, s17
    s_mov_b32 s46, 3670016
    s_mov_b32 s47, 0x20000
    """)

def setup():
    srd_rest()
    a(f"""
    v_mov_b32 v{IDX}, 0xdddddddd
    s_lshl_b32 s62, s{sB}, 3
    s_add_u32 s62, s62, s{sHP}            ; b*8+hp
    s_lshl_b32 s9, s62, {FSH+6}
    s_add_u32 s9, s9, {FL_OFF}
    s_lshl_b32 s62, s62, 1                ; b*16 + 2hp
    s_lshr_b32 s63, s{sG}, 1              ; hd
    s_add_u32 s{sHD}, s62, s63
    s_lshl_b32 s7, s63, 14
    s_lshl_b32 s63, s{sKH}, 13
    s_add_u32 s7, s7, s63
    s_add_u32 s7, s7, {C0}
    v_add_u32 v{VC}, s7, v3
    v_add_u32 v{VA}, {C3-C0}, v{VC}
    s_add_u32 s62, s62, s{sKH}
    s_lshl_b32 s4, s62, 6
    s_add_u32 s4, s4, s{sG}
    s_lshl_b32 s4, s4, 12
    s_and_b32 s5, s{sJ}, 8
    s_sub_u32 s5, s5, 1
    {f"s_mov_b32 s5, s{sJ}" if opt("ownrot") else ""}
    s_lshl_b32 s8, s{sW}, 12
    s_lshl_b32 s10, s{sG}, {FSH+4}
    s_add_u32 s10, s10, s9
    s_lshl_b32 s62, s{sJ}, {FSH}
    s_add_u32 s10, s10, s62
    s_lshr_b32 s62, s{sW}, 1
    s_lshl_b32 s62, s62, {FSH+4}
    s_add_u32 s9, s9, s62
    v_lshlrev_b32 v{PA}, 3, v2
    s_mul_i32 s62, s23, 37
    s_lshr_b32 s62, s62, 8                ; r/7
    s_mul_i32 s3, s62, 7
    s_sub_u32 s3, s23, s3                 ; ct
    s_lshl_b32 s12, s22, 2
    s_add_u32 s12, s12, s62
    s_lshl_b32 s12, s12, 2
    s_add_u32 s12, s12, s{sG}
    v_lshrrev_b32 v{WOA}, 3, v2
    v_and_b32 v{EXA}, 7, v2
    v_bfe_u32 v{EXB}, v2, 4, 1
    v_lshlrev_b32 v{EXB}, 2, v{EXB}
    v_xor_b32 v{EXA}, v{EXA}, v{EXB}
    v_mul_u32_u24 v{WOA}, 896, v{WOA}
    v_lshl_add_u32 v{WOA}, v{EXA}, 4, v{WOA}
    s_mul_i32 s62, s{sG}, {8*896}
    s_mul_i32 s63, s{sKH}, {224*896}
    s_add_u32 s62, s62, s63
    s_lshl_b32 s63, s3, 7
    s_add_u32 s62, s62, s63
    v_add_u32 v{WOA}, s62, v{WOA}
    s_mul_i32 s13, s{sKH}, {C3-C0}
    s_lshl_b32 s62, s{sG}, 10
    s_add_u32 s13, s13, s62
    s_add_u32 s13, s13, {C0}
    s_lshl_b32 s62, s{sW}, 12
    v_add_u32 v{EXA}, s62, v3
    s_xor_b32 s62, s62, 16384
    v_add_u32 v{EXB}, s62, v3
    s_add_u32 s11, s8, {C1}
    s_add_u32 s69, s8, {C2}
    s_lshl_b32 s62, s{sB}, 4
    s_add_u32 s62, s62, s{sJ}
    s_lshl_b32 s62, s62, 1
    s_and_b32 s63, s{sG}, 1
    s_add_u32 s62, s62, s63
    s_lshl_b32 s62, s62, 1
    s_add_u32 s62, s62, s{sKH}
    s_lshl_b32 s62, s62, 4
    s_and_b32 s63, s{sHD}, 15
    s_add_u32 s62, s62, s63
    s_lshl_b32 s15, s62, 3
    s_add_u32 s15, s15, {FO_OFF}
    s_lshl_b32 s14, s62, 11
    s_add_u32 s14, s14, {OF_OFF}
    s_lshl_b32 s16, s12, 7
    s_lshl_b32 s62, s{sKH}, 6
    s_add_u32 s16, s16, s62
    s_add_u32 s16, s16, {FO_OFF}
    s_lshl_b32 s17, s12, 15
    s_lshl_b32 s62, s{sKH}, 14
    s_add_u32 s17, s17, s62
    s_add_u32 s17, s17, {OF_OFF}
    v_lshrrev_b32 v216, 5, v2             ; hh
    v_bfe_u32 v217, v2, 2, 2
    v_lshl_add_u32 v{P3A}, v216, 2, v217
    v_lshlrev_b32 v{P3A}, 7, v{P3A}
    v_bfe_u32 v217, v2, 4, 1
    v_lshl_add_u32 v{P3A}, v217, 5, v{P3A}
    v_and_b32 v217, 3, v2
    v_lshl_add_u32 v{P3A}, v217, 3, v{P3A}
    v_bfe_u32 v217, v2, 3, 1
    v_lshl_add_u32 v{P3A}, v217, 6, v{P3A}
    s_mul_i32 s62, s{sKH}, {C3-C0}
    s_add_u32 s62, s62, {C0}
    v_add_u32 v{P3A}, s62, v{P3A}
    v_and_b32 v217, 31, v2
    v_and_b32 v218, 7, v2
    v_xor_b32 v218, v216, v218
    v_lshlrev_b32 v218, 4, v218
    v_lshl_add_u32 v{PWA}, v217, 8, v218
    s_lshl_b32 s62, s{sW}, 13
    s_add_u32 s62, s62, {C1}
    v_add_u32 v{PWA}, s62, v{PWA}
    v_lshrrev_b32 v217, 3, v2
    v_and_b32 v218, 7, v2
    v_lshlrev_b32 v219, 1, v218
    v_xor_b32 v219, v219, v217
    v_lshlrev_b32 v219, 4, v219
    v_lshl_add_u32 v{PRA}, v217, 8, v219
    s_lshl_b32 s62, s{sG}, 13
    s_lshl_b32 s63, s{sKH}, 12
    s_add_u32 s62, s62, s63
    s_add_u32 s62, s62, {C1}
    v_add_u32 v{PRA}, s62, v{PRA}
    s_and_b32 s62, s12, 63
    s_lshl_b32 s62, s62, 5
    s_lshl_b32 s63, s{sKH}, 4
    s_add_u32 s62, s62, s63
    v_add_u32 v217, s62, v217
    v_mul_u32_u24 v217, 1792, v217
    v_lshl_add_u32 v{OUTA}, v218, 4, v217
    s_mul_i32 s62, s{sB}, 896
    s_lshl_b32 s63, s3, 7
    s_add_u32 s62, s62, s63
    v_add_u32 v{OUTA}, s62, v{OUTA}
    s_mov_b32 s68, 0
    v_lshlrev_b32 v216, {FSH}, v2
    """)
    if not opt("oflags"):
        a(f"""
        s_lshl_b32 s15, s{sB}, 4
        s_add_u32 s15, s15, s{sJ}
        s_lshl_b32 s15, s15, 7
        s_lshl_b32 s62, s{sHP}, 3
        s_add_u32 s15, s15, s62
        s_add_u32 s15, s15, {FO_OFF}
        s_lshr_b32 s16, s12, 2
        s_lshl_b32 s16, s16, 7
        s_add_u32 s16, s16, {FO_OFF}
        v_mov_b32 v220, -1
        v_mov_b32 v221, -1
        v_mov_b32 v222, -1
        v_mov_b32 v223, -1
        """)
    for r in range(O, O+32): a(f"v_mov_b32 v{r}, 0")

def loader():
    a(f"""
    v_lshrrev_b32 v8, 3, v2       ; lane/8
    v_and_b32 v9, 7, v2
    v_lshrrev_b32 v14, 4, v2
    v_xor_b32 v9, v9, v14
    v_xor_b32 v14, 4, v9
    s_lshl_b32 s55, s{sJ}, 7
    s_lshl_b32 s56, s{sG}, 5
    s_add_u32 s55, s55, s56
    s_mul_i32 s55, s55, 896
    v_mul_u32_u24 v8, 896, v8
    v_add_u32 v8, s55, v8
    v_lshl_add_u32 v10, v9, 4, v8
    v_lshl_add_u32 v11, v14, 4, v8
    v_add_u32 v12, {2*6144}, v10
    v_add_u32 v13, {3*6144}, v11
    v_add_u32 v11, {6144}, v11
    s_lshl_b32 s55, s{sG}, 12              ; g*4096
    s_lshl_b32 s57, s54, 7
    s_mov_b32 m0, s55
    s_mul_i32 s58, s54, {64*2688}
    """)
    srd_const()
    a(f"""
    v_lshrrev_b32 v8, 4, v2
    v_and_b32 v9, 15, v2
    v_lshlrev_b32 v20, 2, v8
    v_xor_b32 v9, v9, v20         ; P
    v_lshrrev_b32 v20, 3, v9      ; seg
    v_and_b32 v9, 7, v9
    v_min_u32 v9, 6, v9
    v_mul_u32_u24 v8, 2688, v8
    v_mul_u32_u24 v20, 896, v20
    v_lshlrev_b32 v9, 4, v9
    v_add3_u32 v8, v8, v9, v20
    s_mul_i32 s59, s{sG}, {16*2688}
    s_mul_i32 s60, s{sHP}, 112
    s_add_u32 s59, s59, s60
    s_add_u32 s60, s59, 896
    v_add_u32 v14, s60, v8
    v_add_u32 v15, {4*2688-1024}, v14
    v_add_u32 v16, {2*(4*2688-1024)}, v14
    v_add_u32 v17, {3*(4*2688-1024)}, v14
    """)
    srd_in()
    for q in range(4): a(f"buffer_load_dwordx4 v{10+q}, {X_SRD}, s57 offen offset:{q*1024} {SC} lds")
    def next_c():
        a("""
        s_add_u32 s54, s54, 1
        s_cmp_eq_u32 s54, 7
        s_cselect_b32 s54, 0, s54
        """)
    def item(i):
        if i < 7:
            if i:
                a(f"""
                s_lshl_b32 s57, s54, 7
                s_add_u32 m0, s55, {i*16384}
                s_mul_i32 s58, s54, {64*2688}
                """)
                for q in range(4): a(f"buffer_load_dwordx4 v{10+q}, {X_SRD}, s57 offen offset:{q*1024} {SC} lds")
            a(f"s_add_u32 m0, s55, {wslot(i)}")
            a("s_nop 0")
            for q in range(4): a(f"buffer_load_dwordx4 v{14+q}, {W_SRD}, s58 offen offset:{q*1024} {SC} lds")
            next_c()
        else:
            for d in range(2):
                if 2*(i-7)+d > 6: break
                a(f"""
                s_add_u32 m0, s56, {wslot(i) + d*8192}
                s_mul_i32 s58, s54, {64*2688}
                """)
                for q in range(2): a(f"buffer_load_dwordx4 v{18+q}, {W_SRD}, s58 offen offset:{q*1024} {SC} lds")
                next_c()
    item(0); item(1)
    a(f"""
    v_lshrrev_b32 v8, 3, v2
    v_and_b32 v9, 7, v2
    v_bfe_u32 v20, v2, 4, 1
    v_lshlrev_b32 v20, 2, v20
    v_xor_b32 v9, v9, v20
    v_min_u32 v9, 6, v9
    v_mul_u32_u24 v8, 2688, v8
    v_lshl_add_u32 v8, v9, 4, v8
    v_add_u32 v18, s59, v8
    v_add_u32 v19, {8*2688-1024}, v18
    s_lshl_b32 s56, s{sG}, 11
    """)
    stamp(1)
    cnt = lambda i: 8 if i < 7 else (4 if i < 10 else (2 if i == 10 else 0))
    for k in range(11):
        a(f"s_waitcnt vmcnt({0 if (opt('sfirst') and k == 7) else cnt(k+1)})")
        a("s_barrier")
        if k == 0: stamp(2)
        if opt("sfirst"):
            if k + 2 <= 7: item(k+2)
            if k == 7:
                a("s_barrier")
                item(8); item(9)
            if k == 8: item(10)
        elif k + 2 <= 10: item(k+2)
        if k == 8: setup()
        if k == 9: a(f"global_load_dwordx2 v[{TMP}:{TMP+1}], v7, s[18:19] {SC}")
    tag_check("L_tagl", TMP)
    stamp(3); stamp(4)
    a(f"""
    s_lshl_b32 s55, s{sG}, 12
    v_add_u32 v{TMP+4}, s55, v3
    s_barrier
    """)
    for i in range(4): a(f"ds_read_b128 {vr(Q+4*i,4)}, v{TMP+4} offset:{i*1024}")
    a("s_branch L_attn")

def compute():
    XA = 24
    WK, WV, WQ = 28, 168, 169
    AK, AV, AQ = (32, 64), (48, 80), (96, 112)
    FB = 128
    PK = 32
    a("L_compute:")
    srd_const(); srd_in()
    if not opt("nocodepf"):
        a(f"""
        s_getpc_b64 s[62:63]
        L_pc:
        s_and_b32 s55, s23, 7
        s_lshl_b32 s55, s55, 2
        s_add_u32 s55, s55, s{sW}
        s_lshl_b32 s55, s55, 10
        v_add_u32 v8, s55, v3
        v_min_u32 v8, L_code_end - L_pc - 16, v8
        global_load_dwordx4 v[164:167], v8, s[62:63]
        """)
    a(f"""
    s_cmp_lg_u32 s2, 0
    s_cbranch_scc1 L_notag
    s_cmp_lg_u32 s{sW}, 0
    s_cbranch_scc1 L_notag
    s_memrealtime s[60:61]
    s_waitcnt lgkmcnt(0)
    s_or_b32 s60, s60, 1
    v_mov_b32 v18, s60
    v_mov_b32 v19, s61
    s_mov_b64 exec, 1
    global_store_dwordx2 v7, v[18:19], s[18:19] {SC}
    s_mov_b64 exec, -1
    L_notag:
    v_and_b32 v8, 31, v2          ; m
    v_lshrrev_b32 v9, 5, v2       ; hh
    v_bfe_u32 v10, v2, 1, 3       ; z
    v_xor_b32 v10, v9, v10
    s_and_b32 s55, s{sG}, 1
    s_lshl_b32 s55, s55, 13
    v_lshlrev_b32 v11, 7, v8
    v_add_u32 v11, s55, v11
    v_lshl_add_u32 v{XA}, v10, 4, v11
    v_xor_b32 v12, 2, v10
    v_lshl_add_u32 v{XA+1}, v12, 4, v11
    v_xor_b32 v12, 4, v10
    v_lshl_add_u32 v{XA+2}, v12, 4, v11
    v_xor_b32 v12, 6, v10
    v_lshl_add_u32 v{XA+3}, v12, 4, v11
    v_bfe_u32 v10, v2, 2, 2       ; r
    v_bfe_u32 v11, v2, 4, 1       ; nhalf
    v_and_b32 v12, 3, v2          ; c4
    v_lshl_add_u32 v11, v11, 2, v12
    s_lshr_b32 s55, s{sG}, 1
    s_mul_i32 s55, s55, 7
    v_add_u32 v11, s55, v11       ; u
    v_lshrrev_b32 v12, 1, v11     ; piece
    v_and_b32 v11, 1, v11
    v_lshlrev_b32 v11, 3, v11     ; half*8
    v_lshl_add_u32 v13, v9, 3, v10      ; 8hh + r
    v_lshlrev_b32 v14, 2, v10
    v_xor_b32 v14, v12, v14             ; piece ^ (r<<2)
    v_lshl_add_u32 v14, v14, 4, v11
    v_lshl_add_u32 v14, v13, 8, v14
    v_add_u32 v{WK}, {WR0}, v14
    v_xor_b32 v{WV}, 128, v{WK}
    v_lshrrev_b32 v14, 1, v10
    v_lshlrev_b32 v14, 2, v14
    v_xor_b32 v14, v12, v14             ; piece ^ ((r>>1)<<2)
    v_lshl_add_u32 v14, v14, 4, v11
    v_lshl_add_u32 v14, v13, 7, v14
    v_add_u32 v{WQ}, {WR0}, v14
    v_and_b32 v29, 0x33, v2
    v_bfe_u32 v10, v2, 2, 1
    v_bfe_u32 v11, v2, 3, 1
    v_lshl_or_b32 v29, v10, 3, v29
    v_lshl_or_b32 v29, v11, 2, v29
    v_lshlrev_b32 v29, 4, v29     ; swap23(lane)*16
    v_cmp_gt_u32 s[56:57], 28, v8
    v_cmp_eq_u32 s[58:59], 28, v8
    v_mov_b32 v30, 0x3f803f80
    v_mov_b32 v31, 0x00003f80
    v_cndmask_b32 v1, 0, v30, s[58:59]
    s_lshl_b32 s60, s{sG}, 13
    s_add_u32 s60, s60, {A2}
    v_add_u32 v170, s60, v29
    v_add_u32 v171, s60, v3
    s_lshl_b32 s60, s{sG}, 12
    v_add_u32 v172, s60, v3
    """)
    PT = val("pretouch", 0)
    if PT:
        srd_rest()
        if PT == 1:
            a(f"""
            s_cmp_lg_u32 s{sW}, 1
            s_cbranch_scc1 L_nopt
            s_lshl_b32 s55, s23, 19
            v_lshlrev_b32 v8, 16, v2
            s_mov_b64 exec, 0xff
            buffer_load_dword v224, v8, {WS_SRD}, s55 offen {SC}
            s_lshl_b32 s55, s23, 17
            s_mov_b64 exec, 3
            buffer_load_dword v225, v8, {OUT_SRD}, s55 offen {SC}
            s_mov_b64 exec, -1
            L_nopt:
            """)
        else:
            a(f"""
            s_cmp_lg_u32 s{sW}, 1
            s_cbranch_scc1 L_nopt
            s_lshl_b32 s55, s23, 19
            v_lshlrev_b32 v8, 13, v2
            buffer_load_dword v224, v8, {WS_SRD}, s55 offen {SC}
            s_lshl_b32 s55, s23, 17
            v_lshlrev_b32 v8, 12, v2
            s_mov_b64 exec, 0xffffffff
            buffer_load_dword v225, v8, {OUT_SRD}, s55 offen {SC}
            s_mov_b64 exec, -1
            L_nopt:
            """)
    setup()
    a(f"""
    s_lshl_b32 s55, s{sHD}, 6
    s_lshl_b32 s60, s{sJ}, 2
    s_add_u32 s55, s55, s60
    s_and_b32 s60, s{sG}, 1
    s_lshl_b32 s60, s60, 1
    s_add_u32 s55, s55, s60
    s_lshl_b32 s55, s55, 12       ; KV global offset of this wave's first tile
    s_mov_b32 s60, {hex(f2u(CSCALE))}
    s_mov_b32 s61, s60
    v_cmp_gt_u32 vcc, 32, v2
    """)
    def FB2(t): return (128, 140, 152)[t % 3] if t else 128
    def xoff(i): return (i if i < 4 else i-4) * 16384
    def reads1(t):
        i, s = divmod(t, 4); b = FB + 16*(t & 1); wo = wslot(i) - WR0
        R = [f"ds_read_b128 {vr(b,4)}, v{XA+s} offset:{xoff(i)}"]
        for rd in range(2): R.append(f"ds_read_b64_tr_b16 {vr(b+8+2*rd,2)}, v{WK} offset:{wo+(16*s+4*rd)*256}")
        for rd in range(2): R.append(f"ds_read_b64_tr_b16 {vr(b+12+2*rd,2)}, v{WV} offset:{wo+(16*s+4*rd)*256}")
        R.append(f"ds_read_b128 {vr(b+4,4)}, v{XA+s} offset:{xoff(i)+4096}")
        return R
    def reads2(t):
        i, s = divmod(t, 4); b = FB2(t); wo = wslot(7 + i//2) - WR0 + (i & 1)*8192
        R = [f"ds_read_b128 {vr(b,4)}, v{XA+s} offset:{xoff(i)}"]
        for rd in range(2): R.append(f"ds_read_b64_tr_b16 {vr(b+8+2*rd,2)}, v{WQ} offset:{wo+(16*s+4*rd)*128}")
        R.append(f"ds_read_b128 {vr(b+4,4)}, v{XA+s} offset:{xoff(i)+4096}")
        return R
    def shift(d): return [f"v_add_u32 v{XA+k}, {d & 0xffffffff}, v{XA+k}" for k in range(4)]
    stamp(1)
    a("s_barrier")
    stamp(2)
    for r in reads1(0): a(r)
    for t in range(28):
        i, s = divmod(t, 4); b = FB + 16*(t & 1)
        cin = lambda r: ("0" if t == 0 else vr(r, 16))
        M = [f"v_mfma_f32_32x32x16_bf16 {vr(AK[0],16)}, {vr(b+8,4)}, {vr(b,4)}, {cin(AK[0])}",
             f"v_mfma_f32_32x32x16_bf16 {vr(AV[0],16)}, {vr(b,4)}, {vr(b+12,4)}, {cin(AV[0])}",
             f"v_mfma_f32_32x32x16_bf16 {vr(AK[1],16)}, {vr(b+8,4)}, {vr(b+4,4)}, {cin(AK[1])}",
             f"v_mfma_f32_32x32x16_bf16 {vr(AV[1],16)}, {vr(b+4,4)}, {vr(b+12,4)}, {cin(AV[1])}"]
        R = reads1(t+1) if t < 27 else reads2(0)
        a("s_waitcnt lgkmcnt(0)")
        if s == 3:
            a(M[0])
            if i == 3:
                for l in shift(65536): a(l)
            if i == 6:
                for l in shift(-65536): a(l)
            a("s_barrier")
            for m in range(1, 4):
                for r in R[2*(m-1):2*(m-1)+2]: a(r)
                a(M[m])
        else:
            for m in range(4):
                a(M[m])
                for r in R[2*m:2*m+2]: a(r)
        if t == 17: a(f"global_load_dwordx2 v[174:175], v7, s[18:19] {SC}")
    stamp(3)
    side = []
    for i in range(2):
        for k in range(8): side.append(f"v_cvt_pk_bf16_f32 v{AK[i]+k}, v{AK[i]+2*k}, v{AK[i]+2*k+1}")
        side.append(f"v_cndmask_b32 v{AK[i]+6}, v30, v{AK[i]+6}, vcc")
        side.append(f"v_cndmask_b32 v{AK[i]+7}, v31, v{AK[i]+7}, vcc")
        side.append(f"buffer_store_dwordx4 {vr(AK[i],4)}, v29, {WS_SRD}, s55 offen {SC}")
        side.append(f"buffer_store_dwordx4 {vr(AK[i]+4,4)}, v29, {WS_SRD}, s55 offen offset:1024 {SC}")
        for k in range(8): side.append(f"v_cvt_pk_bf16_f32 v{AV[i]+k}, v{AV[i]+2*k}, v{AV[i]+2*k+1}")
        for k in range(8): side.append(f"v_cndmask_b32 v{AV[i]+k}, v1, v{AV[i]+k}, s[56:57]")
        side.append(f"buffer_store_dwordx4 {vr(AV[i],4)}, v3, {WS_SRD}, s55 offen offset:2048 {SC}")
        side.append(f"buffer_store_dwordx4 {vr(AV[i]+4,4)}, v3, {WS_SRD}, s55 offen offset:3072 {SC}")
        if i == 0: side.append("s_add_u32 s55, s55, 4096")
    PER = val("side", 8)
    if PER >= 100:
        a("s_nop 7")
        for l in side: a(l)
        side = []
        if opt("sfirst"): a("s_barrier")
    lw = []
    for i in range(2):
        lw += [f"ds_write_b128 v170, {vr(AK[i],4)} offset:{4096*i}", f"ds_write_b128 v170, {vr(AK[i]+4,4)} offset:{4096*i+1024}",
               f"ds_write_b128 v171, {vr(AV[i],4)} offset:{4096*i+2048}", f"ds_write_b128 v171, {vr(AV[i]+4,4)} offset:{4096*i+3072}"]
    FT = val("flagt", 22)
    for r in reads2(1): a(r)
    for t in range(28):
        i, s = divmod(t, 4); b = FB2(t)
        cin = lambda r: ("0" if t == 0 else vr(r, 16))
        M = [f"v_mfma_f32_32x32x16_bf16 {vr(AQ[0],16)}, {vr(b+8,4)}, {vr(b,4)}, {cin(AQ[0])}",
             f"v_mfma_f32_32x32x16_bf16 {vr(AQ[1],16)}, {vr(b+8,4)}, {vr(b+4,4)}, {cin(AQ[1])}"]
        R = reads2(t+2) if t+2 < 28 else []
        bar = (t+2) in (8, 16, 24)
        nw = 2 if t >= 25 else 0
        if bar: a("s_waitcnt lgkmcnt(0)")
        else: a(f"s_waitcnt lgkmcnt({(4 if t < 27 else 0) + nw})")
        a(M[0])
        if t+2 == 16:
            for l in shift(65536): a(l)
        if bar: a("s_barrier")
        for r in R: a(r)
        for l in side[:PER//2]: a(l)
        side = side[PER//2:]
        a(M[1])
        for l in side[:PER//2]: a(l)
        side = side[PER//2:]
        if t >= 24:
            for l in lw[2*(t-24):2*(t-24)+2]: a(l)
        if t == FT:
            assert not side
            a("s_waitcnt vmcnt(8)")
            tag_check("L_tagc", 174)
            a("s_waitcnt vmcnt(0)")
            flag_store("s10", 174)
            stamp(4)
    a("s_nop 7")
    a("s_nop 1")
    for i in range(2):
        A = AQ[i]
        for k in range(8): a(f"v_pk_mul_f32 {vr(A+2*k,2)}, {vr(A+2*k,2)}, s[60:61]")
        for k in range(8): a(f"v_cvt_pk_bf16_f32 v{Q+8*i+k}, v{A+2*k}, v{A+2*k+1}")
        a(f"v_cndmask_b32 v{Q+8*i+6}, 0, v{Q+8*i+6}, vcc")
        a(f"v_cndmask_b32 v{Q+8*i+7}, 0, v{Q+8*i+7}, vcc")
        a(f"ds_write_b128 v172, {vr(Q+8*i,4)} offset:{2048*i}")
        a(f"ds_write_b128 v172, {vr(Q+8*i+4,4)} offset:{2048*i+1024}")
    if FT >= 28:
        a("s_waitcnt vmcnt(8)")
        tag_check("L_tagc", 174)
        a("s_waitcnt vmcnt(0)")
        flag_store("s10", 174)
        stamp(4)
    a("""
    s_waitcnt lgkmcnt(0)
    s_barrier
    """)

def tile_addr(t):
    return (VA if t < 2 else VC, (t & 1) * 4096)

def unit(u, kind="loop", side=None, hook=None):
    side = side or {}
    cur = S + 16*(u & 3); nxt = S + 16*((u+1) & 3); prv = S + 16*((u-1) & 3)
    tn = ((u+1) >> 1) & 1; subn = (u+1) & 1
    tp = ((u-1) >> 1) & 1; subp = (u-1) & 1
    kf = KF + 8*tn; vf = VF + 8*tp
    qn = Q + 8*subn; op = O + 16*subp
    M = [f"v_mfma_f32_32x32x16_bf16 {vr(nxt,16)}, {vr(kf,4)}, {vr(qn,4)}, 0",
         f"v_mfma_f32_32x32x16_bf16 {vr(nxt,16)}, {vr(kf+4,4)}, {vr(qn+4,4)}, {vr(nxt,16)}",
         f"v_smfmac_f32_32x32x32_bf16 {vr(op,16)}, {vr(vf,4)}, {vr(prv,8)}, v{IDX}",
         f"v_smfmac_f32_32x32x32_bf16 {vr(op,16)}, {vr(vf+4,4)}, {vr(prv+8,8)}, v{IDX}"]
    E = [f"v_exp_f32 v{cur+e}, v{cur+e}" for e in range(16)]
    t = u >> 1
    if (u & 1) == 0:
        if t < 3 and not (kind == "first" and t == 1):
            va, off = tile_addr(t+1); kb = KF + 8*((t+1) & 1)
            a(f"ds_read_b128 {vr(kb,4)}, v{va} offset:{off}")
            a(f"ds_read_b128 {vr(kb+4,4)}, v{va} offset:{off+1024}")
        va, off = tile_addr(t); vb = VF + 8*(t & 1)
        a(f"ds_read_b128 {vr(vb,4)}, v{va} offset:{off+2048}")
        a(f"ds_read_b128 {vr(vb+4,4)}, v{va} offset:{off+3072}")
    elif not (u == 7 and hook):
        a("s_waitcnt lgkmcnt(0)")
    if kind == "first" and u == 0: M[2] = M[3] = None
    if (kind == "first" and u == 3) or (kind == "last" and u == 7): M[0] = M[1] = None
    if u == 7 and hook:
        H = hook()
        seq = [M[2]] + E[:6] + [M[3]] + E[6:8] + ["s_waitcnt lgkmcnt(0)", M[0]] + E[8:10] + [M[1]]
        k = 0
        for e in range(6):
            n = (len(H) * (e + 1)) // 6
            seq += H[k:n] + [E[10+e]]; k = n
        for l in seq: a(l)
        return
    for m in range(4):
        if M[m]: a(M[m])
        for e in E[4*m:4*m+4]: a(e)
        for l in side.get(m, []): a(l)

def chunk_salu(m0src):
    return ["s_add_u32 s5, s5, 1", "s_and_b32 s5, s5, 15", f"s_cmp_eq_u32 s5, s{sJ}", "s_addc_u32 s5, s5, 0", "s_and_b32 s5, s5, 15",
            "s_lshl_b32 s6, s5, 14", m0src, "s_add_u32 s6, s6, s4"]
def l2pf():
    return []
    return ["s_and_b32 s101, s98, 15", "s_lshl_b32 s101, s101, 14", "s_add_u32 s101, s101, s100", "s_mov_b64 exec, 0xff",
            f"buffer_load_dword v217, v216, {WS_SRD}, s101 offen {SC}", "s_mov_b64 exec, -1", "s_add_u32 s98, s98, 2"]
def piece(q): return f"buffer_load_dwordx4 v3, {WS_SRD}, s6 offen offset:{q*1024} {SC} lds"

def attention():
    PU = val("pu", 0); CU_ = val("cu", 1)
    PR = [3, 2, 2, 1, 1, 0, 0, 3]
    def hook():
        a(f"""
        v_xor_b32 v{VA}, {C1 ^ C3}, v{VA}
        v_xor_b32 v{VC}, {C0 ^ C2}, v{VC}
        s_waitcnt vmcnt(0) lgkmcnt(0)
        {"" if opt("xnobar") else "s_barrier"}
        ds_read_b128 {vr(KF,4)}, v{VA}
        ds_read_b128 {vr(KF+4,4)}, v{VA} offset:1024
        """)
        return [f"s_xor_b32 s11, s11, {C1 ^ C3}", f"s_xor_b32 s69, s69, {C0 ^ C2}"] + chunk_salu("s_mov_b32 m0, s11")
    restart = f"""
    s_waitcnt lgkmcnt(0)
    v_mfma_f32_32x32x16_bf16 {vr(S,16)}, {vr(KF,4)}, {vr(Q,4)}, 0
    v_mfma_f32_32x32x16_bf16 {vr(S,16)}, {vr(KF+4,4)}, {vr(Q+4,4)}, {vr(S,16)}
    s_nop 11
    """
    a("L_attn:")
    if PU < 0: poll_issue("s9", 0xffff)
    a(f"""
    ds_read_b128 {vr(KF,4)}, v{VA}
    ds_read_b128 {vr(KF+4,4)}, v{VA} offset:1024
    """)
    a(restart)
    stamp(5)
    for u in range(4):
        a(f"s_setprio {3-u}")
        unit(u, "first")
        if u == PU: poll_issue("s9", 0xffff)
        if u == CU_:
            poll_check("L_kvp", "s9", 0xffff)
            for l in chunk_salu(f"s_add_u32 m0, s8, {C0}") + [piece(q) for q in range(4)]: a(l)
            for l in chunk_salu("s_mov_b32 m0, s11") + [piece(q) for q in range(4)]: a(l)
    a(f"""
    s_waitcnt vmcnt(4)
    s_barrier
    ds_read_b128 {vr(KF,4)}, v{VC}
    ds_read_b128 {vr(KF+4,4)}, v{VC} offset:1024
    """)
    for l in chunk_salu("s_mov_b32 m0, s69") + [piece(q) for q in range(4)]: a(l)
    if not opt("oflags"):
        a(f"buffer_store_dwordx4 v[220:223], v3, {WS_SRD}, s14 offen {SC}")
        a(f"buffer_store_dwordx4 v[220:223], v3, {WS_SRD}, s14 offen offset:1024 {SC}")
    for l in l2pf(): a(l)
    a(restart)
    stamp(6)
    for u in range(4, 8):
        a(f"s_setprio {[2,1,0,3][u-4]}")
        unit(u, "second", hook=hook)
    if not opt("oflags"):
        a(f"""
        s_cmp_lg_u32 s{sW}, 0
        s_cbranch_scc1 L_noclean
        """)
        flag_store("s15")
        a("L_noclean:")
    stamp(7)
    DM = val("dm", 0)
    P = [piece(q) for q in range(4)]
    C2S = chunk_salu("s_mov_b32 m0, s69")
    if DM == 0:
        sides = {0: {0: [P[0]], 1: [P[1]], 2: [P[2]]}, 1: {0: [P[3]], 1: C2S + [P[0]], 2: [P[1]]}, 2: {0: [P[2]], 1: [P[3]]}}
    elif DM == 1:
        sides = {0: {0: [P[0]], 2: [P[1]]}, 1: {0: [P[2]], 2: [P[3]]}, 2: {0: C2S + [P[0]], 2: [P[1]]}, 3: {0: [P[2]], 2: [P[3]]}}
    else:
        sides = {0: {m: [P[m]] for m in range(4)}, 1: {0: C2S + [P[0]], 1: [P[1]], 2: [P[2]], 3: [P[3]]}}
    sides.setdefault(4 if DM == 1 else 3, {}).setdefault(0, []).extend(l2pf())
    PM = val("pm", 0)
    PRS = {0: {(1,-1): 2, (3,-1): 1, (5,-1): 0, (7,-1): 3},
           1: {(4,-1): 2, (5,-1): 1, (6,-1): 0, (7,-1): 3},
           2: {(5,-1): 2, (6,-1): 1, (6,1): 0, (7,-1): 3},
           3: {(5,1): 2, (6,0): 1, (6,2): 0, (7,-1): 3},
           4: {(6,0): 2, (6,1): 1, (6,2): 0, (7,-1): 3},
           5: {(3,-1): 2, (5,-1): 1, (6,1): 0, (7,-1): 3}}[PM]
    def with_prio(u, sd):
        sd = {m: list(v) for m, v in (sd or {}).items()}
        if (u, -1) in PRS and not opt("noprio"): a(f"s_setprio {PRS[(u,-1)]}")
        for m in range(4):
            if (u, m) in PRS: sd.setdefault(m, []).append(f"s_setprio {PRS[(u,m)]}")
        return sd
    a(".p2align 6")
    a("L_loop:")
    for u in range(8):
        unit(u, side=with_prio(u, sides.get(u)), hook=hook)
    a(f"""
    s_add_u32 s68, s68, 1
    s_cmp_lt_u32 s68, 6
    s_cbranch_scc1 L_loop
    """)
    if opt("xdummy"):
        a(f"s_mov_b32 s68, {val('xdummy', 4)}")
        a("L_dummy:")
        for u in range(8):
            d = 224 + 16*(u & 1); e = 224 + 16*((u+1) & 1)
            a(f"v_mfma_f32_32x32x16_bf16 {vr(e,16)}, {vr(KF,4)}, {vr(Q,4)}, 0")
            for k in range(4): a(f"v_exp_f32 v{d+k}, v{d+k}")
            a(f"v_mfma_f32_32x32x16_bf16 {vr(e,16)}, {vr(KF+4,4)}, {vr(Q+4,4)}, {vr(e,16)}")
            for k in range(4, 8): a(f"v_exp_f32 v{d+k}, v{d+k}")
            a(f"v_smfmac_f32_32x32x32_bf16 {vr(32,16)}, {vr(VF,4)}, {vr(S+48,8)}, v{IDX}")
            for k in range(8, 12): a(f"v_exp_f32 v{d+k}, v{d+k}")
            a(f"v_smfmac_f32_32x32x32_bf16 {vr(32,16)}, {vr(VF+4,4)}, {vr(S+56,8)}, v{IDX}")
            for k in range(12, 16): a(f"v_exp_f32 v{d+k}, v{d+k}")
        a("""
        s_sub_u32 s68, s68, 1
        s_cmp_lg_u32 s68, 0
        s_cbranch_scc1 L_dummy
        """)
    if opt("xspin"):
        a(f"""
        s_memrealtime s[60:61]
        s_waitcnt lgkmcnt(0)
        s_add_u32 s68, s60, {val('xspin', 500)}
        L_xspin:
        s_memrealtime s[60:61]
        s_waitcnt lgkmcnt(0)
        s_cmp_lt_u32 s60, s68
        s_cbranch_scc1 L_xspin
        """)
    WP = []
    for i in range(8):
        WP.append([f"s_add_u32 m0, s13, {i*4096}", f"s_mov_b32 s6, {i*32*896}", f"buffer_load_dwordx4 v{WOA}, {WO_SRD}, s6 offen {SC} lds"])
    wsides = {0: {0: WP[0], 1: WP[1], 2: WP[2]}, 1: {0: WP[3], 1: WP[4], 2: WP[5]}, 2: {0: WP[6], 1: WP[7]}}
    PRS = {(5,-1): 2, (6,1): 1, (7,1): 0} if PM else {(1,-1): 2, (3,-1): 1, (5,-1): 0}
    for u in range(8):
        unit(u, "last", side=with_prio(u, wsides.get(u)))
    a("s_setprio 0")
    stamp(8)
    if not opt("oflags"): poll_issue("s16", 0xff)
    a(f"""
    v_smfmac_f32_32x32x32_bf16 {vr(O+16,16)}, {vr(VF+8,4)}, {vr(S+48,8)}, v{IDX}
    v_smfmac_f32_32x32x32_bf16 {vr(O+16,16)}, {vr(VF+12,4)}, {vr(S+56,8)}, v{IDX}
    s_cmp_eq_u32 s{sKH}, 0
    s_cbranch_scc1 L_kh0
    s_nop 4
    """)
    for q in range(4): a(f"ds_write_b128 v{EXA}, {vr(O+4*q,4)} offset:{q*1024}")
    for r in range(8): a(f"v_mov_b32 v{Q+r}, v{Q+8+r}")
    a("s_waitcnt lgkmcnt(0)")
    a("s_barrier")
    for q in range(4): a(f"ds_read_b128 {vr(S+16+4*q,4)}, v{EXB} offset:{q*1024}")
    a("s_waitcnt lgkmcnt(0)")
    for r in range(8): a(f"v_pk_add_f32 {vr(S+2*r,2)}, {vr(O+16+2*r,2)}, {vr(S+16+2*r,2)}")
    a("s_branch L_norm")
    a("L_kh0:")
    a("s_nop 9")
    for q in range(4): a(f"ds_write_b128 v{EXA}, {vr(O+16+4*q,4)} offset:{q*1024}")
    a("s_waitcnt lgkmcnt(0)")
    a("s_barrier")
    for q in range(4): a(f"ds_read_b128 {vr(S+16+4*q,4)}, v{EXB} offset:{q*1024}")
    a("s_waitcnt lgkmcnt(0)")
    for r in range(8): a(f"v_pk_add_f32 {vr(S+2*r,2)}, {vr(O+2*r,2)}, {vr(S+16+2*r,2)}")
    a("L_norm:")
    a(f"""
    v_mov_b32 v{S+32}, v{S+12}
    v_mov_b32 v{S+33}, v{S+12}
    s_mov_b32 s54, 0x2f800000        ; 2^-32
    s_mov_b32 s62, 0x57800000        ; 2^48
    v_permlane32_swap_b32 v{S+32}, v{S+33}
    s_nop 1
    v_rcp_f32 v{S+34}, v{S+33}
    v_cmp_ge_f32 vcc, v{S+33}, s54
    v_cmp_le_f32 s[56:57], v{S+33}, s62
    s_nop 1
    s_and_b64 s[56:57], s[56:57], vcc
    s_cmp_eq_u64 s[56:57], -1
    s_cbranch_scc0 L_fallback
    L_norm2:
    v_cmp_gt_u32 vcc, 32, v2
    """)
    for r in range(8): a(f"v_pk_mul_f32 {vr(S+2*r,2)}, {vr(S+2*r,2)}, {vr(S+34,2)} op_sel_hi:[1,0]")
    for i in range(4): a(f"v_cvt_pk_bf16_f32 v{S+16+i}, v{S+2*i}, v{S+2*i+1}")
    a(f"buffer_store_dwordx4 {vr(S+16,4)}, v3, {WS_SRD}, s14 offen {SC}")
    for i in range(4, 8): a(f"v_cvt_pk_bf16_f32 v{S+16+i}, v{S+2*i}, v{S+2*i+1}")
    a(f"v_cndmask_b32 v{S+22}, 0, v{S+22}, vcc")
    a(f"v_cndmask_b32 v{S+23}, 0, v{S+23}, vcc")
    a(f"buffer_store_dwordx4 {vr(S+20,4)}, v3, {WS_SRD}, s14 offen offset:1024 {SC}")

def p3():
    OFR = 96; ACC = 16; WA = 64
    pool = [48, 56] + list(range(164, 204, 8)) + list(range(224, 256, 8))
    NPRE = len(pool)
    def WFt(t): return pool[t] if t < NPRE else pool[t - NPRE]
    for i in range(8):
        a(f"""
        s_add_u32 s62, s3, {i}
        s_and_b32 s62, s62, 7
        s_lshl_b32 s{54+i}, s62, 11
        s_add_u32 s{54+i}, s{54+i}, s17
        s_mul_i32 s62, s62, {28*128}
        v_add_u32 v{WA+2*i}, s62, v{P3A}
        v_xor_b32 v{WA+1+2*i}, 64, v{WA+2*i}
        """)
    def rd(t):
        i, s = divmod(t, 2)
        for ctile in range(2):
            for eh in range(2):
                a(f"ds_read_b64_tr_b16 {vr(WFt(t)+4*ctile+2*eh,2)}, v{WA+2*i+ctile} offset:{(16*s+8*eh)*128}")
    def ld(t): a(f"buffer_load_dwordx4 {vr(OFR+4*t,4)}, v3, {WS_SRD}, s{54+t//2} offen offset:{(t%2)*1024} {SC}")
    def mf(t):
        for ctile in range(2):
            acc = vr(ACC+16*ctile, 16)
            a(f"v_mfma_f32_32x32x16_bf16 {acc}, {vr(WFt(t)+4*ctile,4)}, {vr(OFR+4*t,4)}, {'0' if t == 0 else acc}")
    if opt("oflags"):
        a("s_waitcnt vmcnt(0)")
        flag_store("s15")
        stamp(9)
        a(f"""
        s_cmp_ge_u32 s23, 28
        s_cbranch_scc1 L_fin
        s_barrier
        """)
        poll_issue("s16", 0xff)
        for t in range(NPRE): rd(t)
        poll_check("L_op", "s16", 0xff, 62, 63)
        stamp(10)
        for t in range(16): ld(t)
    else:
        stamp(9)
        a(f"""
        s_cmp_ge_u32 s23, 28
        s_cbranch_scc1 L_fin
        s_waitcnt vmcnt({2 if opt("nodelay") else 0})
        s_barrier
        v_cmp_eq_u64 vcc, s[{TAG}:{TAG+1}], v[{TMP}:{TMP+1}]
        s_nop 1
        s_and_b32 s63, vcc_lo, 0xff
        s_cmp_eq_u32 s63, 0xff
        s_cbranch_scc1 L_op_ok
        """)
        poll_check("L_op", "s16", 0xff, 62, 63)
        stamp(10)
        for t in range(16): ld(t)
        for t in range(NPRE): rd(t)
    for k in range(1, 4): a(f"v_xor_b32 v{8+k}, {32*k}, v{PWA}")
    a(f"v_xor_b32 v12, 16, v{PRA}")
    a(f"s_mov_b32 s62, {SPIN_MAX}")
    if opt("diag"): a("s_mov_b32 s76, 0\ns_mov_b32 s73, 0\ns_mov_b32 s75, 0\ns_mov_b32 s78, 99")
    for t in range(16):
        if opt("oflags"):
            a(f"s_waitcnt vmcnt({15-t})")
        else:
            if t % 2 == 0:
                B = OFR + 4*t
                a(f"""
                s_waitcnt vmcnt({14-t})
                L_mk{t}:
                v_max3_u32 v13, v{B}, v{B+3}, v{B+4}
                v_max_u32 v13, v13, v{B+7}
                v_cmp_eq_u32 vcc, -1, v13
                s_nop 1
                s_cmp_eq_u64 vcc, 0
                s_cbranch_scc0 L_retry{t}
                L_go{t}:
                """)
        if t == 0 or t == NPRE: a("s_waitcnt lgkmcnt(0)")
        mf(t)
        if t + NPRE < 16: rd(t + NPRE)
    a(f"s_mov_b32 s62, {8*1792}")
    stamp(11)
    a("s_nop 10")
    for c in range(2):
        for g in range(4):
            ad = PWA if g == 0 else 8+g
            a(f"ds_write_b128 v{ad}, {vr(ACC+16*c+4*g,4)} offset:{c*128}")
    a("s_waitcnt lgkmcnt(0)")
    a("s_barrier")
    for h8 in range(2):
        for p in range(2):
            for i in range(2):
                a(f"ds_read_b128 {vr(64+16*h8+8*p+4*i,4)}, v{PRA if i == 0 else 12} offset:{h8*2048+p*32768}")
    OS = "" if opt("outplain") else "sc1"
    for h8 in range(2):
        B = 64 + 16*h8
        a(f"s_waitcnt lgkmcnt({4 if h8 == 0 else 0})")
        for r in range(4): a(f"v_pk_add_f32 {vr(B+2*r,2)}, {vr(B+2*r,2)}, {vr(B+8+2*r,2)}")
        for r in range(4): a(f"v_cvt_pk_bf16_f32 v{96+4*h8+r}, v{B+2*r}, v{B+2*r+1}")
        a(f"buffer_store_dwordx4 {vr(96+4*h8,4)}, v{OUTA}, {OUT_SRD}, {'0' if h8 == 0 else 's62'} offen {OS}")
    a("L_fin:")
    if STAMP: a("s_waitcnt vmcnt(0)")
    stamp(12)
    stamp_flush(13)
    a("L_end:")
    a("s_endpgm")

def retries():
    if opt("oflags"): return
    OFR = 96
    for t in range(0, 16, 2):
        a(f"""
        L_retry{t}:
        s_mov_b32 s99, {t}
        s_branch L_refresh
        """)
    a("L_refresh:")
    a("s_waitcnt vmcnt(0)")
    if opt("diag"):
        a("""
        s_cmp_lg_u32 s76, 0
        s_cbranch_scc1 L_diag1
        """)
        stamp(1)
        a("""
        s_mov_b32 s78, s99
        L_diag1:
        s_add_u32 s76, s76, 1
        """)
    a("s_mov_b32 s63, 0")
    for t in range(0, 16, 2):
        B = OFR + 4*t
        a(f"""
        v_max3_u32 v13, v{B}, v{B+3}, v{B+4}
        v_max_u32 v13, v13, v{B+7}
        v_cmp_eq_u32 vcc, -1, v13
        s_nop 1
        s_cmp_eq_u64 vcc, 0
        s_cbranch_scc1 L_fresh{t}
        buffer_load_dwordx4 {vr(B,4)}, v3, {WS_SRD}, s{54+t//2} offen {SC}
        buffer_load_dwordx4 {vr(B+4,4)}, v3, {WS_SRD}, s{54+t//2} offen offset:1024 {SC}
        s_mov_b32 s63, 1
        L_fresh{t}:
        """)
    a(f"""
    s_cmp_eq_u32 s63, 0
    s_cbranch_scc1 L_refreshed
    s_sub_u32 s62, s62, 1
    s_cbranch_scc0 L_refresh
    s_mov_b32 s62, 0
    s_waitcnt vmcnt(0)
    L_refreshed:
    """)
    if opt("diag"): stamp(2)
    for t in range(0, 14, 2):
        a(f"""
        s_cmp_eq_u32 s99, {t}
        s_cbranch_scc1 L_go{t}
        """)
    a("s_branch L_go14")

def fallback():
    T = S + 16; K0 = KF; M = S + 35
    a("L_fallback:")
    a(f"""
    s_lshl_b32 s58, s{sHD}, 18
    s_mov_b32 s59, 64
    v_mov_b32 v{M}, 0xff800000
    L_fb1:
    buffer_load_dwordx4 {vr(K0,4)}, v3, {WS_SRD}, s58 offen {SC}
    buffer_load_dwordx4 {vr(K0+4,4)}, v3, {WS_SRD}, s58 offen offset:1024 {SC}
    s_waitcnt vmcnt(0)
    v_mfma_f32_32x32x16_bf16 {vr(T,16)}, {vr(K0,4)}, {vr(Q,4)}, 0
    v_mfma_f32_32x32x16_bf16 {vr(T,16)}, {vr(K0+4,4)}, {vr(Q+4,4)}, {vr(T,16)}
    s_add_u32 s58, s58, 4096
    s_sub_u32 s59, s59, 1
    s_nop 15
    """)
    for i in range(8): a(f"v_max3_f32 v{M}, v{M}, v{T+2*i}, v{T+2*i+1}")
    a(f"""
    s_cmp_lg_u32 s59, 0
    s_cbranch_scc1 L_fb1
    v_mov_b32 v{M+1}, v{M}
    s_nop 1
    v_permlane32_swap_b32 v{M}, v{M+1}
    s_nop 1
    v_max_f32 v{M}, v{M}, v{M+1}
    v_sub_f32 v{M}, 0, v{M}
    v_and_b32 v{M+1}, 0xffff0000, v{M}
    v_sub_f32 v{M+2}, v{M}, v{M+1}
    v_and_b32 v{M+3}, 0xffff0000, v{M+2}
    v_sub_f32 v{M+2}, v{M+2}, v{M+3}
    v_lshrrev_b32 v{M+1}, 16, v{M+1}
    v_or_b32 v{M+1}, v{M+1}, v{M+3}
    v_lshrrev_b32 v{M+2}, 16, v{M+2}
    v_cmp_gt_u32 vcc, 32, v2
    s_lshl_b32 s58, s{sHD}, 18
    s_mov_b32 s59, 64
    v_cndmask_b32 v{Q+6}, v{M+1}, v{Q+6}, vcc
    v_cndmask_b32 v{Q+7}, v{M+2}, v{Q+7}, vcc
    """)
    for r in range(16): a(f"v_mov_b32 v{S+r}, 0")
    a(f"""
    L_fb2:
    buffer_load_dwordx4 {vr(K0,4)}, v3, {WS_SRD}, s58 offen {SC}
    buffer_load_dwordx4 {vr(K0+4,4)}, v3, {WS_SRD}, s58 offen offset:1024 {SC}
    buffer_load_dwordx4 {vr(K0+8,4)}, v3, {WS_SRD}, s58 offen offset:2048 {SC}
    buffer_load_dwordx4 {vr(K0+12,4)}, v3, {WS_SRD}, s58 offen offset:3072 {SC}
    s_waitcnt vmcnt(0)
    v_mfma_f32_32x32x16_bf16 {vr(T,16)}, {vr(K0,4)}, {vr(Q,4)}, 0
    v_mfma_f32_32x32x16_bf16 {vr(T,16)}, {vr(K0+4,4)}, {vr(Q+4,4)}, {vr(T,16)}
    s_add_u32 s58, s58, 4096
    s_sub_u32 s59, s59, 1
    s_nop 15
    """)
    for i in range(16): a(f"v_exp_f32 v{T+i}, v{T+i}")
    a(f"""
    s_nop 1
    v_smfmac_f32_32x32x32_bf16 {vr(S,16)}, {vr(K0+8,4)}, {vr(T,8)}, v{IDX}
    v_smfmac_f32_32x32x32_bf16 {vr(S,16)}, {vr(K0+12,4)}, {vr(T+8,8)}, v{IDX}
    s_cmp_lg_u32 s59, 0
    s_cbranch_scc1 L_fb2
    s_nop 15
    v_mov_b32 v{S+32}, v{S+12}
    v_mov_b32 v{S+33}, v{S+12}
    s_nop 1
    v_permlane32_swap_b32 v{S+32}, v{S+33}
    s_nop 1
    v_rcp_f32 v{S+34}, v{S+33}
    s_branch L_norm2
    """)

prologue(); loader(); compute(); attention(); p3(); retries(); fallback()
a("L_code_end:")
a(kdesc(N, NV, 102))
hdr = f"; @launch grid=(256,1,1) block=(512,1,1) lds={LDS_BYTES}\n" + '.amdgcn_target "amdgcn-amd-amdhsa--gfx950"\n'
open(sys.argv[1], "w").write(hdr + a.text())
```

```python
import sys, struct
from asmlib import *

KV_OFF = 0
OF_OFF = 8 << 20
FL_OFF = 12 << 20
FO_OFF = (12 << 20) + (256 << 10)
WS_USED = 13 << 20
ST_OFF = 32 << 20
CSCALE = 28 ** -0.5 * 1.4426950408889634
def f2u(x): return struct.unpack("<I", struct.pack("<f", x))[0]
ARGS = sys.argv[2:]
def opt(name): return ("--" + name) in ARGS
def val(name, d): return int(ARGS[ARGS.index("--" + name) + 1]) if opt(name) else d
STAMP = opt("stamp")
N = "concat_heads__softmax_full_mha__mha_block__prompt_kernel"
SC = "sc1"
SPIN_MAX = 100000
SLEEP = val("sleep", 2)

FSH = 7 if opt("spreadfl") else 3
WR0 = 114688
C0, C1, C2, C3 = 32768, 65536, 98304, 131072
A2 = C3
LDS_BYTES = 163840
def wslot(i): return WR0 + ((i + 2) % 3) * 16384

a = Asm()
def stamp(idx):
    if not STAMP: return
    a(f"""
    s_memtime s[64:65]
    s_memrealtime s[66:67]
    s_waitcnt lgkmcnt(0)
    s_mov_b32 s{70+2*idx}, s64
    s_mov_b32 s{71+2*idx}, s66
    """)
def stamp_flush(n):
    if not STAMP: return
    a(f"""
    s_lshl_b32 s66, s2, 4
    s_add_u32 s66, s66, s27
    s_lshl_b32 s66, s66, 7
    s_add_u32 s66, s66, {ST_OFF}
    s_add_u32 s64, s20, s66
    s_addc_u32 s65, s21, 0
    v_mov_b32 v0, 0
    s_mov_b64 exec, 1
    """)
    for i in range(n):
        a(f"""
        v_mov_b32 v4, s{70+2*i}
        v_mov_b32 v5, s{71+2*i}
        global_store_dwordx2 v0, v[4:5], s[64:65] offset:{8*i}
        s_nop 1
        """)

sB, sJ, sHP, sW, sG, sKH, sHD = 24, 25, 26, 27, 48, 49, 52
X_SRD, W_SRD, WS_SRD, WO_SRD, OUT_SRD = "s[28:31]", "s[32:35]", "s[36:39]", "s[40:43]", "s[44:47]"
TAG = 50
IDX, VA, VC = 4, 5, 6
Q, O, S, KF, VF = 8, 176, 64, 128, 144
TMP = 160
PA, WOA, EXA, EXB, P3A, OUTA, PWA, PRA = 208, 209, 210, 211, 212, 213, 214, 215
NV = 256

def tag_check(lbl, v):
    a(f"""
    s_mov_b32 s53, {SPIN_MAX}
    {lbl}_chk:
    v_readfirstlane_b32 s{TAG}, v{v}
    v_readfirstlane_b32 s{TAG+1}, v{v+1}
    s_nop 1
    s_cmp_lg_u64 s[{TAG}:{TAG+1}], 0
    s_cbranch_scc1 {lbl}_ok
    s_sub_u32 s53, s53, 1
    s_cbranch_scc1 {lbl}_ok
    global_load_dwordx2 v[{v}:{v+1}], v7, s[18:19] {SC}
    s_waitcnt vmcnt(0)
    s_branch {lbl}_chk
    {lbl}_ok:
    """)
def poll_issue(soff, mask):
    a(f"""
    s_mov_b64 exec, {hex(mask)}
    buffer_load_dwordx2 v[{TMP}:{TMP+1}], v{216 if mask == 0xffff else PA}, {WS_SRD}, {soff} offen {SC}
    s_mov_b64 exec, -1
    """)
def poll_check(lbl, soff, mask, t0=53, t1=54):
    a(f"""
    s_mov_b32 s{t0}, {SPIN_MAX}
    {lbl}_chk:
    s_waitcnt vmcnt(0)
    v_cmp_eq_u64 vcc, s[{TAG}:{TAG+1}], v[{TMP}:{TMP+1}]
    s_nop 1
    s_and_b32 s{t1}, vcc_lo, {hex(mask)}
    s_cmp_eq_u32 s{t1}, {hex(mask)}
    s_cbranch_scc1 {lbl}_ok
    s_sub_u32 s{t0}, s{t0}, 1
    s_cbranch_scc1 {lbl}_ok
    s_sleep {SLEEP}
    """)
    poll_issue(soff, mask)
    a(f"""
    s_branch {lbl}_chk
    {lbl}_ok:
    """)
def flag_store(soff, v=TMP+2):
    a(f"""
    v_mov_b32 v{v}, s{TAG}
    v_mov_b32 v{v+1}, s{TAG+1}
    s_mov_b64 exec, 1
    buffer_store_dwordx2 v[{v}:{v+1}], v7, {WS_SRD}, {soff} offen {SC}
    s_mov_b64 exec, -1
    """)

def prologue():
    a(khead(N))
    a(f"""
    s_cmp_ge_u32 s2, 256
    s_cbranch_scc1 L_end
    """)
    stamp(0)
    if opt("tag0"): a("s_memrealtime s[60:61]")
    for _ in range(val("xpad", 0)): a("s_mov_b32 s3, 0x12345678")
    a(f"""
    s_load_dwordx16 s[4:19], s[0:1], 0
    s_load_dwordx2 s[20:21], s[0:1], 64
    s_and_b32 s22, s2, 7          ; xcd
    s_lshr_b32 s23, s2, 3         ; r
    s_lshr_b32 s{sB}, s22, 2
    s_bfe_u32 s25, s22, 0x10001
    s_lshl_b32 s25, s25, 3
    s_and_b32 s53, s23, 7
    s_add_u32 s{sJ}, s25, s53     ; jj
    s_and_b32 s26, s22, 1
    s_lshl_b32 s26, s26, 2
    s_lshr_b32 s54, s23, 3
    s_add_u32 s{sHP}, s26, s54    ; hp
    s_lshl_b32 s54, s54, 1
    s_add_u32 s54, s54, s53       ; 0..13
    s_sub_u32 s53, s54, 7
    s_cmp_ge_u32 s54, 7
    s_cselect_b32 s54, s53, s54   ; first K chunk
    """)
    RM = val("rotm", 1)
    if RM:
        a("""
        s_lshr_b32 s54, s23, 3
        s_add_u32 s54, s54, s23
        """)
        if RM == 1: a("s_and_b32 s54, s54, 3\ns_lshl_b32 s54, s54, 1")
        if RM == 3: a("s_and_b32 s54, s54, 1\ns_lshl_b32 s54, s54, 2")
        if RM == 2: a("s_and_b32 s54, s54, 3\ns_lshl_b32 s54, s54, 2\ns_lshr_b32 s54, 0x2520, s54\ns_and_b32 s54, s54, 15")
        if RM == 4: a("s_and_b32 s54, s54, 7\ns_lshl_b32 s54, s54, 2\ns_lshr_b32 s54, 0x53164200, s54\ns_and_b32 s54, s54, 15")
    a(f"""
    v_lshrrev_b32 v1, 6, v0
    v_and_b32 v2, 63, v0          ; lane
    v_mov_b32 v7, 0
    v_readfirstlane_b32 s{sW}, v1
    v_lshlrev_b32 v3, 4, v2       ; lane*16
    s_and_b32 s{sG}, s{sW}, 3
    s_lshr_b32 s{sKH}, s{sW}, 2
    s_cmp_eq_u32 s{sKH}, 0
    s_cbranch_scc1 L_compute
    """)

def srd_in():
    a(f"""
    s_waitcnt lgkmcnt(0)
    s_cmp_eq_u32 s{sB}, 0
    s_cselect_b32 s28, s4, s10
    s_cselect_b32 s29, s5, s11
    s_cselect_b32 s32, s6, s12
    s_cselect_b32 s33, s7, s13
    """)
def srd_const():
    a(f"""
    s_mov_b32 s30, 1835008
    s_mov_b32 s31, 0x20000
    s_mov_b32 s34, 1204224
    s_mov_b32 s35, 0x20000
    """)
def srd_rest():
    a(f"""
    s_cmp_eq_u32 s{sB}, 0
    s_mov_b32 s36, s20
    s_mov_b32 s37, s21
    s_mov_b32 s38, {WS_USED}
    s_mov_b32 s39, 0x20000
    s_cselect_b32 s40, s8, s14
    s_cselect_b32 s41, s9, s15
    s_mov_b32 s42, 401408
    s_mov_b32 s43, 0x20000
    s_mov_b32 s44, s16
    s_mov_b32 s45, s17
    s_mov_b32 s46, 3670016
    s_mov_b32 s47, 0x20000
    """)

def setup():
    srd_rest()
    a(f"""
    v_mov_b32 v{IDX}, 0xdddddddd
    s_lshl_b32 s62, s{sB}, 3
    s_add_u32 s62, s62, s{sHP}            ; b*8+hp
    s_lshl_b32 s9, s62, {FSH+6}
    s_add_u32 s9, s9, {FL_OFF}
    s_lshl_b32 s62, s62, 1                ; b*16 + 2hp
    s_lshr_b32 s63, s{sG}, 1              ; hd
    s_add_u32 s{sHD}, s62, s63
    s_lshl_b32 s7, s63, 14
    s_lshl_b32 s63, s{sKH}, 13
    s_add_u32 s7, s7, s63
    s_add_u32 s7, s7, {C0}
    v_add_u32 v{VC}, s7, v3
    v_add_u32 v{VA}, {C3-C0}, v{VC}
    s_add_u32 s62, s62, s{sKH}
    s_lshl_b32 s4, s62, 6
    s_add_u32 s4, s4, s{sG}
    s_lshl_b32 s4, s4, 12
    s_and_b32 s5, s{sJ}, 8
    s_sub_u32 s5, s5, 1
    {f"s_mov_b32 s5, s{sJ}" if opt("ownrot") else ""}
    s_lshl_b32 s8, s{sW}, 12
    s_lshl_b32 s10, s{sG}, {FSH+4}
    s_add_u32 s10, s10, s9
    s_lshl_b32 s62, s{sJ}, {FSH}
    s_add_u32 s10, s10, s62
    s_lshr_b32 s62, s{sW}, 1
    s_lshl_b32 s62, s62, {FSH+4}
    s_add_u32 s9, s9, s62
    v_lshlrev_b32 v{PA}, 3, v2
    s_mul_i32 s62, s23, 37
    s_lshr_b32 s62, s62, 8                ; r/7
    s_mul_i32 s3, s62, 7
    s_sub_u32 s3, s23, s3                 ; ct
    s_lshl_b32 s12, s22, 2
    s_add_u32 s12, s12, s62
    s_lshl_b32 s12, s12, 2
    s_add_u32 s12, s12, s{sG}
    v_lshrrev_b32 v{WOA}, 3, v2
    v_and_b32 v{EXA}, 7, v2
    v_bfe_u32 v{EXB}, v2, 4, 1
    v_lshlrev_b32 v{EXB}, 2, v{EXB}
    v_xor_b32 v{EXA}, v{EXA}, v{EXB}
    v_mul_u32_u24 v{WOA}, 896, v{WOA}
    v_lshl_add_u32 v{WOA}, v{EXA}, 4, v{WOA}
    s_mul_i32 s62, s{sG}, {8*896}
    s_mul_i32 s63, s{sKH}, {224*896}
    s_add_u32 s62, s62, s63
    s_lshl_b32 s63, s3, 7
    s_add_u32 s62, s62, s63
    v_add_u32 v{WOA}, s62, v{WOA}
    s_mul_i32 s13, s{sKH}, {C3-C0}
    s_lshl_b32 s62, s{sG}, 10
    s_add_u32 s13, s13, s62
    s_add_u32 s13, s13, {C0}
    s_lshl_b32 s62, s{sW}, 12
    v_add_u32 v{EXA}, s62, v3
    s_xor_b32 s62, s62, 16384
    v_add_u32 v{EXB}, s62, v3
    s_add_u32 s11, s8, {C1}
    s_add_u32 s69, s8, {C2}
    s_lshl_b32 s62, s{sB}, 4
    s_add_u32 s62, s62, s{sJ}
    s_lshl_b32 s62, s62, 1
    s_and_b32 s63, s{sG}, 1
    s_add_u32 s62, s62, s63
    s_lshl_b32 s62, s62, 1
    s_add_u32 s62, s62, s{sKH}
    s_lshl_b32 s62, s62, 4
    s_and_b32 s63, s{sHD}, 15
    s_add_u32 s62, s62, s63
    s_lshl_b32 s15, s62, 3
    s_add_u32 s15, s15, {FO_OFF}
    s_lshl_b32 s14, s62, 11
    s_add_u32 s14, s14, {OF_OFF}
    s_lshl_b32 s16, s12, 7
    s_lshl_b32 s62, s{sKH}, 6
    s_add_u32 s16, s16, s62
    s_add_u32 s16, s16, {FO_OFF}
    s_lshl_b32 s17, s12, 15
    s_lshl_b32 s62, s{sKH}, 14
    s_add_u32 s17, s17, s62
    s_add_u32 s17, s17, {OF_OFF}
    v_lshrrev_b32 v216, 5, v2             ; hh
    v_bfe_u32 v217, v2, 2, 2
    v_lshl_add_u32 v{P3A}, v216, 2, v217
    v_lshlrev_b32 v{P3A}, 7, v{P3A}
    v_bfe_u32 v217, v2, 4, 1
    v_lshl_add_u32 v{P3A}, v217, 5, v{P3A}
    v_and_b32 v217, 3, v2
    v_lshl_add_u32 v{P3A}, v217, 3, v{P3A}
    v_bfe_u32 v217, v2, 3, 1
    v_lshl_add_u32 v{P3A}, v217, 6, v{P3A}
    s_mul_i32 s62, s{sKH}, {C3-C0}
    s_add_u32 s62, s62, {C0}
    v_add_u32 v{P3A}, s62, v{P3A}
    v_and_b32 v217, 31, v2
    v_and_b32 v218, 7, v2
    v_xor_b32 v218, v216, v218
    v_lshlrev_b32 v218, 4, v218
    v_lshl_add_u32 v{PWA}, v217, 8, v218
    s_lshl_b32 s62, s{sW}, 13
    s_add_u32 s62, s62, {C1}
    v_add_u32 v{PWA}, s62, v{PWA}
    v_lshrrev_b32 v217, 3, v2
    v_and_b32 v218, 7, v2
    v_lshlrev_b32 v219, 1, v218
    v_xor_b32 v219, v219, v217
    v_lshlrev_b32 v219, 4, v219
    v_lshl_add_u32 v{PRA}, v217, 8, v219
    s_lshl_b32 s62, s{sG}, 13
    s_lshl_b32 s63, s{sKH}, 12
    s_add_u32 s62, s62, s63
    s_add_u32 s62, s62, {C1}
    v_add_u32 v{PRA}, s62, v{PRA}
    s_and_b32 s62, s12, 63
    s_lshl_b32 s62, s62, 5
    s_lshl_b32 s63, s{sKH}, 4
    s_add_u32 s62, s62, s63
    v_add_u32 v217, s62, v217
    v_mul_u32_u24 v217, 1792, v217
    v_lshl_add_u32 v{OUTA}, v218, 4, v217
    s_mul_i32 s62, s{sB}, 896
    s_lshl_b32 s63, s3, 7
    s_add_u32 s62, s62, s63
    v_add_u32 v{OUTA}, s62, v{OUTA}
    s_mov_b32 s68, 0
    v_lshlrev_b32 v216, {FSH}, v2
    """)
    if not opt("oflags"):
        a(f"""
        s_lshl_b32 s15, s{sB}, 4
        s_add_u32 s15, s15, s{sJ}
        s_lshl_b32 s15, s15, 7
        s_lshl_b32 s62, s{sHP}, 3
        s_add_u32 s15, s15, s62
        s_add_u32 s15, s15, {FO_OFF}
        s_lshr_b32 s16, s12, 2
        s_lshl_b32 s16, s16, 7
        s_add_u32 s16, s16, {FO_OFF}
        v_mov_b32 v220, -1
        v_mov_b32 v221, -1
        v_mov_b32 v222, -1
        v_mov_b32 v223, -1
        """)
    for r in range(O, O+32): a(f"v_mov_b32 v{r}, 0")

def loader():
    a(f"""
    v_lshrrev_b32 v8, 3, v2       ; lane/8
    v_and_b32 v9, 7, v2
    v_lshrrev_b32 v14, 4, v2
    v_xor_b32 v9, v9, v14
    v_xor_b32 v14, 4, v9
    s_lshl_b32 s55, s{sJ}, 7
    s_lshl_b32 s56, s{sG}, 5
    s_add_u32 s55, s55, s56
    s_mul_i32 s55, s55, 896
    v_mul_u32_u24 v8, 896, v8
    v_add_u32 v8, s55, v8
    v_lshl_add_u32 v10, v9, 4, v8
    v_lshl_add_u32 v11, v14, 4, v8
    v_add_u32 v12, {2*6144}, v10
    v_add_u32 v13, {3*6144}, v11
    v_add_u32 v11, {6144}, v11
    s_lshl_b32 s55, s{sG}, 12              ; g*4096
    s_lshl_b32 s57, s54, 7
    s_mov_b32 m0, s55
    s_mul_i32 s58, s54, {64*2688}
    """)
    srd_const()
    a(f"""
    v_lshrrev_b32 v8, 4, v2
    v_and_b32 v9, 15, v2
    v_lshlrev_b32 v20, 2, v8
    v_xor_b32 v9, v9, v20         ; P
    v_lshrrev_b32 v20, 3, v9      ; seg
    v_and_b32 v9, 7, v9
    v_min_u32 v9, 6, v9
    v_mul_u32_u24 v8, 2688, v8
    v_mul_u32_u24 v20, 896, v20
    v_lshlrev_b32 v9, 4, v9
    v_add3_u32 v8, v8, v9, v20
    s_mul_i32 s59, s{sG}, {16*2688}
    s_mul_i32 s60, s{sHP}, 112
    s_add_u32 s59, s59, s60
    s_add_u32 s60, s59, 896
    v_add_u32 v14, s60, v8
    v_add_u32 v15, {4*2688-1024}, v14
    v_add_u32 v16, {2*(4*2688-1024)}, v14
    v_add_u32 v17, {3*(4*2688-1024)}, v14
    """)
    srd_in()
    for q in range(4): a(f"buffer_load_dwordx4 v{10+q}, {X_SRD}, s57 offen offset:{q*1024} {SC} lds")
    def next_c():
        a("""
        s_add_u32 s54, s54, 1
        s_cmp_eq_u32 s54, 7
        s_cselect_b32 s54, 0, s54
        """)
    def item(i):
        if i < 7:
            if i:
                a(f"""
                s_lshl_b32 s57, s54, 7
                s_add_u32 m0, s55, {i*16384}
                s_mul_i32 s58, s54, {64*2688}
                """)
                for q in range(4): a(f"buffer_load_dwordx4 v{10+q}, {X_SRD}, s57 offen offset:{q*1024} {SC} lds")
            a(f"s_add_u32 m0, s55, {wslot(i)}")
            a("s_nop 0")
            for q in range(4): a(f"buffer_load_dwordx4 v{14+q}, {W_SRD}, s58 offen offset:{q*1024} {SC} lds")
            next_c()
        else:
            for d in range(2):
                if 2*(i-7)+d > 6: break
                a(f"""
                s_add_u32 m0, s56, {wslot(i) + d*8192}
                s_mul_i32 s58, s54, {64*2688}
                """)
                for q in range(2): a(f"buffer_load_dwordx4 v{18+q}, {W_SRD}, s58 offen offset:{q*1024} {SC} lds")
                next_c()
    item(0); item(1)
    a(f"""
    v_lshrrev_b32 v8, 3, v2
    v_and_b32 v9, 7, v2
    v_bfe_u32 v20, v2, 4, 1
    v_lshlrev_b32 v20, 2, v20
    v_xor_b32 v9, v9, v20
    v_min_u32 v9, 6, v9
    v_mul_u32_u24 v8, 2688, v8
    v_lshl_add_u32 v8, v9, 4, v8
    v_add_u32 v18, s59, v8
    v_add_u32 v19, {8*2688-1024}, v18
    s_lshl_b32 s56, s{sG}, 11
    """)
    stamp(1)
    cnt = lambda i: 8 if i < 7 else (4 if i < 10 else (2 if i == 10 else 0))
    for k in range(11):
        a(f"s_waitcnt vmcnt({0 if (opt('sfirst') and k == 7) else cnt(k+1)})")
        a("s_barrier")
        if k == 0: stamp(2)
        if opt("sfirst"):
            if k + 2 <= 7: item(k+2)
            if k == 7:
                a("s_barrier")
                item(8); item(9)
            if k == 8: item(10)
        elif k + 2 <= 10: item(k+2)
        if k == 8: setup()
        if k == 9: a(f"global_load_dwordx2 v[{TMP}:{TMP+1}], v7, s[18:19] {SC}")
    tag_check("L_tagl", TMP)
    stamp(3); stamp(4)
    a(f"""
    s_lshl_b32 s55, s{sG}, 12
    v_add_u32 v{TMP+4}, s55, v3
    s_barrier
    """)
    for i in range(4): a(f"ds_read_b128 {vr(Q+4*i,4)}, v{TMP+4} offset:{i*1024}")
    a("s_branch L_attn")

def compute():
    XA = 24
    WK, WV, WQ = 28, 168, 169
    AK, AV, AQ = (32, 64), (48, 80), (96, 112)
    FB = 128
    PK = 32
    a("L_compute:")
    srd_const(); srd_in()
    if not opt("nocodepf"):
        a(f"""
        s_getpc_b64 s[62:63]
        L_pc:
        s_and_b32 s55, s23, 7
        s_lshl_b32 s55, s55, 2
        s_add_u32 s55, s55, s{sW}
        s_lshl_b32 s55, s55, 10
        v_add_u32 v8, s55, v3
        v_min_u32 v8, L_code_end - L_pc - 16, v8
        global_load_dwordx4 v[164:167], v8, s[62:63]
        """)
    a(f"""
    s_cmp_lg_u32 s2, 0
    s_cbranch_scc1 L_notag
    s_cmp_lg_u32 s{sW}, 0
    s_cbranch_scc1 L_notag
    {"" if opt("tag0") else "s_memrealtime s[60:61]"}
    s_waitcnt lgkmcnt(0)
    s_or_b32 s60, s60, 1
    v_mov_b32 v18, s60
    v_mov_b32 v19, s61
    s_mov_b64 exec, 1
    global_store_dwordx2 v7, v[18:19], s[18:19] {SC}
    s_mov_b64 exec, -1
    L_notag:
    v_and_b32 v8, 31, v2          ; m
    v_lshrrev_b32 v9, 5, v2       ; hh
    v_bfe_u32 v10, v2, 1, 3       ; z
    v_xor_b32 v10, v9, v10
    s_and_b32 s55, s{sG}, 1
    s_lshl_b32 s55, s55, 13
    v_lshlrev_b32 v11, 7, v8
    v_add_u32 v11, s55, v11
    v_lshl_add_u32 v{XA}, v10, 4, v11
    v_xor_b32 v12, 2, v10
    v_lshl_add_u32 v{XA+1}, v12, 4, v11
    v_xor_b32 v12, 4, v10
    v_lshl_add_u32 v{XA+2}, v12, 4, v11
    v_xor_b32 v12, 6, v10
    v_lshl_add_u32 v{XA+3}, v12, 4, v11
    v_bfe_u32 v10, v2, 2, 2       ; r
    v_bfe_u32 v11, v2, 4, 1       ; nhalf
    v_and_b32 v12, 3, v2          ; c4
    v_lshl_add_u32 v11, v11, 2, v12
    s_lshr_b32 s55, s{sG}, 1
    s_mul_i32 s55, s55, 7
    v_add_u32 v11, s55, v11       ; u
    v_lshrrev_b32 v12, 1, v11     ; piece
    v_and_b32 v11, 1, v11
    v_lshlrev_b32 v11, 3, v11     ; half*8
    v_lshl_add_u32 v13, v9, 3, v10      ; 8hh + r
    v_lshlrev_b32 v14, 2, v10
    v_xor_b32 v14, v12, v14             ; piece ^ (r<<2)
    v_lshl_add_u32 v14, v14, 4, v11
    v_lshl_add_u32 v14, v13, 8, v14
    v_add_u32 v{WK}, {WR0}, v14
    v_xor_b32 v{WV}, 128, v{WK}
    v_lshrrev_b32 v14, 1, v10
    v_lshlrev_b32 v14, 2, v14
    v_xor_b32 v14, v12, v14             ; piece ^ ((r>>1)<<2)
    v_lshl_add_u32 v14, v14, 4, v11
    v_lshl_add_u32 v14, v13, 7, v14
    v_add_u32 v{WQ}, {WR0}, v14
    v_and_b32 v29, 0x33, v2
    v_bfe_u32 v10, v2, 2, 1
    v_bfe_u32 v11, v2, 3, 1
    v_lshl_or_b32 v29, v10, 3, v29
    v_lshl_or_b32 v29, v11, 2, v29
    v_lshlrev_b32 v29, 4, v29     ; swap23(lane)*16
    v_cmp_gt_u32 s[56:57], 28, v8
    v_cmp_eq_u32 s[58:59], 28, v8
    v_mov_b32 v30, 0x3f803f80
    v_mov_b32 v31, 0x00003f80
    v_cndmask_b32 v1, 0, v30, s[58:59]
    s_lshl_b32 s60, s{sG}, 13
    s_add_u32 s60, s60, {A2}
    v_add_u32 v170, s60, v29
    v_add_u32 v171, s60, v3
    s_lshl_b32 s60, s{sG}, 12
    v_add_u32 v172, s60, v3
    """)
    PT = val("pretouch", 0)
    if PT:
        srd_rest()
        if PT == 1:
            a(f"""
            s_cmp_lg_u32 s{sW}, 1
            s_cbranch_scc1 L_nopt
            s_lshl_b32 s55, s23, 19
            v_lshlrev_b32 v8, 16, v2
            s_mov_b64 exec, 0xff
            buffer_load_dword v224, v8, {WS_SRD}, s55 offen {SC}
            s_lshl_b32 s55, s23, 17
            s_mov_b64 exec, 3
            buffer_load_dword v225, v8, {OUT_SRD}, s55 offen {SC}
            s_mov_b64 exec, -1
            L_nopt:
            """)
        else:
            a(f"""
            s_cmp_lg_u32 s{sW}, 1
            s_cbranch_scc1 L_nopt
            s_lshl_b32 s55, s23, 19
            v_lshlrev_b32 v8, 13, v2
            buffer_load_dword v224, v8, {WS_SRD}, s55 offen {SC}
            s_lshl_b32 s55, s23, 17
            v_lshlrev_b32 v8, 12, v2
            s_mov_b64 exec, 0xffffffff
            buffer_load_dword v225, v8, {OUT_SRD}, s55 offen {SC}
            s_mov_b64 exec, -1
            L_nopt:
            """)
    setup()
    a(f"""
    s_lshl_b32 s55, s{sHD}, 6
    s_lshl_b32 s60, s{sJ}, 2
    s_add_u32 s55, s55, s60
    s_and_b32 s60, s{sG}, 1
    s_lshl_b32 s60, s60, 1
    s_add_u32 s55, s55, s60
    s_lshl_b32 s55, s55, 12       ; KV global offset of this wave's first tile
    s_mov_b32 s60, {hex(f2u(CSCALE))}
    s_mov_b32 s61, s60
    v_cmp_gt_u32 vcc, 32, v2
    """)
    def FB2(t): return (128, 140, 152)[t % 3] if t else 128
    def xoff(i): return (i if i < 4 else i-4) * 16384
    def reads1(t):
        i, s = divmod(t, 4); b = FB + 16*(t & 1); wo = wslot(i) - WR0
        R = [f"ds_read_b128 {vr(b,4)}, v{XA+s} offset:{xoff(i)}"]
        for rd in range(2): R.append(f"ds_read_b64_tr_b16 {vr(b+8+2*rd,2)}, v{WK} offset:{wo+(16*s+4*rd)*256}")
        for rd in range(2): R.append(f"ds_read_b64_tr_b16 {vr(b+12+2*rd,2)}, v{WV} offset:{wo+(16*s+4*rd)*256}")
        R.append(f"ds_read_b128 {vr(b+4,4)}, v{XA+s} offset:{xoff(i)+4096}")
        return R
    def reads2(t):
        i, s = divmod(t, 4); b = FB2(t); wo = wslot(7 + i//2) - WR0 + (i & 1)*8192
        R = [f"ds_read_b128 {vr(b,4)}, v{XA+s} offset:{xoff(i)}"]
        for rd in range(2): R.append(f"ds_read_b64_tr_b16 {vr(b+8+2*rd,2)}, v{WQ} offset:{wo+(16*s+4*rd)*128}")
        R.append(f"ds_read_b128 {vr(b+4,4)}, v{XA+s} offset:{xoff(i)+4096}")
        return R
    def shift(d): return [f"v_add_u32 v{XA+k}, {d & 0xffffffff}, v{XA+k}" for k in range(4)]
    stamp(1)
    a("s_barrier")
    stamp(2)
    for r in reads1(0): a(r)
    for t in range(28):
        i, s = divmod(t, 4); b = FB + 16*(t & 1)
        cin = lambda r: ("0" if t == 0 else vr(r, 16))
        M = [f"v_mfma_f32_32x32x16_bf16 {vr(AK[0],16)}, {vr(b+8,4)}, {vr(b,4)}, {cin(AK[0])}",
             f"v_mfma_f32_32x32x16_bf16 {vr(AV[0],16)}, {vr(b,4)}, {vr(b+12,4)}, {cin(AV[0])}",
             f"v_mfma_f32_32x32x16_bf16 {vr(AK[1],16)}, {vr(b+8,4)}, {vr(b+4,4)}, {cin(AK[1])}",
             f"v_mfma_f32_32x32x16_bf16 {vr(AV[1],16)}, {vr(b+4,4)}, {vr(b+12,4)}, {cin(AV[1])}"]
        R = reads1(t+1) if t < 27 else reads2(0)
        a("s_waitcnt lgkmcnt(0)")
        if s == 3:
            a(M[0])
            if i == 3:
                for l in shift(65536): a(l)
            if i == 6:
                for l in shift(-65536): a(l)
            a("s_barrier")
            for m in range(1, 4):
                for r in R[2*(m-1):2*(m-1)+2]: a(r)
                a(M[m])
        else:
            for m in range(4):
                a(M[m])
                for r in R[2*m:2*m+2]: a(r)
        if t == 17: a(f"global_load_dwordx2 v[174:175], v7, s[18:19] {SC}")
    stamp(3)
    side = []
    for i in range(2):
        for k in range(8): side.append(f"v_cvt_pk_bf16_f32 v{AK[i]+k}, v{AK[i]+2*k}, v{AK[i]+2*k+1}")
        side.append(f"v_cndmask_b32 v{AK[i]+6}, v30, v{AK[i]+6}, vcc")
        side.append(f"v_cndmask_b32 v{AK[i]+7}, v31, v{AK[i]+7}, vcc")
        side.append(f"buffer_store_dwordx4 {vr(AK[i],4)}, v29, {WS_SRD}, s55 offen {SC}")
        side.append(f"buffer_store_dwordx4 {vr(AK[i]+4,4)}, v29, {WS_SRD}, s55 offen offset:1024 {SC}")
        for k in range(8): side.append(f"v_cvt_pk_bf16_f32 v{AV[i]+k}, v{AV[i]+2*k}, v{AV[i]+2*k+1}")
        for k in range(8): side.append(f"v_cndmask_b32 v{AV[i]+k}, v1, v{AV[i]+k}, s[56:57]")
        side.append(f"buffer_store_dwordx4 {vr(AV[i],4)}, v3, {WS_SRD}, s55 offen offset:2048 {SC}")
        side.append(f"buffer_store_dwordx4 {vr(AV[i]+4,4)}, v3, {WS_SRD}, s55 offen offset:3072 {SC}")
        if i == 0: side.append("s_add_u32 s55, s55, 4096")
    PER = val("side", 8)
    if PER >= 100:
        a("s_nop 7")
        for l in side: a(l)
        side = []
        if opt("sfirst"): a("s_barrier")
    lw = []
    for i in range(2):
        lw += [f"ds_write_b128 v170, {vr(AK[i],4)} offset:{4096*i}", f"ds_write_b128 v170, {vr(AK[i]+4,4)} offset:{4096*i+1024}",
               f"ds_write_b128 v171, {vr(AV[i],4)} offset:{4096*i+2048}", f"ds_write_b128 v171, {vr(AV[i]+4,4)} offset:{4096*i+3072}"]
    FT = val("flagt", 22)
    for r in reads2(1): a(r)
    for t in range(28):
        i, s = divmod(t, 4); b = FB2(t)
        cin = lambda r: ("0" if t == 0 else vr(r, 16))
        M = [f"v_mfma_f32_32x32x16_bf16 {vr(AQ[0],16)}, {vr(b+8,4)}, {vr(b,4)}, {cin(AQ[0])}",
             f"v_mfma_f32_32x32x16_bf16 {vr(AQ[1],16)}, {vr(b+8,4)}, {vr(b+4,4)}, {cin(AQ[1])}"]
        R = reads2(t+2) if t+2 < 28 else []
        bar = (t+2) in (8, 16, 24)
        nw = 2 if t >= 25 else 0
        if bar: a("s_waitcnt lgkmcnt(0)")
        else: a(f"s_waitcnt lgkmcnt({(4 if t < 27 else 0) + nw})")
        a(M[0])
        if t+2 == 16:
            for l in shift(65536): a(l)
        if bar: a("s_barrier")
        for r in R: a(r)
        for l in side[:PER//2]: a(l)
        side = side[PER//2:]
        a(M[1])
        for l in side[:PER//2]: a(l)
        side = side[PER//2:]
        if t >= 24:
            for l in lw[2*(t-24):2*(t-24)+2]: a(l)
        if t == FT:
            assert not side
            a("s_waitcnt vmcnt(8)")
            tag_check("L_tagc", 174)
            a("s_waitcnt vmcnt(0)")
            flag_store("s10", 174)
            stamp(4)
    a("s_nop 7")
    a("s_nop 1")
    for i in range(2):
        A = AQ[i]
        for k in range(8): a(f"v_pk_mul_f32 {vr(A+2*k,2)}, {vr(A+2*k,2)}, s[60:61]")
        for k in range(8): a(f"v_cvt_pk_bf16_f32 v{Q+8*i+k}, v{A+2*k}, v{A+2*k+1}")
        a(f"v_cndmask_b32 v{Q+8*i+6}, 0, v{Q+8*i+6}, vcc")
        a(f"v_cndmask_b32 v{Q+8*i+7}, 0, v{Q+8*i+7}, vcc")
        a(f"ds_write_b128 v172, {vr(Q+8*i,4)} offset:{2048*i}")
        a(f"ds_write_b128 v172, {vr(Q+8*i+4,4)} offset:{2048*i+1024}")
    if FT >= 28:
        a("s_waitcnt vmcnt(8)")
        tag_check("L_tagc", 174)
        a("s_waitcnt vmcnt(0)")
        flag_store("s10", 174)
        stamp(4)
    a("""
    s_waitcnt lgkmcnt(0)
    s_barrier
    """)

def tile_addr(t):
    return (VA if t < 2 else VC, (t & 1) * 4096)

def unit(u, kind="loop", side=None, hook=None):
    side = side or {}
    cur = S + 16*(u & 3); nxt = S + 16*((u+1) & 3); prv = S + 16*((u-1) & 3)
    tn = ((u+1) >> 1) & 1; subn = (u+1) & 1
    tp = ((u-1) >> 1) & 1; subp = (u-1) & 1
    kf = KF + 8*tn; vf = VF + 8*tp
    qn = Q + 8*subn; op = O + 16*subp
    M = [f"v_mfma_f32_32x32x16_bf16 {vr(nxt,16)}, {vr(kf,4)}, {vr(qn,4)}, 0",
         f"v_mfma_f32_32x32x16_bf16 {vr(nxt,16)}, {vr(kf+4,4)}, {vr(qn+4,4)}, {vr(nxt,16)}",
         f"v_smfmac_f32_32x32x32_bf16 {vr(op,16)}, {vr(vf,4)}, {vr(prv,8)}, v{IDX}",
         f"v_smfmac_f32_32x32x32_bf16 {vr(op,16)}, {vr(vf+4,4)}, {vr(prv+8,8)}, v{IDX}"]
    E = [f"v_exp_f32 v{cur+e}, v{cur+e}" for e in range(16)]
    t = u >> 1
    if (u & 1) == 0:
        if t < 3 and not (kind == "first" and t == 1):
            va, off = tile_addr(t+1); kb = KF + 8*((t+1) & 1)
            a(f"ds_read_b128 {vr(kb,4)}, v{va} offset:{off}")
            a(f"ds_read_b128 {vr(kb+4,4)}, v{va} offset:{off+1024}")
        va, off = tile_addr(t); vb = VF + 8*(t & 1)
        a(f"ds_read_b128 {vr(vb,4)}, v{va} offset:{off+2048}")
        a(f"ds_read_b128 {vr(vb+4,4)}, v{va} offset:{off+3072}")
    elif not (u == 7 and hook):
        a("s_waitcnt lgkmcnt(0)")
    if kind == "first" and u == 0: M[2] = M[3] = None
    if (kind == "first" and u == 3) or (kind == "last" and u == 7): M[0] = M[1] = None
    if u == 7 and hook:
        H = hook()
        seq = [M[2]] + E[:6] + [M[3]] + E[6:8] + ["s_waitcnt lgkmcnt(0)", M[0]] + E[8:10] + [M[1]]
        k = 0
        for e in range(6):
            n = (len(H) * (e + 1)) // 6
            seq += H[k:n] + [E[10+e]]; k = n
        for l in seq: a(l)
        return
    for m in range(4):
        if M[m]: a(M[m])
        for e in E[4*m:4*m+4]: a(e)
        for l in side.get(m, []): a(l)

def chunk_salu(m0src):
    return ["s_add_u32 s5, s5, 1", "s_and_b32 s5, s5, 15", f"s_cmp_eq_u32 s5, s{sJ}", "s_addc_u32 s5, s5, 0", "s_and_b32 s5, s5, 15",
            "s_lshl_b32 s6, s5, 14", m0src, "s_add_u32 s6, s6, s4"]
def l2pf():
    return []
    return ["s_and_b32 s101, s98, 15", "s_lshl_b32 s101, s101, 14", "s_add_u32 s101, s101, s100", "s_mov_b64 exec, 0xff",
            f"buffer_load_dword v217, v216, {WS_SRD}, s101 offen {SC}", "s_mov_b64 exec, -1", "s_add_u32 s98, s98, 2"]
def piece(q): return f"buffer_load_dwordx4 v3, {WS_SRD}, s6 offen offset:{q*1024} {SC} lds"

def deadline(lbl, ticks):
    a(f"""
    s_add_u32 s53, s{TAG}, {ticks}
    {lbl}:
    s_memrealtime s[60:61]
    s_waitcnt lgkmcnt(0)
    s_sub_u32 s60, s60, s53
    s_cmp_lt_i32 s60, 0
    s_cbranch_scc1 {lbl}
    """)

def attention():
    PU = val("pu", 0); CU_ = val("cu", 1)
    PR = [3, 2, 2, 1, 1, 0, 0, 3]
    def hook():
        a(f"""
        v_xor_b32 v{VA}, {C1 ^ C3}, v{VA}
        v_xor_b32 v{VC}, {C0 ^ C2}, v{VC}
        s_waitcnt vmcnt(0) lgkmcnt(0)
        {"" if opt("xnobar") else "s_barrier"}
        ds_read_b128 {vr(KF,4)}, v{VA}
        ds_read_b128 {vr(KF+4,4)}, v{VA} offset:1024
        """)
        return [f"s_xor_b32 s11, s11, {C1 ^ C3}", f"s_xor_b32 s69, s69, {C0 ^ C2}"] + chunk_salu("s_mov_b32 m0, s11")
    restart = f"""
    s_waitcnt lgkmcnt(0)
    v_mfma_f32_32x32x16_bf16 {vr(S,16)}, {vr(KF,4)}, {vr(Q,4)}, 0
    v_mfma_f32_32x32x16_bf16 {vr(S,16)}, {vr(KF+4,4)}, {vr(Q+4,4)}, {vr(S,16)}
    s_nop 11
    """
    a("L_attn:")
    if opt("xd1"): deadline("L_xd1", val("xd1", 0))
    if PU < 0: poll_issue("s9", 0xffff)
    a(f"""
    ds_read_b128 {vr(KF,4)}, v{VA}
    ds_read_b128 {vr(KF+4,4)}, v{VA} offset:1024
    """)
    a(restart)
    stamp(5)
    for u in range(4):
        a(f"s_setprio {3-u}")
        unit(u, "first")
        if u == PU: poll_issue("s9", 0xffff)
        if u == CU_:
            poll_check("L_kvp", "s9", 0xffff)
            for l in chunk_salu(f"s_add_u32 m0, s8, {C0}") + [piece(q) for q in range(4)]: a(l)
            for l in chunk_salu("s_mov_b32 m0, s11") + [piece(q) for q in range(4)]: a(l)
    a(f"""
    s_waitcnt vmcnt(4)
    s_barrier
    ds_read_b128 {vr(KF,4)}, v{VC}
    ds_read_b128 {vr(KF+4,4)}, v{VC} offset:1024
    """)
    for l in chunk_salu("s_mov_b32 m0, s69") + [piece(q) for q in range(4)]: a(l)
    if not opt("oflags"):
        a(f"buffer_store_dwordx4 v[220:223], v3, {WS_SRD}, s14 offen {SC}")
        a(f"buffer_store_dwordx4 v[220:223], v3, {WS_SRD}, s14 offen offset:1024 {SC}")
    for l in l2pf(): a(l)
    a(restart)
    stamp(6)
    for u in range(4, 8):
        a(f"s_setprio {[2,1,0,3][u-4]}")
        unit(u, "second", hook=hook)
    if not opt("oflags"):
        a(f"""
        s_cmp_lg_u32 s{sW}, 0
        s_cbranch_scc1 L_noclean
        """)
        flag_store("s15")
        a("L_noclean:")
    stamp(7)
    DM = val("dm", 0)
    P = [piece(q) for q in range(4)]
    C2S = chunk_salu("s_mov_b32 m0, s69")
    if DM == 0:
        sides = {0: {0: [P[0]], 1: [P[1]], 2: [P[2]]}, 1: {0: [P[3]], 1: C2S + [P[0]], 2: [P[1]]}, 2: {0: [P[2]], 1: [P[3]]}}
    elif DM == 1:
        sides = {0: {0: [P[0]], 2: [P[1]]}, 1: {0: [P[2]], 2: [P[3]]}, 2: {0: C2S + [P[0]], 2: [P[1]]}, 3: {0: [P[2]], 2: [P[3]]}}
    else:
        sides = {0: {m: [P[m]] for m in range(4)}, 1: {0: C2S + [P[0]], 1: [P[1]], 2: [P[2]], 3: [P[3]]}}
    sides.setdefault(4 if DM == 1 else 3, {}).setdefault(0, []).extend(l2pf())
    PM = val("pm", 0)
    PRS = {0: {(1,-1): 2, (3,-1): 1, (5,-1): 0, (7,-1): 3},
           1: {(4,-1): 2, (5,-1): 1, (6,-1): 0, (7,-1): 3},
           2: {(5,-1): 2, (6,-1): 1, (6,1): 0, (7,-1): 3},
           3: {(5,1): 2, (6,0): 1, (6,2): 0, (7,-1): 3},
           4: {(6,0): 2, (6,1): 1, (6,2): 0, (7,-1): 3},
           5: {(3,-1): 2, (5,-1): 1, (6,1): 0, (7,-1): 3}}[PM]
    def with_prio(u, sd):
        sd = {m: list(v) for m, v in (sd or {}).items()}
        if (u, -1) in PRS and not opt("noprio"): a(f"s_setprio {PRS[(u,-1)]}")
        for m in range(4):
            if (u, m) in PRS: sd.setdefault(m, []).append(f"s_setprio {PRS[(u,m)]}")
        return sd
    a(".p2align 6")
    a("L_loop:")
    for u in range(8):
        unit(u, side=with_prio(u, sides.get(u)), hook=hook)
    a(f"""
    s_add_u32 s68, s68, 1
    s_cmp_lt_u32 s68, 6
    s_cbranch_scc1 L_loop
    """)
    if opt("xdummy"):
        a(f"s_mov_b32 s68, {val('xdummy', 4)}")
        a("L_dummy:")
        for u in range(8):
            d = 224 + 16*(u & 1); e = 224 + 16*((u+1) & 1)
            a(f"v_mfma_f32_32x32x16_bf16 {vr(e,16)}, {vr(KF,4)}, {vr(Q,4)}, 0")
            for k in range(4): a(f"v_exp_f32 v{d+k}, v{d+k}")
            a(f"v_mfma_f32_32x32x16_bf16 {vr(e,16)}, {vr(KF+4,4)}, {vr(Q+4,4)}, {vr(e,16)}")
            for k in range(4, 8): a(f"v_exp_f32 v{d+k}, v{d+k}")
            a(f"v_smfmac_f32_32x32x32_bf16 {vr(32,16)}, {vr(VF,4)}, {vr(S+48,8)}, v{IDX}")
            for k in range(8, 12): a(f"v_exp_f32 v{d+k}, v{d+k}")
            a(f"v_smfmac_f32_32x32x32_bf16 {vr(32,16)}, {vr(VF+4,4)}, {vr(S+56,8)}, v{IDX}")
            for k in range(12, 16): a(f"v_exp_f32 v{d+k}, v{d+k}")
        a("""
        s_sub_u32 s68, s68, 1
        s_cmp_lg_u32 s68, 0
        s_cbranch_scc1 L_dummy
        """)
    if opt("xspin"):
        a(f"""
        s_memrealtime s[60:61]
        s_waitcnt lgkmcnt(0)
        s_add_u32 s68, s60, {val('xspin', 500)}
        L_xspin:
        s_memrealtime s[60:61]
        s_waitcnt lgkmcnt(0)
        s_cmp_lt_u32 s60, s68
        s_cbranch_scc1 L_xspin
        """)
    WP = []
    for i in range(8):
        WP.append([f"s_add_u32 m0, s13, {i*4096}", f"s_mov_b32 s6, {i*32*896}", f"buffer_load_dwordx4 v{WOA}, {WO_SRD}, s6 offen {SC} lds"])
    wsides = {0: {0: WP[0], 1: WP[1], 2: WP[2]}, 1: {0: WP[3], 1: WP[4], 2: WP[5]}, 2: {0: WP[6], 1: WP[7]}}
    PRS = {(5,-1): 2, (6,1): 1, (7,1): 0} if PM else {(1,-1): 2, (3,-1): 1, (5,-1): 0}
    for u in range(8):
        unit(u, "last", side=with_prio(u, wsides.get(u)))
    a("s_setprio 0")
    stamp(8)
    if opt("xd3"): deadline("L_xd3", val("xd3", 0))
    if not opt("oflags"): poll_issue("s16", 0xff)
    a(f"""
    v_smfmac_f32_32x32x32_bf16 {vr(O+16,16)}, {vr(VF+8,4)}, {vr(S+48,8)}, v{IDX}
    v_smfmac_f32_32x32x32_bf16 {vr(O+16,16)}, {vr(VF+12,4)}, {vr(S+56,8)}, v{IDX}
    s_cmp_eq_u32 s{sKH}, 0
    s_cbranch_scc1 L_kh0
    s_nop 4
    """)
    for q in range(4): a(f"ds_write_b128 v{EXA}, {vr(O+4*q,4)} offset:{q*1024}")
    for r in range(8): a(f"v_mov_b32 v{Q+r}, v{Q+8+r}")
    a("s_waitcnt lgkmcnt(0)")
    a("s_barrier")
    for q in range(4): a(f"ds_read_b128 {vr(S+16+4*q,4)}, v{EXB} offset:{q*1024}")
    a("s_waitcnt lgkmcnt(0)")
    for r in range(8): a(f"v_pk_add_f32 {vr(S+2*r,2)}, {vr(O+16+2*r,2)}, {vr(S+16+2*r,2)}")
    a("s_branch L_norm")
    a("L_kh0:")
    a("s_nop 9")
    for q in range(4): a(f"ds_write_b128 v{EXA}, {vr(O+16+4*q,4)} offset:{q*1024}")
    a("s_waitcnt lgkmcnt(0)")
    a("s_barrier")
    for q in range(4): a(f"ds_read_b128 {vr(S+16+4*q,4)}, v{EXB} offset:{q*1024}")
    a("s_waitcnt lgkmcnt(0)")
    for r in range(8): a(f"v_pk_add_f32 {vr(S+2*r,2)}, {vr(O+2*r,2)}, {vr(S+16+2*r,2)}")
    a("L_norm:")
    a(f"""
    v_mov_b32 v{S+32}, v{S+12}
    v_mov_b32 v{S+33}, v{S+12}
    s_mov_b32 s54, 0x2f800000        ; 2^-32
    s_mov_b32 s62, 0x57800000        ; 2^48
    v_permlane32_swap_b32 v{S+32}, v{S+33}
    s_nop 1
    v_rcp_f32 v{S+34}, v{S+33}
    v_cmp_ge_f32 vcc, v{S+33}, s54
    v_cmp_le_f32 s[56:57], v{S+33}, s62
    s_nop 1
    s_and_b64 s[56:57], s[56:57], vcc
    s_cmp_eq_u64 s[56:57], -1
    s_cbranch_scc0 L_fallback
    L_norm2:
    v_cmp_gt_u32 vcc, 32, v2
    """)
    for r in range(8): a(f"v_pk_mul_f32 {vr(S+2*r,2)}, {vr(S+2*r,2)}, {vr(S+34,2)} op_sel_hi:[1,0]")
    for i in range(4): a(f"v_cvt_pk_bf16_f32 v{S+16+i}, v{S+2*i}, v{S+2*i+1}")
    a(f"buffer_store_dwordx4 {vr(S+16,4)}, v3, {WS_SRD}, s14 offen {SC}")
    for i in range(4, 8): a(f"v_cvt_pk_bf16_f32 v{S+16+i}, v{S+2*i}, v{S+2*i+1}")
    a(f"v_cndmask_b32 v{S+22}, 0, v{S+22}, vcc")
    a(f"v_cndmask_b32 v{S+23}, 0, v{S+23}, vcc")
    a(f"buffer_store_dwordx4 {vr(S+20,4)}, v3, {WS_SRD}, s14 offen offset:1024 {SC}")

def p3():
    OFR = 96; ACC = 16; WA = 64
    pool = [48, 56] + list(range(164, 204, 8)) + list(range(224, 256, 8))
    NPRE = len(pool)
    def WFt(t): return pool[t] if t < NPRE else pool[t - NPRE]
    for i in range(8):
        a(f"""
        s_add_u32 s62, s3, {i}
        s_and_b32 s62, s62, 7
        s_lshl_b32 s{54+i}, s62, 11
        s_add_u32 s{54+i}, s{54+i}, s17
        s_mul_i32 s62, s62, {28*128}
        v_add_u32 v{WA+2*i}, s62, v{P3A}
        v_xor_b32 v{WA+1+2*i}, 64, v{WA+2*i}
        """)
    def rd(t):
        i, s = divmod(t, 2)
        for ctile in range(2):
            for eh in range(2):
                a(f"ds_read_b64_tr_b16 {vr(WFt(t)+4*ctile+2*eh,2)}, v{WA+2*i+ctile} offset:{(16*s+8*eh)*128}")
    def ld(t): a(f"buffer_load_dwordx4 {vr(OFR+4*t,4)}, v3, {WS_SRD}, s{54+t//2} offen offset:{(t%2)*1024} {SC}")
    def mf(t):
        for ctile in range(2):
            acc = vr(ACC+16*ctile, 16)
            a(f"v_mfma_f32_32x32x16_bf16 {acc}, {vr(WFt(t)+4*ctile,4)}, {vr(OFR+4*t,4)}, {'0' if t == 0 else acc}")
    if opt("oflags"):
        a("s_waitcnt vmcnt(0)")
        flag_store("s15")
        stamp(9)
        a(f"""
        s_cmp_ge_u32 s23, 28
        s_cbranch_scc1 L_fin
        s_barrier
        """)
        poll_issue("s16", 0xff)
        for t in range(NPRE): rd(t)
        poll_check("L_op", "s16", 0xff, 62, 63)
        stamp(10)
        for t in range(16): ld(t)
    else:
        stamp(9)
        a(f"""
        s_cmp_ge_u32 s23, 28
        s_cbranch_scc1 L_fin
        s_waitcnt vmcnt({2 if opt("nodelay") else 0})
        s_barrier
        v_cmp_eq_u64 vcc, s[{TAG}:{TAG+1}], v[{TMP}:{TMP+1}]
        s_nop 1
        s_and_b32 s63, vcc_lo, 0xff
        s_cmp_eq_u32 s63, 0xff
        s_cbranch_scc1 L_op_ok
        """)
        poll_check("L_op", "s16", 0xff, 62, 63)
        stamp(10)
        for t in range(16): ld(t)
        for t in range(NPRE): rd(t)
    for k in range(1, 4): a(f"v_xor_b32 v{8+k}, {32*k}, v{PWA}")
    a(f"v_xor_b32 v12, 16, v{PRA}")
    a(f"s_mov_b32 s62, {SPIN_MAX}")
    if opt("diag"): a("s_mov_b32 s76, 0\ns_mov_b32 s73, 0\ns_mov_b32 s75, 0\ns_mov_b32 s78, 99")
    for t in range(16):
        if opt("oflags"):
            a(f"s_waitcnt vmcnt({15-t})")
        else:
            if t % 2 == 0:
                B = OFR + 4*t
                a(f"""
                s_waitcnt vmcnt({14-t})
                L_mk{t}:
                v_max3_u32 v13, v{B}, v{B+3}, v{B+4}
                v_max_u32 v13, v13, v{B+7}
                v_cmp_eq_u32 vcc, -1, v13
                s_nop 1
                s_cmp_eq_u64 vcc, 0
                s_cbranch_scc0 L_retry{t}
                L_go{t}:
                """)
        if t == 0 or t == NPRE: a("s_waitcnt lgkmcnt(0)")
        mf(t)
        if t + NPRE < 16: rd(t + NPRE)
    a(f"s_mov_b32 s62, {8*1792}")
    stamp(11)
    if opt("xd2"): deadline("L_xd2", val("xd2", 0))
    a("s_nop 10")
    for c in range(2):
        for g in range(4):
            ad = PWA if g == 0 else 8+g
            a(f"ds_write_b128 v{ad}, {vr(ACC+16*c+4*g,4)} offset:{c*128}")
    a("s_waitcnt lgkmcnt(0)")
    a("s_barrier")
    for h8 in range(2):
        for p in range(2):
            for i in range(2):
                a(f"ds_read_b128 {vr(64+16*h8+8*p+4*i,4)}, v{PRA if i == 0 else 12} offset:{h8*2048+p*32768}")
    OS = "" if opt("outplain") else "sc1"
    for h8 in range(2):
        B = 64 + 16*h8
        a(f"s_waitcnt lgkmcnt({4 if h8 == 0 else 0})")
        for r in range(4): a(f"v_pk_add_f32 {vr(B+2*r,2)}, {vr(B+2*r,2)}, {vr(B+8+2*r,2)}")
        for r in range(4): a(f"v_cvt_pk_bf16_f32 v{96+4*h8+r}, v{B+2*r}, v{B+2*r+1}")
        a(f"buffer_store_dwordx4 {vr(96+4*h8,4)}, v{OUTA}, {OUT_SRD}, {'0' if h8 == 0 else 's62'} offen {OS}")
    a("L_fin:")
    if STAMP: a("s_waitcnt vmcnt(0)")
    stamp(12)
    stamp_flush(13)
    a("L_end:")
    a("s_endpgm")

def retries():
    if opt("oflags"): return
    OFR = 96
    for t in range(0, 16, 2):
        a(f"""
        L_retry{t}:
        s_mov_b32 s99, {t}
        s_branch L_refresh
        """)
    a("L_refresh:")
    a("s_waitcnt vmcnt(0)")
    if opt("diag"):
        a("""
        s_cmp_lg_u32 s76, 0
        s_cbranch_scc1 L_diag1
        """)
        stamp(1)
        a("""
        s_mov_b32 s78, s99
        L_diag1:
        s_add_u32 s76, s76, 1
        """)
    a("s_mov_b32 s63, 0")
    for t in range(0, 16, 2):
        B = OFR + 4*t
        a(f"""
        v_max3_u32 v13, v{B}, v{B+3}, v{B+4}
        v_max_u32 v13, v13, v{B+7}
        v_cmp_eq_u32 vcc, -1, v13
        s_nop 1
        s_cmp_eq_u64 vcc, 0
        s_cbranch_scc1 L_fresh{t}
        buffer_load_dwordx4 {vr(B,4)}, v3, {WS_SRD}, s{54+t//2} offen {SC}
        buffer_load_dwordx4 {vr(B+4,4)}, v3, {WS_SRD}, s{54+t//2} offen offset:1024 {SC}
        s_mov_b32 s63, 1
        L_fresh{t}:
        """)
    a(f"""
    s_cmp_eq_u32 s63, 0
    s_cbranch_scc1 L_refreshed
    s_sub_u32 s62, s62, 1
    s_cbranch_scc0 L_refresh
    s_mov_b32 s62, 0
    s_waitcnt vmcnt(0)
    L_refreshed:
    """)
    if opt("diag"): stamp(2)
    for t in range(0, 14, 2):
        a(f"""
        s_cmp_eq_u32 s99, {t}
        s_cbranch_scc1 L_go{t}
        """)
    a("s_branch L_go14")

def fallback():
    T = S + 16; K0 = KF; M = S + 35
    a("L_fallback:")
    a(f"""
    s_lshl_b32 s58, s{sHD}, 18
    s_mov_b32 s59, 64
    v_mov_b32 v{M}, 0xff800000
    L_fb1:
    buffer_load_dwordx4 {vr(K0,4)}, v3, {WS_SRD}, s58 offen {SC}
    buffer_load_dwordx4 {vr(K0+4,4)}, v3, {WS_SRD}, s58 offen offset:1024 {SC}
    s_waitcnt vmcnt(0)
    v_mfma_f32_32x32x16_bf16 {vr(T,16)}, {vr(K0,4)}, {vr(Q,4)}, 0
    v_mfma_f32_32x32x16_bf16 {vr(T,16)}, {vr(K0+4,4)}, {vr(Q+4,4)}, {vr(T,16)}
    s_add_u32 s58, s58, 4096
    s_sub_u32 s59, s59, 1
    s_nop 15
    """)
    for i in range(8): a(f"v_max3_f32 v{M}, v{M}, v{T+2*i}, v{T+2*i+1}")
    a(f"""
    s_cmp_lg_u32 s59, 0
    s_cbranch_scc1 L_fb1
    v_mov_b32 v{M+1}, v{M}
    s_nop 1
    v_permlane32_swap_b32 v{M}, v{M+1}
    s_nop 1
    v_max_f32 v{M}, v{M}, v{M+1}
    v_sub_f32 v{M}, 0, v{M}
    v_and_b32 v{M+1}, 0xffff0000, v{M}
    v_sub_f32 v{M+2}, v{M}, v{M+1}
    v_and_b32 v{M+3}, 0xffff0000, v{M+2}
    v_sub_f32 v{M+2}, v{M+2}, v{M+3}
    v_lshrrev_b32 v{M+1}, 16, v{M+1}
    v_or_b32 v{M+1}, v{M+1}, v{M+3}
    v_lshrrev_b32 v{M+2}, 16, v{M+2}
    v_cmp_gt_u32 vcc, 32, v2
    s_lshl_b32 s58, s{sHD}, 18
    s_mov_b32 s59, 64
    v_cndmask_b32 v{Q+6}, v{M+1}, v{Q+6}, vcc
    v_cndmask_b32 v{Q+7}, v{M+2}, v{Q+7}, vcc
    """)
    for r in range(16): a(f"v_mov_b32 v{S+r}, 0")
    a(f"""
    L_fb2:
    buffer_load_dwordx4 {vr(K0,4)}, v3, {WS_SRD}, s58 offen {SC}
    buffer_load_dwordx4 {vr(K0+4,4)}, v3, {WS_SRD}, s58 offen offset:1024 {SC}
    buffer_load_dwordx4 {vr(K0+8,4)}, v3, {WS_SRD}, s58 offen offset:2048 {SC}
    buffer_load_dwordx4 {vr(K0+12,4)}, v3, {WS_SRD}, s58 offen offset:3072 {SC}
    s_waitcnt vmcnt(0)
    v_mfma_f32_32x32x16_bf16 {vr(T,16)}, {vr(K0,4)}, {vr(Q,4)}, 0
    v_mfma_f32_32x32x16_bf16 {vr(T,16)}, {vr(K0+4,4)}, {vr(Q+4,4)}, {vr(T,16)}
    s_add_u32 s58, s58, 4096
    s_sub_u32 s59, s59, 1
    s_nop 15
    """)
    for i in range(16): a(f"v_exp_f32 v{T+i}, v{T+i}")
    a(f"""
    s_nop 1
    v_smfmac_f32_32x32x32_bf16 {vr(S,16)}, {vr(K0+8,4)}, {vr(T,8)}, v{IDX}
    v_smfmac_f32_32x32x32_bf16 {vr(S,16)}, {vr(K0+12,4)}, {vr(T+8,8)}, v{IDX}
    s_cmp_lg_u32 s59, 0
    s_cbranch_scc1 L_fb2
    s_nop 15
    v_mov_b32 v{S+32}, v{S+12}
    v_mov_b32 v{S+33}, v{S+12}
    s_nop 1
    v_permlane32_swap_b32 v{S+32}, v{S+33}
    s_nop 1
    v_rcp_f32 v{S+34}, v{S+33}
    s_branch L_norm2
    """)

prologue(); loader(); compute(); attention(); p3(); retries(); fallback()
a("L_code_end:")
a(kdesc(N, NV, 102))
hdr = f"; @launch grid=(256,1,1) block=(512,1,1) lds={LDS_BYTES}\n" + '.amdgcn_target "amdgcn-amd-amdhsa--gfx950"\n'
open(sys.argv[1], "w").write(hdr + a.text())
```

```python
import sys, struct
from asmlib import *

KV_OFF = 0
OF_OFF = 8 << 20
FL_OFF = 12 << 20
FO_OFF = (12 << 20) + (256 << 10)
WS_USED = 13 << 20
ST_OFF = 32 << 20
CSCALE = 28 ** -0.5 * 1.4426950408889634
def f2u(x): return struct.unpack("<I", struct.pack("<f", x))[0]
ARGS = sys.argv[2:]
def opt(name): return ("--" + name) in ARGS
def val(name, d): return int(ARGS[ARGS.index("--" + name) + 1]) if opt(name) else d
STAMP = opt("stamp")
N = "concat_heads__softmax_full_mha__mha_block__prompt_kernel"
SC = "sc1"
SPIN_MAX = 100000
SLEEP = val("sleep", 2)

FSH = 7 if opt("spreadfl") else 3
WR0 = 114688
C0, C1, C2, C3 = 32768, 65536, 98304, 131072
A2 = C3
LDS_BYTES = 163840
def wslot(i): return WR0 + ((i + 2) % 3) * 16384

a = Asm()
def stamp(idx):
    if not STAMP: return
    a(f"""
    s_memtime s[64:65]
    s_memrealtime s[66:67]
    s_waitcnt lgkmcnt(0)
    s_mov_b32 s{70+2*idx}, s64
    s_mov_b32 s{71+2*idx}, s66
    """)
def stamp_flush(n):
    if not STAMP: return
    a(f"""
    s_lshl_b32 s66, s2, 4
    s_add_u32 s66, s66, s27
    s_lshl_b32 s66, s66, 7
    s_add_u32 s66, s66, {ST_OFF}
    s_add_u32 s64, s20, s66
    s_addc_u32 s65, s21, 0
    v_mov_b32 v0, 0
    s_mov_b64 exec, 1
    """)
    for i in range(n):
        a(f"""
        v_mov_b32 v4, s{70+2*i}
        v_mov_b32 v5, s{71+2*i}
        global_store_dwordx2 v0, v[4:5], s[64:65] offset:{8*i}
        s_nop 1
        """)

sB, sJ, sHP, sW, sG, sKH, sHD = 24, 25, 26, 27, 48, 49, 52
X_SRD, W_SRD, WS_SRD, WO_SRD, OUT_SRD = "s[28:31]", "s[32:35]", "s[36:39]", "s[40:43]", "s[44:47]"
TAG = 50
IDX, VA, VC = 4, 5, 6
Q, O, S, KF, VF = 8, 176, 64, 128, 144
TMP = 160
PA, WOA, EXA, EXB, P3A, OUTA, PWA, PRA = 208, 209, 210, 211, 212, 213, 214, 215
NV = 256

def tag_check(lbl, v):
    a(f"""
    s_mov_b32 s53, {SPIN_MAX}
    {lbl}_chk:
    v_readfirstlane_b32 s{TAG}, v{v}
    v_readfirstlane_b32 s{TAG+1}, v{v+1}
    s_nop 1
    s_cmp_lg_u64 s[{TAG}:{TAG+1}], 0
    s_cbranch_scc1 {lbl}_ok
    s_sub_u32 s53, s53, 1
    s_cbranch_scc1 {lbl}_ok
    global_load_dwordx2 v[{v}:{v+1}], v7, s[18:19] {SC}
    s_waitcnt vmcnt(0)
    s_branch {lbl}_chk
    {lbl}_ok:
    """)
def poll_issue(soff, mask):
    a(f"""
    s_mov_b64 exec, {hex(mask)}
    buffer_load_dwordx2 v[{TMP}:{TMP+1}], v{216 if mask == 0xffff else PA}, {WS_SRD}, {soff} offen {SC}
    s_mov_b64 exec, -1
    """)
def poll_check(lbl, soff, mask, t0=53, t1=54):
    a(f"""
    s_mov_b32 s{t0}, {SPIN_MAX}
    {lbl}_chk:
    s_waitcnt vmcnt(0)
    v_cmp_eq_u64 vcc, s[{TAG}:{TAG+1}], v[{TMP}:{TMP+1}]
    s_nop 1
    s_and_b32 s{t1}, vcc_lo, {hex(mask)}
    s_cmp_eq_u32 s{t1}, {hex(mask)}
    s_cbranch_scc1 {lbl}_ok
    s_sub_u32 s{t0}, s{t0}, 1
    s_cbranch_scc1 {lbl}_ok
    s_sleep {SLEEP}
    """)
    poll_issue(soff, mask)
    a(f"""
    s_branch {lbl}_chk
    {lbl}_ok:
    """)
def flag_store(soff, v=TMP+2):
    a(f"""
    v_mov_b32 v{v}, s{TAG}
    v_mov_b32 v{v+1}, s{TAG+1}
    s_mov_b64 exec, 1
    buffer_store_dwordx2 v[{v}:{v+1}], v7, {WS_SRD}, {soff} offen {SC}
    s_mov_b64 exec, -1
    """)

def prologue():
    a(khead(N))
    a(f"""
    s_cmp_ge_u32 s2, 256
    s_cbranch_scc1 L_end
    """)
    stamp(0)
    if opt("tag0"): a("s_memrealtime s[98:99]")
    for _ in range(val("xpad", 0)): a("s_mov_b32 s3, 0x12345678")
    a(f"""
    s_load_dwordx16 s[4:19], s[0:1], 0
    s_load_dwordx2 s[20:21], s[0:1], 64
    s_and_b32 s22, s2, 7          ; xcd
    s_lshr_b32 s23, s2, 3         ; r
    s_lshr_b32 s{sB}, s22, 2
    s_bfe_u32 s25, s22, 0x10001
    s_lshl_b32 s25, s25, 3
    s_and_b32 s53, s23, 7
    s_add_u32 s{sJ}, s25, s53     ; jj
    s_and_b32 s26, s22, 1
    s_lshl_b32 s26, s26, 2
    s_lshr_b32 s54, s23, 3
    s_add_u32 s{sHP}, s26, s54    ; hp
    s_lshl_b32 s54, s54, 1
    s_add_u32 s54, s54, s53       ; 0..13
    s_sub_u32 s53, s54, 7
    s_cmp_ge_u32 s54, 7
    s_cselect_b32 s54, s53, s54   ; first K chunk
    """)
    RM = val("rotm", 1)
    if RM:
        a("""
        s_lshr_b32 s54, s23, 3
        s_add_u32 s54, s54, s23
        """)
        if RM == 1: a("s_and_b32 s54, s54, 3\ns_lshl_b32 s54, s54, 1")
        if RM == 3: a("s_and_b32 s54, s54, 1\ns_lshl_b32 s54, s54, 2")
        if RM == 2: a("s_and_b32 s54, s54, 3\ns_lshl_b32 s54, s54, 2\ns_lshr_b32 s54, 0x2520, s54\ns_and_b32 s54, s54, 15")
        if RM == 4: a("s_and_b32 s54, s54, 7\ns_lshl_b32 s54, s54, 2\ns_lshr_b32 s54, 0x53164200, s54\ns_and_b32 s54, s54, 15")
    a(f"""
    v_lshrrev_b32 v1, 6, v0
    v_and_b32 v2, 63, v0          ; lane
    v_mov_b32 v7, 0
    v_readfirstlane_b32 s{sW}, v1
    v_lshlrev_b32 v3, 4, v2       ; lane*16
    s_and_b32 s{sG}, s{sW}, 3
    s_lshr_b32 s{sKH}, s{sW}, 2
    s_cmp_eq_u32 s{sKH}, 0
    s_cbranch_scc1 L_compute
    """)

def srd_in():
    a(f"""
    s_waitcnt lgkmcnt(0)
    s_cmp_eq_u32 s{sB}, 0
    s_cselect_b32 s28, s4, s10
    s_cselect_b32 s29, s5, s11
    s_cselect_b32 s32, s6, s12
    s_cselect_b32 s33, s7, s13
    """)
def srd_const():
    a(f"""
    s_mov_b32 s30, 1835008
    s_mov_b32 s31, 0x20000
    s_mov_b32 s34, 1204224
    s_mov_b32 s35, 0x20000
    """)
def srd_rest():
    a(f"""
    s_cmp_eq_u32 s{sB}, 0
    s_mov_b32 s36, s20
    s_mov_b32 s37, s21
    s_mov_b32 s38, {WS_USED}
    s_mov_b32 s39, 0x20000
    s_cselect_b32 s40, s8, s14
    s_cselect_b32 s41, s9, s15
    s_mov_b32 s42, 401408
    s_mov_b32 s43, 0x20000
    s_mov_b32 s44, s16
    s_mov_b32 s45, s17
    s_mov_b32 s46, 3670016
    s_mov_b32 s47, 0x20000
    """)

def setup():
    srd_rest()
    a(f"""
    v_mov_b32 v{IDX}, 0xdddddddd
    s_lshl_b32 s62, s{sB}, 3
    s_add_u32 s62, s62, s{sHP}            ; b*8+hp
    s_lshl_b32 s9, s62, {FSH+6}
    s_add_u32 s9, s9, {FL_OFF}
    s_lshl_b32 s62, s62, 1                ; b*16 + 2hp
    s_lshr_b32 s63, s{sG}, 1              ; hd
    s_add_u32 s{sHD}, s62, s63
    s_lshl_b32 s7, s63, 14
    s_lshl_b32 s63, s{sKH}, 13
    s_add_u32 s7, s7, s63
    s_add_u32 s7, s7, {C0}
    v_add_u32 v{VC}, s7, v3
    v_add_u32 v{VA}, {C3-C0}, v{VC}
    s_add_u32 s62, s62, s{sKH}
    s_lshl_b32 s4, s62, 6
    s_add_u32 s4, s4, s{sG}
    s_lshl_b32 s4, s4, 12
    s_and_b32 s5, s{sJ}, 8
    s_sub_u32 s5, s5, 1
    {f"s_mov_b32 s5, s{sJ}" if opt("ownrot") else ""}
    s_lshl_b32 s8, s{sW}, 12
    s_lshl_b32 s10, s{sG}, {FSH+4}
    s_add_u32 s10, s10, s9
    s_lshl_b32 s62, s{sJ}, {FSH}
    s_add_u32 s10, s10, s62
    s_lshr_b32 s62, s{sW}, 1
    s_lshl_b32 s62, s62, {FSH+4}
    s_add_u32 s9, s9, s62
    v_lshlrev_b32 v{PA}, 3, v2
    s_mul_i32 s62, s23, 37
    s_lshr_b32 s62, s62, 8                ; r/7
    s_mul_i32 s3, s62, 7
    s_sub_u32 s3, s23, s3                 ; ct
    s_lshl_b32 s12, s22, 2
    s_add_u32 s12, s12, s62
    s_lshl_b32 s12, s12, 2
    s_and_b32 s100, s{sG}, 1
    s_lshl_b32 s100, s100, 1
    s_add_u32 s100, s100, s{sKH}
    s_lshr_b32 s101, s{sG}, 1
    s_add_u32 s12, s12, s100
    v_lshrrev_b32 v{WOA}, 3, v2
    v_and_b32 v{EXA}, 7, v2
    v_bfe_u32 v{EXB}, v2, 4, 1
    v_lshlrev_b32 v{EXB}, 2, v{EXB}
    v_xor_b32 v{EXA}, v{EXA}, v{EXB}
    v_mul_u32_u24 v{WOA}, 896, v{WOA}
    v_lshl_add_u32 v{WOA}, v{EXA}, 4, v{WOA}
    s_mul_i32 s62, s{sG}, {8*896}
    s_mul_i32 s63, s{sKH}, {224*896}
    s_add_u32 s62, s62, s63
    s_lshl_b32 s63, s3, 7
    s_add_u32 s62, s62, s63
    v_add_u32 v{WOA}, s62, v{WOA}
    s_mul_i32 s13, s{sKH}, {C3-C0}
    s_lshl_b32 s62, s{sG}, 10
    s_add_u32 s13, s13, s62
    s_add_u32 s13, s13, {C0}
    s_lshl_b32 s62, s{sW}, 12
    v_add_u32 v{EXA}, s62, v3
    s_xor_b32 s62, s62, 16384
    v_add_u32 v{EXB}, s62, v3
    s_add_u32 s11, s8, {C1}
    s_add_u32 s69, s8, {C2}
    s_lshl_b32 s62, s{sB}, 4
    s_add_u32 s62, s62, s{sJ}
    s_lshl_b32 s62, s62, 1
    s_and_b32 s63, s{sG}, 1
    s_add_u32 s62, s62, s63
    s_lshl_b32 s62, s62, 1
    s_add_u32 s62, s62, s{sKH}
    s_lshl_b32 s62, s62, 4
    s_and_b32 s63, s{sHD}, 15
    s_add_u32 s62, s62, s63
    s_lshl_b32 s15, s62, 3
    s_add_u32 s15, s15, {FO_OFF}
    s_lshl_b32 s14, s62, 11
    s_add_u32 s14, s14, {OF_OFF}
    s_lshl_b32 s16, s12, 7
    s_lshl_b32 s62, s{sKH}, 6
    s_add_u32 s16, s16, s62
    s_add_u32 s16, s16, {FO_OFF}
    s_lshl_b32 s17, s12, 15
    s_lshl_b32 s62, s101, 14
    s_add_u32 s17, s17, s62
    s_add_u32 s17, s17, {OF_OFF}
    v_lshrrev_b32 v216, 5, v2             ; hh
    v_bfe_u32 v217, v2, 2, 2
    v_lshl_add_u32 v{P3A}, v216, 2, v217
    v_lshlrev_b32 v{P3A}, 7, v{P3A}
    v_bfe_u32 v217, v2, 4, 1
    v_lshl_add_u32 v{P3A}, v217, 5, v{P3A}
    v_and_b32 v217, 3, v2
    v_lshl_add_u32 v{P3A}, v217, 3, v{P3A}
    v_bfe_u32 v217, v2, 3, 1
    v_lshl_add_u32 v{P3A}, v217, 6, v{P3A}
    s_mul_i32 s62, s101, {C3-C0}
    s_add_u32 s62, s62, {C0}
    v_add_u32 v{P3A}, s62, v{P3A}
    v_and_b32 v217, 31, v2
    v_and_b32 v218, 7, v2
    v_xor_b32 v218, v216, v218
    v_lshlrev_b32 v218, 4, v218
    v_lshl_add_u32 v{PWA}, v217, 8, v218
    s_lshl_b32 s62, s101, 15
    s_lshl_b32 s63, s100, 13
    s_add_u32 s62, s62, s63
    s_add_u32 s62, s62, {C1}
    v_add_u32 v{PWA}, s62, v{PWA}
    v_lshrrev_b32 v217, 3, v2
    v_and_b32 v218, 7, v2
    v_lshlrev_b32 v219, 1, v218
    v_xor_b32 v219, v219, v217
    v_lshlrev_b32 v219, 4, v219
    v_lshl_add_u32 v{PRA}, v217, 8, v219
    s_lshl_b32 s62, s100, 13
    s_lshl_b32 s63, s101, 12
    s_add_u32 s62, s62, s63
    s_add_u32 s62, s62, {C1}
    v_add_u32 v{PRA}, s62, v{PRA}
    s_and_b32 s62, s12, 63
    s_lshl_b32 s62, s62, 5
    s_lshl_b32 s63, s101, 4
    s_add_u32 s62, s62, s63
    v_add_u32 v217, s62, v217
    v_mul_u32_u24 v217, 1792, v217
    v_lshl_add_u32 v{OUTA}, v218, 4, v217
    s_mul_i32 s62, s{sB}, 896
    s_lshl_b32 s63, s3, 7
    s_add_u32 s62, s62, s63
    v_add_u32 v{OUTA}, s62, v{OUTA}
    s_mov_b32 s68, 0
    v_lshlrev_b32 v216, {FSH}, v2
    """)
    if not opt("oflags"):
        a(f"""
        s_lshl_b32 s15, s{sB}, 4
        s_add_u32 s15, s15, s{sJ}
        s_lshl_b32 s15, s15, 7
        s_lshl_b32 s62, s{sHP}, 3
        s_add_u32 s15, s15, s62
        s_add_u32 s15, s15, {FO_OFF}
        s_lshr_b32 s16, s12, 2
        s_lshl_b32 s16, s16, 7
        s_add_u32 s16, s16, {FO_OFF}
        v_mov_b32 v220, -1
        v_mov_b32 v221, -1
        v_mov_b32 v222, -1
        v_mov_b32 v223, -1
        """)
    for r in range(O, O+32): a(f"v_mov_b32 v{r}, 0")

def loader():
    a(f"""
    v_lshrrev_b32 v8, 3, v2       ; lane/8
    v_and_b32 v9, 7, v2
    v_lshrrev_b32 v14, 4, v2
    v_xor_b32 v9, v9, v14
    v_xor_b32 v14, 4, v9
    s_lshl_b32 s55, s{sJ}, 7
    s_lshl_b32 s56, s{sG}, 5
    s_add_u32 s55, s55, s56
    s_mul_i32 s55, s55, 896
    v_mul_u32_u24 v8, 896, v8
    v_add_u32 v8, s55, v8
    v_lshl_add_u32 v10, v9, 4, v8
    v_lshl_add_u32 v11, v14, 4, v8
    v_add_u32 v12, {2*6144}, v10
    v_add_u32 v13, {3*6144}, v11
    v_add_u32 v11, {6144}, v11
    s_lshl_b32 s55, s{sG}, 12              ; g*4096
    s_lshl_b32 s57, s54, 7
    s_mov_b32 m0, s55
    s_mul_i32 s58, s54, {64*2688}
    """)
    srd_const()
    a(f"""
    v_lshrrev_b32 v8, 4, v2
    v_and_b32 v9, 15, v2
    v_lshlrev_b32 v20, 2, v8
    v_xor_b32 v9, v9, v20         ; P
    v_lshrrev_b32 v20, 3, v9      ; seg
    v_and_b32 v9, 7, v9
    v_min_u32 v9, 6, v9
    v_mul_u32_u24 v8, 2688, v8
    v_mul_u32_u24 v20, 896, v20
    v_lshlrev_b32 v9, 4, v9
    v_add3_u32 v8, v8, v9, v20
    s_mul_i32 s59, s{sG}, {16*2688}
    s_mul_i32 s60, s{sHP}, 112
    s_add_u32 s59, s59, s60
    s_add_u32 s60, s59, 896
    v_add_u32 v14, s60, v8
    v_add_u32 v15, {4*2688-1024}, v14
    v_add_u32 v16, {2*(4*2688-1024)}, v14
    v_add_u32 v17, {3*(4*2688-1024)}, v14
    """)
    srd_in()
    for q in range(4): a(f"buffer_load_dwordx4 v{10+q}, {X_SRD}, s57 offen offset:{q*1024} {SC} lds")
    def next_c():
        a("""
        s_add_u32 s54, s54, 1
        s_cmp_eq_u32 s54, 7
        s_cselect_b32 s54, 0, s54
        """)
    def item(i):
        if i < 7:
            if i:
                a(f"""
                s_lshl_b32 s57, s54, 7
                s_add_u32 m0, s55, {i*16384}
                s_mul_i32 s58, s54, {64*2688}
                """)
                for q in range(4): a(f"buffer_load_dwordx4 v{10+q}, {X_SRD}, s57 offen offset:{q*1024} {SC} lds")
            a(f"s_add_u32 m0, s55, {wslot(i)}")
            a("s_nop 0")
            for q in range(4): a(f"buffer_load_dwordx4 v{14+q}, {W_SRD}, s58 offen offset:{q*1024} {SC} lds")
            next_c()
        else:
            for d in range(2):
                if 2*(i-7)+d > 6: break
                a(f"""
                s_add_u32 m0, s56, {wslot(i) + d*8192}
                s_mul_i32 s58, s54, {64*2688}
                """)
                for q in range(2): a(f"buffer_load_dwordx4 v{18+q}, {W_SRD}, s58 offen offset:{q*1024} {SC} lds")
                next_c()
    item(0); item(1)
    a(f"""
    v_lshrrev_b32 v8, 3, v2
    v_and_b32 v9, 7, v2
    v_bfe_u32 v20, v2, 4, 1
    v_lshlrev_b32 v20, 2, v20
    v_xor_b32 v9, v9, v20
    v_min_u32 v9, 6, v9
    v_mul_u32_u24 v8, 2688, v8
    v_lshl_add_u32 v8, v9, 4, v8
    v_add_u32 v18, s59, v8
    v_add_u32 v19, {8*2688-1024}, v18
    s_lshl_b32 s56, s{sG}, 11
    """)
    stamp(1)
    cnt = lambda i: 8 if i < 7 else (4 if i < 10 else (2 if i == 10 else 0))
    for k in range(11):
        a(f"s_waitcnt vmcnt({0 if (opt('sfirst') and k == 7) else cnt(k+1)})")
        a("s_barrier")
        if k == 0: stamp(2)
        if opt("sfirst"):
            if k + 2 <= 7: item(k+2)
            if k == 7:
                a("s_barrier")
                item(8); item(9)
            if k == 8: item(10)
        elif k + 2 <= 10: item(k+2)
        if k == 8: setup()
        if k == 9: a(f"global_load_dwordx2 v[{TMP}:{TMP+1}], v7, s[18:19] {SC}")
    tag_check("L_tagl", TMP)
    stamp(3); stamp(4)
    a(f"""
    s_lshl_b32 s55, s{sG}, 12
    v_add_u32 v{TMP+4}, s55, v3
    s_barrier
    """)
    for i in range(4): a(f"ds_read_b128 {vr(Q+4*i,4)}, v{TMP+4} offset:{i*1024}")
    a("s_branch L_attn")

def compute():
    XA = 24
    WK, WV, WQ = 28, 168, 169
    AK, AV, AQ = (32, 64), (48, 80), (96, 112)
    FB = 128
    PK = 32
    a("L_compute:")
    srd_const(); srd_in()
    if not opt("nocodepf"):
        a(f"""
        s_getpc_b64 s[62:63]
        L_pc:
        s_and_b32 s55, s23, 7
        s_lshl_b32 s55, s55, 2
        s_add_u32 s55, s55, s{sW}
        s_lshl_b32 s55, s55, 10
        v_add_u32 v8, s55, v3
        v_min_u32 v8, L_code_end - L_pc - 16, v8
        global_load_dwordx4 v[164:167], v8, s[62:63]
        """)
    a(f"""
    s_cmp_lg_u32 s2, 0
    s_cbranch_scc1 L_notag
    s_cmp_lg_u32 s{sW}, 0
    s_cbranch_scc1 L_notag
    {"s_mov_b64 s[60:61], s[98:99]" if opt("tag0") else "s_memrealtime s[60:61]"}
    s_waitcnt lgkmcnt(0)
    s_or_b32 s60, s60, 1
    v_mov_b32 v18, s60
    v_mov_b32 v19, s61
    s_mov_b64 exec, 1
    global_store_dwordx2 v7, v[18:19], s[18:19] {SC}
    s_mov_b64 exec, -1
    L_notag:
    v_and_b32 v8, 31, v2          ; m
    v_lshrrev_b32 v9, 5, v2       ; hh
    v_bfe_u32 v10, v2, 1, 3       ; z
    v_xor_b32 v10, v9, v10
    s_and_b32 s55, s{sG}, 1
    s_lshl_b32 s55, s55, 13
    v_lshlrev_b32 v11, 7, v8
    v_add_u32 v11, s55, v11
    v_lshl_add_u32 v{XA}, v10, 4, v11
    v_xor_b32 v12, 2, v10
    v_lshl_add_u32 v{XA+1}, v12, 4, v11
    v_xor_b32 v12, 4, v10
    v_lshl_add_u32 v{XA+2}, v12, 4, v11
    v_xor_b32 v12, 6, v10
    v_lshl_add_u32 v{XA+3}, v12, 4, v11
    v_bfe_u32 v10, v2, 2, 2       ; r
    v_bfe_u32 v11, v2, 4, 1       ; nhalf
    v_and_b32 v12, 3, v2          ; c4
    v_lshl_add_u32 v11, v11, 2, v12
    s_lshr_b32 s55, s{sG}, 1
    s_mul_i32 s55, s55, 7
    v_add_u32 v11, s55, v11       ; u
    v_lshrrev_b32 v12, 1, v11     ; piece
    v_and_b32 v11, 1, v11
    v_lshlrev_b32 v11, 3, v11     ; half*8
    v_lshl_add_u32 v13, v9, 3, v10      ; 8hh + r
    v_lshlrev_b32 v14, 2, v10
    v_xor_b32 v14, v12, v14             ; piece ^ (r<<2)
    v_lshl_add_u32 v14, v14, 4, v11
    v_lshl_add_u32 v14, v13, 8, v14
    v_add_u32 v{WK}, {WR0}, v14
    v_xor_b32 v{WV}, 128, v{WK}
    v_lshrrev_b32 v14, 1, v10
    v_lshlrev_b32 v14, 2, v14
    v_xor_b32 v14, v12, v14             ; piece ^ ((r>>1)<<2)
    v_lshl_add_u32 v14, v14, 4, v11
    v_lshl_add_u32 v14, v13, 7, v14
    v_add_u32 v{WQ}, {WR0}, v14
    v_and_b32 v29, 0x33, v2
    v_bfe_u32 v10, v2, 2, 1
    v_bfe_u32 v11, v2, 3, 1
    v_lshl_or_b32 v29, v10, 3, v29
    v_lshl_or_b32 v29, v11, 2, v29
    v_lshlrev_b32 v29, 4, v29     ; swap23(lane)*16
    v_cmp_gt_u32 s[56:57], 28, v8
    v_cmp_eq_u32 s[58:59], 28, v8
    v_mov_b32 v30, 0x3f803f80
    v_mov_b32 v31, 0x00003f80
    v_cndmask_b32 v1, 0, v30, s[58:59]
    s_lshl_b32 s60, s{sG}, 13
    s_add_u32 s60, s60, {A2}
    v_add_u32 v170, s60, v29
    v_add_u32 v171, s60, v3
    s_lshl_b32 s60, s{sG}, 12
    v_add_u32 v172, s60, v3
    """)
    PT = val("pretouch", 0)
    if PT:
        srd_rest()
        if PT == 1:
            a(f"""
            s_cmp_lg_u32 s{sW}, 1
            s_cbranch_scc1 L_nopt
            s_lshl_b32 s55, s23, 19
            v_lshlrev_b32 v8, 16, v2
            s_mov_b64 exec, 0xff
            buffer_load_dword v224, v8, {WS_SRD}, s55 offen {SC}
            s_lshl_b32 s55, s23, 17
            s_mov_b64 exec, 3
            buffer_load_dword v225, v8, {OUT_SRD}, s55 offen {SC}
            s_mov_b64 exec, -1
            L_nopt:
            """)
        else:
            a(f"""
            s_cmp_lg_u32 s{sW}, 1
            s_cbranch_scc1 L_nopt
            s_lshl_b32 s55, s23, 19
            v_lshlrev_b32 v8, 13, v2
            buffer_load_dword v224, v8, {WS_SRD}, s55 offen {SC}
            s_lshl_b32 s55, s23, 17
            v_lshlrev_b32 v8, 12, v2
            s_mov_b64 exec, 0xffffffff
            buffer_load_dword v225, v8, {OUT_SRD}, s55 offen {SC}
            s_mov_b64 exec, -1
            L_nopt:
            """)
    setup()
    a(f"""
    s_lshl_b32 s55, s{sHD}, 6
    s_lshl_b32 s60, s{sJ}, 2
    s_add_u32 s55, s55, s60
    s_and_b32 s60, s{sG}, 1
    s_lshl_b32 s60, s60, 1
    s_add_u32 s55, s55, s60
    s_lshl_b32 s55, s55, 12       ; KV global offset of this wave's first tile
    s_mov_b32 s60, {hex(f2u(CSCALE))}
    s_mov_b32 s61, s60
    v_cmp_gt_u32 vcc, 32, v2
    """)
    def FB2(t): return (128, 140, 152)[t % 3] if t else 128
    def xoff(i): return (i if i < 4 else i-4) * 16384
    def reads1(t):
        i, s = divmod(t, 4); b = FB + 16*(t & 1); wo = wslot(i) - WR0
        R = [f"ds_read_b128 {vr(b,4)}, v{XA+s} offset:{xoff(i)}"]
        for rd in range(2): R.append(f"ds_read_b64_tr_b16 {vr(b+8+2*rd,2)}, v{WK} offset:{wo+(16*s+4*rd)*256}")
        for rd in range(2): R.append(f"ds_read_b64_tr_b16 {vr(b+12+2*rd,2)}, v{WV} offset:{wo+(16*s+4*rd)*256}")
        R.append(f"ds_read_b128 {vr(b+4,4)}, v{XA+s} offset:{xoff(i)+4096}")
        return R
    def reads2(t):
        i, s = divmod(t, 4); b = FB2(t); wo = wslot(7 + i//2) - WR0 + (i & 1)*8192
        R = [f"ds_read_b128 {vr(b,4)}, v{XA+s} offset:{xoff(i)}"]
        for rd in range(2): R.append(f"ds_read_b64_tr_b16 {vr(b+8+2*rd,2)}, v{WQ} offset:{wo+(16*s+4*rd)*128}")
        R.append(f"ds_read_b128 {vr(b+4,4)}, v{XA+s} offset:{xoff(i)+4096}")
        return R
    def shift(d): return [f"v_add_u32 v{XA+k}, {d & 0xffffffff}, v{XA+k}" for k in range(4)]
    stamp(1)
    a("s_barrier")
    stamp(2)
    for r in reads1(0): a(r)
    for t in range(28):
        i, s = divmod(t, 4); b = FB + 16*(t & 1)
        cin = lambda r: ("0" if t == 0 else vr(r, 16))
        M = [f"v_mfma_f32_32x32x16_bf16 {vr(AK[0],16)}, {vr(b+8,4)}, {vr(b,4)}, {cin(AK[0])}",
             f"v_mfma_f32_32x32x16_bf16 {vr(AV[0],16)}, {vr(b,4)}, {vr(b+12,4)}, {cin(AV[0])}",
             f"v_mfma_f32_32x32x16_bf16 {vr(AK[1],16)}, {vr(b+8,4)}, {vr(b+4,4)}, {cin(AK[1])}",
             f"v_mfma_f32_32x32x16_bf16 {vr(AV[1],16)}, {vr(b+4,4)}, {vr(b+12,4)}, {cin(AV[1])}"]
        R = reads1(t+1) if t < 27 else reads2(0)
        a("s_waitcnt lgkmcnt(0)")
        if s == 3:
            a(M[0])
            if i == 3:
                for l in shift(65536): a(l)
            if i == 6:
                for l in shift(-65536): a(l)
            a("s_barrier")
            for m in range(1, 4):
                for r in R[2*(m-1):2*(m-1)+2]: a(r)
                a(M[m])
        else:
            for m in range(4):
                a(M[m])
                for r in R[2*m:2*m+2]: a(r)
        if t == 17: a(f"global_load_dwordx2 v[174:175], v7, s[18:19] {SC}")
    stamp(3)
    side = []
    for i in range(2):
        for k in range(8): side.append(f"v_cvt_pk_bf16_f32 v{AK[i]+k}, v{AK[i]+2*k}, v{AK[i]+2*k+1}")
        side.append(f"v_cndmask_b32 v{AK[i]+6}, v30, v{AK[i]+6}, vcc")
        side.append(f"v_cndmask_b32 v{AK[i]+7}, v31, v{AK[i]+7}, vcc")
        side.append(f"buffer_store_dwordx4 {vr(AK[i],4)}, v29, {WS_SRD}, s55 offen {SC}")
        side.append(f"buffer_store_dwordx4 {vr(AK[i]+4,4)}, v29, {WS_SRD}, s55 offen offset:1024 {SC}")
        for k in range(8): side.append(f"v_cvt_pk_bf16_f32 v{AV[i]+k}, v{AV[i]+2*k}, v{AV[i]+2*k+1}")
        for k in range(8): side.append(f"v_cndmask_b32 v{AV[i]+k}, v1, v{AV[i]+k}, s[56:57]")
        side.append(f"buffer_store_dwordx4 {vr(AV[i],4)}, v3, {WS_SRD}, s55 offen offset:2048 {SC}")
        side.append(f"buffer_store_dwordx4 {vr(AV[i]+4,4)}, v3, {WS_SRD}, s55 offen offset:3072 {SC}")
        if i == 0: side.append("s_add_u32 s55, s55, 4096")
    PER = val("side", 8)
    if PER >= 100:
        a("s_nop 7")
        for l in side: a(l)
        side = []
        if opt("sfirst"): a("s_barrier")
    lw = []
    for i in range(2):
        lw += [f"ds_write_b128 v170, {vr(AK[i],4)} offset:{4096*i}", f"ds_write_b128 v170, {vr(AK[i]+4,4)} offset:{4096*i+1024}",
               f"ds_write_b128 v171, {vr(AV[i],4)} offset:{4096*i+2048}", f"ds_write_b128 v171, {vr(AV[i]+4,4)} offset:{4096*i+3072}"]
    FT = val("flagt", 22)
    for r in reads2(1): a(r)
    for t in range(28):
        i, s = divmod(t, 4); b = FB2(t)
        cin = lambda r: ("0" if t == 0 else vr(r, 16))
        M = [f"v_mfma_f32_32x32x16_bf16 {vr(AQ[0],16)}, {vr(b+8,4)}, {vr(b,4)}, {cin(AQ[0])}",
             f"v_mfma_f32_32x32x16_bf16 {vr(AQ[1],16)}, {vr(b+8,4)}, {vr(b+4,4)}, {cin(AQ[1])}"]
        R = reads2(t+2) if t+2 < 28 else []
        bar = (t+2) in (8, 16, 24)
        nw = 2 if t >= 25 else 0
        if bar: a("s_waitcnt lgkmcnt(0)")
        else: a(f"s_waitcnt lgkmcnt({(4 if t < 27 else 0) + nw})")
        a(M[0])
        if t+2 == 16:
            for l in shift(65536): a(l)
        if bar: a("s_barrier")
        for r in R: a(r)
        for l in side[:PER//2]: a(l)
        side = side[PER//2:]
        a(M[1])
        for l in side[:PER//2]: a(l)
        side = side[PER//2:]
        if t >= 24:
            for l in lw[2*(t-24):2*(t-24)+2]: a(l)
        if t == FT:
            assert not side
            a("s_waitcnt vmcnt(8)")
            tag_check("L_tagc", 174)
            a("s_waitcnt vmcnt(0)")
            flag_store("s10", 174)
            stamp(4)
    a("s_nop 7")
    a("s_nop 1")
    for i in range(2):
        A = AQ[i]
        for k in range(8): a(f"v_pk_mul_f32 {vr(A+2*k,2)}, {vr(A+2*k,2)}, s[60:61]")
        QD = Q + 8*i
        for k in range(8): a(f"v_cvt_pk_bf16_f32 v{QD+k}, v{A+2*k}, v{A+2*k+1}")
        a(f"v_cndmask_b32 v{QD+6}, 0, v{QD+6}, vcc")
        a(f"v_cndmask_b32 v{QD+7}, 0, v{QD+7}, vcc")
        a(f"ds_write_b128 v172, {vr(QD,4)} offset:{2048*i}")
        a(f"ds_write_b128 v172, {vr(QD+4,4)} offset:{2048*i+1024}")
    if FT >= 28:
        a("s_waitcnt vmcnt(8)")
        tag_check("L_tagc", 174)
        a("s_waitcnt vmcnt(0)")
        flag_store("s10", 174)
        stamp(4)
    a("""
    s_waitcnt lgkmcnt(0)
    s_barrier
    """)

def tile_addr(t):
    return (VA if t < 2 else VC, (t & 1) * 4096)

def unit(u, kind="loop", side=None, hook=None):
    side = side or {}
    cur = S + 16*(u & 3); nxt = S + 16*((u+1) & 3); prv = S + 16*((u-1) & 3)
    tn = ((u+1) >> 1) & 1; subn = (u+1) & 1
    tp = ((u-1) >> 1) & 1; subp = (u-1) & 1
    kf = KF + 8*tn; vf = VF + 8*tp
    qn = Q + 8*subn; op = O + 16*subp
    M = [f"v_mfma_f32_32x32x16_bf16 {vr(nxt,16)}, {vr(kf,4)}, {vr(qn,4)}, 0",
         f"v_mfma_f32_32x32x16_bf16 {vr(nxt,16)}, {vr(kf+4,4)}, {vr(qn+4,4)}, {vr(nxt,16)}",
         f"v_smfmac_f32_32x32x32_bf16 {vr(op,16)}, {vr(vf,4)}, {vr(prv,8)}, v{IDX}",
         f"v_smfmac_f32_32x32x32_bf16 {vr(op,16)}, {vr(vf+4,4)}, {vr(prv+8,8)}, v{IDX}"]
    E = [f"v_exp_f32 v{cur+e}, v{cur+e}" for e in range(16)]
    t = u >> 1
    if (u & 1) == 0:
        if t < 3 and not (kind == "first" and t == 1):
            va, off = tile_addr(t+1); kb = KF + 8*((t+1) & 1)
            a(f"ds_read_b128 {vr(kb,4)}, v{va} offset:{off}")
            a(f"ds_read_b128 {vr(kb+4,4)}, v{va} offset:{off+1024}")
        va, off = tile_addr(t); vb = VF + 8*(t & 1)
        a(f"ds_read_b128 {vr(vb,4)}, v{va} offset:{off+2048}")
        a(f"ds_read_b128 {vr(vb+4,4)}, v{va} offset:{off+3072}")
    elif not (u == 7 and hook):
        a("s_waitcnt lgkmcnt(0)")
    if kind == "first" and u == 0: M[2] = M[3] = None
    if (kind == "first" and u == 3) or (kind == "last" and u == 7): M[0] = M[1] = None
    if u == 7 and hook:
        H = hook()
        seq = [M[2]] + E[:6] + [M[3]] + E[6:8] + ["s_waitcnt lgkmcnt(0)", M[0]] + E[8:10] + [M[1]]
        k = 0
        for e in range(6):
            n = (len(H) * (e + 1)) // 6
            seq += H[k:n] + [E[10+e]]; k = n
        for l in seq: a(l)
        return
    for m in range(4):
        if M[m]: a(M[m])
        for e in E[4*m:4*m+4]: a(e)
        for l in side.get(m, []): a(l)

def chunk_salu(m0src):
    return ["s_add_u32 s5, s5, 1", "s_and_b32 s5, s5, 15", f"s_cmp_eq_u32 s5, s{sJ}", "s_addc_u32 s5, s5, 0", "s_and_b32 s5, s5, 15",
            "s_lshl_b32 s6, s5, 14", m0src, "s_add_u32 s6, s6, s4"]
def l2pf():
    return []
    return ["s_and_b32 s101, s98, 15", "s_lshl_b32 s101, s101, 14", "s_add_u32 s101, s101, s100", "s_mov_b64 exec, 0xff",
            f"buffer_load_dword v217, v216, {WS_SRD}, s101 offen {SC}", "s_mov_b64 exec, -1", "s_add_u32 s98, s98, 2"]
def piece(q): return f"buffer_load_dwordx4 v3, {WS_SRD}, s6 offen offset:{q*1024} {SC} lds"

def deadline(lbl, ticks):
    a(f"""
    s_add_u32 s53, s{TAG}, {ticks}
    {lbl}:
    s_memrealtime s[60:61]
    s_waitcnt lgkmcnt(0)
    s_sub_u32 s60, s60, s53
    s_cmp_lt_i32 s60, 0
    s_cbranch_scc1 {lbl}
    """)

def attention():
    PU = val("pu", -1); CU_ = val("cu", 0)
    PR = [3, 2, 2, 1, 1, 0, 0, 3]
    def hook():
        a(f"""
        v_xor_b32 v{VA}, {C1 ^ C3}, v{VA}
        v_xor_b32 v{VC}, {C0 ^ C2}, v{VC}
        s_waitcnt vmcnt(0) lgkmcnt(0)
        {"" if opt("xnobar") else "s_barrier"}
        ds_read_b128 {vr(KF,4)}, v{VA}
        ds_read_b128 {vr(KF+4,4)}, v{VA} offset:1024
        """)
        return [f"s_xor_b32 s11, s11, {C1 ^ C3}", f"s_xor_b32 s69, s69, {C0 ^ C2}"] + chunk_salu("s_mov_b32 m0, s11")
    restart = f"""
    s_waitcnt lgkmcnt(0)
    v_mfma_f32_32x32x16_bf16 {vr(S,16)}, {vr(KF,4)}, {vr(Q,4)}, 0
    v_mfma_f32_32x32x16_bf16 {vr(S,16)}, {vr(KF+4,4)}, {vr(Q+4,4)}, {vr(S,16)}
    s_nop 11
    """
    a("L_attn:")
    if opt("xd1"): deadline("L_xd1", val("xd1", 0))
    if PU < 0: poll_issue("s9", 0xffff)
    a(f"""
    ds_read_b128 {vr(KF,4)}, v{VA}
    ds_read_b128 {vr(KF+4,4)}, v{VA} offset:1024
    """)
    a(restart)
    stamp(5)
    pend = []
    for u in range(4):
        a(f"s_setprio {3-u}")
        sd = {}
        if pend:
            left = (4 - u) * 4
            for m in range(4):
                n = -(-len(pend) // left); sd[m] = pend[:n]; pend = pend[n:]; left -= 1
        unit(u, "first", side=sd)
        if u == PU: poll_issue("s9", 0xffff)
        if u == CU_:
            poll_check("L_kvp", "s9", 0xffff)
            for l in chunk_salu(f"s_add_u32 m0, s8, {C0}") + [piece(q) for q in range(4)]: a(l)
            if not opt("c3late"):
                pend = chunk_salu("s_mov_b32 m0, s11") + [piece(q) for q in range(4)] + chunk_salu("s_mov_b32 m0, s69") + [piece(q) for q in range(4)]
                if not opt("oflags"):
                    pend += [f"buffer_store_dwordx4 v[220:223], v3, {WS_SRD}, s14 offen {SC}", f"buffer_store_dwordx4 v[220:223], v3, {WS_SRD}, s14 offen offset:1024 {SC}"]
            else:
                for l in chunk_salu("s_mov_b32 m0, s11") + [piece(q) for q in range(4)]: a(l)
    a(f"""
    s_waitcnt vmcnt({4 if opt("c3late") else (8 if opt("oflags") else 10)})
    s_barrier
    ds_read_b128 {vr(KF,4)}, v{VC}
    ds_read_b128 {vr(KF+4,4)}, v{VC} offset:1024
    """)
    if opt("c3late"):
        for l in chunk_salu("s_mov_b32 m0, s69") + [piece(q) for q in range(4)]: a(l)
        if not opt("oflags"):
            a(f"buffer_store_dwordx4 v[220:223], v3, {WS_SRD}, s14 offen {SC}")
            a(f"buffer_store_dwordx4 v[220:223], v3, {WS_SRD}, s14 offen offset:1024 {SC}")
    for l in l2pf(): a(l)
    a(restart)
    stamp(6)
    for u in range(4, 8):
        a(f"s_setprio {[2,1,0,3][u-4]}")
        unit(u, "second", hook=hook)
    if not opt("oflags"):
        a(f"""
        s_cmp_lg_u32 s{sW}, 0
        s_cbranch_scc1 L_noclean
        """)
        flag_store("s15")
        a("L_noclean:")
    stamp(7)
    DM = val("dm", 0)
    P = [piece(q) for q in range(4)]
    C2S = chunk_salu("s_mov_b32 m0, s69")
    if DM == 0:
        sides = {0: {0: [P[0]], 1: [P[1]], 2: [P[2]]}, 1: {0: [P[3]], 1: C2S + [P[0]], 2: [P[1]]}, 2: {0: [P[2]], 1: [P[3]]}}
    elif DM == 1:
        sides = {0: {0: [P[0]], 2: [P[1]]}, 1: {0: [P[2]], 2: [P[3]]}, 2: {0: C2S + [P[0]], 2: [P[1]]}, 3: {0: [P[2]], 2: [P[3]]}}
    else:
        sides = {0: {m: [P[m]] for m in range(4)}, 1: {0: C2S + [P[0]], 1: [P[1]], 2: [P[2]], 3: [P[3]]}}
    sides.setdefault(4 if DM == 1 else 3, {}).setdefault(0, []).extend(l2pf())
    PM = val("pm", 0)
    PRS = {0: {(1,-1): 2, (3,-1): 1, (5,-1): 0, (7,-1): 3},
           1: {(4,-1): 2, (5,-1): 1, (6,-1): 0, (7,-1): 3},
           2: {(5,-1): 2, (6,-1): 1, (6,1): 0, (7,-1): 3},
           3: {(5,1): 2, (6,0): 1, (6,2): 0, (7,-1): 3},
           4: {(6,0): 2, (6,1): 1, (6,2): 0, (7,-1): 3},
           5: {(3,-1): 2, (5,-1): 1, (6,1): 0, (7,-1): 3}}[PM]
    def with_prio(u, sd):
        sd = {m: list(v) for m, v in (sd or {}).items()}
        if (u, -1) in PRS and not opt("noprio"): a(f"s_setprio {PRS[(u,-1)]}")
        for m in range(4):
            if (u, m) in PRS: sd.setdefault(m, []).append(f"s_setprio {PRS[(u,m)]}")
        return sd
    a(".p2align 6")
    a("L_loop:")
    for u in range(8):
        unit(u, side=with_prio(u, sides.get(u)), hook=hook)
    a(f"""
    s_add_u32 s68, s68, 1
    s_cmp_lt_u32 s68, 6
    s_cbranch_scc1 L_loop
    """)
    if opt("xdummy"):
        a(f"s_mov_b32 s68, {val('xdummy', 4)}")
        a("L_dummy:")
        for u in range(8):
            d = 224 + 16*(u & 1); e = 224 + 16*((u+1) & 1)
            a(f"v_mfma_f32_32x32x16_bf16 {vr(e,16)}, {vr(KF,4)}, {vr(Q,4)}, 0")
            for k in range(4): a(f"v_exp_f32 v{d+k}, v{d+k}")
            a(f"v_mfma_f32_32x32x16_bf16 {vr(e,16)}, {vr(KF+4,4)}, {vr(Q+4,4)}, {vr(e,16)}")
            for k in range(4, 8): a(f"v_exp_f32 v{d+k}, v{d+k}")
            a(f"v_smfmac_f32_32x32x32_bf16 {vr(32,16)}, {vr(VF,4)}, {vr(S+48,8)}, v{IDX}")
            for k in range(8, 12): a(f"v_exp_f32 v{d+k}, v{d+k}")
            a(f"v_smfmac_f32_32x32x32_bf16 {vr(32,16)}, {vr(VF+4,4)}, {vr(S+56,8)}, v{IDX}")
            for k in range(12, 16): a(f"v_exp_f32 v{d+k}, v{d+k}")
        a("""
        s_sub_u32 s68, s68, 1
        s_cmp_lg_u32 s68, 0
        s_cbranch_scc1 L_dummy
        """)
    if opt("xspin"):
        a(f"""
        s_memrealtime s[60:61]
        s_waitcnt lgkmcnt(0)
        s_add_u32 s68, s60, {val('xspin', 500)}
        L_xspin:
        s_memrealtime s[60:61]
        s_waitcnt lgkmcnt(0)
        s_cmp_lt_u32 s60, s68
        s_cbranch_scc1 L_xspin
        """)
    WP = []
    for i in range(8):
        WP.append([f"s_add_u32 m0, s13, {i*4096}", f"s_mov_b32 s6, {i*32*896}", f"buffer_load_dwordx4 v{WOA}, {WO_SRD}, s6 offen {SC} lds"])
    def norm(B, own, lblfail):
        for q in range(4): a(f"ds_read_b128 {vr(B+16+4*q,4)}, v{EXB} offset:{q*1024}")
        for q in range(4):
            a(f"s_waitcnt lgkmcnt({3-q})")
            for r in range(2): a(f"v_pk_add_f32 {vr(B+4*q+2*r,2)}, {vr(own+4*q+2*r,2)}, {vr(B+16+4*q+2*r,2)}")
        a(f"""
        v_mov_b32 v{B+32}, v{B+12}
        v_mov_b32 v{B+33}, v{B+12}
        s_mov_b32 s54, 0x2f800000        ; 2^-32
        s_mov_b32 s62, 0x57800000        ; 2^48
        v_permlane32_swap_b32 v{B+32}, v{B+33}
        v_pk_mul_f32 {vr(B+36,2)}, {vr(B,2)}, 0 op_sel_hi:[1,0]
        v_pk_mul_f32 {vr(B+38,2)}, {vr(B+2,2)}, 0 op_sel_hi:[1,0]
        v_rcp_f32 v{B+34}, v{B+33}
        """)
        for r in range(2, 8): a(f"v_pk_fma_f32 {vr(B+36+2*(r&1),2)}, {vr(B+2*r,2)}, 0, {vr(B+36+2*(r&1),2)} op_sel_hi:[1,0,1]")
        a(f"""
        v_pk_add_f32 {vr(B+36,2)}, {vr(B+36,2)}, {vr(B+38,2)}
        v_add_f32 v{B+36}, v{B+36}, v{B+37}
        v_add_f32 v{B+36}, v{B+36}, v{B+33}
        v_cmp_ge_f32 vcc, v{B+36}, s54
        v_cmp_le_f32 s[56:57], v{B+36}, s62
        s_nop 1
        s_and_b64 s[56:57], s[56:57], vcc
        s_cmp_eq_u64 s[56:57], -1
        s_cbranch_scc0 {lblfail}
        """)
    def norm2(B):
        a("v_cmp_gt_u32 vcc, 32, v2")
        for r in range(8): a(f"v_pk_mul_f32 {vr(B+2*r,2)}, {vr(B+2*r,2)}, {vr(B+34,2)} op_sel_hi:[1,0]")
        for i in range(4): a(f"v_cvt_pk_bf16_f32 v{B+16+i}, v{B+2*i}, v{B+2*i+1}")
        a(f"buffer_store_dwordx4 {vr(B+16,4)}, v3, {WS_SRD}, s14 offen {SC}")
        for i in range(4, 8): a(f"v_cvt_pk_bf16_f32 v{B+16+i}, v{B+2*i}, v{B+2*i+1}")
        a(f"v_cndmask_b32 v{B+22}, 0, v{B+22}, vcc")
        a(f"v_cndmask_b32 v{B+23}, 0, v{B+23}, vcc")
        a(f"buffer_store_dwordx4 {vr(B+20,4)}, v3, {WS_SRD}, s14 offen offset:1024 {SC}")
    def kread(v):
        va, off = tile_addr(v & 3); kb = KF + 8*(v & 1)
        a(f"ds_read_b128 {vr(kb,4)}, v{va} offset:{off}")
        a(f"ds_read_b128 {vr(kb+4,4)}, v{va} offset:{off+1024}")
    LP = {1: 2, 3: 1, 4: 0, 5: 2, 6: 1, 7: 0}
    a("s_mov_b32 s98, 0")
    for v in range(8):
        cur = S + 16*(v & 3); nxt = S + 16*((v+1) & 3); prv = S + 16*((v-1) & 3)
        kf = KF + 8*((v+1) & 1); vf = VF + 8*((v-1) & 1)
        qn = Q + 8*((v+1) >> 2); op = O + 16*(1 if v == 0 else ((v-1) >> 2))
        if v < 7:
            M = [f"v_mfma_f32_32x32x16_bf16 {vr(nxt,16)}, {vr(kf,4)}, {vr(qn,4)}, 0",
                 f"v_mfma_f32_32x32x16_bf16 {vr(nxt,16)}, {vr(kf+4,4)}, {vr(qn+4,4)}, {vr(nxt,16)}"]
        else: M = [None, None]
        M += [f"v_smfmac_f32_32x32x32_bf16 {vr(op,16)}, {vr(vf,4)}, {vr(prv,8)}, v{IDX}",
              f"v_smfmac_f32_32x32x32_bf16 {vr(op,16)}, {vr(vf+4,4)}, {vr(prv+8,8)}, v{IDX}"]
        E = [f"v_exp_f32 v{cur+e}, v{cur+e}" for e in range(16)]
        if v in LP: a(f"s_setprio {LP[v]}")
        if v == 5:
            a(f"""
            s_setprio 3
            s_cmp_eq_u32 s{sKH}, 0
            s_cbranch_scc1 L_mid1
            s_nop 4
            """)
            for q in range(4): a(f"ds_write_b128 v{EXA}, {vr(O+4*q,4)} offset:{q*1024}")
            a(f"""
            L_mid1:
            s_waitcnt lgkmcnt(0)
            s_barrier
            s_cmp_lg_u32 s{sKH}, 0
            s_cbranch_scc1 L_mid2
            """)
            norm(24, O, "L_midfail")
            norm2(24)
            a("L_mid2:")
            a("s_setprio 2")
        elif v: a("s_waitcnt lgkmcnt(0)")
        if v == 0: kread(1)
        va, off = tile_addr(v & 3); vb = VF + 8*(v & 1)
        if v == 0:
            a(f"ds_read_b128 {vr(vb,4)}, v{va} offset:{off+2048}")
            a(f"ds_read_b128 {vr(vb+4,4)}, v{va} offset:{off+3072}")
            seq = [M[2]] + E[:6] + [M[3]] + E[6:8] + ["s_waitcnt lgkmcnt(2)", M[0]] + E[8:10] + [M[1], "KREAD"] + E[10:13] + WP[0] + E[13:] + WP[1]
            for l in seq:
                if l == "KREAD": kread(2)
                else: a(l)
            continue
        if v + 2 < 8: kread(v + 2)
        a(f"ds_read_b128 {vr(vb,4)}, v{va} offset:{off+2048}")
        a(f"ds_read_b128 {vr(vb+4,4)}, v{va} offset:{off+3072}")
        sd = {1: {0: WP[2], 1: WP[3], 2: WP[4]}, 2: {0: WP[5], 1: WP[6], 2: WP[7]}}.get(v, {})
        for m in range(4):
            if M[m]: a(M[m])
            for e in E[4*m:4*m+4]: a(e)
            for l in sd.get(m, []): a(l)
    a("s_setprio 0")
    stamp(8)
    poll_issue("s16", 0xff)
    a(f"""
    s_waitcnt lgkmcnt(0)
    v_smfmac_f32_32x32x32_bf16 {vr(O+16,16)}, {vr(VF+8,4)}, {vr(S+48,8)}, v{IDX}
    v_smfmac_f32_32x32x32_bf16 {vr(O+16,16)}, {vr(VF+12,4)}, {vr(S+56,8)}, v{IDX}
    s_cmp_lg_u32 s{sKH}, 0
    s_cbranch_scc1 L_end1
    s_nop 9
    """)
    for q in range(4): a(f"ds_write_b128 v{EXA}, {vr(O+16+4*q,4)} offset:{q*1024}")
    a(f"""
    s_waitcnt vmcnt(3) lgkmcnt(0)
    s_barrier
    s_cmp_eq_u32 s98, 0
    s_cbranch_scc1 L_p3
    s_branch L_fallbackA
    L_midfail:
    s_mov_b32 s98, 1
    s_waitcnt vmcnt(0)
    s_branch L_mid2
    L_end1:
    s_waitcnt vmcnt(1)
    s_barrier
    """)
    norm(S, O+16, "L_fallbackB")
    a("L_norm2:")
    norm2(S)
    a("L_p3:")

def p3():
    OFR = 96; ACC = 16
    quads = list(range(48, 80, 4)) + list(range(88, 96, 4)) + list(range(164, 208, 4)) + list(range(220, 256, 4)) + [80, 84]
    assert len(quads) == 32
    def WQ(t, c): return quads[2*t + c]
    for i in range(8):
        a(f"""
        s_add_u32 s62, s3, {i}
        s_and_b32 s62, s62, 7
        s_lshl_b32 s{54+i}, s62, 11
        s_add_u32 s{54+i}, s{54+i}, s17
        """)
    stamp(9)
    a(f"""
    s_cmp_ge_u32 s23, 28
    s_cbranch_scc1 L_fin
    """)
    def rd(i):
        a(f"""
        s_add_u32 s62, s3, {i}
        s_and_b32 s62, s62, 7
        s_mul_i32 s62, s62, {28*128}
        v_add_u32 v14, s62, v{P3A}
        v_xor_b32 v15, 64, v14
        """)
        for s_ in range(2):
            for c in range(2):
                for eh in range(2):
                    a(f"ds_read_b64_tr_b16 {vr(WQ(2*i+s_, c)+2*eh,2)}, v{14+c} offset:{(16*s_+8*eh)*128}")
    def ld(t): a(f"buffer_load_dwordx4 {vr(OFR+4*t,4)}, v3, {WS_SRD}, s{54+t//2} offen offset:{(t%2)*1024} {SC}")
    NE = val("nearly", 7)
    for i in range(NE): rd(i)
    a(f"""
    s_waitcnt vmcnt(0)
    v_cmp_eq_u64 vcc, s[{TAG}:{TAG+1}], v[{TMP}:{TMP+1}]
    s_nop 1
    s_and_b32 s63, vcc_lo, 0xff
    s_cmp_eq_u32 s63, 0xff
    s_cbranch_scc1 L_op_ok
    """)
    poll_check("L_op", "s16", 0xff, 62, 63)
    stamp(10)
    for t in range(16): ld(t)
    for i in range(NE, 8): rd(i)
    for r in range(ACC, ACC+32): a(f"v_mov_b32 v{r}, 0")
    for k in range(1, 4): a(f"v_xor_b32 v{8+k}, {32*k}, v{PWA}")
    a(f"""
    v_xor_b32 v12, 16, v{PRA}
    s_mov_b32 s62, {SPIN_MAX}
    s_movk_i32 s63, 0xff
    s_mov_b64 s[98:99], -1
    s_waitcnt lgkmcnt(0)
    {"s_mov_b32 s76, 0" if opt("diag") else ""}
    L_pass:
    """)
    for i in range(8):
        B = OFR + 8*i
        a(f"""
        s_bitcmp0_b32 s63, {i}
        s_cbranch_scc1 L_next{i}
        s_waitcnt vmcnt({14-2*i})
        v_max3_u32 v13, v{B}, v{B+3}, v{B+4}
        v_max_u32 v13, v13, v{B+7}
        v_cmp_eq_u32 vcc, -1, v13
        s_nop 1
        s_and_b64 vcc, vcc, s[98:99]
        s_cbranch_scc0 L_go{i}
        """)
        ld(2*i); ld(2*i+1)
        a(f"""
        s_branch L_next{i}
        L_go{i}:
        s_bitset0_b32 s63, {i}
        """)
        for s_ in range(2):
            for c in range(2):
                acc = vr(ACC+16*c, 16)
                a(f"v_mfma_f32_32x32x16_bf16 {acc}, {vr(WQ(2*i+s_, c),4)}, {vr(B+4*s_,4)}, {acc}")
        a(f"L_next{i}:")
    if opt("diag"):
        a("""
        s_cmp_lg_u32 s76, 0
        s_cbranch_scc1 L_diag1
        """)
        stamp(1)
        a("""
        s_bcnt1_i32_b32 s78, s63
        L_diag1:
        s_add_u32 s76, s76, 1
        """)
    a(f"""
    s_cmp_eq_u32 s63, 0
    s_cbranch_scc1 L_passed
    s_sub_u32 s62, s62, 1
    s_cselect_b64 s[98:99], 0, s[98:99]
    s_waitcnt vmcnt(0)
    s_branch L_pass
    L_passed:
    s_mov_b32 s62, {8*1792}
    """)
    stamp(11)
    if opt("xd2"): deadline("L_xd2", val("xd2", 0))
    a("s_nop 10")
    for c in range(2):
        for g in range(4):
            ad = PWA if g == 0 else 8+g
            a(f"ds_write_b128 v{ad}, {vr(ACC+16*c+4*g,4)} offset:{c*128}")
    a("s_waitcnt lgkmcnt(0)")
    a("s_barrier")
    for h8 in range(2):
        for p in range(2):
            for i in range(2):
                a(f"ds_read_b128 {vr(64+16*h8+8*p+4*i,4)}, v{PRA if i == 0 else 12} offset:{h8*2048+p*32768}")
    OS = "" if opt("outplain") else "sc1"
    for h8 in range(2):
        B = 64 + 16*h8
        a(f"s_waitcnt lgkmcnt({4 if h8 == 0 else 0})")
        for r in range(4): a(f"v_pk_add_f32 {vr(B+2*r,2)}, {vr(B+2*r,2)}, {vr(B+8+2*r,2)}")
        for r in range(4): a(f"v_cvt_pk_bf16_f32 v{96+4*h8+r}, v{B+2*r}, v{B+2*r+1}")
        a(f"buffer_store_dwordx4 {vr(96+4*h8,4)}, v{OUTA}, {OUT_SRD}, {'0' if h8 == 0 else 's62'} offen {OS}")
    a("L_fin:")
    if STAMP: a("s_waitcnt vmcnt(0)")
    stamp(12)
    stamp_flush(13)
    a("L_end:")
    a("s_endpgm")

def fallback():
    T = S + 16; K0 = KF; M = S + 35; Q = 16
    a("L_fallbackA:")
    for r in range(8): a(f"v_mov_b32 v{16+r}, v{8+r}")
    a("L_fallbackB:")
    a(f"""
    s_lshl_b32 s58, s{sHD}, 18
    s_mov_b32 s59, 64
    v_mov_b32 v{M}, 0xff800000
    L_fb1:
    buffer_load_dwordx4 {vr(K0,4)}, v3, {WS_SRD}, s58 offen {SC}
    buffer_load_dwordx4 {vr(K0+4,4)}, v3, {WS_SRD}, s58 offen offset:1024 {SC}
    s_waitcnt vmcnt(0)
    v_mfma_f32_32x32x16_bf16 {vr(T,16)}, {vr(K0,4)}, {vr(Q,4)}, 0
    v_mfma_f32_32x32x16_bf16 {vr(T,16)}, {vr(K0+4,4)}, {vr(Q+4,4)}, {vr(T,16)}
    s_add_u32 s58, s58, 4096
    s_sub_u32 s59, s59, 1
    s_nop 15
    """)
    for i in range(8): a(f"v_max3_f32 v{M}, v{M}, v{T+2*i}, v{T+2*i+1}")
    a(f"""
    s_cmp_lg_u32 s59, 0
    s_cbranch_scc1 L_fb1
    v_mov_b32 v{M+1}, v{M}
    s_nop 1
    v_permlane32_swap_b32 v{M}, v{M+1}
    s_nop 1
    v_max_f32 v{M}, v{M}, v{M+1}
    v_sub_f32 v{M}, 0, v{M}
    v_and_b32 v{M+1}, 0xffff0000, v{M}
    v_sub_f32 v{M+2}, v{M}, v{M+1}
    v_and_b32 v{M+3}, 0xffff0000, v{M+2}
    v_sub_f32 v{M+2}, v{M+2}, v{M+3}
    v_lshrrev_b32 v{M+1}, 16, v{M+1}
    v_or_b32 v{M+1}, v{M+1}, v{M+3}
    v_lshrrev_b32 v{M+2}, 16, v{M+2}
    v_cmp_gt_u32 vcc, 32, v2
    s_lshl_b32 s58, s{sHD}, 18
    s_mov_b32 s59, 64
    v_cndmask_b32 v{Q+6}, v{M+1}, v{Q+6}, vcc
    v_cndmask_b32 v{Q+7}, v{M+2}, v{Q+7}, vcc
    """)
    for r in range(16): a(f"v_mov_b32 v{S+r}, 0")
    a(f"""
    L_fb2:
    buffer_load_dwordx4 {vr(K0,4)}, v3, {WS_SRD}, s58 offen {SC}
    buffer_load_dwordx4 {vr(K0+4,4)}, v3, {WS_SRD}, s58 offen offset:1024 {SC}
    buffer_load_dwordx4 {vr(K0+8,4)}, v3, {WS_SRD}, s58 offen offset:2048 {SC}
    buffer_load_dwordx4 {vr(K0+12,4)}, v3, {WS_SRD}, s58 offen offset:3072 {SC}
    s_waitcnt vmcnt(0)
    v_mfma_f32_32x32x16_bf16 {vr(T,16)}, {vr(K0,4)}, {vr(Q,4)}, 0
    v_mfma_f32_32x32x16_bf16 {vr(T,16)}, {vr(K0+4,4)}, {vr(Q+4,4)}, {vr(T,16)}
    s_add_u32 s58, s58, 4096
    s_sub_u32 s59, s59, 1
    s_nop 15
    """)
    for i in range(16): a(f"v_exp_f32 v{T+i}, v{T+i}")
    a(f"""
    s_nop 1
    v_smfmac_f32_32x32x32_bf16 {vr(S,16)}, {vr(K0+8,4)}, {vr(T,8)}, v{IDX}
    v_smfmac_f32_32x32x32_bf16 {vr(S,16)}, {vr(K0+12,4)}, {vr(T+8,8)}, v{IDX}
    s_cmp_lg_u32 s59, 0
    s_cbranch_scc1 L_fb2
    s_nop 15
    v_mov_b32 v{S+32}, v{S+12}
    v_mov_b32 v{S+33}, v{S+12}
    s_nop 1
    v_permlane32_swap_b32 v{S+32}, v{S+33}
    s_nop 1
    v_rcp_f32 v{S+34}, v{S+33}
    s_branch L_norm2
    """)

prologue(); loader(); compute(); attention(); p3(); fallback()
a("L_code_end:")
a(kdesc(N, NV, 102))
hdr = f"; @launch grid=(256,1,1) block=(512,1,1) lds={LDS_BYTES}\n" + '.amdgcn_target "amdgcn-amd-amdhsa--gfx950"\n'
open(sys.argv[1], "w").write(hdr + a.text())
```

```python
import sys, struct
from asmlib import *

KV_OFF = 0
OF_OFF = 8 << 20
FL_OFF = 12 << 20
FO_OFF = (12 << 20) + (256 << 10)
WS_USED = 13 << 20
ST_OFF = 32 << 20
CSCALE = 28 ** -0.5 * 1.4426950408889634
def f2u(x): return struct.unpack("<I", struct.pack("<f", x))[0]
ARGS = sys.argv[2:]
def opt(name): return ("--" + name) in ARGS
def val(name, d): return int(ARGS[ARGS.index("--" + name) + 1]) if opt(name) else d
STAMP = opt("stamp")
N = "concat_heads__softmax_full_mha__mha_block__prompt_kernel"
SC = "sc1"
SPIN_MAX = 100000
SLEEP = val("sleep", 2)

FL2 = val("fl2", 2)
FSH = 3
WR0 = 114688
C0, C1, C2, C3 = 32768, 65536, 98304, 131072
A2 = C3
LDS_BYTES = 163840
def wslot(i): return WR0 + ((i + 2) % 3) * 16384

a = Asm()
def stamp(idx):
    if not STAMP: return
    a(f"""
    s_memtime s[64:65]
    s_memrealtime s[66:67]
    s_waitcnt lgkmcnt(0)
    s_mov_b32 s{70+2*idx}, s64
    s_mov_b32 s{71+2*idx}, s66
    """)
def stamp_flush(n):
    if not STAMP: return
    a(f"""
    s_lshl_b32 s66, s2, 4
    s_add_u32 s66, s66, s27
    s_lshl_b32 s66, s66, 7
    s_add_u32 s66, s66, {ST_OFF}
    s_add_u32 s64, s20, s66
    s_addc_u32 s65, s21, 0
    v_mov_b32 v0, 0
    s_mov_b64 exec, 1
    """)
    for i in range(n):
        a(f"""
        v_mov_b32 v4, s{70+2*i}
        v_mov_b32 v5, s{71+2*i}
        global_store_dwordx2 v0, v[4:5], s[64:65] offset:{8*i}
        s_nop 1
        """)

sB, sJ, sHP, sW, sG, sKH, sHD = 24, 25, 26, 27, 48, 49, 52
X_SRD, W_SRD, WS_SRD, WO_SRD, OUT_SRD = "s[28:31]", "s[32:35]", "s[36:39]", "s[40:43]", "s[44:47]"
TAG = 50
IDX, VA, VC = 4, 5, 6
Q, O, S, KF, VF = 8, 176, 64, 128, 144
TMP = 160
PA, WOA, EXA, EXB, P3A, OUTA, PWA, PRA = 208, 209, 210, 211, 212, 213, 214, 215
NV = 256

def tag_check(lbl, v):
    a(f"""
    s_mov_b32 s53, {SPIN_MAX}
    {lbl}_chk:
    v_readfirstlane_b32 s{TAG}, v{v}
    v_readfirstlane_b32 s{TAG+1}, v{v+1}
    s_nop 1
    s_cmp_lg_u64 s[{TAG}:{TAG+1}], 0
    s_cbranch_scc1 {lbl}_ok
    s_sub_u32 s53, s53, 1
    s_cbranch_scc1 {lbl}_ok
    global_load_dwordx2 v[{v}:{v+1}], v7, s[18:19] {SC}
    s_waitcnt vmcnt(0)
    s_branch {lbl}_chk
    {lbl}_ok:
    """)
def poll_issue(soff, mask):
    a(f"""
    s_mov_b64 exec, {hex(mask)}
    buffer_load_dwordx2 v[{TMP}:{TMP+1}], v{216 if mask == 0xffff else PA}, {WS_SRD}, {soff} offen {SC}
    s_mov_b64 exec, -1
    """)
def prepoll():
    if not opt("pre"): return
    a(f"""
    s_mov_b32 exec_lo, s7
    s_mov_b32 exec_hi, 0
    buffer_load_dwordx2 v[{TMP}:{TMP+1}], v216, {WS_SRD}, s9 offen {SC}
    s_mov_b64 exec, -1
    """)
def poll_read(dst):
    a(f"""
    s_waitcnt vmcnt(0)
    v_cmp_eq_u64 vcc, s[{TAG}:{TAG+1}], v[{TMP}:{TMP+1}]
    s_nop 1
    s_mov_b32 s{dst}, vcc_lo
    """)
def need_bits(lbl, mreg, nreg, soff, mask, va=None):
    a(f"""
    s_and_b32 s53, s{mreg}, s{nreg}
    s_cmp_eq_u32 s53, s{nreg}
    s_cbranch_scc1 {lbl}_ok
    s_mov_b32 s54, {SPIN_MAX}
    {lbl}_spin:
    """)
    poll_issue(soff, mask)
    poll_read(mreg)
    a(f"""
    s_and_b32 s53, s{mreg}, s{nreg}
    s_cmp_eq_u32 s53, s{nreg}
    s_cbranch_scc1 {lbl}_ok
    s_sleep {SLEEP}
    s_sub_u32 s54, s54, 1
    s_cbranch_scc0 {lbl}_spin
    {lbl}_ok:
    """)
def poll_check(lbl, soff, mask, t0=53, t1=54):
    a(f"""
    s_mov_b32 s{t0}, {SPIN_MAX}
    {lbl}_chk:
    s_waitcnt vmcnt(0)
    v_cmp_eq_u64 vcc, s[{TAG}:{TAG+1}], v[{TMP}:{TMP+1}]
    s_nop 1
    s_and_b32 s{t1}, vcc_lo, {hex(mask)}
    s_cmp_eq_u32 s{t1}, {hex(mask)}
    s_cbranch_scc1 {lbl}_ok
    s_sub_u32 s{t0}, s{t0}, 1
    s_cbranch_scc1 {lbl}_ok
    s_sleep {SLEEP}
    """)
    poll_issue(soff, mask)
    a(f"""
    s_branch {lbl}_chk
    {lbl}_ok:
    """)
def flag_store(soff, v=TMP+2):
    a(f"""
    v_mov_b32 v{v}, s{TAG}
    v_mov_b32 v{v+1}, s{TAG+1}
    s_mov_b64 exec, 1
    buffer_store_dwordx2 v[{v}:{v+1}], v7, {WS_SRD}, {soff} offen {SC}
    s_mov_b64 exec, -1
    """)

def prologue():
    a(khead(N))
    a(f"""
    s_cmp_ge_u32 s2, 256
    s_cbranch_scc1 L_end
    """)
    stamp(0)
    if opt("tag0"): a("s_memrealtime s[98:99]")
    for _ in range(val("xpad", 0)): a("s_mov_b32 s3, 0x12345678")
    a(f"""
    s_load_dwordx16 s[4:19], s[0:1], 0
    s_load_dwordx2 s[20:21], s[0:1], 64
    s_and_b32 s22, s2, 7          ; xcd
    s_lshr_b32 s23, s2, 3         ; r
    s_lshr_b32 s{sB}, s22, 2
    s_bfe_u32 s25, s22, 0x10001
    s_lshl_b32 s25, s25, 3
    s_and_b32 s53, s23, 7
    s_add_u32 s{sJ}, s25, s53     ; jj
    s_and_b32 s26, s22, 1
    s_lshl_b32 s26, s26, 2
    s_lshr_b32 s54, s23, 3
    s_add_u32 s{sHP}, s26, s54    ; hp
    s_lshl_b32 s54, s54, 1
    s_add_u32 s54, s54, s53       ; 0..13
    s_sub_u32 s53, s54, 7
    s_cmp_ge_u32 s54, 7
    s_cselect_b32 s54, s53, s54   ; first K chunk
    """)
    RM = val("rotm", 1)
    if RM:
        a("""
        s_lshr_b32 s54, s23, 3
        s_add_u32 s54, s54, s23
        """)
        if RM == 1: a("s_and_b32 s54, s54, 3\ns_lshl_b32 s54, s54, 1")
        if RM == 3: a("s_and_b32 s54, s54, 1\ns_lshl_b32 s54, s54, 2")
        if RM == 2: a("s_and_b32 s54, s54, 3\ns_lshl_b32 s54, s54, 2\ns_lshr_b32 s54, 0x2520, s54\ns_and_b32 s54, s54, 15")
        if RM == 4: a("s_and_b32 s54, s54, 7\ns_lshl_b32 s54, s54, 2\ns_lshr_b32 s54, 0x53164200, s54\ns_and_b32 s54, s54, 15")
    a(f"""
    v_lshrrev_b32 v1, 6, v0
    v_and_b32 v2, 63, v0          ; lane
    v_mov_b32 v7, 0
    v_readfirstlane_b32 s{sW}, v1
    v_lshlrev_b32 v3, 4, v2       ; lane*16
    s_and_b32 s{sG}, s{sW}, 3
    s_lshr_b32 s{sKH}, s{sW}, 2
    s_cmp_eq_u32 s{sKH}, 0
    s_cbranch_scc1 L_compute
    """)

def srd_in():
    a(f"""
    s_waitcnt lgkmcnt(0)
    s_cmp_eq_u32 s{sB}, 0
    s_cselect_b32 s28, s4, s10
    s_cselect_b32 s29, s5, s11
    s_cselect_b32 s32, s6, s12
    s_cselect_b32 s33, s7, s13
    """)
def srd_const():
    a(f"""
    s_mov_b32 s30, 1835008
    s_mov_b32 s31, 0x20000
    s_mov_b32 s34, 1204224
    s_mov_b32 s35, 0x20000
    """)
def srd_rest():
    a(f"""
    s_cmp_eq_u32 s{sB}, 0
    s_mov_b32 s36, s20
    s_mov_b32 s37, s21
    s_mov_b32 s38, {WS_USED}
    s_mov_b32 s39, 0x20000
    s_cselect_b32 s40, s8, s14
    s_cselect_b32 s41, s9, s15
    s_mov_b32 s42, 401408
    s_mov_b32 s43, 0x20000
    s_mov_b32 s44, s16
    s_mov_b32 s45, s17
    s_mov_b32 s46, 3670016
    s_mov_b32 s47, 0x20000
    """)

def setup():
    srd_rest()
    a(f"""
    v_mov_b32 v{IDX}, 0xdddddddd
    s_lshl_b32 s62, s{sB}, 3
    s_add_u32 s62, s62, s{sHP}            ; b*8+hp
    s_lshl_b32 s9, s62, 11
    s_add_u32 s9, s9, {FL_OFF}
    s_lshl_b32 s62, s62, 1                ; b*16 + 2hp
    s_lshr_b32 s63, s{sG}, 1              ; hd
    s_add_u32 s{sHD}, s62, s63
    s_lshl_b32 s7, s63, 14
    s_lshl_b32 s63, s{sKH}, 13
    s_add_u32 s7, s7, s63
    s_add_u32 s7, s7, {C0}
    v_add_u32 v{VC}, s7, v3
    v_add_u32 v{VA}, {C3-C0}, v{VC}
    s_add_u32 s62, s62, s{sKH}
    s_lshl_b32 s4, s62, 6
    s_add_u32 s4, s4, s{sG}
    s_lshl_b32 s4, s4, 12
    s_and_b32 s5, s{sJ}, 8
    s_sub_u32 s5, s5, 1
    {f"s_mov_b32 s5, s{sJ}" if opt("ownrot") else ""}
    s_lshl_b32 s8, s{sW}, 12
    s_lshl_b32 s10, s{sG}, 9
    s_add_u32 s10, s10, s9
    s_lshr_b32 s62, s{sJ}, {FL2}
    s_lshl_b32 s62, s62, {FL2+5}
    s_add_u32 s10, s10, s62
    s_and_b32 s62, s{sJ}, {(1<<FL2)-1}
    s_lshl_b32 s62, s62, 3
    s_add_u32 s10, s10, s62
    s_lshr_b32 s62, s{sW}, 1
    s_lshl_b32 s62, s62, 9
    s_add_u32 s9, s9, s62
    v_lshlrev_b32 v{PA}, 3, v2
    s_mul_i32 s62, s23, 37
    s_lshr_b32 s62, s62, 8                ; r/7
    s_mul_i32 s3, s62, 7
    s_sub_u32 s3, s23, s3                 ; ct
    s_lshl_b32 s12, s22, 2
    s_add_u32 s12, s12, s62
    s_lshl_b32 s12, s12, 2
    s_and_b32 s100, s{sG}, 1
    s_lshl_b32 s100, s100, 1
    s_add_u32 s100, s100, s{sKH}
    s_lshr_b32 s101, s{sG}, 1
    s_add_u32 s12, s12, s100
    v_lshrrev_b32 v{WOA}, 3, v2
    v_and_b32 v{EXA}, 7, v2
    v_bfe_u32 v{EXB}, v2, 4, 1
    v_lshlrev_b32 v{EXB}, 2, v{EXB}
    v_xor_b32 v{EXA}, v{EXA}, v{EXB}
    v_mul_u32_u24 v{WOA}, 896, v{WOA}
    v_lshl_add_u32 v{WOA}, v{EXA}, 4, v{WOA}
    s_mul_i32 s62, s{sG}, {8*896}
    s_mul_i32 s63, s{sKH}, {224*896}
    s_add_u32 s62, s62, s63
    s_lshl_b32 s63, s3, 7
    s_add_u32 s62, s62, s63
    v_add_u32 v{WOA}, s62, v{WOA}
    s_mul_i32 s13, s{sKH}, {C3-C0}
    s_lshl_b32 s62, s{sG}, 10
    s_add_u32 s13, s13, s62
    s_add_u32 s13, s13, {C0}
    s_lshl_b32 s62, s{sW}, 12
    v_add_u32 v{EXA}, s62, v3
    s_xor_b32 s62, s62, 16384
    v_add_u32 v{EXB}, s62, v3
    s_add_u32 s11, s8, {C1}
    s_add_u32 s69, s8, {C2}
    s_lshl_b32 s62, s{sB}, 4
    s_add_u32 s62, s62, s{sJ}
    s_lshl_b32 s62, s62, 1
    s_and_b32 s63, s{sG}, 1
    s_add_u32 s62, s62, s63
    s_lshl_b32 s62, s62, 1
    s_add_u32 s62, s62, s{sKH}
    s_lshl_b32 s62, s62, 4
    s_and_b32 s63, s{sHD}, 15
    s_add_u32 s62, s62, s63
    s_lshl_b32 s15, s62, 3
    s_add_u32 s15, s15, {FO_OFF}
    s_lshl_b32 s14, s62, 11
    s_add_u32 s14, s14, {OF_OFF}
    s_lshl_b32 s16, s12, 7
    s_lshl_b32 s62, s{sKH}, 6
    s_add_u32 s16, s16, s62
    s_add_u32 s16, s16, {FO_OFF}
    s_lshl_b32 s17, s12, 15
    s_lshl_b32 s62, s101, 14
    s_add_u32 s17, s17, s62
    s_add_u32 s17, s17, {OF_OFF}
    v_lshrrev_b32 v216, 5, v2             ; hh
    v_bfe_u32 v217, v2, 2, 2
    v_lshl_add_u32 v{P3A}, v216, 2, v217
    v_lshlrev_b32 v{P3A}, 7, v{P3A}
    v_bfe_u32 v217, v2, 4, 1
    v_lshl_add_u32 v{P3A}, v217, 5, v{P3A}
    v_and_b32 v217, 3, v2
    v_lshl_add_u32 v{P3A}, v217, 3, v{P3A}
    v_bfe_u32 v217, v2, 3, 1
    v_lshl_add_u32 v{P3A}, v217, 6, v{P3A}
    s_mul_i32 s62, s101, {C3-C0}
    s_add_u32 s62, s62, {C0}
    v_add_u32 v{P3A}, s62, v{P3A}
    v_and_b32 v217, 31, v2
    v_and_b32 v218, 7, v2
    v_xor_b32 v218, v216, v218
    v_lshlrev_b32 v218, 4, v218
    v_lshl_add_u32 v{PWA}, v217, 8, v218
    s_lshl_b32 s62, s101, 15
    s_lshl_b32 s63, s100, 13
    s_add_u32 s62, s62, s63
    s_add_u32 s62, s62, {C1}
    v_add_u32 v{PWA}, s62, v{PWA}
    v_lshrrev_b32 v217, 3, v2
    v_and_b32 v218, 7, v2
    v_lshlrev_b32 v219, 1, v218
    v_xor_b32 v219, v219, v217
    v_lshlrev_b32 v219, 4, v219
    v_lshl_add_u32 v{PRA}, v217, 8, v219
    s_lshl_b32 s62, s100, 13
    s_lshl_b32 s63, s101, 12
    s_add_u32 s62, s62, s63
    s_add_u32 s62, s62, {C1}
    v_add_u32 v{PRA}, s62, v{PRA}
    s_and_b32 s62, s12, 63
    s_lshl_b32 s62, s62, 5
    s_lshl_b32 s63, s101, 4
    s_add_u32 s62, s62, s63
    v_add_u32 v217, s62, v217
    v_mul_u32_u24 v217, 1792, v217
    v_lshl_add_u32 v{OUTA}, v218, 4, v217
    s_mul_i32 s62, s{sB}, 896
    s_lshl_b32 s63, s3, 7
    s_add_u32 s62, s62, s63
    v_add_u32 v{OUTA}, s62, v{OUTA}
    s_mov_b32 s68, 0
    v_lshrrev_b32 v217, {FL2}, v2
    v_and_b32 v218, {(1<<FL2)-1}, v2
    v_lshlrev_b32 v218, 3, v218
    v_lshl_add_u32 v216, v217, {FL2+5}, v218
    s_and_b32 s62, s{sJ}, 8
    s_lshl_b32 s7, 15, s62                ; lanes of the flags of the first foreign chunks
    """)
    if not opt("oflags"):
        a(f"""
        s_lshl_b32 s15, s{sB}, 4
        s_add_u32 s15, s15, s{sJ}
        s_lshl_b32 s15, s15, 7
        s_lshl_b32 s62, s{sHP}, 3
        s_add_u32 s15, s15, s62
        s_add_u32 s15, s15, {FO_OFF}
        s_lshr_b32 s16, s12, 2
        s_lshl_b32 s16, s16, 7
        s_add_u32 s16, s16, {FO_OFF}
        v_mov_b32 v220, -1
        v_mov_b32 v221, -1
        v_mov_b32 v222, -1
        v_mov_b32 v223, -1
        """)
    for r in range(O, O+32): a(f"v_mov_b32 v{r}, 0")

def loader():
    a(f"""
    v_lshrrev_b32 v8, 3, v2       ; lane/8
    v_and_b32 v9, 7, v2
    v_lshrrev_b32 v14, 4, v2
    v_xor_b32 v9, v9, v14
    v_xor_b32 v14, 4, v9
    s_lshl_b32 s55, s{sJ}, 7
    s_lshl_b32 s56, s{sG}, 5
    s_add_u32 s55, s55, s56
    s_mul_i32 s55, s55, 896
    v_mul_u32_u24 v8, 896, v8
    v_add_u32 v8, s55, v8
    v_lshl_add_u32 v10, v9, 4, v8
    v_lshl_add_u32 v11, v14, 4, v8
    v_add_u32 v12, {2*6144}, v10
    v_add_u32 v13, {3*6144}, v11
    v_add_u32 v11, {6144}, v11
    s_lshl_b32 s55, s{sG}, 12              ; g*4096
    s_lshl_b32 s57, s54, 7
    s_mov_b32 m0, s55
    s_mul_i32 s58, s54, {64*2688}
    """)
    srd_const()
    a(f"""
    v_lshrrev_b32 v8, 4, v2
    v_and_b32 v9, 15, v2
    v_lshlrev_b32 v20, 2, v8
    v_xor_b32 v9, v9, v20         ; P
    v_lshrrev_b32 v20, 3, v9      ; seg
    v_and_b32 v9, 7, v9
    v_min_u32 v9, 6, v9
    v_mul_u32_u24 v8, 2688, v8
    v_mul_u32_u24 v20, 896, v20
    v_lshlrev_b32 v9, 4, v9
    v_add3_u32 v8, v8, v9, v20
    s_mul_i32 s59, s{sG}, {16*2688}
    s_mul_i32 s60, s{sHP}, 112
    s_add_u32 s59, s59, s60
    s_add_u32 s60, s59, 896
    v_add_u32 v14, s60, v8
    v_add_u32 v15, {4*2688-1024}, v14
    v_add_u32 v16, {2*(4*2688-1024)}, v14
    v_add_u32 v17, {3*(4*2688-1024)}, v14
    """)
    srd_in()
    for q in range(4): a(f"buffer_load_dwordx4 v{10+q}, {X_SRD}, s57 offen offset:{q*1024} {SC} lds")
    def next_c():
        a("""
        s_add_u32 s54, s54, 1
        s_cmp_eq_u32 s54, 7
        s_cselect_b32 s54, 0, s54
        """)
    def item(i):
        if i < 7:
            if i:
                a(f"""
                s_lshl_b32 s57, s54, 7
                s_add_u32 m0, s55, {i*16384}
                s_mul_i32 s58, s54, {64*2688}
                """)
                for q in range(4): a(f"buffer_load_dwordx4 v{10+q}, {X_SRD}, s57 offen offset:{q*1024} {SC} lds")
            a(f"s_add_u32 m0, s55, {wslot(i)}")
            a("s_nop 0")
            for q in range(4): a(f"buffer_load_dwordx4 v{14+q}, {W_SRD}, s58 offen offset:{q*1024} {SC} lds")
            next_c()
        else:
            for d in range(2):
                if 2*(i-7)+d > 6: break
                a(f"""
                s_add_u32 m0, s56, {wslot(i) + d*8192}
                s_mul_i32 s58, s54, {64*2688}
                """)
                for q in range(2): a(f"buffer_load_dwordx4 v{18+q}, {W_SRD}, s58 offen offset:{q*1024} {SC} lds")
                next_c()
    item(0); item(1)
    a(f"""
    v_lshrrev_b32 v8, 3, v2
    v_and_b32 v9, 7, v2
    v_bfe_u32 v20, v2, 4, 1
    v_lshlrev_b32 v20, 2, v20
    v_xor_b32 v9, v9, v20
    v_min_u32 v9, 6, v9
    v_mul_u32_u24 v8, 2688, v8
    v_lshl_add_u32 v8, v9, 4, v8
    v_add_u32 v18, s59, v8
    v_add_u32 v19, {8*2688-1024}, v18
    s_lshl_b32 s56, s{sG}, 11
    """)
    stamp(1)
    cnt = lambda i: 8 if i < 7 else (4 if i < 10 else (2 if i == 10 else 0))
    for k in range(11):
        a(f"s_waitcnt vmcnt({0 if (opt('sfirst') and k == 7) else cnt(k+1)})")
        a("s_barrier")
        if k == 0: stamp(2)
        if opt("sfirst"):
            if k + 2 <= 7: item(k+2)
            if k == 7:
                a("s_barrier")
                item(8); item(9)
            if k == 8: item(10)
        elif k + 2 <= 10: item(k+2)
        if k == 8: setup()
        if k == 9: a(f"global_load_dwordx2 v[{TMP}:{TMP+1}], v7, s[18:19] {SC}")
    tag_check("L_tagl", TMP)
    stamp(3); stamp(4)
    if opt("pre"):
        for _ in range(val("ldelay", 0)): a("s_sleep 2")
    prepoll()
    a(f"""
    s_lshl_b32 s55, s{sG}, 12
    v_add_u32 v{TMP+4}, s55, v3
    s_barrier
    """)
    for i in range(4): a(f"ds_read_b128 {vr(Q+4*i,4)}, v{TMP+4} offset:{i*1024}")
    a("s_branch L_attn")

def compute():
    XA = 24
    WK, WV, WQ = 28, 168, 169
    AK, AV, AQ = (32, 64), (48, 80), (96, 112)
    FB = 128
    PK = 32
    a("L_compute:")
    srd_const(); srd_in()
    if not opt("nocodepf"):
        a(f"""
        s_getpc_b64 s[62:63]
        L_pc:
        s_and_b32 s55, s23, 7
        s_lshl_b32 s55, s55, 2
        s_add_u32 s55, s55, s{sW}
        s_lshl_b32 s55, s55, 10
        v_add_u32 v8, s55, v3
        v_min_u32 v8, L_code_end - L_pc - 16, v8
        global_load_dwordx4 v[164:167], v8, s[62:63]
        """)
    a(f"""
    s_cmp_lg_u32 s2, 0
    s_cbranch_scc1 L_notag
    s_cmp_lg_u32 s{sW}, 0
    s_cbranch_scc1 L_notag
    {"s_mov_b64 s[60:61], s[98:99]" if opt("tag0") else "s_memrealtime s[60:61]"}
    s_waitcnt lgkmcnt(0)
    s_or_b32 s60, s60, 1
    v_mov_b32 v18, s60
    v_mov_b32 v19, s61
    s_mov_b64 exec, 1
    global_store_dwordx2 v7, v[18:19], s[18:19] {SC}
    s_mov_b64 exec, -1
    L_notag:
    v_and_b32 v8, 31, v2          ; m
    v_lshrrev_b32 v9, 5, v2       ; hh
    v_bfe_u32 v10, v2, 1, 3       ; z
    v_xor_b32 v10, v9, v10
    s_and_b32 s55, s{sG}, 1
    s_lshl_b32 s55, s55, 13
    v_lshlrev_b32 v11, 7, v8
    v_add_u32 v11, s55, v11
    v_lshl_add_u32 v{XA}, v10, 4, v11
    v_xor_b32 v12, 2, v10
    v_lshl_add_u32 v{XA+1}, v12, 4, v11
    v_xor_b32 v12, 4, v10
    v_lshl_add_u32 v{XA+2}, v12, 4, v11
    v_xor_b32 v12, 6, v10
    v_lshl_add_u32 v{XA+3}, v12, 4, v11
    v_bfe_u32 v10, v2, 2, 2       ; r
    v_bfe_u32 v11, v2, 4, 1       ; nhalf
    v_and_b32 v12, 3, v2          ; c4
    v_lshl_add_u32 v11, v11, 2, v12
    s_lshr_b32 s55, s{sG}, 1
    s_mul_i32 s55, s55, 7
    v_add_u32 v11, s55, v11       ; u
    v_lshrrev_b32 v12, 1, v11     ; piece
    v_and_b32 v11, 1, v11
    v_lshlrev_b32 v11, 3, v11     ; half*8
    v_lshl_add_u32 v13, v9, 3, v10      ; 8hh + r
    v_lshlrev_b32 v14, 2, v10
    v_xor_b32 v14, v12, v14             ; piece ^ (r<<2)
    v_lshl_add_u32 v14, v14, 4, v11
    v_lshl_add_u32 v14, v13, 8, v14
    v_add_u32 v{WK}, {WR0}, v14
    v_xor_b32 v{WV}, 128, v{WK}
    v_lshrrev_b32 v14, 1, v10
    v_lshlrev_b32 v14, 2, v14
    v_xor_b32 v14, v12, v14             ; piece ^ ((r>>1)<<2)
    v_lshl_add_u32 v14, v14, 4, v11
    v_lshl_add_u32 v14, v13, 7, v14
    v_add_u32 v{WQ}, {WR0}, v14
    v_and_b32 v29, 0x33, v2
    v_bfe_u32 v10, v2, 2, 1
    v_bfe_u32 v11, v2, 3, 1
    v_lshl_or_b32 v29, v10, 3, v29
    v_lshl_or_b32 v29, v11, 2, v29
    v_lshlrev_b32 v29, 4, v29     ; swap23(lane)*16
    v_cmp_gt_u32 s[56:57], 28, v8
    v_cmp_eq_u32 s[58:59], 28, v8
    v_mov_b32 v30, 0x3f803f80
    v_mov_b32 v31, 0x00003f80
    v_cndmask_b32 v1, 0, v30, s[58:59]
    s_lshl_b32 s60, s{sG}, 13
    s_add_u32 s60, s60, {A2}
    v_add_u32 v170, s60, v29
    v_add_u32 v171, s60, v3
    s_lshl_b32 s60, s{sG}, 12
    v_add_u32 v172, s60, v3
    """)
    PT = val("pretouch", 0)
    if PT:
        srd_rest()
        if PT == 1:
            a(f"""
            s_cmp_lg_u32 s{sW}, 1
            s_cbranch_scc1 L_nopt
            s_lshl_b32 s55, s23, 19
            v_lshlrev_b32 v8, 16, v2
            s_mov_b64 exec, 0xff
            buffer_load_dword v224, v8, {WS_SRD}, s55 offen {SC}
            s_lshl_b32 s55, s23, 17
            s_mov_b64 exec, 3
            buffer_load_dword v225, v8, {OUT_SRD}, s55 offen {SC}
            s_mov_b64 exec, -1
            L_nopt:
            """)
        else:
            a(f"""
            s_cmp_lg_u32 s{sW}, 1
            s_cbranch_scc1 L_nopt
            s_lshl_b32 s55, s23, 19
            v_lshlrev_b32 v8, 13, v2
            buffer_load_dword v224, v8, {WS_SRD}, s55 offen {SC}
            s_lshl_b32 s55, s23, 17
            v_lshlrev_b32 v8, 12, v2
            s_mov_b64 exec, 0xffffffff
            buffer_load_dword v225, v8, {OUT_SRD}, s55 offen {SC}
            s_mov_b64 exec, -1
            L_nopt:
            """)
    setup()
    a(f"""
    s_lshl_b32 s55, s{sHD}, 6
    s_lshl_b32 s60, s{sJ}, 2
    s_add_u32 s55, s55, s60
    s_and_b32 s60, s{sG}, 1
    s_lshl_b32 s60, s60, 1
    s_add_u32 s55, s55, s60
    s_lshl_b32 s55, s55, 12       ; KV global offset of this wave's first tile
    s_mov_b32 s60, {hex(f2u(CSCALE))}
    s_mov_b32 s61, s60
    v_cmp_gt_u32 vcc, 32, v2
    """)
    def FB2(t): return (128, 140, 152)[t % 3] if t else 128
    def xoff(i): return (i if i < 4 else i-4) * 16384
    def reads1(t):
        i, s = divmod(t, 4); b = FB + 16*(t & 1); wo = wslot(i) - WR0
        R = [f"ds_read_b128 {vr(b,4)}, v{XA+s} offset:{xoff(i)}"]
        for rd in range(2): R.append(f"ds_read_b64_tr_b16 {vr(b+8+2*rd,2)}, v{WK} offset:{wo+(16*s+4*rd)*256}")
        for rd in range(2): R.append(f"ds_read_b64_tr_b16 {vr(b+12+2*rd,2)}, v{WV} offset:{wo+(16*s+4*rd)*256}")
        R.append(f"ds_read_b128 {vr(b+4,4)}, v{XA+s} offset:{xoff(i)+4096}")
        return R
    def reads2(t):
        i, s = divmod(t, 4); b = FB2(t); wo = wslot(7 + i//2) - WR0 + (i & 1)*8192
        R = [f"ds_read_b128 {vr(b,4)}, v{XA+s} offset:{xoff(i)}"]
        for rd in range(2): R.append(f"ds_read_b64_tr_b16 {vr(b+8+2*rd,2)}, v{WQ} offset:{wo+(16*s+4*rd)*128}")
        R.append(f"ds_read_b128 {vr(b+4,4)}, v{XA+s} offset:{xoff(i)+4096}")
        return R
    def shift(d): return [f"v_add_u32 v{XA+k}, {d & 0xffffffff}, v{XA+k}" for k in range(4)]
    stamp(1)
    a("s_barrier")
    stamp(2)
    for r in reads1(0): a(r)
    for t in range(28):
        i, s = divmod(t, 4); b = FB + 16*(t & 1)
        cin = lambda r: ("0" if t == 0 else vr(r, 16))
        M = [f"v_mfma_f32_32x32x16_bf16 {vr(AK[0],16)}, {vr(b+8,4)}, {vr(b,4)}, {cin(AK[0])}",
             f"v_mfma_f32_32x32x16_bf16 {vr(AV[0],16)}, {vr(b,4)}, {vr(b+12,4)}, {cin(AV[0])}",
             f"v_mfma_f32_32x32x16_bf16 {vr(AK[1],16)}, {vr(b+8,4)}, {vr(b+4,4)}, {cin(AK[1])}",
             f"v_mfma_f32_32x32x16_bf16 {vr(AV[1],16)}, {vr(b+4,4)}, {vr(b+12,4)}, {cin(AV[1])}"]
        R = reads1(t+1) if t < 27 else reads2(0)
        a("s_waitcnt lgkmcnt(0)")
        if s == 3:
            a(M[0])
            if i == 3:
                for l in shift(65536): a(l)
            if i == 6:
                for l in shift(-65536): a(l)
            a("s_barrier")
            for m in range(1, 4):
                for r in R[2*(m-1):2*(m-1)+2]: a(r)
                a(M[m])
        else:
            for m in range(4):
                a(M[m])
                for r in R[2*m:2*m+2]: a(r)
        if t == 17: a(f"global_load_dwordx2 v[174:175], v7, s[18:19] {SC}")
    stamp(3)
    side = []
    for i in range(2):
        for k in range(8): side.append(f"v_cvt_pk_bf16_f32 v{AK[i]+k}, v{AK[i]+2*k}, v{AK[i]+2*k+1}")
        side.append(f"v_cndmask_b32 v{AK[i]+6}, v30, v{AK[i]+6}, vcc")
        side.append(f"v_cndmask_b32 v{AK[i]+7}, v31, v{AK[i]+7}, vcc")
        side.append(f"buffer_store_dwordx4 {vr(AK[i],4)}, v29, {WS_SRD}, s55 offen {SC}")
        side.append(f"buffer_store_dwordx4 {vr(AK[i]+4,4)}, v29, {WS_SRD}, s55 offen offset:1024 {SC}")
        for k in range(8): side.append(f"v_cvt_pk_bf16_f32 v{AV[i]+k}, v{AV[i]+2*k}, v{AV[i]+2*k+1}")
        for k in range(8): side.append(f"v_cndmask_b32 v{AV[i]+k}, v1, v{AV[i]+k}, s[56:57]")
        side.append(f"buffer_store_dwordx4 {vr(AV[i],4)}, v3, {WS_SRD}, s55 offen offset:2048 {SC}")
        side.append(f"buffer_store_dwordx4 {vr(AV[i]+4,4)}, v3, {WS_SRD}, s55 offen offset:3072 {SC}")
        if i == 0: side.append("s_add_u32 s55, s55, 4096")
    PER = val("side", 8)
    if PER >= 100:
        a("s_nop 7")
        for l in side: a(l)
        side = []
        if opt("sfirst"): a("s_barrier")
    lw = []
    for i in range(2):
        lw += [f"ds_write_b128 v170, {vr(AK[i],4)} offset:{4096*i}", f"ds_write_b128 v170, {vr(AK[i]+4,4)} offset:{4096*i+1024}",
               f"ds_write_b128 v171, {vr(AV[i],4)} offset:{4096*i+2048}", f"ds_write_b128 v171, {vr(AV[i]+4,4)} offset:{4096*i+3072}"]
    FT = val("flagt", 22)
    for r in reads2(1): a(r)
    for t in range(28):
        i, s = divmod(t, 4); b = FB2(t)
        cin = lambda r: ("0" if t == 0 else vr(r, 16))
        M = [f"v_mfma_f32_32x32x16_bf16 {vr(AQ[0],16)}, {vr(b+8,4)}, {vr(b,4)}, {cin(AQ[0])}",
             f"v_mfma_f32_32x32x16_bf16 {vr(AQ[1],16)}, {vr(b+8,4)}, {vr(b+4,4)}, {cin(AQ[1])}"]
        R = reads2(t+2) if t+2 < 28 else []
        bar = (t+2) in (8, 16, 24)
        nw = 2 if t >= 25 else 0
        if bar: a("s_waitcnt lgkmcnt(0)")
        else: a(f"s_waitcnt lgkmcnt({(4 if t < 27 else 0) + nw})")
        a(M[0])
        if t+2 == 16:
            for l in shift(65536): a(l)
        if bar: a("s_barrier")
        for r in R: a(r)
        for l in side[:PER//2]: a(l)
        side = side[PER//2:]
        a(M[1])
        for l in side[:PER//2]: a(l)
        side = side[PER//2:]
        if t >= 24:
            for l in lw[2*(t-24):2*(t-24)+2]: a(l)
        if t == FT:
            assert not side
            a("s_waitcnt vmcnt(8)")
            tag_check("L_tagc", 174)
            a("s_waitcnt vmcnt(0)")
            flag_store("s10", 174)
            stamp(4)
    prepoll()
    a("s_nop 7")
    a("s_nop 1")
    for i in range(2):
        A = AQ[i]
        for k in range(8): a(f"v_pk_mul_f32 {vr(A+2*k,2)}, {vr(A+2*k,2)}, s[60:61]")
        QD = Q + 8*i
        for k in range(8): a(f"v_cvt_pk_bf16_f32 v{QD+k}, v{A+2*k}, v{A+2*k+1}")
        a(f"v_cndmask_b32 v{QD+6}, 0, v{QD+6}, vcc")
        a(f"v_cndmask_b32 v{QD+7}, 0, v{QD+7}, vcc")
        a(f"ds_write_b128 v172, {vr(QD,4)} offset:{2048*i}")
        a(f"ds_write_b128 v172, {vr(QD+4,4)} offset:{2048*i+1024}")
    if FT >= 28:
        a("s_waitcnt vmcnt(8)")
        tag_check("L_tagc", 174)
        a("s_waitcnt vmcnt(0)")
        flag_store("s10", 174)
        stamp(4)
    a("""
    s_waitcnt lgkmcnt(0)
    s_barrier
    """)

def tile_addr(t):
    return (VA if t < 2 else VC, (t & 1) * 4096)

def unit(u, kind="loop", side=None, hook=None):
    side = side or {}
    cur = S + 16*(u & 3); nxt = S + 16*((u+1) & 3); prv = S + 16*((u-1) & 3)
    tn = ((u+1) >> 1) & 1; subn = (u+1) & 1
    tp = ((u-1) >> 1) & 1; subp = (u-1) & 1
    kf = KF + 8*tn; vf = VF + 8*tp
    qn = Q + 8*subn; op = O + 16*subp
    M = [f"v_mfma_f32_32x32x16_bf16 {vr(nxt,16)}, {vr(kf,4)}, {vr(qn,4)}, 0",
         f"v_mfma_f32_32x32x16_bf16 {vr(nxt,16)}, {vr(kf+4,4)}, {vr(qn+4,4)}, {vr(nxt,16)}",
         f"v_smfmac_f32_32x32x32_bf16 {vr(op,16)}, {vr(vf,4)}, {vr(prv,8)}, v{IDX}",
         f"v_smfmac_f32_32x32x32_bf16 {vr(op,16)}, {vr(vf+4,4)}, {vr(prv+8,8)}, v{IDX}"]
    E = [f"v_exp_f32 v{cur+e}, v{cur+e}" for e in range(16)]
    t = u >> 1
    if (u & 1) == 0:
        if t < 3 and not (kind == "first" and t == 1):
            va, off = tile_addr(t+1); kb = KF + 8*((t+1) & 1)
            a(f"ds_read_b128 {vr(kb,4)}, v{va} offset:{off}")
            a(f"ds_read_b128 {vr(kb+4,4)}, v{va} offset:{off+1024}")
        va, off = tile_addr(t); vb = VF + 8*(t & 1)
        a(f"ds_read_b128 {vr(vb,4)}, v{va} offset:{off+2048}")
        a(f"ds_read_b128 {vr(vb+4,4)}, v{va} offset:{off+3072}")
    elif not (u == 7 and hook):
        a("s_waitcnt lgkmcnt(0)")
    if kind == "first" and u == 0: M[2] = M[3] = None
    if (kind == "first" and u == 3) or (kind == "last" and u == 7): M[0] = M[1] = None
    if u == 7 and hook:
        H = hook()
        seq = [M[2]] + E[:6] + [M[3]] + E[6:8] + ["s_waitcnt lgkmcnt(0)", M[0]] + E[8:10] + [M[1]]
        k = 0
        for e in range(6):
            n = (len(H) * (e + 1)) // 6
            seq += H[k:n] + [E[10+e]]; k = n
        for l in seq: a(l)
        return
    for m in range(4):
        if M[m]: a(M[m])
        for e in E[4*m:4*m+4]: a(e)
        for l in side.get(m, []): a(l)

def chunk_salu(m0src):
    return ["s_add_u32 s5, s5, 1", "s_and_b32 s5, s5, 15", f"s_cmp_eq_u32 s5, s{sJ}", "s_addc_u32 s5, s5, 0", "s_and_b32 s5, s5, 15",
            "s_lshl_b32 s6, s5, 14", m0src, "s_add_u32 s6, s6, s4"]
def l2pf():
    return []
    return ["s_and_b32 s101, s98, 15", "s_lshl_b32 s101, s101, 14", "s_add_u32 s101, s101, s100", "s_mov_b64 exec, 0xff",
            f"buffer_load_dword v217, v216, {WS_SRD}, s101 offen {SC}", "s_mov_b64 exec, -1", "s_add_u32 s98, s98, 2"]
def piece(q): return f"buffer_load_dwordx4 v3, {WS_SRD}, s6 offen offset:{q*1024} {SC} lds"

def deadline(lbl, ticks):
    a(f"""
    s_add_u32 s53, s{TAG}, {ticks}
    {lbl}:
    s_memrealtime s[60:61]
    s_waitcnt lgkmcnt(0)
    s_sub_u32 s60, s60, s53
    s_cmp_lt_i32 s60, 0
    s_cbranch_scc1 {lbl}
    """)

def attention():
    PU = val("pu", -1); CU_ = val("cu", 0)
    PR = [3, 2, 2, 1, 1, 0, 0, 3]
    def hook():
        a(f"""
        v_xor_b32 v{VA}, {C1 ^ C3}, v{VA}
        v_xor_b32 v{VC}, {C0 ^ C2}, v{VC}
        s_waitcnt vmcnt(0) lgkmcnt(0)
        {"" if opt("xnobar") else "s_barrier"}
        ds_read_b128 {vr(KF,4)}, v{VA}
        ds_read_b128 {vr(KF+4,4)}, v{VA} offset:1024
        """)
        return [f"s_xor_b32 s11, s11, {C1 ^ C3}", f"s_xor_b32 s69, s69, {C0 ^ C2}"] + chunk_salu("s_mov_b32 m0, s11")
    restart = f"""
    s_waitcnt lgkmcnt(0)
    v_mfma_f32_32x32x16_bf16 {vr(S,16)}, {vr(KF,4)}, {vr(Q,4)}, 0
    v_mfma_f32_32x32x16_bf16 {vr(S,16)}, {vr(KF+4,4)}, {vr(Q+4,4)}, {vr(S,16)}
    s_nop 11
    """
    a("L_attn:")
    if opt("xd1"): deadline("L_xd1", val("xd1", 0))
    pend = []
    if opt("pre"):
        poll_read(99)
        need_bits("L_pre", 99, 7, "s9", 0xffff)
        for l in chunk_salu(f"s_add_u32 m0, s8, {C0}") + [piece(q) for q in range(4)]: a(l)
        pend = chunk_salu("s_mov_b32 m0, s11") + [piece(q) for q in range(4)] + chunk_salu("s_mov_b32 m0, s69") + [piece(q) for q in range(4)]
        pend += [f"buffer_store_dwordx4 v[220:223], v3, {WS_SRD}, s14 offen {SC}", f"buffer_store_dwordx4 v[220:223], v3, {WS_SRD}, s14 offen offset:1024 {SC}"]
        PU = CU_ = 99
    if PU < 0: poll_issue("s9", 0xffff)
    a(f"""
    ds_read_b128 {vr(KF,4)}, v{VA}
    ds_read_b128 {vr(KF+4,4)}, v{VA} offset:1024
    """)
    a(restart)
    stamp(5)
    for u in range(4):
        a(f"s_setprio {3-u}")
        sd = {}
        if pend:
            left = (4 - u) * 4
            for m in range(4):
                n = -(-len(pend) // left); sd[m] = pend[:n]; pend = pend[n:]; left -= 1
        unit(u, "first", side=sd)
        if opt("lazy") and not opt("pre") and u == val("cu2", 1):
            a("s_mov_b32 s68, 0xffff")
            need_bits("L_call", 99, 68, "s9", 0xffff)
            a("s_mov_b32 s68, 0")
            pend = pend2
        if u == PU: poll_issue("s9", 0xffff)
        if u == CU_:
            if not opt("lazy"):
                poll_check("L_kvp", "s9", 0xffff)
                for l in chunk_salu(f"s_add_u32 m0, s8, {C0}") + [piece(q) for q in range(4)]: a(l)
            else:
                poll_read(99)
                if opt("pre"):
                    a("""
                    s_cmp_lg_u32 s98, 0
                    s_cbranch_scc1 L_f1b
                    """)
                else:
                    for l in chunk_salu(f"s_add_u32 m0, s8, {C0}"): a(l)
                    a("s_lshl_b32 s68, 1, s5")
                need_bits("L_c1", 99, 68, "s9", 0xffff)
                for q in range(4): a(piece(q))
                a("L_f1b:")
                if opt("repoll"): poll_issue("s9", 0xffff)
            if not opt("c3late"):
                pend = chunk_salu("s_mov_b32 m0, s11") + [piece(q) for q in range(4)] + chunk_salu("s_mov_b32 m0, s69") + [piece(q) for q in range(4)]
                if not opt("oflags"):
                    pend += [f"buffer_store_dwordx4 v[220:223], v3, {WS_SRD}, s14 offen {SC}", f"buffer_store_dwordx4 v[220:223], v3, {WS_SRD}, s14 offen offset:1024 {SC}"]
                if opt("lazy"): pend2, pend = pend, []
            else:
                for l in chunk_salu("s_mov_b32 m0, s11") + [piece(q) for q in range(4)]: a(l)
    a(f"""
    s_waitcnt vmcnt({4 if opt("c3late") else (8 if opt("oflags") else 10)})
    s_barrier
    ds_read_b128 {vr(KF,4)}, v{VC}
    ds_read_b128 {vr(KF+4,4)}, v{VC} offset:1024
    """)
    if opt("c3late"):
        for l in chunk_salu("s_mov_b32 m0, s69") + [piece(q) for q in range(4)]: a(l)
        if not opt("oflags"):
            a(f"buffer_store_dwordx4 v[220:223], v3, {WS_SRD}, s14 offen {SC}")
            a(f"buffer_store_dwordx4 v[220:223], v3, {WS_SRD}, s14 offen offset:1024 {SC}")
    for l in l2pf(): a(l)
    a(restart)
    stamp(6)
    for u in range(4, 8):
        a(f"s_setprio {[2,1,0,3][u-4]}")
        unit(u, "second", hook=hook)
        if opt("pre") and u == val("pall", 5): poll_issue("s9", 0xffff)
    if not opt("oflags"):
        a(f"""
        s_cmp_lg_u32 s{sW}, 0
        s_cbranch_scc1 L_noclean
        """)
        flag_store("s15")
        a("L_noclean:")
    if opt("pre"):
        a(f"""
        v_cmp_eq_u64 vcc, s[{TAG}:{TAG+1}], v[{TMP}:{TMP+1}]
        s_mov_b32 s68, 0xffff
        s_nop 0
        s_mov_b32 s99, vcc_lo
        """)
        need_bits("L_call", 99, 68, "s9", 0xffff)
        a("s_mov_b32 s68, 0")
    stamp(7)
    DM = val("dm", 0)
    P = [piece(q) for q in range(4)]
    C2S = chunk_salu("s_mov_b32 m0, s69")
    if DM == 0:
        sides = {0: {0: [P[0]], 1: [P[1]], 2: [P[2]]}, 1: {0: [P[3]], 1: C2S + [P[0]], 2: [P[1]]}, 2: {0: [P[2]], 1: [P[3]]}}
    elif DM == 1:
        sides = {0: {0: [P[0]], 2: [P[1]]}, 1: {0: [P[2]], 2: [P[3]]}, 2: {0: C2S + [P[0]], 2: [P[1]]}, 3: {0: [P[2]], 2: [P[3]]}}
    else:
        sides = {0: {m: [P[m]] for m in range(4)}, 1: {0: C2S + [P[0]], 1: [P[1]], 2: [P[2]], 3: [P[3]]}}
    sides.setdefault(4 if DM == 1 else 3, {}).setdefault(0, []).extend(l2pf())
    PM = val("pm", 0)
    PRS = {0: {(1,-1): 2, (3,-1): 1, (5,-1): 0, (7,-1): 3},
           1: {(4,-1): 2, (5,-1): 1, (6,-1): 0, (7,-1): 3},
           2: {(5,-1): 2, (6,-1): 1, (6,1): 0, (7,-1): 3},
           3: {(5,1): 2, (6,0): 1, (6,2): 0, (7,-1): 3},
           4: {(6,0): 2, (6,1): 1, (6,2): 0, (7,-1): 3},
           5: {(3,-1): 2, (5,-1): 1, (6,1): 0, (7,-1): 3}}[PM]
    def with_prio(u, sd):
        sd = {m: list(v) for m, v in (sd or {}).items()}
        if (u, -1) in PRS and not opt("noprio"): a(f"s_setprio {PRS[(u,-1)]}")
        for m in range(4):
            if (u, m) in PRS: sd.setdefault(m, []).append(f"s_setprio {PRS[(u,m)]}")
        return sd
    a(".p2align 6")
    a("L_loop:")
    for u in range(8):
        unit(u, side=with_prio(u, sides.get(u)), hook=hook)
    a(f"""
    s_add_u32 s68, s68, 1
    s_cmp_lt_u32 s68, 6
    s_cbranch_scc1 L_loop
    """)
    if opt("xdummy"):
        a(f"s_mov_b32 s68, {val('xdummy', 4)}")
        a("L_dummy:")
        for u in range(8):
            d = 224 + 16*(u & 1); e = 224 + 16*((u+1) & 1)
            a(f"v_mfma_f32_32x32x16_bf16 {vr(e,16)}, {vr(KF,4)}, {vr(Q,4)}, 0")
            for k in range(4): a(f"v_exp_f32 v{d+k}, v{d+k}")
            a(f"v_mfma_f32_32x32x16_bf16 {vr(e,16)}, {vr(KF+4,4)}, {vr(Q+4,4)}, {vr(e,16)}")
            for k in range(4, 8): a(f"v_exp_f32 v{d+k}, v{d+k}")
            a(f"v_smfmac_f32_32x32x32_bf16 {vr(32,16)}, {vr(VF,4)}, {vr(S+48,8)}, v{IDX}")
            for k in range(8, 12): a(f"v_exp_f32 v{d+k}, v{d+k}")
            a(f"v_smfmac_f32_32x32x32_bf16 {vr(32,16)}, {vr(VF+4,4)}, {vr(S+56,8)}, v{IDX}")
            for k in range(12, 16): a(f"v_exp_f32 v{d+k}, v{d+k}")
        a("""
        s_sub_u32 s68, s68, 1
        s_cmp_lg_u32 s68, 0
        s_cbranch_scc1 L_dummy
        """)
    if opt("xspin"):
        a(f"""
        s_memrealtime s[60:61]
        s_waitcnt lgkmcnt(0)
        s_add_u32 s68, s60, {val('xspin', 500)}
        L_xspin:
        s_memrealtime s[60:61]
        s_waitcnt lgkmcnt(0)
        s_cmp_lt_u32 s60, s68
        s_cbranch_scc1 L_xspin
        """)
    WP = []
    for i in range(8):
        WP.append([f"s_add_u32 m0, s13, {i*4096}", f"s_mov_b32 s6, {i*32*896}", f"buffer_load_dwordx4 v{WOA}, {WO_SRD}, s6 offen {SC} lds"])
    def norm(B, own, lblfail):
        for q in range(4): a(f"ds_read_b128 {vr(B+16+4*q,4)}, v{EXB} offset:{q*1024}")
        for q in range(4):
            a(f"s_waitcnt lgkmcnt({3-q})")
            for r in range(2): a(f"v_pk_add_f32 {vr(B+4*q+2*r,2)}, {vr(own+4*q+2*r,2)}, {vr(B+16+4*q+2*r,2)}")
        a(f"""
        v_mov_b32 v{B+32}, v{B+12}
        v_mov_b32 v{B+33}, v{B+12}
        s_mov_b32 s54, 0x2f800000        ; 2^-32
        s_mov_b32 s62, 0x57800000        ; 2^48
        v_permlane32_swap_b32 v{B+32}, v{B+33}
        v_pk_mul_f32 {vr(B+36,2)}, {vr(B,2)}, 0 op_sel_hi:[1,0]
        v_pk_mul_f32 {vr(B+38,2)}, {vr(B+2,2)}, 0 op_sel_hi:[1,0]
        v_rcp_f32 v{B+34}, v{B+33}
        """)
        for r in range(2, 8): a(f"v_pk_fma_f32 {vr(B+36+2*(r&1),2)}, {vr(B+2*r,2)}, 0, {vr(B+36+2*(r&1),2)} op_sel_hi:[1,0,1]")
        a(f"""
        v_pk_add_f32 {vr(B+36,2)}, {vr(B+36,2)}, {vr(B+38,2)}
        v_add_f32 v{B+36}, v{B+36}, v{B+37}
        v_add_f32 v{B+36}, v{B+36}, v{B+33}
        v_cmp_ge_f32 vcc, v{B+36}, s54
        v_cmp_le_f32 s[56:57], v{B+36}, s62
        s_nop 1
        s_and_b64 s[56:57], s[56:57], vcc
        s_cmp_eq_u64 s[56:57], -1
        s_cbranch_scc0 {lblfail}
        """)
    def norm2(B):
        a("v_cmp_gt_u32 vcc, 32, v2")
        for r in range(8): a(f"v_pk_mul_f32 {vr(B+2*r,2)}, {vr(B+2*r,2)}, {vr(B+34,2)} op_sel_hi:[1,0]")
        for i in range(4): a(f"v_cvt_pk_bf16_f32 v{B+16+i}, v{B+2*i}, v{B+2*i+1}")
        a(f"buffer_store_dwordx4 {vr(B+16,4)}, v3, {WS_SRD}, s14 offen {SC}")
        for i in range(4, 8): a(f"v_cvt_pk_bf16_f32 v{B+16+i}, v{B+2*i}, v{B+2*i+1}")
        a(f"v_cndmask_b32 v{B+22}, 0, v{B+22}, vcc")
        a(f"v_cndmask_b32 v{B+23}, 0, v{B+23}, vcc")
        a(f"buffer_store_dwordx4 {vr(B+20,4)}, v3, {WS_SRD}, s14 offen offset:1024 {SC}")
    def kread(v):
        va, off = tile_addr(v & 3); kb = KF + 8*(v & 1)
        a(f"ds_read_b128 {vr(kb,4)}, v{va} offset:{off}")
        a(f"ds_read_b128 {vr(kb+4,4)}, v{va} offset:{off+1024}")
    LP = {1: 2, 3: 1, 4: 0, 5: 2, 6: 1, 7: 0}
    a("s_mov_b32 s98, 0")
    for v in range(8):
        cur = S + 16*(v & 3); nxt = S + 16*((v+1) & 3); prv = S + 16*((v-1) & 3)
        kf = KF + 8*((v+1) & 1); vf = VF + 8*((v-1) & 1)
        qn = Q + 8*((v+1) >> 2); op = O + 16*(1 if v == 0 else ((v-1) >> 2))
        if v < 7:
            M = [f"v_mfma_f32_32x32x16_bf16 {vr(nxt,16)}, {vr(kf,4)}, {vr(qn,4)}, 0",
                 f"v_mfma_f32_32x32x16_bf16 {vr(nxt,16)}, {vr(kf+4,4)}, {vr(qn+4,4)}, {vr(nxt,16)}"]
        else: M = [None, None]
        M += [f"v_smfmac_f32_32x32x32_bf16 {vr(op,16)}, {vr(vf,4)}, {vr(prv,8)}, v{IDX}",
              f"v_smfmac_f32_32x32x32_bf16 {vr(op,16)}, {vr(vf+4,4)}, {vr(prv+8,8)}, v{IDX}"]
        E = [f"v_exp_f32 v{cur+e}, v{cur+e}" for e in range(16)]
        if v in LP: a(f"s_setprio {LP[v]}")
        if v == 5:
            a(f"""
            s_setprio 3
            s_cmp_eq_u32 s{sKH}, 0
            s_cbranch_scc1 L_mid1
            s_nop 4
            """)
            for q in range(4): a(f"ds_write_b128 v{EXA}, {vr(O+4*q,4)} offset:{q*1024}")
            a(f"""
            L_mid1:
            s_waitcnt lgkmcnt(0)
            s_barrier
            s_cmp_lg_u32 s{sKH}, 0
            s_cbranch_scc1 L_mid2
            """)
            norm(24, O, "L_midfail")
            norm2(24)
            a("L_mid2:")
            a("s_setprio 2")
        elif v: a("s_waitcnt lgkmcnt(0)")
        if v == 0: kread(1)
        va, off = tile_addr(v & 3); vb = VF + 8*(v & 1)
        if v == 0:
            a(f"ds_read_b128 {vr(vb,4)}, v{va} offset:{off+2048}")
            a(f"ds_read_b128 {vr(vb+4,4)}, v{va} offset:{off+3072}")
            seq = [M[2]] + E[:6] + [M[3]] + E[6:8] + ["s_waitcnt lgkmcnt(2)", M[0]] + E[8:10] + [M[1], "KREAD"] + E[10:13] + WP[0] + E[13:] + WP[1]
            for l in seq:
                if l == "KREAD": kread(2)
                else: a(l)
            continue
        if v + 2 < 8: kread(v + 2)
        a(f"ds_read_b128 {vr(vb,4)}, v{va} offset:{off+2048}")
        a(f"ds_read_b128 {vr(vb+4,4)}, v{va} offset:{off+3072}")
        sd = {1: {0: WP[2], 1: WP[3], 2: WP[4]}, 2: {0: WP[5], 1: WP[6], 2: WP[7]}}.get(v, {})
        for m in range(4):
            if M[m]: a(M[m])
            for e in E[4*m:4*m+4]: a(e)
            for l in sd.get(m, []): a(l)
    a("s_setprio 0")
    stamp(8)
    poll_issue("s16", 0xff)
    a(f"""
    s_waitcnt lgkmcnt(0)
    v_smfmac_f32_32x32x32_bf16 {vr(O+16,16)}, {vr(VF+8,4)}, {vr(S+48,8)}, v{IDX}
    v_smfmac_f32_32x32x32_bf16 {vr(O+16,16)}, {vr(VF+12,4)}, {vr(S+56,8)}, v{IDX}
    s_cmp_lg_u32 s{sKH}, 0
    s_cbranch_scc1 L_end1
    s_nop 9
    """)
    for q in range(4): a(f"ds_write_b128 v{EXA}, {vr(O+16+4*q,4)} offset:{q*1024}")
    a(f"""
    s_waitcnt vmcnt(3) lgkmcnt(0)
    s_barrier
    s_cmp_eq_u32 s98, 0
    s_cbranch_scc1 L_p3
    s_branch L_fallbackA
    L_midfail:
    s_mov_b32 s98, 1
    s_waitcnt vmcnt(0)
    s_branch L_mid2
    L_end1:
    s_waitcnt vmcnt(1)
    s_barrier
    """)
    norm(S, O+16, "L_fallbackB")
    a("L_norm2:")
    norm2(S)
    a("L_p3:")

def p3():
    OFR = 96; ACC = 16
    quads = list(range(48, 80, 4)) + list(range(88, 96, 4)) + list(range(164, 208, 4)) + list(range(220, 256, 4)) + [80, 84]
    assert len(quads) == 32
    def WQ(t, c): return quads[2*t + c]
    for i in range(8):
        a(f"""
        s_add_u32 s62, s3, {i}
        s_and_b32 s62, s62, 7
        s_lshl_b32 s{54+i}, s62, 11
        s_add_u32 s{54+i}, s{54+i}, s17
        """)
    stamp(9)
    a(f"""
    s_cmp_ge_u32 s23, 28
    s_cbranch_scc1 L_fin
    """)
    def rd(i):
        a(f"""
        s_add_u32 s62, s3, {i}
        s_and_b32 s62, s62, 7
        s_mul_i32 s62, s62, {28*128}
        v_add_u32 v14, s62, v{P3A}
        v_xor_b32 v15, 64, v14
        """)
        for s_ in range(2):
            for c in range(2):
                for eh in range(2):
                    a(f"ds_read_b64_tr_b16 {vr(WQ(2*i+s_, c)+2*eh,2)}, v{14+c} offset:{(16*s_+8*eh)*128}")
    def ld(t): a(f"buffer_load_dwordx4 {vr(OFR+4*t,4)}, v3, {WS_SRD}, s{54+t//2} offen offset:{(t%2)*1024} {SC}")
    NE = val("nearly", 7)
    for i in range(NE): rd(i)
    a(f"""
    s_waitcnt vmcnt(0)
    v_cmp_eq_u64 vcc, s[{TAG}:{TAG+1}], v[{TMP}:{TMP+1}]
    s_nop 1
    s_and_b32 s63, vcc_lo, 0xff
    s_cmp_eq_u32 s63, 0xff
    s_cbranch_scc1 L_op_ok
    """)
    poll_check("L_op", "s16", 0xff, 62, 63)
    stamp(10)
    for t in range(16): ld(t)
    for i in range(NE, 8): rd(i)
    for r in range(ACC, ACC+32): a(f"v_mov_b32 v{r}, 0")
    for k in range(1, 4): a(f"v_xor_b32 v{8+k}, {32*k}, v{PWA}")
    a(f"""
    v_xor_b32 v12, 16, v{PRA}
    s_mov_b32 s62, {SPIN_MAX}
    s_movk_i32 s63, 0xff
    s_mov_b64 s[98:99], -1
    s_waitcnt lgkmcnt(0)
    {"s_mov_b32 s76, 0" if opt("diag") else ""}
    L_pass:
    """)
    for i in range(8):
        B = OFR + 8*i
        a(f"""
        s_bitcmp0_b32 s63, {i}
        s_cbranch_scc1 L_next{i}
        s_waitcnt vmcnt({14-2*i})
        v_max3_u32 v13, v{B}, v{B+3}, v{B+4}
        v_max_u32 v13, v13, v{B+7}
        v_cmp_eq_u32 vcc, -1, v13
        s_nop 1
        s_and_b64 vcc, vcc, s[98:99]
        s_cbranch_scc0 L_go{i}
        """)
        ld(2*i); ld(2*i+1)
        if opt("anyorder"):
            a(f"""
            s_branch L_next{i}
            L_go{i}:
            s_bitset0_b32 s63, {i}
            """)
        else:
            a(f"""
            s_branch L_next{i}
            L_go{i}:
            """)
            if i:
                a(f"""
                s_and_b32 s53, s63, {(1 << i) - 1}
                s_cbranch_scc1 L_next{i}
                """)
            a(f"s_bitset0_b32 s63, {i}")
        for s_ in range(2):
            for c in range(2):
                acc = vr(ACC+16*c, 16)
                a(f"v_mfma_f32_32x32x16_bf16 {acc}, {vr(WQ(2*i+s_, c),4)}, {vr(B+4*s_,4)}, {acc}")
        a(f"L_next{i}:")
    if opt("diag"):
        a("""
        s_cmp_lg_u32 s76, 0
        s_cbranch_scc1 L_diag1
        """)
        stamp(1)
        a("""
        s_bcnt1_i32_b32 s78, s63
        L_diag1:
        s_add_u32 s76, s76, 1
        """)
    a(f"""
    s_cmp_eq_u32 s63, 0
    s_cbranch_scc1 L_passed
    s_sub_u32 s62, s62, 1
    s_cselect_b64 s[98:99], 0, s[98:99]
    s_waitcnt vmcnt(0)
    s_branch L_pass
    L_passed:
    s_mov_b32 s62, {8*1792}
    """)
    stamp(11)
    if opt("xd2"): deadline("L_xd2", val("xd2", 0))
    a("s_nop 10")
    for c in range(2):
        for g in range(4):
            ad = PWA if g == 0 else 8+g
            a(f"ds_write_b128 v{ad}, {vr(ACC+16*c+4*g,4)} offset:{c*128}")
    a("s_waitcnt lgkmcnt(0)")
    a("s_barrier")
    for h8 in range(2):
        for p in range(2):
            for i in range(2):
                a(f"ds_read_b128 {vr(64+16*h8+8*p+4*i,4)}, v{PRA if i == 0 else 12} offset:{h8*2048+p*32768}")
    OS = "" if opt("outplain") else "sc1"
    for h8 in range(2):
        B = 64 + 16*h8
        a(f"s_waitcnt lgkmcnt({4 if h8 == 0 else 0})")
        for r in range(4): a(f"v_pk_add_f32 {vr(B+2*r,2)}, {vr(B+2*r,2)}, {vr(B+8+2*r,2)}")
        for r in range(4): a(f"v_cvt_pk_bf16_f32 v{96+4*h8+r}, v{B+2*r}, v{B+2*r+1}")
        a(f"buffer_store_dwordx4 {vr(96+4*h8,4)}, v{OUTA}, {OUT_SRD}, {'0' if h8 == 0 else 's62'} offen {OS}")
    a("L_fin:")
    if STAMP: a("s_waitcnt vmcnt(0)")
    stamp(12)
    stamp_flush(13)
    a("L_end:")
    a("s_endpgm")

def fallback():
    T = S + 16; K0 = KF; M = S + 35; Q = 16
    a("L_fallbackA:")
    for r in range(8): a(f"v_mov_b32 v{16+r}, v{8+r}")
    a("L_fallbackB:")
    a(f"""
    s_lshl_b32 s58, s{sHD}, 18
    s_mov_b32 s59, 64
    v_mov_b32 v{M}, 0xff800000
    L_fb1:
    buffer_load_dwordx4 {vr(K0,4)}, v3, {WS_SRD}, s58 offen {SC}
    buffer_load_dwordx4 {vr(K0+4,4)}, v3, {WS_SRD}, s58 offen offset:1024 {SC}
    s_waitcnt vmcnt(0)
    v_mfma_f32_32x32x16_bf16 {vr(T,16)}, {vr(K0,4)}, {vr(Q,4)}, 0
    v_mfma_f32_32x32x16_bf16 {vr(T,16)}, {vr(K0+4,4)}, {vr(Q+4,4)}, {vr(T,16)}
    s_add_u32 s58, s58, 4096
    s_sub_u32 s59, s59, 1
    s_nop 15
    """)
    for i in range(8): a(f"v_max3_f32 v{M}, v{M}, v{T+2*i}, v{T+2*i+1}")
    a(f"""
    s_cmp_lg_u32 s59, 0
    s_cbranch_scc1 L_fb1
    v_mov_b32 v{M+1}, v{M}
    s_nop 1
    v_permlane32_swap_b32 v{M}, v{M+1}
    s_nop 1
    v_max_f32 v{M}, v{M}, v{M+1}
    v_sub_f32 v{M}, 0, v{M}
    v_and_b32 v{M+1}, 0xffff0000, v{M}
    v_sub_f32 v{M+2}, v{M}, v{M+1}
    v_and_b32 v{M+3}, 0xffff0000, v{M+2}
    v_sub_f32 v{M+2}, v{M+2}, v{M+3}
    v_lshrrev_b32 v{M+1}, 16, v{M+1}
    v_or_b32 v{M+1}, v{M+1}, v{M+3}
    v_lshrrev_b32 v{M+2}, 16, v{M+2}
    v_cmp_gt_u32 vcc, 32, v2
    s_lshl_b32 s58, s{sHD}, 18
    s_mov_b32 s59, 64
    v_cndmask_b32 v{Q+6}, v{M+1}, v{Q+6}, vcc
    v_cndmask_b32 v{Q+7}, v{M+2}, v{Q+7}, vcc
    """)
    for r in range(16): a(f"v_mov_b32 v{S+r}, 0")
    a(f"""
    L_fb2:
    buffer_load_dwordx4 {vr(K0,4)}, v3, {WS_SRD}, s58 offen {SC}
    buffer_load_dwordx4 {vr(K0+4,4)}, v3, {WS_SRD}, s58 offen offset:1024 {SC}
    buffer_load_dwordx4 {vr(K0+8,4)}, v3, {WS_SRD}, s58 offen offset:2048 {SC}
    buffer_load_dwordx4 {vr(K0+12,4)}, v3, {WS_SRD}, s58 offen offset:3072 {SC}
    s_waitcnt vmcnt(0)
    v_mfma_f32_32x32x16_bf16 {vr(T,16)}, {vr(K0,4)}, {vr(Q,4)}, 0
    v_mfma_f32_32x32x16_bf16 {vr(T,16)}, {vr(K0+4,4)}, {vr(Q+4,4)}, {vr(T,16)}
    s_add_u32 s58, s58, 4096
    s_sub_u32 s59, s59, 1
    s_nop 15
    """)
    for i in range(16): a(f"v_exp_f32 v{T+i}, v{T+i}")
    a(f"""
    s_nop 1
    v_smfmac_f32_32x32x32_bf16 {vr(S,16)}, {vr(K0+8,4)}, {vr(T,8)}, v{IDX}
    v_smfmac_f32_32x32x32_bf16 {vr(S,16)}, {vr(K0+12,4)}, {vr(T+8,8)}, v{IDX}
    s_cmp_lg_u32 s59, 0
    s_cbranch_scc1 L_fb2
    s_nop 15
    v_mov_b32 v{S+32}, v{S+12}
    v_mov_b32 v{S+33}, v{S+12}
    s_nop 1
    v_permlane32_swap_b32 v{S+32}, v{S+33}
    s_nop 1
    v_rcp_f32 v{S+34}, v{S+33}
    s_branch L_norm2
    """)

prologue(); loader(); compute(); attention(); p3(); fallback()
a("L_code_end:")
a(kdesc(N, NV, 102))
hdr = f"; @launch grid=(256,1,1) block=(512,1,1) lds={LDS_BYTES}\n" + '.amdgcn_target "amdgcn-amd-amdhsa--gfx950"\n'
open(sys.argv[1], "w").write(hdr + a.text())
```

```python
import sys, struct
from asmlib import *

KV_OFF = 0
OF_OFF = 8 << 20
FL_OFF = 12 << 20
FO_OFF = (12 << 20) + (256 << 10)
WS_USED = 13 << 20
ST_OFF = 32 << 20
CSCALE = 28 ** -0.5 * 1.4426950408889634
def f2u(x): return struct.unpack("<I", struct.pack("<f", x))[0]
ARGS = sys.argv[2:]
def opt(name): return ("--" + name) in ARGS
def val(name, d): return int(ARGS[ARGS.index("--" + name) + 1]) if opt(name) else d
STAMP = opt("stamp")
N = "concat_heads__softmax_full_mha__mha_block__prompt_kernel"
SC = "sc1"
SPIN_MAX = 100000
SLEEP = val("sleep", 2)

FL2 = val("fl2", 4)
FSH = 3
WR0 = 114688
C0, C1, C2, C3 = 32768, 65536, 98304, 131072
A2 = C3
LDS_BYTES = 163840
def wslot(i): return WR0 + ((i + 2) % 3) * 16384

a = Asm()
def stamp(idx):
    if not STAMP: return
    a(f"""
    s_memtime s[64:65]
    s_memrealtime s[66:67]
    s_waitcnt lgkmcnt(0)
    s_mov_b32 s{70+2*idx}, s64
    s_mov_b32 s{71+2*idx}, s66
    """)
def stamp_flush(n):
    if not STAMP: return
    a(f"""
    s_lshl_b32 s66, s2, 4
    s_add_u32 s66, s66, s27
    s_lshl_b32 s66, s66, 7
    s_add_u32 s66, s66, {ST_OFF}
    s_add_u32 s64, s20, s66
    s_addc_u32 s65, s21, 0
    v_mov_b32 v0, 0
    s_mov_b64 exec, 1
    """)
    for i in range(n):
        a(f"""
        v_mov_b32 v4, s{70+2*i}
        v_mov_b32 v5, s{71+2*i}
        global_store_dwordx2 v0, v[4:5], s[64:65] offset:{8*i}
        s_nop 1
        """)

sB, sJ, sHP, sW, sG, sKH, sHD = 24, 25, 26, 27, 48, 49, 52
X_SRD, W_SRD, WS_SRD, WO_SRD, OUT_SRD = "s[28:31]", "s[32:35]", "s[36:39]", "s[40:43]", "s[44:47]"
TAG = 50
IDX, VA, VC = 4, 5, 6
Q, O, S, KF, VF = 8, 176, 64, 128, 144
TMP = 160
PA, WOA, EXA, EXB, P3A, OUTA, PWA, PRA = 208, 209, 210, 211, 212, 213, 214, 215
NV = 256

def tag_check(lbl, v):
    a(f"""
    s_mov_b32 s53, {SPIN_MAX}
    {lbl}_chk:
    v_readfirstlane_b32 s{TAG}, v{v}
    v_readfirstlane_b32 s{TAG+1}, v{v+1}
    s_nop 1
    s_cmp_lg_u64 s[{TAG}:{TAG+1}], 0
    s_cbranch_scc1 {lbl}_ok
    s_sub_u32 s53, s53, 1
    s_cbranch_scc1 {lbl}_ok
    global_load_dwordx2 v[{v}:{v+1}], v7, s[18:19] {SC}
    s_waitcnt vmcnt(0)
    s_branch {lbl}_chk
    {lbl}_ok:
    """)
def poll_issue(soff, mask):
    a(f"""
    s_mov_b64 exec, {hex(mask)}
    buffer_load_dwordx2 v[{TMP}:{TMP+1}], v{216 if mask == 0xffff else PA}, {WS_SRD}, {soff} offen {SC}
    s_mov_b64 exec, -1
    """)
def prepoll():
    if not opt("pre"): return
    a(f"""
    s_mov_b32 exec_lo, s7
    s_mov_b32 exec_hi, 0
    buffer_load_dwordx2 v[{TMP}:{TMP+1}], v216, {WS_SRD}, s9 offen {SC}
    s_mov_b64 exec, -1
    """)
def poll_read(dst):
    a(f"""
    s_waitcnt vmcnt(0)
    v_cmp_eq_u64 vcc, s[{TAG}:{TAG+1}], v[{TMP}:{TMP+1}]
    s_nop 1
    s_mov_b32 s{dst}, vcc_lo
    """)
def need_bits(lbl, mreg, nreg, soff, mask, va=None):
    a(f"""
    s_and_b32 s53, s{mreg}, s{nreg}
    s_cmp_eq_u32 s53, s{nreg}
    s_cbranch_scc1 {lbl}_ok
    s_mov_b32 s54, {SPIN_MAX}
    {lbl}_spin:
    """)
    poll_issue(soff, mask)
    poll_read(mreg)
    a(f"""
    s_and_b32 s53, s{mreg}, s{nreg}
    s_cmp_eq_u32 s53, s{nreg}
    s_cbranch_scc1 {lbl}_ok
    s_sleep {SLEEP}
    s_sub_u32 s54, s54, 1
    s_cbranch_scc0 {lbl}_spin
    {lbl}_ok:
    """)
def poll_check(lbl, soff, mask, t0=53, t1=54):
    a(f"""
    s_mov_b32 s{t0}, {SPIN_MAX}
    {lbl}_chk:
    s_waitcnt vmcnt(0)
    v_cmp_eq_u64 vcc, s[{TAG}:{TAG+1}], v[{TMP}:{TMP+1}]
    s_nop 1
    s_and_b32 s{t1}, vcc_lo, {hex(mask)}
    s_cmp_eq_u32 s{t1}, {hex(mask)}
    s_cbranch_scc1 {lbl}_ok
    s_sub_u32 s{t0}, s{t0}, 1
    s_cbranch_scc1 {lbl}_ok
    s_sleep {SLEEP}
    """)
    poll_issue(soff, mask)
    a(f"""
    s_branch {lbl}_chk
    {lbl}_ok:
    """)
def flag_store(soff, v=TMP+2):
    a(f"""
    v_mov_b32 v{v}, s{TAG}
    v_mov_b32 v{v+1}, s{TAG+1}
    s_mov_b64 exec, 1
    buffer_store_dwordx2 v[{v}:{v+1}], v7, {WS_SRD}, {soff} offen {SC}
    s_mov_b64 exec, -1
    """)

def prologue():
    a(khead(N))
    a(f"""
    s_cmp_ge_u32 s2, 256
    s_cbranch_scc1 L_end
    """)
    stamp(0)
    if opt("tag0"): a("s_memrealtime s[98:99]")
    for _ in range(val("xpad", 0)): a("s_mov_b32 s3, 0x12345678")
    a(f"""
    s_load_dwordx16 s[4:19], s[0:1], 0
    s_load_dwordx2 s[20:21], s[0:1], 64
    s_and_b32 s22, s2, 7          ; xcd
    s_lshr_b32 s23, s2, 3         ; r
    s_lshr_b32 s{sB}, s22, 2
    s_bfe_u32 s25, s22, 0x10001
    s_lshl_b32 s25, s25, 3
    s_and_b32 s53, s23, 7
    s_add_u32 s{sJ}, s25, s53     ; jj
    s_and_b32 s26, s22, 1
    s_lshl_b32 s26, s26, 2
    s_lshr_b32 s54, s23, 3
    s_add_u32 s{sHP}, s26, s54    ; hp
    s_lshl_b32 s54, s54, 1
    s_add_u32 s54, s54, s53       ; 0..13
    s_sub_u32 s53, s54, 7
    s_cmp_ge_u32 s54, 7
    s_cselect_b32 s54, s53, s54   ; first K chunk
    """)
    RM = val("rotm", 1)
    if RM:
        a("""
        s_lshr_b32 s54, s23, 3
        s_add_u32 s54, s54, s23
        """)
        if RM == 1: a("s_and_b32 s54, s54, 3\ns_lshl_b32 s54, s54, 1")
        if RM == 3: a("s_and_b32 s54, s54, 1\ns_lshl_b32 s54, s54, 2")
        if RM == 2: a("s_and_b32 s54, s54, 3\ns_lshl_b32 s54, s54, 2\ns_lshr_b32 s54, 0x2520, s54\ns_and_b32 s54, s54, 15")
        if RM == 4: a("s_and_b32 s54, s54, 7\ns_lshl_b32 s54, s54, 2\ns_lshr_b32 s54, 0x53164200, s54\ns_and_b32 s54, s54, 15")
    a(f"""
    v_lshrrev_b32 v1, 6, v0
    v_and_b32 v2, 63, v0          ; lane
    v_mov_b32 v7, 0
    v_readfirstlane_b32 s{sW}, v1
    v_lshlrev_b32 v3, 4, v2       ; lane*16
    s_and_b32 s{sG}, s{sW}, 3
    s_lshr_b32 s{sKH}, s{sW}, 2
    s_cmp_eq_u32 s{sKH}, 0
    s_cbranch_scc1 L_compute
    """)

def srd_in():
    a(f"""
    s_waitcnt lgkmcnt(0)
    s_cmp_eq_u32 s{sB}, 0
    s_cselect_b32 s28, s4, s10
    s_cselect_b32 s29, s5, s11
    s_cselect_b32 s32, s6, s12
    s_cselect_b32 s33, s7, s13
    """)
def srd_const():
    a(f"""
    s_mov_b32 s30, 1835008
    s_mov_b32 s31, 0x20000
    s_mov_b32 s34, 1204224
    s_mov_b32 s35, 0x20000
    """)
def srd_rest():
    a(f"""
    s_cmp_eq_u32 s{sB}, 0
    s_mov_b32 s36, s20
    s_mov_b32 s37, s21
    s_mov_b32 s38, {WS_USED}
    s_mov_b32 s39, 0x20000
    s_cselect_b32 s40, s8, s14
    s_cselect_b32 s41, s9, s15
    s_mov_b32 s42, 401408
    s_mov_b32 s43, 0x20000
    s_mov_b32 s44, s16
    s_mov_b32 s45, s17
    s_mov_b32 s46, 3670016
    s_mov_b32 s47, 0x20000
    """)

def setup():
    srd_rest()
    a(f"""
    v_mov_b32 v{IDX}, 0xdddddddd
    s_lshl_b32 s62, s{sB}, 3
    s_add_u32 s62, s62, s{sHP}            ; b*8+hp
    s_lshl_b32 s9, s62, 11
    s_add_u32 s9, s9, {FL_OFF}
    s_lshl_b32 s62, s62, 1                ; b*16 + 2hp
    s_lshr_b32 s63, s{sG}, 1              ; hd
    s_add_u32 s{sHD}, s62, s63
    s_lshl_b32 s7, s63, 14
    s_lshl_b32 s63, s{sKH}, 13
    s_add_u32 s7, s7, s63
    s_add_u32 s7, s7, {C0}
    v_add_u32 v{VC}, s7, v3
    v_add_u32 v{VA}, {C3-C0}, v{VC}
    s_add_u32 s62, s62, s{sKH}
    s_lshl_b32 s4, s62, 6
    s_add_u32 s4, s4, s{sG}
    s_lshl_b32 s4, s4, 12
    s_and_b32 s5, s{sJ}, 8
    s_sub_u32 s5, s5, 1
    {f"s_mov_b32 s5, s{sJ}" if opt("ownrot") else ""}
    s_lshl_b32 s8, s{sW}, 12
    s_lshl_b32 s10, s{sG}, 9
    s_add_u32 s10, s10, s9
    s_lshr_b32 s62, s{sJ}, {FL2}
    s_lshl_b32 s62, s62, {FL2+5}
    s_add_u32 s10, s10, s62
    s_and_b32 s62, s{sJ}, {(1<<FL2)-1}
    s_lshl_b32 s62, s62, 3
    s_add_u32 s10, s10, s62
    s_lshr_b32 s62, s{sW}, 1
    s_lshl_b32 s62, s62, 9
    s_add_u32 s9, s9, s62
    v_lshlrev_b32 v{PA}, 3, v2
    s_mul_i32 s62, s23, 37
    s_lshr_b32 s62, s62, 8                ; r/7
    s_mul_i32 s3, s62, 7
    s_sub_u32 s3, s23, s3                 ; ct
    s_lshl_b32 s12, s22, 2
    s_add_u32 s12, s12, s62
    s_lshl_b32 s12, s12, 2
    s_and_b32 s100, s{sG}, 1
    s_lshl_b32 s100, s100, 1
    s_add_u32 s100, s100, s{sKH}
    s_lshr_b32 s101, s{sG}, 1
    s_add_u32 s12, s12, s100
    v_lshrrev_b32 v{WOA}, 3, v2
    v_and_b32 v{EXA}, 7, v2
    v_bfe_u32 v{EXB}, v2, 4, 1
    v_lshlrev_b32 v{EXB}, 2, v{EXB}
    v_xor_b32 v{EXA}, v{EXA}, v{EXB}
    v_mul_u32_u24 v{WOA}, 896, v{WOA}
    v_lshl_add_u32 v{WOA}, v{EXA}, 4, v{WOA}
    s_mul_i32 s62, s{sG}, {8*896}
    s_mul_i32 s63, s{sKH}, {224*896}
    s_add_u32 s62, s62, s63
    s_lshl_b32 s63, s3, 7
    s_add_u32 s62, s62, s63
    v_add_u32 v{WOA}, s62, v{WOA}
    s_mul_i32 s13, s{sKH}, {C3-C0}
    s_lshl_b32 s62, s{sG}, 10
    s_add_u32 s13, s13, s62
    s_add_u32 s13, s13, {C0}
    s_lshl_b32 s62, s{sW}, 12
    v_add_u32 v{EXA}, s62, v3
    s_xor_b32 s62, s62, 16384
    v_add_u32 v{EXB}, s62, v3
    s_add_u32 s11, s8, {C1}
    s_add_u32 s69, s8, {C2}
    s_lshl_b32 s62, s{sB}, 4
    s_add_u32 s62, s62, s{sJ}
    s_lshl_b32 s62, s62, 1
    s_and_b32 s63, s{sG}, 1
    s_add_u32 s62, s62, s63
    s_lshl_b32 s62, s62, 1
    s_add_u32 s62, s62, s{sKH}
    s_lshl_b32 s62, s62, 4
    s_and_b32 s63, s{sHD}, 15
    s_add_u32 s62, s62, s63
    s_lshl_b32 s15, s62, 3
    s_add_u32 s15, s15, {FO_OFF}
    s_lshl_b32 s14, s62, 11
    s_add_u32 s14, s14, {OF_OFF}
    s_lshl_b32 s16, s12, 7
    s_lshl_b32 s62, s{sKH}, 6
    s_add_u32 s16, s16, s62
    s_add_u32 s16, s16, {FO_OFF}
    s_lshl_b32 s17, s12, 15
    s_lshl_b32 s62, s101, 14
    s_add_u32 s17, s17, s62
    s_add_u32 s17, s17, {OF_OFF}
    v_lshrrev_b32 v216, 5, v2             ; hh
    v_bfe_u32 v217, v2, 2, 2
    v_lshl_add_u32 v{P3A}, v216, 2, v217
    v_lshlrev_b32 v{P3A}, 7, v{P3A}
    v_bfe_u32 v217, v2, 4, 1
    v_lshl_add_u32 v{P3A}, v217, 5, v{P3A}
    v_and_b32 v217, 3, v2
    v_lshl_add_u32 v{P3A}, v217, 3, v{P3A}
    v_bfe_u32 v217, v2, 3, 1
    v_lshl_add_u32 v{P3A}, v217, 6, v{P3A}
    s_mul_i32 s62, s101, {C3-C0}
    s_add_u32 s62, s62, {C0}
    v_add_u32 v{P3A}, s62, v{P3A}
    v_and_b32 v217, 31, v2
    v_and_b32 v218, 7, v2
    v_xor_b32 v218, v216, v218
    v_lshlrev_b32 v218, 4, v218
    v_lshl_add_u32 v{PWA}, v217, 8, v218
    s_lshl_b32 s62, s101, 15
    s_lshl_b32 s63, s100, 13
    s_add_u32 s62, s62, s63
    s_add_u32 s62, s62, {C1}
    v_add_u32 v{PWA}, s62, v{PWA}
    v_lshrrev_b32 v217, 3, v2
    v_and_b32 v218, 7, v2
    v_lshlrev_b32 v219, 1, v218
    v_xor_b32 v219, v219, v217
    v_lshlrev_b32 v219, 4, v219
    v_lshl_add_u32 v{PRA}, v217, 8, v219
    s_lshl_b32 s62, s100, 13
    s_lshl_b32 s63, s101, 12
    s_add_u32 s62, s62, s63
    s_add_u32 s62, s62, {C1}
    v_add_u32 v{PRA}, s62, v{PRA}
    s_and_b32 s62, s12, 63
    s_lshl_b32 s62, s62, 5
    s_lshl_b32 s63, s101, 4
    s_add_u32 s62, s62, s63
    v_add_u32 v217, s62, v217
    v_mul_u32_u24 v217, 1792, v217
    v_lshl_add_u32 v{OUTA}, v218, 4, v217
    s_mul_i32 s62, s{sB}, 896
    s_lshl_b32 s63, s3, 7
    s_add_u32 s62, s62, s63
    v_add_u32 v{OUTA}, s62, v{OUTA}
    s_mov_b32 s68, 0
    v_lshrrev_b32 v217, {FL2}, v2
    v_and_b32 v218, {(1<<FL2)-1}, v2
    v_lshlrev_b32 v218, 3, v218
    v_lshl_add_u32 v216, v217, {FL2+5}, v218
    s_and_b32 s62, s{sJ}, 8
    s_lshl_b32 s7, 15, s62                ; lanes of the flags of the first foreign chunks
    """)
    if not opt("oflags"):
        a(f"""
        s_lshl_b32 s15, s{sB}, 4
        s_add_u32 s15, s15, s{sJ}
        s_lshl_b32 s15, s15, 7
        s_lshl_b32 s62, s{sHP}, 3
        s_add_u32 s15, s15, s62
        s_add_u32 s15, s15, {FO_OFF}
        s_lshr_b32 s16, s12, 2
        s_lshl_b32 s16, s16, 7
        s_add_u32 s16, s16, {FO_OFF}
        v_mov_b32 v220, -1
        v_mov_b32 v221, -1
        v_mov_b32 v222, -1
        v_mov_b32 v223, -1
        """)
    for r in range(O, O+32): a(f"v_mov_b32 v{r}, 0")

def loader():
    a(f"""
    v_lshrrev_b32 v8, 3, v2       ; lane/8
    v_and_b32 v9, 7, v2
    v_lshrrev_b32 v14, 4, v2
    v_xor_b32 v9, v9, v14
    v_xor_b32 v14, 4, v9
    s_lshl_b32 s55, s{sJ}, 7
    s_lshl_b32 s56, s{sG}, 5
    s_add_u32 s55, s55, s56
    s_mul_i32 s55, s55, 896
    v_mul_u32_u24 v8, 896, v8
    v_add_u32 v8, s55, v8
    v_lshl_add_u32 v10, v9, 4, v8
    v_lshl_add_u32 v11, v14, 4, v8
    v_add_u32 v12, {2*6144}, v10
    v_add_u32 v13, {3*6144}, v11
    v_add_u32 v11, {6144}, v11
    s_lshl_b32 s55, s{sG}, 12              ; g*4096
    s_lshl_b32 s57, s54, 7
    s_mov_b32 m0, s55
    s_mul_i32 s58, s54, {64*2688}
    """)
    srd_const()
    a(f"""
    v_lshrrev_b32 v8, 4, v2
    v_and_b32 v9, 15, v2
    v_lshlrev_b32 v20, 2, v8
    v_xor_b32 v9, v9, v20         ; P
    v_lshrrev_b32 v20, 3, v9      ; seg
    v_and_b32 v9, 7, v9
    v_min_u32 v9, 6, v9
    v_mul_u32_u24 v8, 2688, v8
    v_mul_u32_u24 v20, 896, v20
    v_lshlrev_b32 v9, 4, v9
    v_add3_u32 v8, v8, v9, v20
    s_mul_i32 s59, s{sG}, {16*2688}
    s_mul_i32 s60, s{sHP}, 112
    s_add_u32 s59, s59, s60
    s_add_u32 s60, s59, 896
    v_add_u32 v14, s60, v8
    v_add_u32 v15, {4*2688-1024}, v14
    v_add_u32 v16, {2*(4*2688-1024)}, v14
    v_add_u32 v17, {3*(4*2688-1024)}, v14
    """)
    srd_in()
    for q in range(4): a(f"buffer_load_dwordx4 v{10+q}, {X_SRD}, s57 offen offset:{q*1024} {SC} lds")
    def next_c():
        a("""
        s_add_u32 s54, s54, 1
        s_cmp_eq_u32 s54, 7
        s_cselect_b32 s54, 0, s54
        """)
    def item(i):
        if i < 7:
            if i:
                a(f"""
                s_lshl_b32 s57, s54, 7
                s_add_u32 m0, s55, {i*16384}
                s_mul_i32 s58, s54, {64*2688}
                """)
                for q in range(4): a(f"buffer_load_dwordx4 v{10+q}, {X_SRD}, s57 offen offset:{q*1024} {SC} lds")
            a(f"s_add_u32 m0, s55, {wslot(i)}")
            a("s_nop 0")
            for q in range(4): a(f"buffer_load_dwordx4 v{14+q}, {W_SRD}, s58 offen offset:{q*1024} {SC} lds")
            next_c()
        else:
            for d in range(2):
                if 2*(i-7)+d > 6: break
                a(f"""
                s_add_u32 m0, s56, {wslot(i) + d*8192}
                s_mul_i32 s58, s54, {64*2688}
                """)
                for q in range(2): a(f"buffer_load_dwordx4 v{18+q}, {W_SRD}, s58 offen offset:{q*1024} {SC} lds")
                next_c()
    item(0); item(1)
    a(f"""
    v_lshrrev_b32 v8, 3, v2
    v_and_b32 v9, 7, v2
    v_bfe_u32 v20, v2, 4, 1
    v_lshlrev_b32 v20, 2, v20
    v_xor_b32 v9, v9, v20
    v_min_u32 v9, 6, v9
    v_mul_u32_u24 v8, 2688, v8
    v_lshl_add_u32 v8, v9, 4, v8
    v_add_u32 v18, s59, v8
    v_add_u32 v19, {8*2688-1024}, v18
    s_lshl_b32 s56, s{sG}, 11
    """)
    stamp(1)
    cnt = lambda i: 8 if i < 7 else (4 if i < 10 else (2 if i == 10 else 0))
    for k in range(11):
        a(f"s_waitcnt vmcnt({0 if (opt('sfirst') and k == 7) else cnt(k+1)})")
        a("s_barrier")
        if k == 0: stamp(2)
        if opt("sfirst"):
            if k + 2 <= 7: item(k+2)
            if k == 7:
                a("s_barrier")
                item(8); item(9)
            if k == 8: item(10)
        elif k + 2 <= 10: item(k+2)
        if k == 8: setup()
        if k == 9: a(f"global_load_dwordx2 v[{TMP}:{TMP+1}], v7, s[18:19] {SC}")
    tag_check("L_tagl", TMP)
    stamp(3); stamp(4)
    if opt("pre"):
        for _ in range(val("ldelay", 0)): a("s_sleep 2")
    prepoll()
    a(f"""
    s_lshl_b32 s55, s{sG}, 12
    v_add_u32 v{TMP+4}, s55, v3
    s_barrier
    """)
    for i in range(4): a(f"ds_read_b128 {vr(Q+4*i,4)}, v{TMP+4} offset:{i*1024}")
    a("s_branch L_attn")

def compute():
    XA = 24
    WK, WV, WQ = 28, 168, 169
    AK, AV, AQ = (32, 64), (48, 80), (96, 112)
    FB = 128
    PK = 32
    a("L_compute:")
    srd_const(); srd_in()
    if not opt("nocodepf"):
        a(f"""
        s_getpc_b64 s[62:63]
        L_pc:
        s_and_b32 s55, s23, 7
        s_lshl_b32 s55, s55, 2
        s_add_u32 s55, s55, s{sW}
        s_lshl_b32 s55, s55, 10
        v_add_u32 v8, s55, v3
        v_min_u32 v8, L_code_end - L_pc - 16, v8
        global_load_dwordx4 v[164:167], v8, s[62:63]
        """)
    a(f"""
    s_cmp_lg_u32 s2, 0
    s_cbranch_scc1 L_notag
    s_cmp_lg_u32 s{sW}, 0
    s_cbranch_scc1 L_notag
    {"s_mov_b64 s[60:61], s[98:99]" if opt("tag0") else "s_memrealtime s[60:61]"}
    s_waitcnt lgkmcnt(0)
    s_or_b32 s60, s60, 1
    v_mov_b32 v18, s60
    v_mov_b32 v19, s61
    s_mov_b64 exec, 1
    global_store_dwordx2 v7, v[18:19], s[18:19] {SC}
    s_mov_b64 exec, -1
    L_notag:
    v_and_b32 v8, 31, v2          ; m
    v_lshrrev_b32 v9, 5, v2       ; hh
    v_bfe_u32 v10, v2, 1, 3       ; z
    v_xor_b32 v10, v9, v10
    s_and_b32 s55, s{sG}, 1
    s_lshl_b32 s55, s55, 13
    v_lshlrev_b32 v11, 7, v8
    v_add_u32 v11, s55, v11
    v_lshl_add_u32 v{XA}, v10, 4, v11
    v_xor_b32 v12, 2, v10
    v_lshl_add_u32 v{XA+1}, v12, 4, v11
    v_xor_b32 v12, 4, v10
    v_lshl_add_u32 v{XA+2}, v12, 4, v11
    v_xor_b32 v12, 6, v10
    v_lshl_add_u32 v{XA+3}, v12, 4, v11
    v_bfe_u32 v10, v2, 2, 2       ; r
    v_bfe_u32 v11, v2, 4, 1       ; nhalf
    v_and_b32 v12, 3, v2          ; c4
    v_lshl_add_u32 v11, v11, 2, v12
    s_lshr_b32 s55, s{sG}, 1
    s_mul_i32 s55, s55, 7
    v_add_u32 v11, s55, v11       ; u
    v_lshrrev_b32 v12, 1, v11     ; piece
    v_and_b32 v11, 1, v11
    v_lshlrev_b32 v11, 3, v11     ; half*8
    v_lshl_add_u32 v13, v9, 3, v10      ; 8hh + r
    v_lshlrev_b32 v14, 2, v10
    v_xor_b32 v14, v12, v14             ; piece ^ (r<<2)
    v_lshl_add_u32 v14, v14, 4, v11
    v_lshl_add_u32 v14, v13, 8, v14
    v_add_u32 v{WK}, {WR0}, v14
    v_xor_b32 v{WV}, 128, v{WK}
    v_lshrrev_b32 v14, 1, v10
    v_lshlrev_b32 v14, 2, v14
    v_xor_b32 v14, v12, v14             ; piece ^ ((r>>1)<<2)
    v_lshl_add_u32 v14, v14, 4, v11
    v_lshl_add_u32 v14, v13, 7, v14
    v_add_u32 v{WQ}, {WR0}, v14
    v_and_b32 v29, 0x33, v2
    v_bfe_u32 v10, v2, 2, 1
    v_bfe_u32 v11, v2, 3, 1
    v_lshl_or_b32 v29, v10, 3, v29
    v_lshl_or_b32 v29, v11, 2, v29
    v_lshlrev_b32 v29, 4, v29     ; swap23(lane)*16
    v_cmp_gt_u32 s[56:57], 28, v8
    v_cmp_eq_u32 s[58:59], 28, v8
    v_mov_b32 v30, 0x3f803f80
    v_mov_b32 v31, 0x00003f80
    v_cndmask_b32 v1, 0, v30, s[58:59]
    s_lshl_b32 s60, s{sG}, 13
    s_add_u32 s60, s60, {A2}
    v_add_u32 v170, s60, v29
    v_add_u32 v171, s60, v3
    s_lshl_b32 s60, s{sG}, 12
    v_add_u32 v172, s60, v3
    """)
    PT = val("pretouch", 0)
    if PT:
        srd_rest()
        if PT == 1:
            a(f"""
            s_cmp_lg_u32 s{sW}, 1
            s_cbranch_scc1 L_nopt
            s_lshl_b32 s55, s23, 19
            v_lshlrev_b32 v8, 16, v2
            s_mov_b64 exec, 0xff
            buffer_load_dword v224, v8, {WS_SRD}, s55 offen {SC}
            s_lshl_b32 s55, s23, 17
            s_mov_b64 exec, 3
            buffer_load_dword v225, v8, {OUT_SRD}, s55 offen {SC}
            s_mov_b64 exec, -1
            L_nopt:
            """)
        else:
            a(f"""
            s_cmp_lg_u32 s{sW}, 1
            s_cbranch_scc1 L_nopt
            s_lshl_b32 s55, s23, 19
            v_lshlrev_b32 v8, 13, v2
            buffer_load_dword v224, v8, {WS_SRD}, s55 offen {SC}
            s_lshl_b32 s55, s23, 17
            v_lshlrev_b32 v8, 12, v2
            s_mov_b64 exec, 0xffffffff
            buffer_load_dword v225, v8, {OUT_SRD}, s55 offen {SC}
            s_mov_b64 exec, -1
            L_nopt:
            """)
    setup()
    a(f"""
    s_lshl_b32 s55, s{sHD}, 6
    s_lshl_b32 s60, s{sJ}, 2
    s_add_u32 s55, s55, s60
    s_and_b32 s60, s{sG}, 1
    s_lshl_b32 s60, s60, 1
    s_add_u32 s55, s55, s60
    s_lshl_b32 s55, s55, 12       ; KV global offset of this wave's first tile
    s_mov_b32 s60, {hex(f2u(CSCALE))}
    s_mov_b32 s61, s60
    v_cmp_gt_u32 vcc, 32, v2
    """)
    def FB2(t): return (128, 140, 152)[t % 3] if t else 128
    def xoff(i): return (i if i < 4 else i-4) * 16384
    def reads1(t):
        i, s = divmod(t, 4); b = FB + 16*(t & 1); wo = wslot(i) - WR0
        R = [f"ds_read_b128 {vr(b,4)}, v{XA+s} offset:{xoff(i)}"]
        for rd in range(2): R.append(f"ds_read_b64_tr_b16 {vr(b+8+2*rd,2)}, v{WK} offset:{wo+(16*s+4*rd)*256}")
        for rd in range(2): R.append(f"ds_read_b64_tr_b16 {vr(b+12+2*rd,2)}, v{WV} offset:{wo+(16*s+4*rd)*256}")
        R.append(f"ds_read_b128 {vr(b+4,4)}, v{XA+s} offset:{xoff(i)+4096}")
        return R
    def reads2(t):
        i, s = divmod(t, 4); b = FB2(t); wo = wslot(7 + i//2) - WR0 + (i & 1)*8192
        R = [f"ds_read_b128 {vr(b,4)}, v{XA+s} offset:{xoff(i)}"]
        for rd in range(2): R.append(f"ds_read_b64_tr_b16 {vr(b+8+2*rd,2)}, v{WQ} offset:{wo+(16*s+4*rd)*128}")
        R.append(f"ds_read_b128 {vr(b+4,4)}, v{XA+s} offset:{xoff(i)+4096}")
        return R
    def shift(d): return [f"v_add_u32 v{XA+k}, {d & 0xffffffff}, v{XA+k}" for k in range(4)]
    stamp(1)
    a("s_barrier")
    stamp(2)
    for r in reads1(0): a(r)
    for t in range(28):
        i, s = divmod(t, 4); b = FB + 16*(t & 1)
        cin = lambda r: ("0" if t == 0 else vr(r, 16))
        M = [f"v_mfma_f32_32x32x16_bf16 {vr(AK[0],16)}, {vr(b+8,4)}, {vr(b,4)}, {cin(AK[0])}",
             f"v_mfma_f32_32x32x16_bf16 {vr(AV[0],16)}, {vr(b,4)}, {vr(b+12,4)}, {cin(AV[0])}",
             f"v_mfma_f32_32x32x16_bf16 {vr(AK[1],16)}, {vr(b+8,4)}, {vr(b+4,4)}, {cin(AK[1])}",
             f"v_mfma_f32_32x32x16_bf16 {vr(AV[1],16)}, {vr(b+4,4)}, {vr(b+12,4)}, {cin(AV[1])}"]
        R = reads1(t+1) if t < 27 else reads2(0)
        a("s_waitcnt lgkmcnt(0)")
        if s == 3:
            a(M[0])
            if i == 3:
                for l in shift(65536): a(l)
            if i == 6:
                for l in shift(-65536): a(l)
            a("s_barrier")
            for m in range(1, 4):
                for r in R[2*(m-1):2*(m-1)+2]: a(r)
                a(M[m])
        else:
            for m in range(4):
                a(M[m])
                for r in R[2*m:2*m+2]: a(r)
        if t == 17: a(f"global_load_dwordx2 v[174:175], v7, s[18:19] {SC}")
    stamp(3)
    side = []
    for i in range(2):
        for k in range(8): side.append(f"v_cvt_pk_bf16_f32 v{AK[i]+k}, v{AK[i]+2*k}, v{AK[i]+2*k+1}")
        side.append(f"v_cndmask_b32 v{AK[i]+6}, v30, v{AK[i]+6}, vcc")
        side.append(f"v_cndmask_b32 v{AK[i]+7}, v31, v{AK[i]+7}, vcc")
        side.append(f"buffer_store_dwordx4 {vr(AK[i],4)}, v29, {WS_SRD}, s55 offen {SC}")
        side.append(f"buffer_store_dwordx4 {vr(AK[i]+4,4)}, v29, {WS_SRD}, s55 offen offset:1024 {SC}")
        for k in range(8): side.append(f"v_cvt_pk_bf16_f32 v{AV[i]+k}, v{AV[i]+2*k}, v{AV[i]+2*k+1}")
        for k in range(8): side.append(f"v_cndmask_b32 v{AV[i]+k}, v1, v{AV[i]+k}, s[56:57]")
        side.append(f"buffer_store_dwordx4 {vr(AV[i],4)}, v3, {WS_SRD}, s55 offen offset:2048 {SC}")
        side.append(f"buffer_store_dwordx4 {vr(AV[i]+4,4)}, v3, {WS_SRD}, s55 offen offset:3072 {SC}")
        if i == 0: side.append("s_add_u32 s55, s55, 4096")
    stores = []
    if opt("stag"):
        stores = [l.replace("s55", "s62") if k >= 4 else l for k, l in enumerate(l for l in side if l.startswith("buffer_store"))]
        side = [l for l in side if not l.startswith("buffer_store") and not l.startswith("s_add")]
        a("s_add_u32 s62, s55, 4096")
    def store_block(lbl, early):
        a(f"""
        s_bitcmp1_b32 s{sJ}, 2
        s_cbranch_scc{1 if early else 0} {lbl}
        """)
        for l in stores: a(l)
        a(f"{lbl}:")
    PER = val("side", 8)
    ST1 = (len(side) + PER - 1) // PER - 1
    ST2 = val("st2", 22)
    if PER >= 100:
        a("s_nop 7")
        for l in side: a(l)
        side = []
        if opt("sfirst"): a("s_barrier")
    lw = []
    for i in range(2):
        lw += [f"ds_write_b128 v170, {vr(AK[i],4)} offset:{4096*i}", f"ds_write_b128 v170, {vr(AK[i]+4,4)} offset:{4096*i+1024}",
               f"ds_write_b128 v171, {vr(AV[i],4)} offset:{4096*i+2048}", f"ds_write_b128 v171, {vr(AV[i]+4,4)} offset:{4096*i+3072}"]
    FT = val("flagt", 22)
    for r in reads2(1): a(r)
    for t in range(28):
        i, s = divmod(t, 4); b = FB2(t)
        cin = lambda r: ("0" if t == 0 else vr(r, 16))
        M = [f"v_mfma_f32_32x32x16_bf16 {vr(AQ[0],16)}, {vr(b+8,4)}, {vr(b,4)}, {cin(AQ[0])}",
             f"v_mfma_f32_32x32x16_bf16 {vr(AQ[1],16)}, {vr(b+8,4)}, {vr(b+4,4)}, {cin(AQ[1])}"]
        R = reads2(t+2) if t+2 < 28 else []
        bar = (t+2) in (8, 16, 24)
        nw = 2 if t >= 25 else 0
        if bar: a("s_waitcnt lgkmcnt(0)")
        else: a(f"s_waitcnt lgkmcnt({(4 if t < 27 else 0) + nw})")
        a(M[0])
        if t+2 == 16:
            for l in shift(65536): a(l)
        if bar: a("s_barrier")
        for r in R: a(r)
        for l in side[:PER//2]: a(l)
        side = side[PER//2:]
        a(M[1])
        for l in side[:PER//2]: a(l)
        side = side[PER//2:]
        if t >= 24:
            for l in lw[2*(t-24):2*(t-24)+2]: a(l)
        if opt("stag") and t == ST1: store_block("L_st1", True)
        if opt("stag") and t == ST2: store_block("L_st2", False)
        if t == FT:
            assert not side
            if opt("stag"):
                assert FT < ST2
                a("s_waitcnt vmcnt(0)")
                tag_check("L_tagc", 174)
                a(f"""
                s_bitcmp1_b32 s{sJ}, 2
                s_cbranch_scc1 L_fl1
                """)
                flag_store("s10", 174)
                a("L_fl1:")
            else:
                a("s_waitcnt vmcnt(8)")
                tag_check("L_tagc", 174)
                a("s_waitcnt vmcnt(0)")
                flag_store("s10", 174)
            stamp(4)
    prepoll()
    a("s_nop 7")
    a("s_nop 1")
    for i in range(2):
        A = AQ[i]
        for k in range(8): a(f"v_pk_mul_f32 {vr(A+2*k,2)}, {vr(A+2*k,2)}, s[60:61]")
        QD = Q + 8*i
        for k in range(8): a(f"v_cvt_pk_bf16_f32 v{QD+k}, v{A+2*k}, v{A+2*k+1}")
        a(f"v_cndmask_b32 v{QD+6}, 0, v{QD+6}, vcc")
        a(f"v_cndmask_b32 v{QD+7}, 0, v{QD+7}, vcc")
        a(f"ds_write_b128 v172, {vr(QD,4)} offset:{2048*i}")
        a(f"ds_write_b128 v172, {vr(QD+4,4)} offset:{2048*i+1024}")
    if FT >= 28:
        a("s_waitcnt vmcnt(8)")
        tag_check("L_tagc", 174)
        a("s_waitcnt vmcnt(0)")
        flag_store("s10", 174)
        stamp(4)
    a("""
    s_waitcnt lgkmcnt(0)
    s_barrier
    """)

def tile_addr(t):
    return (VA if t < 2 else VC, (t & 1) * 4096)

def unit(u, kind="loop", side=None, hook=None):
    side = side or {}
    cur = S + 16*(u & 3); nxt = S + 16*((u+1) & 3); prv = S + 16*((u-1) & 3)
    tn = ((u+1) >> 1) & 1; subn = (u+1) & 1
    tp = ((u-1) >> 1) & 1; subp = (u-1) & 1
    kf = KF + 8*tn; vf = VF + 8*tp
    qn = Q + 8*subn; op = O + 16*subp
    M = [f"v_mfma_f32_32x32x16_bf16 {vr(nxt,16)}, {vr(kf,4)}, {vr(qn,4)}, 0",
         f"v_mfma_f32_32x32x16_bf16 {vr(nxt,16)}, {vr(kf+4,4)}, {vr(qn+4,4)}, {vr(nxt,16)}",
         f"v_smfmac_f32_32x32x32_bf16 {vr(op,16)}, {vr(vf,4)}, {vr(prv,8)}, v{IDX}",
         f"v_smfmac_f32_32x32x32_bf16 {vr(op,16)}, {vr(vf+4,4)}, {vr(prv+8,8)}, v{IDX}"]
    E = [f"v_exp_f32 v{cur+e}, v{cur+e}" for e in range(16)]
    t = u >> 1
    if (u & 1) == 0:
        if t < 3 and not (kind == "first" and t == 1):
            va, off = tile_addr(t+1); kb = KF + 8*((t+1) & 1)
            a(f"ds_read_b128 {vr(kb,4)}, v{va} offset:{off}")
            a(f"ds_read_b128 {vr(kb+4,4)}, v{va} offset:{off+1024}")
        va, off = tile_addr(t); vb = VF + 8*(t & 1)
        a(f"ds_read_b128 {vr(vb,4)}, v{va} offset:{off+2048}")
        a(f"ds_read_b128 {vr(vb+4,4)}, v{va} offset:{off+3072}")
    elif not (u == 7 and hook):
        a("s_waitcnt lgkmcnt(0)")
    if kind == "first" and u == 0: M[2] = M[3] = None
    if (kind == "first" and u == 3) or (kind == "last" and u == 7): M[0] = M[1] = None
    if u == 7 and hook:
        H = hook()
        seq = [M[2]] + E[:6] + [M[3]] + E[6:8] + ["s_waitcnt lgkmcnt(0)", M[0]] + E[8:10] + [M[1]]
        k = 0
        for e in range(6):
            n = (len(H) * (e + 1)) // 6
            seq += H[k:n] + [E[10+e]]; k = n
        for l in seq: a(l)
        return
    for m in range(4):
        if M[m]: a(M[m])
        for e in E[4*m:4*m+4]: a(e)
        for l in side.get(m, []): a(l)

def chunk_salu(m0src):
    return ["s_add_u32 s5, s5, 1", "s_and_b32 s5, s5, 15", f"s_cmp_eq_u32 s5, s{sJ}", "s_addc_u32 s5, s5, 0", "s_and_b32 s5, s5, 15",
            "s_lshl_b32 s6, s5, 14", m0src, "s_add_u32 s6, s6, s4"]
def l2pf():
    return []
    return ["s_and_b32 s101, s98, 15", "s_lshl_b32 s101, s101, 14", "s_add_u32 s101, s101, s100", "s_mov_b64 exec, 0xff",
            f"buffer_load_dword v217, v216, {WS_SRD}, s101 offen {SC}", "s_mov_b64 exec, -1", "s_add_u32 s98, s98, 2"]
def win_salu(i, m0src):
    if opt("nowin"): return chunk_salu(m0src)
    return [f"s_add_u32 s6, s{sJ}, {i}", "s_and_b32 s6, s6, 3", f"s_and_b32 s5, s{sJ}, 8", "s_or_b32 s5, s5, s6",
            "s_lshl_b32 s6, s5, 14", m0src, "s_add_u32 s6, s6, s4"]
def after_win(m0src):
    if opt("nowin"): return chunk_salu(m0src)
    return [f"s_and_b32 s6, s{sJ}, 11", f"s_and_b32 s5, s{sJ}, 8", "s_add_u32 s5, s5, 4", f"s_bitcmp1_b32 s{sJ}, 2",
            "s_cselect_b32 s6, s6, s5", "s_subb_u32 s5, s5, 0", "s_lshl_b32 s6, s6, 14", m0src, "s_add_u32 s6, s6, s4"]
def piece(q): return f"buffer_load_dwordx4 v3, {WS_SRD}, s6 offen offset:{q*1024} {SC} lds"

def deadline(lbl, ticks):
    a(f"""
    s_add_u32 s53, s{TAG}, {ticks}
    {lbl}:
    s_memrealtime s[60:61]
    s_waitcnt lgkmcnt(0)
    s_sub_u32 s60, s60, s53
    s_cmp_lt_i32 s60, 0
    s_cbranch_scc1 {lbl}
    """)

def attention():
    PU = val("pu", -1); CU_ = val("cu", 0)
    PR = [3, 2, 2, 1, 1, 0, 0, 3]
    def hook(first=False):
        a(f"""
        v_xor_b32 v{VA}, {C1 ^ C3}, v{VA}
        v_xor_b32 v{VC}, {C0 ^ C2}, v{VC}
        s_waitcnt vmcnt(0) lgkmcnt(0)
        {"" if opt("xnobar") else "s_barrier"}
        ds_read_b128 {vr(KF,4)}, v{VA}
        ds_read_b128 {vr(KF+4,4)}, v{VA} offset:1024
        """)
        return [f"s_xor_b32 s11, s11, {C1 ^ C3}", f"s_xor_b32 s69, s69, {C0 ^ C2}"] + (after_win if first else chunk_salu)("s_mov_b32 m0, s11")
    restart = f"""
    s_waitcnt lgkmcnt(0)
    v_mfma_f32_32x32x16_bf16 {vr(S,16)}, {vr(KF,4)}, {vr(Q,4)}, 0
    v_mfma_f32_32x32x16_bf16 {vr(S,16)}, {vr(KF+4,4)}, {vr(Q+4,4)}, {vr(S,16)}
    s_nop 11
    """
    CLEAN = [f"buffer_store_dwordx4 v[220:223], v3, {WS_SRD}, s14 offen {SC}", f"buffer_store_dwordx4 v[220:223], v3, {WS_SRD}, s14 offen offset:1024 {SC}"]
    a("L_attn:")
    if opt("xd1"): deadline("L_xd1", val("xd1", 0))
    pend = []
    if opt("pre"):
        poll_read(99)
        if opt("stag"):
            a(f"""
            s_cmp_lg_u32 s{sKH}, 0
            s_cbranch_scc1 L_fl2
            s_bitcmp1_b32 s{sJ}, 2
            s_cbranch_scc0 L_fl2
            """)
            flag_store("s10")
            a("L_fl2:")
        need_bits("L_pre", 99, 7, "s9", 0xffff)
        for l in win_salu(1, f"s_add_u32 m0, s8, {C0}") + [piece(q) for q in range(4)]: a(l)
        pend = win_salu(2, "s_mov_b32 m0, s11") + [piece(q) for q in range(4)] + win_salu(3, "s_mov_b32 m0, s69") + [piece(q) for q in range(4)]
        if opt("cleanearly"): pend += CLEAN
        PU = CU_ = 99
    if PU < 0: poll_issue("s9", 0xffff)
    a(f"""
    ds_read_b128 {vr(KF,4)}, v{VA}
    ds_read_b128 {vr(KF+4,4)}, v{VA} offset:1024
    """)
    a(restart)
    stamp(5)
    for u in range(4):
        a(f"s_setprio {3-u}")
        sd = {}
        if pend and not (not opt("c23early")):
            left = (4 - u) * 4
            for m in range(4):
                n = -(-len(pend) // left); sd[m] = pend[:n]; pend = pend[n:]; left -= 1
        unit(u, "first", side=sd)
        if opt("lazy") and not opt("pre") and u == val("cu2", 1):
            a("s_mov_b32 s68, 0xffff")
            need_bits("L_call", 99, 68, "s9", 0xffff)
            a("s_mov_b32 s68, 0")
            pend = pend2
        if u == PU: poll_issue("s9", 0xffff)
        if u == CU_:
            if not opt("lazy"):
                poll_check("L_kvp", "s9", 0xffff)
                for l in win_salu(1, f"s_add_u32 m0, s8, {C0}") + [piece(q) for q in range(4)]: a(l)
            else:
                poll_read(99)
                if opt("pre"):
                    a("""
                    s_cmp_lg_u32 s98, 0
                    s_cbranch_scc1 L_f1b
                    """)
                else:
                    for l in win_salu(1, f"s_add_u32 m0, s8, {C0}"): a(l)
                    a("s_lshl_b32 s68, 1, s5")
                need_bits("L_c1", 99, 68, "s9", 0xffff)
                for q in range(4): a(piece(q))
                a("L_f1b:")
                if opt("repoll"): poll_issue("s9", 0xffff)
            if not opt("c3late"):
                pend = win_salu(2, "s_mov_b32 m0, s11") + [piece(q) for q in range(4)] + win_salu(3, "s_mov_b32 m0, s69") + [piece(q) for q in range(4)]
                if opt("cleanearly"): pend += CLEAN
                if opt("lazy"): pend2, pend = pend, []
            else:
                for l in chunk_salu("s_mov_b32 m0, s11") + [piece(q) for q in range(4)]: a(l)
    a(f"""
    s_waitcnt vmcnt({0 if (not opt("c23early")) else (10 if opt("cleanearly") else 8)})
    s_barrier
    ds_read_b128 {vr(KF,4)}, v{VC}
    ds_read_b128 {vr(KF+4,4)}, v{VC} offset:1024
    """)
    if opt("c3late"):
        for l in chunk_salu("s_mov_b32 m0, s69") + [piece(q) for q in range(4)]: a(l)
        if not opt("oflags"):
            a(f"buffer_store_dwordx4 v[220:223], v3, {WS_SRD}, s14 offen {SC}")
            a(f"buffer_store_dwordx4 v[220:223], v3, {WS_SRD}, s14 offen offset:1024 {SC}")
    for l in l2pf(): a(l)
    a(restart)
    stamp(6)
    for u in range(4, 8):
        a(f"s_setprio {[2,1,0,3][u-4]}")
        sd = {}
        if pend and (not opt("c23early")):
            left = (4 + val("c23n", 1) - u) * 4
            for m in range(4):
                n = -(-len(pend) // left); sd[m] = pend[:n]; pend = pend[n:]; left -= 1
        unit(u, "second", side=sd, hook=lambda: hook(True))
        if opt("pre") and u == val("pall", 5): poll_issue("s9", 0xffff)
    if opt("cleanearly"):
        a(f"""
        s_cmp_lg_u32 s{sW}, 0
        s_cbranch_scc1 L_noclean
        """)
        flag_store("s15")
        a("L_noclean:")
    else:
        for l in CLEAN: a(l)
        a(f"""
        s_cmp_eq_u32 s{sW}, 0
        s_cselect_b32 s98, 1, 99
        """)
    if opt("pre"):
        a(f"""
        v_cmp_eq_u64 vcc, s[{TAG}:{TAG+1}], v[{TMP}:{TMP+1}]
        s_mov_b32 s68, 0xffff
        s_nop 0
        s_mov_b32 s99, vcc_lo
        """)
        need_bits("L_call", 99, 68, "s9", 0xffff)
        a("s_mov_b32 s68, 0")
    stamp(7)
    DM = val("dm", 0)
    P = [piece(q) for q in range(4)]
    C2S = chunk_salu("s_mov_b32 m0, s69")
    if DM == 0:
        sides = {0: {0: [P[0]], 1: [P[1]], 2: [P[2]]}, 1: {0: [P[3]], 1: C2S + [P[0]], 2: [P[1]]}, 2: {0: [P[2]], 1: [P[3]]}}
    elif DM == 1:
        sides = {0: {0: [P[0]], 2: [P[1]]}, 1: {0: [P[2]], 2: [P[3]]}, 2: {0: C2S + [P[0]], 2: [P[1]]}, 3: {0: [P[2]], 2: [P[3]]}}
    else:
        sides = {0: {m: [P[m]] for m in range(4)}, 1: {0: C2S + [P[0]], 1: [P[1]], 2: [P[2]], 3: [P[3]]}}
    sides.setdefault(4 if DM == 1 else 3, {}).setdefault(0, []).extend(l2pf())
    PM = val("pm", 0)
    PRS = {0: {(1,-1): 2, (3,-1): 1, (5,-1): 0, (7,-1): 3},
           1: {(4,-1): 2, (5,-1): 1, (6,-1): 0, (7,-1): 3},
           2: {(5,-1): 2, (6,-1): 1, (6,1): 0, (7,-1): 3},
           3: {(5,1): 2, (6,0): 1, (6,2): 0, (7,-1): 3},
           4: {(6,0): 2, (6,1): 1, (6,2): 0, (7,-1): 3},
           5: {(3,-1): 2, (5,-1): 1, (6,1): 0, (7,-1): 3}}[PM]
    def with_prio(u, sd):
        sd = {m: list(v) for m, v in (sd or {}).items()}
        if (u, -1) in PRS and not opt("noprio"): a(f"s_setprio {PRS[(u,-1)]}")
        for m in range(4):
            if (u, m) in PRS: sd.setdefault(m, []).append(f"s_setprio {PRS[(u,m)]}")
        return sd
    a(".p2align 6")
    a("L_loop:")
    for u in range(8):
        unit(u, side=with_prio(u, sides.get(u)), hook=hook)
        if u == 3 and not opt("cleanearly"):
            a("""
            s_cmp_lg_u32 s68, s98
            s_cbranch_scc1 L_noclean
            """)
            flag_store("s15")
            a("L_noclean:")
    a(f"""
    s_add_u32 s68, s68, 1
    s_cmp_lt_u32 s68, 6
    s_cbranch_scc1 L_loop
    """)
    if opt("xdummy"):
        a(f"s_mov_b32 s68, {val('xdummy', 4)}")
        a("L_dummy:")
        for u in range(8):
            d = 224 + 16*(u & 1); e = 224 + 16*((u+1) & 1)
            a(f"v_mfma_f32_32x32x16_bf16 {vr(e,16)}, {vr(KF,4)}, {vr(Q,4)}, 0")
            for k in range(4): a(f"v_exp_f32 v{d+k}, v{d+k}")
            a(f"v_mfma_f32_32x32x16_bf16 {vr(e,16)}, {vr(KF+4,4)}, {vr(Q+4,4)}, {vr(e,16)}")
            for k in range(4, 8): a(f"v_exp_f32 v{d+k}, v{d+k}")
            a(f"v_smfmac_f32_32x32x32_bf16 {vr(32,16)}, {vr(VF,4)}, {vr(S+48,8)}, v{IDX}")
            for k in range(8, 12): a(f"v_exp_f32 v{d+k}, v{d+k}")
            a(f"v_smfmac_f32_32x32x32_bf16 {vr(32,16)}, {vr(VF+4,4)}, {vr(S+56,8)}, v{IDX}")
            for k in range(12, 16): a(f"v_exp_f32 v{d+k}, v{d+k}")
        a("""
        s_sub_u32 s68, s68, 1
        s_cmp_lg_u32 s68, 0
        s_cbranch_scc1 L_dummy
        """)
    if opt("xspin"):
        a(f"""
        s_memrealtime s[60:61]
        s_waitcnt lgkmcnt(0)
        s_add_u32 s68, s60, {val('xspin', 500)}
        L_xspin:
        s_memrealtime s[60:61]
        s_waitcnt lgkmcnt(0)
        s_cmp_lt_u32 s60, s68
        s_cbranch_scc1 L_xspin
        """)
    WP = []
    for i in range(8):
        WP.append([f"s_add_u32 m0, s13, {i*4096}", f"s_mov_b32 s6, {i*32*896}", f"buffer_load_dwordx4 v{WOA}, {WO_SRD}, s6 offen {SC} lds"])
    def norm(B, own, lblfail):
        for q in range(4): a(f"ds_read_b128 {vr(B+16+4*q,4)}, v{EXB} offset:{q*1024}")
        for q in range(4):
            a(f"s_waitcnt lgkmcnt({3-q})")
            for r in range(2): a(f"v_pk_add_f32 {vr(B+4*q+2*r,2)}, {vr(own+4*q+2*r,2)}, {vr(B+16+4*q+2*r,2)}")
        a(f"""
        v_mov_b32 v{B+32}, v{B+12}
        v_mov_b32 v{B+33}, v{B+12}
        s_mov_b32 s54, 0x2f800000        ; 2^-32
        s_mov_b32 s62, 0x57800000        ; 2^48
        v_permlane32_swap_b32 v{B+32}, v{B+33}
        v_pk_mul_f32 {vr(B+36,2)}, {vr(B,2)}, 0 op_sel_hi:[1,0]
        v_pk_mul_f32 {vr(B+38,2)}, {vr(B+2,2)}, 0 op_sel_hi:[1,0]
        v_rcp_f32 v{B+34}, v{B+33}
        """)
        for r in range(2, 8): a(f"v_pk_fma_f32 {vr(B+36+2*(r&1),2)}, {vr(B+2*r,2)}, 0, {vr(B+36+2*(r&1),2)} op_sel_hi:[1,0,1]")
        a(f"""
        v_pk_add_f32 {vr(B+36,2)}, {vr(B+36,2)}, {vr(B+38,2)}
        v_add_f32 v{B+36}, v{B+36}, v{B+37}
        v_add_f32 v{B+36}, v{B+36}, v{B+33}
        v_cmp_ge_f32 vcc, v{B+36}, s54
        v_cmp_le_f32 s[56:57], v{B+36}, s62
        s_nop 1
        s_and_b64 s[56:57], s[56:57], vcc
        s_cmp_eq_u64 s[56:57], -1
        s_cbranch_scc0 {lblfail}
        """)
    def norm2(B):
        a("v_cmp_gt_u32 vcc, 32, v2")
        for r in range(8): a(f"v_pk_mul_f32 {vr(B+2*r,2)}, {vr(B+2*r,2)}, {vr(B+34,2)} op_sel_hi:[1,0]")
        for i in range(4): a(f"v_cvt_pk_bf16_f32 v{B+16+i}, v{B+2*i}, v{B+2*i+1}")
        a(f"buffer_store_dwordx4 {vr(B+16,4)}, v3, {WS_SRD}, s14 offen {SC}")
        for i in range(4, 8): a(f"v_cvt_pk_bf16_f32 v{B+16+i}, v{B+2*i}, v{B+2*i+1}")
        a(f"v_cndmask_b32 v{B+22}, 0, v{B+22}, vcc")
        a(f"v_cndmask_b32 v{B+23}, 0, v{B+23}, vcc")
        a(f"buffer_store_dwordx4 {vr(B+20,4)}, v3, {WS_SRD}, s14 offen offset:1024 {SC}")
    def kread(v):
        va, off = tile_addr(v & 3); kb = KF + 8*(v & 1)
        a(f"ds_read_b128 {vr(kb,4)}, v{va} offset:{off}")
        a(f"ds_read_b128 {vr(kb+4,4)}, v{va} offset:{off+1024}")
    LP = {1: 2, 3: 1, 4: 0, 5: 2, 6: 1, 7: 0}
    a("s_mov_b32 s98, 0")
    for v in range(8):
        cur = S + 16*(v & 3); nxt = S + 16*((v+1) & 3); prv = S + 16*((v-1) & 3)
        kf = KF + 8*((v+1) & 1); vf = VF + 8*((v-1) & 1)
        qn = Q + 8*((v+1) >> 2); op = O + 16*(1 if v == 0 else ((v-1) >> 2))
        if v < 7:
            M = [f"v_mfma_f32_32x32x16_bf16 {vr(nxt,16)}, {vr(kf,4)}, {vr(qn,4)}, 0",
                 f"v_mfma_f32_32x32x16_bf16 {vr(nxt,16)}, {vr(kf+4,4)}, {vr(qn+4,4)}, {vr(nxt,16)}"]
        else: M = [None, None]
        M += [f"v_smfmac_f32_32x32x32_bf16 {vr(op,16)}, {vr(vf,4)}, {vr(prv,8)}, v{IDX}",
              f"v_smfmac_f32_32x32x32_bf16 {vr(op,16)}, {vr(vf+4,4)}, {vr(prv+8,8)}, v{IDX}"]
        E = [f"v_exp_f32 v{cur+e}, v{cur+e}" for e in range(16)]
        if v in LP: a(f"s_setprio {LP[v]}")
        if v == 5:
            a(f"""
            s_setprio 3
            s_cmp_eq_u32 s{sKH}, 0
            s_cbranch_scc1 L_mid1
            s_nop 4
            """)
            for q in range(4): a(f"ds_write_b128 v{EXA}, {vr(O+4*q,4)} offset:{q*1024}")
            a(f"""
            L_mid1:
            s_waitcnt lgkmcnt(0)
            s_barrier
            s_cmp_lg_u32 s{sKH}, 0
            s_cbranch_scc1 L_mid2
            """)
            norm(24, O, "L_midfail")
            norm2(24)
            a("L_mid2:")
            a("s_setprio 2")
        elif v: a("s_waitcnt lgkmcnt(0)")
        if v == 0: kread(1)
        va, off = tile_addr(v & 3); vb = VF + 8*(v & 1)
        if v == 0:
            a(f"ds_read_b128 {vr(vb,4)}, v{va} offset:{off+2048}")
            a(f"ds_read_b128 {vr(vb+4,4)}, v{va} offset:{off+3072}")
            seq = [M[2]] + E[:6] + [M[3]] + E[6:8] + ["s_waitcnt lgkmcnt(2)", M[0]] + E[8:10] + [M[1], "KREAD"] + E[10:13] + WP[0] + E[13:] + WP[1]
            for l in seq:
                if l == "KREAD": kread(2)
                else: a(l)
            continue
        if v + 2 < 8: kread(v + 2)
        a(f"ds_read_b128 {vr(vb,4)}, v{va} offset:{off+2048}")
        a(f"ds_read_b128 {vr(vb+4,4)}, v{va} offset:{off+3072}")
        sd = {1: {0: WP[2], 1: WP[3], 2: WP[4]}, 2: {0: WP[5], 1: WP[6], 2: WP[7]}}.get(v, {})
        for m in range(4):
            if M[m]: a(M[m])
            for e in E[4*m:4*m+4]: a(e)
            for l in sd.get(m, []): a(l)
    a("s_setprio 0")
    stamp(8)
    poll_issue("s16", 0xff)
    a(f"""
    s_waitcnt lgkmcnt(0)
    v_smfmac_f32_32x32x32_bf16 {vr(O+16,16)}, {vr(VF+8,4)}, {vr(S+48,8)}, v{IDX}
    v_smfmac_f32_32x32x32_bf16 {vr(O+16,16)}, {vr(VF+12,4)}, {vr(S+56,8)}, v{IDX}
    s_cmp_lg_u32 s{sKH}, 0
    s_cbranch_scc1 L_end1
    s_nop 9
    """)
    for q in range(4): a(f"ds_write_b128 v{EXA}, {vr(O+16+4*q,4)} offset:{q*1024}")
    a(f"""
    s_waitcnt vmcnt(3) lgkmcnt(0)
    s_barrier
    s_cmp_eq_u32 s98, 0
    s_cbranch_scc1 L_p3
    s_branch L_fallbackA
    L_midfail:
    s_mov_b32 s98, 1
    s_waitcnt vmcnt(0)
    s_branch L_mid2
    L_end1:
    s_waitcnt vmcnt(1)
    s_barrier
    """)
    norm(S, O+16, "L_fallbackB")
    a("L_norm2:")
    norm2(S)
    a("L_p3:")

def p3():
    OFR = 96; ACC = 16
    quads = list(range(48, 80, 4)) + list(range(88, 96, 4)) + list(range(164, 208, 4)) + list(range(220, 256, 4)) + [80, 84]
    assert len(quads) == 32
    def WQ(t, c): return quads[2*t + c]
    for i in range(8):
        a(f"""
        s_add_u32 s62, s3, {i}
        s_and_b32 s62, s62, 7
        s_lshl_b32 s{54+i}, s62, 11
        s_add_u32 s{54+i}, s{54+i}, s17
        """)
    stamp(9)
    a(f"""
    s_cmp_ge_u32 s23, 28
    s_cbranch_scc1 L_fin
    """)
    def rd(i):
        a(f"""
        s_add_u32 s62, s3, {i}
        s_and_b32 s62, s62, 7
        s_mul_i32 s62, s62, {28*128}
        v_add_u32 v14, s62, v{P3A}
        v_xor_b32 v15, 64, v14
        """)
        for s_ in range(2):
            for c in range(2):
                for eh in range(2):
                    a(f"ds_read_b64_tr_b16 {vr(WQ(2*i+s_, c)+2*eh,2)}, v{14+c} offset:{(16*s_+8*eh)*128}")
    def ld(t): a(f"buffer_load_dwordx4 {vr(OFR+4*t,4)}, v3, {WS_SRD}, s{54+t//2} offen offset:{(t%2)*1024} {SC}")
    NE = val("nearly", 7)
    NF = val("nfirst", 0)
    def cleaned(lbl):
        a(f"""
        s_waitcnt vmcnt(0)
        v_cmp_eq_u64 vcc, s[{TAG}:{TAG+1}], v[{TMP}:{TMP+1}]
        s_nop 1
        s_and_b32 s63, vcc_lo, 0xff
        s_cmp_eq_u32 s63, 0xff
        s_cbranch_scc1 {lbl}_ok
        """)
        poll_check(lbl, "s16", 0xff, 62, 63)
    if NF == 0:
        for i in range(NE): rd(i)
        cleaned("L_op")
        stamp(10)
        for t in range(16): ld(t)
        for i in range(NE, 8): rd(i)
    else:
        a(f"""
        s_cmp_lg_u32 s{sKH}, 0
        s_cbranch_scc1 L_p3b
        """)
        cleaned("L_opa")
        for t in range(NF): ld(t)
        a("L_p3b:")
        for i in range(NE): rd(i)
        a(f"""
        s_cmp_eq_u32 s{sKH}, 0
        s_cbranch_scc1 L_p3c
        """)
        cleaned("L_opb")
        for t in range(NF): ld(t)
        a("L_p3c:")
        if not opt("nosbar"): a("s_barrier")
        stamp(10)
        for t in range(NF, 16): ld(t)
        for i in range(NE, 8): rd(i)
    for r in range(ACC, ACC+32): a(f"v_mov_b32 v{r}, 0")
    for k in range(1, 4): a(f"v_xor_b32 v{8+k}, {32*k}, v{PWA}")
    a(f"""
    v_xor_b32 v12, 16, v{PRA}
    s_mov_b32 s62, {SPIN_MAX}
    s_movk_i32 s63, 0xff
    s_mov_b64 s[98:99], -1
    s_waitcnt lgkmcnt(0)
    {"s_mov_b32 s76, 0" if opt("diag") else ""}
    L_pass:
    """)
    for i in range(8):
        B = OFR + 8*i
        a(f"""
        s_bitcmp0_b32 s63, {i}
        s_cbranch_scc1 L_next{i}
        s_waitcnt vmcnt({14-2*i})
        v_max3_u32 v13, v{B}, v{B+3}, v{B+4}
        v_max_u32 v13, v13, v{B+7}
        v_cmp_eq_u32 vcc, -1, v13
        s_nop 1
        s_and_b64 vcc, vcc, s[98:99]
        s_cbranch_scc0 L_go{i}
        """)
        ld(2*i); ld(2*i+1)
        if opt("anyorder"):
            a(f"""
            s_branch L_next{i}
            L_go{i}:
            s_bitset0_b32 s63, {i}
            """)
        else:
            a(f"""
            s_branch L_next{i}
            L_go{i}:
            """)
            if i:
                a(f"""
                s_and_b32 s53, s63, {(1 << i) - 1}
                s_cbranch_scc1 L_next{i}
                """)
            a(f"s_bitset0_b32 s63, {i}")
        for s_ in range(2):
            for c in range(2):
                acc = vr(ACC+16*c, 16)
                a(f"v_mfma_f32_32x32x16_bf16 {acc}, {vr(WQ(2*i+s_, c),4)}, {vr(B+4*s_,4)}, {acc}")
        a(f"L_next{i}:")
    if opt("diag"):
        a("""
        s_cmp_lg_u32 s76, 0
        s_cbranch_scc1 L_diag1
        """)
        stamp(1)
        a("""
        s_bcnt1_i32_b32 s78, s63
        L_diag1:
        s_add_u32 s76, s76, 1
        """)
    a(f"""
    s_cmp_eq_u32 s63, 0
    s_cbranch_scc1 L_passed
    s_sub_u32 s62, s62, 1
    s_cselect_b64 s[98:99], 0, s[98:99]
    s_waitcnt vmcnt(0)
    s_branch L_pass
    L_passed:
    s_mov_b32 s62, {8*1792}
    """)
    stamp(11)
    if opt("xd2"): deadline("L_xd2", val("xd2", 0))
    a("s_nop 10")
    for c in range(2):
        for g in range(4):
            ad = PWA if g == 0 else 8+g
            a(f"ds_write_b128 v{ad}, {vr(ACC+16*c+4*g,4)} offset:{c*128}")
    a("s_waitcnt lgkmcnt(0)")
    a("s_barrier")
    for h8 in range(2):
        for p in range(2):
            for i in range(2):
                a(f"ds_read_b128 {vr(64+16*h8+8*p+4*i,4)}, v{PRA if i == 0 else 12} offset:{h8*2048+p*32768}")
    OS = "" if opt("outplain") else "sc1"
    for h8 in range(2):
        B = 64 + 16*h8
        a(f"s_waitcnt lgkmcnt({4 if h8 == 0 else 0})")
        for r in range(4): a(f"v_pk_add_f32 {vr(B+2*r,2)}, {vr(B+2*r,2)}, {vr(B+8+2*r,2)}")
        for r in range(4): a(f"v_cvt_pk_bf16_f32 v{96+4*h8+r}, v{B+2*r}, v{B+2*r+1}")
        a(f"buffer_store_dwordx4 {vr(96+4*h8,4)}, v{OUTA}, {OUT_SRD}, {'0' if h8 == 0 else 's62'} offen {OS}")
    a("L_fin:")
    if STAMP: a("s_waitcnt vmcnt(0)")
    stamp(12)
    stamp_flush(13)
    a("L_end:")
    a("s_endpgm")

def fallback():
    T = S + 16; K0 = KF; M = S + 35; Q = 16
    a("L_fallbackA:")
    for r in range(8): a(f"v_mov_b32 v{16+r}, v{8+r}")
    a("L_fallbackB:")
    a(f"""
    s_lshl_b32 s58, s{sHD}, 18
    s_mov_b32 s59, 64
    v_mov_b32 v{M}, 0xff800000
    L_fb1:
    buffer_load_dwordx4 {vr(K0,4)}, v3, {WS_SRD}, s58 offen {SC}
    buffer_load_dwordx4 {vr(K0+4,4)}, v3, {WS_SRD}, s58 offen offset:1024 {SC}
    s_waitcnt vmcnt(0)
    v_mfma_f32_32x32x16_bf16 {vr(T,16)}, {vr(K0,4)}, {vr(Q,4)}, 0
    v_mfma_f32_32x32x16_bf16 {vr(T,16)}, {vr(K0+4,4)}, {vr(Q+4,4)}, {vr(T,16)}
    s_add_u32 s58, s58, 4096
    s_sub_u32 s59, s59, 1
    s_nop 15
    """)
    for i in range(8): a(f"v_max3_f32 v{M}, v{M}, v{T+2*i}, v{T+2*i+1}")
    a(f"""
    s_cmp_lg_u32 s59, 0
    s_cbranch_scc1 L_fb1
    v_mov_b32 v{M+1}, v{M}
    s_nop 1
    v_permlane32_swap_b32 v{M}, v{M+1}
    s_nop 1
    v_max_f32 v{M}, v{M}, v{M+1}
    v_sub_f32 v{M}, 0, v{M}
    v_and_b32 v{M+1}, 0xffff0000, v{M}
    v_sub_f32 v{M+2}, v{M}, v{M+1}
    v_and_b32 v{M+3}, 0xffff0000, v{M+2}
    v_sub_f32 v{M+2}, v{M+2}, v{M+3}
    v_lshrrev_b32 v{M+1}, 16, v{M+1}
    v_or_b32 v{M+1}, v{M+1}, v{M+3}
    v_lshrrev_b32 v{M+2}, 16, v{M+2}
    v_cmp_gt_u32 vcc, 32, v2
    s_lshl_b32 s58, s{sHD}, 18
    s_mov_b32 s59, 64
    v_cndmask_b32 v{Q+6}, v{M+1}, v{Q+6}, vcc
    v_cndmask_b32 v{Q+7}, v{M+2}, v{Q+7}, vcc
    """)
    for r in range(16): a(f"v_mov_b32 v{S+r}, 0")
    a(f"""
    L_fb2:
    buffer_load_dwordx4 {vr(K0,4)}, v3, {WS_SRD}, s58 offen {SC}
    buffer_load_dwordx4 {vr(K0+4,4)}, v3, {WS_SRD}, s58 offen offset:1024 {SC}
    buffer_load_dwordx4 {vr(K0+8,4)}, v3, {WS_SRD}, s58 offen offset:2048 {SC}
    buffer_load_dwordx4 {vr(K0+12,4)}, v3, {WS_SRD}, s58 offen offset:3072 {SC}
    s_waitcnt vmcnt(0)
    v_mfma_f32_32x32x16_bf16 {vr(T,16)}, {vr(K0,4)}, {vr(Q,4)}, 0
    v_mfma_f32_32x32x16_bf16 {vr(T,16)}, {vr(K0+4,4)}, {vr(Q+4,4)}, {vr(T,16)}
    s_add_u32 s58, s58, 4096
    s_sub_u32 s59, s59, 1
    s_nop 15
    """)
    for i in range(16): a(f"v_exp_f32 v{T+i}, v{T+i}")
    a(f"""
    s_nop 1
    v_smfmac_f32_32x32x32_bf16 {vr(S,16)}, {vr(K0+8,4)}, {vr(T,8)}, v{IDX}
    v_smfmac_f32_32x32x32_bf16 {vr(S,16)}, {vr(K0+12,4)}, {vr(T+8,8)}, v{IDX}
    s_cmp_lg_u32 s59, 0
    s_cbranch_scc1 L_fb2
    s_nop 15
    v_mov_b32 v{S+32}, v{S+12}
    v_mov_b32 v{S+33}, v{S+12}
    s_nop 1
    v_permlane32_swap_b32 v{S+32}, v{S+33}
    s_nop 1
    v_rcp_f32 v{S+34}, v{S+33}
    s_branch L_norm2
    """)

prologue(); loader(); compute(); attention(); p3(); fallback()
a("L_code_end:")
a(kdesc(N, NV, 102))
hdr = f"; @launch grid=(256,1,1) block=(512,1,1) lds={LDS_BYTES}\n" + '.amdgcn_target "amdgcn-amd-amdhsa--gfx950"\n'
open(sys.argv[1], "w").write(hdr + a.text())
```

```python
import sys, struct
from asmlib import *

KV_OFF = 0
OF_OFF = 8 << 20
FL_OFF = 12 << 20
FO_OFF = (12 << 20) + (256 << 10)
WS_USED = 13 << 20
ST_OFF = 32 << 20
CSCALE = 28 ** -0.5 * 1.4426950408889634
def f2u(x): return struct.unpack("<I", struct.pack("<f", x))[0]
ARGS = sys.argv[2:]
def opt(name): return ("--" + name) in ARGS
def val(name, d): return int(ARGS[ARGS.index("--" + name) + 1]) if opt(name) else d
STAMP = opt("stamp")
N = "concat_heads__softmax_full_mha__mha_block__prompt_kernel"
SC = "sc1"
SPIN_MAX = 100000
SLEEP = val("sleep", 2)

FL2 = val("fl2", 4)
FSH = 3
WR0 = 114688
C0, C1, C2, C3 = 32768, 65536, 98304, 131072
A2 = C3
LDS_BYTES = 163840
def wslot(i): return WR0 + ((i + 2) % 3) * 16384

a = Asm()
def stamp(idx):
    if not STAMP: return
    a(f"""
    s_memtime s[64:65]
    s_memrealtime s[66:67]
    s_waitcnt lgkmcnt(0)
    s_mov_b32 s{70+2*idx}, s64
    s_mov_b32 s{71+2*idx}, s66
    """)
def stamp_flush(n):
    if not STAMP: return
    a(f"""
    s_lshl_b32 s66, s2, 4
    s_add_u32 s66, s66, s27
    s_lshl_b32 s66, s66, 7
    s_add_u32 s66, s66, {ST_OFF}
    s_add_u32 s64, s20, s66
    s_addc_u32 s65, s21, 0
    v_mov_b32 v0, 0
    s_mov_b64 exec, 1
    """)
    for i in range(n):
        a(f"""
        v_mov_b32 v4, s{70+2*i}
        v_mov_b32 v5, s{71+2*i}
        global_store_dwordx2 v0, v[4:5], s[64:65] offset:{8*i}
        s_nop 1
        """)

sB, sJ, sHP, sW, sG, sKH, sHD = 24, 25, 26, 27, 48, 49, 52
X_SRD, W_SRD, WS_SRD, WO_SRD, OUT_SRD = "s[28:31]", "s[32:35]", "s[36:39]", "s[40:43]", "s[44:47]"
TAG = 50
IDX, VA, VC = 4, 5, 6
Q, O, S, KF, VF = 8, 176, 64, 128, 144
TMP = 160
PA, WOA, EXA, EXB, P3A, OUTA, PWA, PRA = 208, 209, 210, 211, 212, 213, 214, 215
NV = 256

def tag_check(lbl, v):
    a(f"""
    s_mov_b32 s53, {SPIN_MAX}
    {lbl}_chk:
    v_readfirstlane_b32 s{TAG}, v{v}
    v_readfirstlane_b32 s{TAG+1}, v{v+1}
    s_nop 1
    s_cmp_lg_u64 s[{TAG}:{TAG+1}], 0
    s_cbranch_scc1 {lbl}_ok
    s_sub_u32 s53, s53, 1
    s_cbranch_scc1 {lbl}_ok
    global_load_dwordx2 v[{v}:{v+1}], v7, s[18:19] {SC}
    s_waitcnt vmcnt(0)
    s_branch {lbl}_chk
    {lbl}_ok:
    """)
def poll_issue(soff, mask):
    a(f"""
    s_mov_b64 exec, {hex(mask)}
    buffer_load_dwordx2 v[{TMP}:{TMP+1}], v{216 if mask == 0xffff else PA}, {WS_SRD}, {soff} offen {SC}
    s_mov_b64 exec, -1
    """)
def prepoll():
    if not opt("pre"): return
    a(f"""
    s_mov_b32 exec_lo, s7
    s_mov_b32 exec_hi, 0
    buffer_load_dwordx2 v[{TMP}:{TMP+1}], v216, {WS_SRD}, s9 offen {SC}
    s_mov_b64 exec, -1
    """)
def poll_read(dst):
    a(f"""
    s_waitcnt vmcnt(0)
    v_cmp_eq_u64 vcc, s[{TAG}:{TAG+1}], v[{TMP}:{TMP+1}]
    s_nop 1
    s_mov_b32 s{dst}, vcc_lo
    """)
def need_bits(lbl, mreg, nreg, soff, mask, va=None):
    a(f"""
    s_and_b32 s53, s{mreg}, s{nreg}
    s_cmp_eq_u32 s53, s{nreg}
    s_cbranch_scc1 {lbl}_ok
    s_mov_b32 s54, {SPIN_MAX}
    {lbl}_spin:
    """)
    poll_issue(soff, mask)
    poll_read(mreg)
    a(f"""
    s_and_b32 s53, s{mreg}, s{nreg}
    s_cmp_eq_u32 s53, s{nreg}
    s_cbranch_scc1 {lbl}_ok
    s_sleep {SLEEP}
    s_sub_u32 s54, s54, 1
    s_cbranch_scc0 {lbl}_spin
    {lbl}_ok:
    """)
def poll_check(lbl, soff, mask, t0=53, t1=54):
    a(f"""
    s_mov_b32 s{t0}, {SPIN_MAX}
    {lbl}_chk:
    s_waitcnt vmcnt(0)
    v_cmp_eq_u64 vcc, s[{TAG}:{TAG+1}], v[{TMP}:{TMP+1}]
    s_nop 1
    s_and_b32 s{t1}, vcc_lo, {hex(mask)}
    s_cmp_eq_u32 s{t1}, {hex(mask)}
    s_cbranch_scc1 {lbl}_ok
    s_sub_u32 s{t0}, s{t0}, 1
    s_cbranch_scc1 {lbl}_ok
    s_sleep {SLEEP}
    """)
    poll_issue(soff, mask)
    a(f"""
    s_branch {lbl}_chk
    {lbl}_ok:
    """)
def flag_store(soff, v=TMP+2):
    a(f"""
    v_mov_b32 v{v}, s{TAG}
    v_mov_b32 v{v+1}, s{TAG+1}
    s_mov_b64 exec, 1
    buffer_store_dwordx2 v[{v}:{v+1}], v7, {WS_SRD}, {soff} offen {SC}
    s_mov_b64 exec, -1
    """)

def prologue():
    a(khead(N))
    a(f"""
    s_cmp_ge_u32 s2, 256
    s_cbranch_scc1 L_end
    """)
    stamp(0)
    if opt("tag0"): a("s_memrealtime s[98:99]")
    for _ in range(val("xpad", 0)): a("s_mov_b32 s3, 0x12345678")
    a(f"""
    s_load_dwordx16 s[4:19], s[0:1], 0
    s_load_dwordx2 s[20:21], s[0:1], 64
    s_and_b32 s22, s2, 7          ; xcd
    s_lshr_b32 s23, s2, 3         ; r
    s_lshr_b32 s{sB}, s22, 2
    s_bfe_u32 s25, s22, 0x10001
    s_lshl_b32 s25, s25, 3
    s_and_b32 s53, s23, 7
    s_add_u32 s{sJ}, s25, s53     ; jj
    s_and_b32 s26, s22, 1
    s_lshl_b32 s26, s26, 2
    s_lshr_b32 s54, s23, 3
    s_add_u32 s{sHP}, s26, s54    ; hp
    s_lshl_b32 s54, s54, 1
    s_add_u32 s54, s54, s53       ; 0..13
    s_sub_u32 s53, s54, 7
    s_cmp_ge_u32 s54, 7
    s_cselect_b32 s54, s53, s54   ; first K chunk
    """)
    RM = val("rotm", 1)
    if RM:
        a("""
        s_lshr_b32 s54, s23, 3
        s_add_u32 s54, s54, s23
        """)
        if RM == 1: a("s_and_b32 s54, s54, 3\ns_lshl_b32 s54, s54, 1")
        if RM == 3: a("s_and_b32 s54, s54, 1\ns_lshl_b32 s54, s54, 2")
        if RM == 2: a("s_and_b32 s54, s54, 3\ns_lshl_b32 s54, s54, 2\ns_lshr_b32 s54, 0x2520, s54\ns_and_b32 s54, s54, 15")
        if RM == 4: a("s_and_b32 s54, s54, 7\ns_lshl_b32 s54, s54, 2\ns_lshr_b32 s54, 0x53164200, s54\ns_and_b32 s54, s54, 15")
    a(f"""
    v_lshrrev_b32 v1, 6, v0
    v_and_b32 v2, 63, v0          ; lane
    v_mov_b32 v7, 0
    v_readfirstlane_b32 s{sW}, v1
    v_lshlrev_b32 v3, 4, v2       ; lane*16
    s_and_b32 s{sG}, s{sW}, 3
    s_lshr_b32 s{sKH}, s{sW}, 2
    s_cmp_eq_u32 s{sKH}, 0
    s_cbranch_scc1 L_compute
    """)

def srd_in():
    a(f"""
    s_waitcnt lgkmcnt(0)
    s_cmp_eq_u32 s{sB}, 0
    s_cselect_b32 s28, s4, s10
    s_cselect_b32 s29, s5, s11
    s_cselect_b32 s32, s6, s12
    s_cselect_b32 s33, s7, s13
    """)
def srd_const():
    a(f"""
    s_mov_b32 s30, 1835008
    s_mov_b32 s31, 0x20000
    s_mov_b32 s34, 1204224
    s_mov_b32 s35, 0x20000
    """)
def srd_rest():
    a(f"""
    s_cmp_eq_u32 s{sB}, 0
    s_mov_b32 s36, s20
    s_mov_b32 s37, s21
    s_mov_b32 s38, {WS_USED}
    s_mov_b32 s39, 0x20000
    s_cselect_b32 s40, s8, s14
    s_cselect_b32 s41, s9, s15
    s_mov_b32 s42, 401408
    s_mov_b32 s43, 0x20000
    s_mov_b32 s44, s16
    s_mov_b32 s45, s17
    s_mov_b32 s46, 3670016
    s_mov_b32 s47, 0x20000
    """)

def setup():
    srd_rest()
    a(f"""
    v_mov_b32 v{IDX}, 0xdddddddd
    s_lshl_b32 s62, s{sB}, 3
    s_add_u32 s62, s62, s{sHP}            ; b*8+hp
    s_lshl_b32 s9, s62, 11
    s_add_u32 s9, s9, {FL_OFF}
    s_lshl_b32 s62, s62, 1                ; b*16 + 2hp
    s_lshr_b32 s63, s{sG}, 1              ; hd
    s_add_u32 s{sHD}, s62, s63
    s_lshl_b32 s7, s63, 14
    s_lshl_b32 s63, s{sKH}, 13
    s_add_u32 s7, s7, s63
    s_add_u32 s7, s7, {C0}
    v_add_u32 v{VC}, s7, v3
    v_add_u32 v{VA}, {C3-C0}, v{VC}
    s_add_u32 s62, s62, s{sKH}
    s_lshl_b32 s4, s62, 6
    s_add_u32 s4, s4, s{sG}
    s_lshl_b32 s4, s4, 12
    s_and_b32 s5, s{sJ}, 8
    s_sub_u32 s5, s5, 1
    {f"s_mov_b32 s5, s{sJ}" if opt("ownrot") else ""}
    s_lshl_b32 s8, s{sW}, 12
    s_lshl_b32 s10, s{sG}, 9
    s_add_u32 s10, s10, s9
    s_lshr_b32 s62, s{sJ}, {FL2}
    s_lshl_b32 s62, s62, {FL2+5}
    s_add_u32 s10, s10, s62
    s_and_b32 s62, s{sJ}, {(1<<FL2)-1}
    s_lshl_b32 s62, s62, 3
    s_add_u32 s10, s10, s62
    s_lshr_b32 s62, s{sW}, 1
    s_lshl_b32 s62, s62, 9
    s_add_u32 s9, s9, s62
    v_lshlrev_b32 v{PA}, 3, v2
    s_mul_i32 s62, s23, 37
    s_lshr_b32 s62, s62, 8                ; r/7
    s_mul_i32 s3, s62, 7
    s_sub_u32 s3, s23, s3                 ; ct
    s_lshl_b32 s12, s22, 2
    s_add_u32 s12, s12, s62
    s_lshl_b32 s12, s12, 2
    s_and_b32 s100, s{sG}, 1
    s_lshl_b32 s100, s100, 1
    s_add_u32 s100, s100, s{sKH}
    s_lshr_b32 s101, s{sG}, 1
    s_add_u32 s12, s12, s100
    v_lshrrev_b32 v{WOA}, 3, v2
    v_and_b32 v{EXA}, 7, v2
    v_bfe_u32 v{EXB}, v2, 4, 1
    v_lshlrev_b32 v{EXB}, 2, v{EXB}
    v_xor_b32 v{EXA}, v{EXA}, v{EXB}
    v_mul_u32_u24 v{WOA}, 896, v{WOA}
    v_lshl_add_u32 v{WOA}, v{EXA}, 4, v{WOA}
    s_mul_i32 s62, s{sG}, {8*896}
    s_mul_i32 s63, s{sKH}, {224*896}
    s_add_u32 s62, s62, s63
    s_lshl_b32 s63, s3, 7
    s_add_u32 s62, s62, s63
    v_add_u32 v{WOA}, s62, v{WOA}
    s_mul_i32 s13, s{sKH}, {C3-C0}
    s_lshl_b32 s62, s{sG}, 10
    s_add_u32 s13, s13, s62
    s_add_u32 s13, s13, {C0}
    s_lshl_b32 s62, s{sW}, 12
    v_add_u32 v{EXA}, s62, v3
    s_xor_b32 s62, s62, 16384
    v_add_u32 v{EXB}, s62, v3
    s_add_u32 s11, s8, {C1}
    s_add_u32 s69, s8, {C2}
    s_lshl_b32 s62, s{sB}, 4
    s_add_u32 s62, s62, s{sJ}
    s_lshl_b32 s62, s62, 1
    s_and_b32 s63, s{sG}, 1
    s_add_u32 s62, s62, s63
    s_lshl_b32 s62, s62, 1
    s_add_u32 s62, s62, s{sKH}
    s_lshl_b32 s62, s62, 4
    s_and_b32 s63, s{sHD}, 15
    s_add_u32 s62, s62, s63
    s_lshl_b32 s15, s62, 3
    s_add_u32 s15, s15, {FO_OFF}
    s_lshl_b32 s14, s62, 11
    s_add_u32 s14, s14, {OF_OFF}
    s_lshl_b32 s16, s12, 7
    s_lshl_b32 s62, s{sKH}, 6
    s_add_u32 s16, s16, s62
    s_add_u32 s16, s16, {FO_OFF}
    s_lshl_b32 s17, s12, 15
    s_lshl_b32 s62, s101, 14
    s_add_u32 s17, s17, s62
    s_add_u32 s17, s17, {OF_OFF}
    v_lshrrev_b32 v216, 5, v2             ; hh
    v_bfe_u32 v217, v2, 2, 2
    v_lshl_add_u32 v{P3A}, v216, 2, v217
    v_lshlrev_b32 v{P3A}, 7, v{P3A}
    v_bfe_u32 v217, v2, 4, 1
    v_lshl_add_u32 v{P3A}, v217, 5, v{P3A}
    v_and_b32 v217, 3, v2
    v_lshl_add_u32 v{P3A}, v217, 3, v{P3A}
    v_bfe_u32 v217, v2, 3, 1
    v_lshl_add_u32 v{P3A}, v217, 6, v{P3A}
    s_mul_i32 s62, s101, {C3-C0}
    s_add_u32 s62, s62, {C0}
    v_add_u32 v{P3A}, s62, v{P3A}
    v_and_b32 v217, 31, v2
    v_and_b32 v218, 7, v2
    v_xor_b32 v218, v216, v218
    v_lshlrev_b32 v218, 4, v218
    v_lshl_add_u32 v{PWA}, v217, 8, v218
    s_lshl_b32 s62, s101, 15
    s_lshl_b32 s63, s100, 13
    s_add_u32 s62, s62, s63
    s_add_u32 s62, s62, {C1}
    v_add_u32 v{PWA}, s62, v{PWA}
    v_lshrrev_b32 v217, 3, v2
    v_and_b32 v218, 7, v2
    v_lshlrev_b32 v219, 1, v218
    v_xor_b32 v219, v219, v217
    v_lshlrev_b32 v219, 4, v219
    v_lshl_add_u32 v{PRA}, v217, 8, v219
    s_lshl_b32 s62, s100, 13
    s_lshl_b32 s63, s101, 12
    s_add_u32 s62, s62, s63
    s_add_u32 s62, s62, {C1}
    v_add_u32 v{PRA}, s62, v{PRA}
    s_and_b32 s62, s12, 63
    s_lshl_b32 s62, s62, 5
    s_lshl_b32 s63, s101, 4
    s_add_u32 s62, s62, s63
    v_add_u32 v217, s62, v217
    v_mul_u32_u24 v217, 1792, v217
    v_lshl_add_u32 v{OUTA}, v218, 4, v217
    s_mul_i32 s62, s{sB}, 896
    s_lshl_b32 s63, s3, 7
    s_add_u32 s62, s62, s63
    v_add_u32 v{OUTA}, s62, v{OUTA}
    s_mov_b32 s68, 0
    v_lshrrev_b32 v217, {FL2}, v2
    v_and_b32 v218, {(1<<FL2)-1}, v2
    v_lshlrev_b32 v218, 3, v218
    v_lshl_add_u32 v216, v217, {FL2+5}, v218
    s_and_b32 s62, s{sJ}, 8
    s_lshl_b32 s7, 15, s62                ; lanes of the flags of the first foreign chunks
    """)
    if not opt("oflags"):
        a(f"""
        s_lshl_b32 s15, s{sB}, 4
        s_add_u32 s15, s15, s{sJ}
        s_lshl_b32 s15, s15, 7
        s_lshl_b32 s62, s{sHP}, 3
        s_add_u32 s15, s15, s62
        s_add_u32 s15, s15, {FO_OFF}
        s_lshr_b32 s16, s12, 2
        s_lshl_b32 s16, s16, 7
        s_add_u32 s16, s16, {FO_OFF}
        v_mov_b32 v220, -1
        v_mov_b32 v221, -1
        v_mov_b32 v222, -1
        v_mov_b32 v223, -1
        """)
    for r in range(O, O+32): a(f"v_mov_b32 v{r}, 0")

def loader():
    a(f"""
    v_lshrrev_b32 v8, 3, v2       ; lane/8
    v_and_b32 v9, 7, v2
    v_lshrrev_b32 v14, 4, v2
    v_xor_b32 v9, v9, v14
    v_xor_b32 v14, 4, v9
    s_lshl_b32 s55, s{sJ}, 7
    s_lshl_b32 s56, s{sG}, 5
    s_add_u32 s55, s55, s56
    s_mul_i32 s55, s55, 896
    v_mul_u32_u24 v8, 896, v8
    v_add_u32 v8, s55, v8
    v_lshl_add_u32 v10, v9, 4, v8
    v_lshl_add_u32 v11, v14, 4, v8
    v_add_u32 v12, {2*6144}, v10
    v_add_u32 v13, {3*6144}, v11
    v_add_u32 v11, {6144}, v11
    s_lshl_b32 s55, s{sG}, 12              ; g*4096
    s_lshl_b32 s57, s54, 7
    s_mov_b32 m0, s55
    s_mul_i32 s58, s54, {64*2688}
    """)
    srd_const()
    a(f"""
    v_lshrrev_b32 v8, 4, v2
    v_and_b32 v9, 15, v2
    v_lshlrev_b32 v20, 2, v8
    v_xor_b32 v9, v9, v20         ; P
    v_lshrrev_b32 v20, 3, v9      ; seg
    v_and_b32 v9, 7, v9
    v_min_u32 v9, 6, v9
    v_mul_u32_u24 v8, 2688, v8
    v_mul_u32_u24 v20, 896, v20
    v_lshlrev_b32 v9, 4, v9
    v_add3_u32 v8, v8, v9, v20
    s_mul_i32 s59, s{sG}, {16*2688}
    s_mul_i32 s60, s{sHP}, 112
    s_add_u32 s59, s59, s60
    s_add_u32 s60, s59, 896
    v_add_u32 v14, s60, v8
    v_add_u32 v15, {4*2688-1024}, v14
    v_add_u32 v16, {2*(4*2688-1024)}, v14
    v_add_u32 v17, {3*(4*2688-1024)}, v14
    """)
    srd_in()
    for q in range(4): a(f"buffer_load_dwordx4 v{10+q}, {X_SRD}, s57 offen offset:{q*1024} {SC} lds")
    def next_c():
        a("""
        s_add_u32 s54, s54, 1
        s_cmp_eq_u32 s54, 7
        s_cselect_b32 s54, 0, s54
        """)
    def item(i):
        if i < 7:
            if i:
                a(f"""
                s_lshl_b32 s57, s54, 7
                s_add_u32 m0, s55, {i*16384}
                s_mul_i32 s58, s54, {64*2688}
                """)
                for q in range(4): a(f"buffer_load_dwordx4 v{10+q}, {X_SRD}, s57 offen offset:{q*1024} {SC} lds")
            a(f"s_add_u32 m0, s55, {wslot(i)}")
            a("s_nop 0")
            for q in range(4): a(f"buffer_load_dwordx4 v{14+q}, {W_SRD}, s58 offen offset:{q*1024} {SC} lds")
            next_c()
        else:
            for d in range(2):
                if 2*(i-7)+d > 6: break
                a(f"""
                s_add_u32 m0, s56, {wslot(i) + d*8192}
                s_mul_i32 s58, s54, {64*2688}
                """)
                for q in range(2): a(f"buffer_load_dwordx4 v{18+q}, {W_SRD}, s58 offen offset:{q*1024} {SC} lds")
                next_c()
    item(0); item(1)
    a(f"""
    v_lshrrev_b32 v8, 3, v2
    v_and_b32 v9, 7, v2
    v_bfe_u32 v20, v2, 4, 1
    v_lshlrev_b32 v20, 2, v20
    v_xor_b32 v9, v9, v20
    v_min_u32 v9, 6, v9
    v_mul_u32_u24 v8, 2688, v8
    v_lshl_add_u32 v8, v9, 4, v8
    v_add_u32 v18, s59, v8
    v_add_u32 v19, {8*2688-1024}, v18
    s_lshl_b32 s56, s{sG}, 11
    """)
    stamp(1)
    cnt = lambda i: 8 if i < 7 else (4 if i < 10 else (2 if i == 10 else 0))
    for k in range(11):
        a(f"s_waitcnt vmcnt({0 if (opt('sfirst') and k == 7) else cnt(k+1)})")
        a("s_barrier")
        if k == 0: stamp(2)
        if opt("sfirst"):
            if k + 2 <= 7: item(k+2)
            if k == 7:
                a("s_barrier")
                item(8); item(9)
            if k == 8: item(10)
        elif k + 2 <= 10: item(k+2)
        if k == 8: setup()
        if k == 9: a(f"global_load_dwordx2 v[{TMP}:{TMP+1}], v7, s[18:19] {SC}")
    tag_check("L_tagl", TMP)
    stamp(3); stamp(4)
    if opt("pre"):
        for _ in range(val("ldelay", 0)): a("s_sleep 2")
    prepoll()
    a(f"""
    s_lshl_b32 s55, s{sG}, 12
    v_add_u32 v{TMP+4}, s55, v3
    s_barrier
    """)
    for i in range(4): a(f"ds_read_b128 {vr(Q+4*i,4)}, v{TMP+4} offset:{i*1024}")
    a("s_branch L_attn")

def compute():
    XA = 24
    WK, WV, WQ = 28, 168, 169
    AK, AV, AQ = (32, 64), (48, 80), (96, 112)
    FB = 128
    PK = 32
    a("L_compute:")
    srd_const(); srd_in()
    if not opt("nocodepf"):
        a(f"""
        s_getpc_b64 s[62:63]
        L_pc:
        s_and_b32 s55, s23, 7
        s_lshl_b32 s55, s55, 2
        s_add_u32 s55, s55, s{sW}
        s_lshl_b32 s55, s55, 10
        v_add_u32 v8, s55, v3
        v_min_u32 v8, L_code_end - L_pc - 16, v8
        global_load_dwordx4 v[164:167], v8, s[62:63]
        """)
    a(f"""
    s_cmp_lg_u32 s2, 0
    s_cbranch_scc1 L_notag
    s_cmp_lg_u32 s{sW}, 0
    s_cbranch_scc1 L_notag
    {"s_mov_b64 s[60:61], s[98:99]" if opt("tag0") else "s_memrealtime s[60:61]"}
    s_waitcnt lgkmcnt(0)
    s_or_b32 s60, s60, 1
    v_mov_b32 v18, s60
    v_mov_b32 v19, s61
    s_mov_b64 exec, 1
    global_store_dwordx2 v7, v[18:19], s[18:19] {SC}
    s_mov_b64 exec, -1
    L_notag:
    v_and_b32 v8, 31, v2          ; m
    v_lshrrev_b32 v9, 5, v2       ; hh
    v_bfe_u32 v10, v2, 1, 3       ; z
    v_xor_b32 v10, v9, v10
    s_and_b32 s55, s{sG}, 1
    s_lshl_b32 s55, s55, 13
    v_lshlrev_b32 v11, 7, v8
    v_add_u32 v11, s55, v11
    v_lshl_add_u32 v{XA}, v10, 4, v11
    v_xor_b32 v12, 2, v10
    v_lshl_add_u32 v{XA+1}, v12, 4, v11
    v_xor_b32 v12, 4, v10
    v_lshl_add_u32 v{XA+2}, v12, 4, v11
    v_xor_b32 v12, 6, v10
    v_lshl_add_u32 v{XA+3}, v12, 4, v11
    v_bfe_u32 v10, v2, 2, 2       ; r
    v_bfe_u32 v11, v2, 4, 1       ; nhalf
    v_and_b32 v12, 3, v2          ; c4
    v_lshl_add_u32 v11, v11, 2, v12
    s_lshr_b32 s55, s{sG}, 1
    s_mul_i32 s55, s55, 7
    v_add_u32 v11, s55, v11       ; u
    v_lshrrev_b32 v12, 1, v11     ; piece
    v_and_b32 v11, 1, v11
    v_lshlrev_b32 v11, 3, v11     ; half*8
    v_lshl_add_u32 v13, v9, 3, v10      ; 8hh + r
    v_lshlrev_b32 v14, 2, v10
    v_xor_b32 v14, v12, v14             ; piece ^ (r<<2)
    v_lshl_add_u32 v14, v14, 4, v11
    v_lshl_add_u32 v14, v13, 8, v14
    v_add_u32 v{WK}, {WR0}, v14
    v_xor_b32 v{WV}, 128, v{WK}
    v_lshrrev_b32 v14, 1, v10
    v_lshlrev_b32 v14, 2, v14
    v_xor_b32 v14, v12, v14             ; piece ^ ((r>>1)<<2)
    v_lshl_add_u32 v14, v14, 4, v11
    v_lshl_add_u32 v14, v13, 7, v14
    v_add_u32 v{WQ}, {WR0}, v14
    v_and_b32 v29, 0x33, v2
    v_bfe_u32 v10, v2, 2, 1
    v_bfe_u32 v11, v2, 3, 1
    v_lshl_or_b32 v29, v10, 3, v29
    v_lshl_or_b32 v29, v11, 2, v29
    v_lshlrev_b32 v29, 4, v29     ; swap23(lane)*16
    v_cmp_gt_u32 s[56:57], 28, v8
    v_cmp_eq_u32 s[58:59], 28, v8
    v_mov_b32 v30, 0x3f803f80
    v_mov_b32 v31, 0x00003f80
    v_cndmask_b32 v1, 0, v30, s[58:59]
    s_lshl_b32 s60, s{sG}, 13
    s_add_u32 s60, s60, {A2}
    v_add_u32 v170, s60, v29
    v_add_u32 v171, s60, v3
    s_lshl_b32 s60, s{sG}, 12
    v_add_u32 v172, s60, v3
    """)
    PT = val("pretouch", 0)
    if PT:
        srd_rest()
        if PT == 1:
            a(f"""
            s_cmp_lg_u32 s{sW}, 1
            s_cbranch_scc1 L_nopt
            s_lshl_b32 s55, s23, 19
            v_lshlrev_b32 v8, 16, v2
            s_mov_b64 exec, 0xff
            buffer_load_dword v224, v8, {WS_SRD}, s55 offen {SC}
            s_lshl_b32 s55, s23, 17
            s_mov_b64 exec, 3
            buffer_load_dword v225, v8, {OUT_SRD}, s55 offen {SC}
            s_mov_b64 exec, -1
            L_nopt:
            """)
        else:
            a(f"""
            s_cmp_lg_u32 s{sW}, 1
            s_cbranch_scc1 L_nopt
            s_lshl_b32 s55, s23, 19
            v_lshlrev_b32 v8, 13, v2
            buffer_load_dword v224, v8, {WS_SRD}, s55 offen {SC}
            s_lshl_b32 s55, s23, 17
            v_lshlrev_b32 v8, 12, v2
            s_mov_b64 exec, 0xffffffff
            buffer_load_dword v225, v8, {OUT_SRD}, s55 offen {SC}
            s_mov_b64 exec, -1
            L_nopt:
            """)
    setup()
    a(f"""
    s_lshl_b32 s55, s{sHD}, 6
    s_lshl_b32 s60, s{sJ}, 2
    s_add_u32 s55, s55, s60
    s_and_b32 s60, s{sG}, 1
    s_lshl_b32 s60, s60, 1
    s_add_u32 s55, s55, s60
    s_lshl_b32 s55, s55, 12       ; KV global offset of this wave's first tile
    s_mov_b32 s60, {hex(f2u(CSCALE))}
    s_mov_b32 s61, s60
    v_cmp_gt_u32 vcc, 32, v2
    """)
    def FB2(t): return (128, 140, 152)[t % 3] if t else 128
    def xoff(i): return (i if i < 4 else i-4) * 16384
    def reads1(t):
        i, s = divmod(t, 4); b = FB + 16*(t & 1); wo = wslot(i) - WR0
        R = [f"ds_read_b128 {vr(b,4)}, v{XA+s} offset:{xoff(i)}"]
        for rd in range(2): R.append(f"ds_read_b64_tr_b16 {vr(b+8+2*rd,2)}, v{WK} offset:{wo+(16*s+4*rd)*256}")
        for rd in range(2): R.append(f"ds_read_b64_tr_b16 {vr(b+12+2*rd,2)}, v{WV} offset:{wo+(16*s+4*rd)*256}")
        R.append(f"ds_read_b128 {vr(b+4,4)}, v{XA+s} offset:{xoff(i)+4096}")
        return R
    def reads2(t):
        i, s = divmod(t, 4); b = FB2(t); wo = wslot(7 + i//2) - WR0 + (i & 1)*8192
        R = [f"ds_read_b128 {vr(b,4)}, v{XA+s} offset:{xoff(i)}"]
        for rd in range(2): R.append(f"ds_read_b64_tr_b16 {vr(b+8+2*rd,2)}, v{WQ} offset:{wo+(16*s+4*rd)*128}")
        R.append(f"ds_read_b128 {vr(b+4,4)}, v{XA+s} offset:{xoff(i)+4096}")
        return R
    def shift(d): return [f"v_add_u32 v{XA+k}, {d & 0xffffffff}, v{XA+k}" for k in range(4)]
    stamp(1)
    a("s_barrier")
    stamp(2)
    for r in reads1(0): a(r)
    for t in range(28):
        i, s = divmod(t, 4); b = FB + 16*(t & 1)
        cin = lambda r: ("0" if t == 0 else vr(r, 16))
        M = [f"v_mfma_f32_32x32x16_bf16 {vr(AK[0],16)}, {vr(b+8,4)}, {vr(b,4)}, {cin(AK[0])}",
             f"v_mfma_f32_32x32x16_bf16 {vr(AV[0],16)}, {vr(b,4)}, {vr(b+12,4)}, {cin(AV[0])}",
             f"v_mfma_f32_32x32x16_bf16 {vr(AK[1],16)}, {vr(b+8,4)}, {vr(b+4,4)}, {cin(AK[1])}",
             f"v_mfma_f32_32x32x16_bf16 {vr(AV[1],16)}, {vr(b+4,4)}, {vr(b+12,4)}, {cin(AV[1])}"]
        R = reads1(t+1) if t < 27 else reads2(0)
        a("s_waitcnt lgkmcnt(0)")
        if s == 3:
            a(M[0])
            if i == 3:
                for l in shift(65536): a(l)
            if i == 6:
                for l in shift(-65536): a(l)
            a("s_barrier")
            for m in range(1, 4):
                for r in R[2*(m-1):2*(m-1)+2]: a(r)
                a(M[m])
        else:
            for m in range(4):
                a(M[m])
                for r in R[2*m:2*m+2]: a(r)
        if t == 17: a(f"global_load_dwordx2 v[174:175], v7, s[18:19] {SC}")
    stamp(3)
    side = []
    for i in range(2):
        for k in range(8): side.append(f"v_cvt_pk_bf16_f32 v{AK[i]+k}, v{AK[i]+2*k}, v{AK[i]+2*k+1}")
        side.append(f"v_cndmask_b32 v{AK[i]+6}, v30, v{AK[i]+6}, vcc")
        side.append(f"v_cndmask_b32 v{AK[i]+7}, v31, v{AK[i]+7}, vcc")
        side.append(f"buffer_store_dwordx4 {vr(AK[i],4)}, v29, {WS_SRD}, s55 offen {SC}")
        side.append(f"buffer_store_dwordx4 {vr(AK[i]+4,4)}, v29, {WS_SRD}, s55 offen offset:1024 {SC}")
        for k in range(8): side.append(f"v_cvt_pk_bf16_f32 v{AV[i]+k}, v{AV[i]+2*k}, v{AV[i]+2*k+1}")
        for k in range(8): side.append(f"v_cndmask_b32 v{AV[i]+k}, v1, v{AV[i]+k}, s[56:57]")
        side.append(f"buffer_store_dwordx4 {vr(AV[i],4)}, v3, {WS_SRD}, s55 offen offset:2048 {SC}")
        side.append(f"buffer_store_dwordx4 {vr(AV[i]+4,4)}, v3, {WS_SRD}, s55 offen offset:3072 {SC}")
        if i == 0: side.append("s_add_u32 s55, s55, 4096")
    stores = []
    if opt("stag"):
        stores = [l.replace("s55", "s62") if k >= 4 else l for k, l in enumerate(l for l in side if l.startswith("buffer_store"))]
        side = [l for l in side if not l.startswith("buffer_store") and not l.startswith("s_add")]
        a("s_add_u32 s62, s55, 4096")
    def store_block(lbl, early):
        a(f"""
        s_bitcmp1_b32 s{sJ}, 2
        s_cbranch_scc{1 if early else 0} {lbl}
        """)
        for l in stores: a(l)
        a(f"{lbl}:")
    PER = val("side", 8)
    ST1 = (len(side) + PER - 1) // PER - 1
    ST2 = val("st2", 22)
    if PER >= 100:
        a("s_nop 7")
        for l in side: a(l)
        side = []
        if opt("sfirst"): a("s_barrier")
    lw = []
    for i in range(2):
        lw += [f"ds_write_b128 v170, {vr(AK[i],4)} offset:{4096*i}", f"ds_write_b128 v170, {vr(AK[i]+4,4)} offset:{4096*i+1024}",
               f"ds_write_b128 v171, {vr(AV[i],4)} offset:{4096*i+2048}", f"ds_write_b128 v171, {vr(AV[i]+4,4)} offset:{4096*i+3072}"]
    FT = val("flagt", 22)
    for r in reads2(1): a(r)
    for t in range(28):
        i, s = divmod(t, 4); b = FB2(t)
        cin = lambda r: ("0" if t == 0 else vr(r, 16))
        M = [f"v_mfma_f32_32x32x16_bf16 {vr(AQ[0],16)}, {vr(b+8,4)}, {vr(b,4)}, {cin(AQ[0])}",
             f"v_mfma_f32_32x32x16_bf16 {vr(AQ[1],16)}, {vr(b+8,4)}, {vr(b+4,4)}, {cin(AQ[1])}"]
        R = reads2(t+2) if t+2 < 28 else []
        bar = (t+2) in (8, 16, 24)
        nw = 2 if t >= 25 else 0
        if bar: a("s_waitcnt lgkmcnt(0)")
        else: a(f"s_waitcnt lgkmcnt({(4 if t < 27 else 0) + nw})")
        a(M[0])
        if t+2 == 16:
            for l in shift(65536): a(l)
        if bar: a("s_barrier")
        for r in R: a(r)
        for l in side[:PER//2]: a(l)
        side = side[PER//2:]
        a(M[1])
        for l in side[:PER//2]: a(l)
        side = side[PER//2:]
        if t >= 24:
            for l in lw[2*(t-24):2*(t-24)+2]: a(l)
        if opt("stag") and t == ST1: store_block("L_st1", True)
        if opt("stag") and t == ST2: store_block("L_st2", False)
        if t == FT:
            assert not side
            if opt("stag"):
                assert FT < ST2
                a("s_waitcnt vmcnt(0)")
                tag_check("L_tagc", 174)
                a(f"""
                s_bitcmp1_b32 s{sJ}, 2
                s_cbranch_scc1 L_fl1
                """)
                flag_store("s10", 174)
                a("L_fl1:")
            else:
                a("s_waitcnt vmcnt(8)")
                tag_check("L_tagc", 174)
                a("s_waitcnt vmcnt(0)")
                flag_store("s10", 174)
            stamp(4)
    prepoll()
    a("s_nop 7")
    a("s_nop 1")
    for i in range(2):
        A = AQ[i]
        for k in range(8): a(f"v_pk_mul_f32 {vr(A+2*k,2)}, {vr(A+2*k,2)}, s[60:61]")
        QD = Q + 8*i
        for k in range(8): a(f"v_cvt_pk_bf16_f32 v{QD+k}, v{A+2*k}, v{A+2*k+1}")
        a(f"v_cndmask_b32 v{QD+6}, 0, v{QD+6}, vcc")
        a(f"v_cndmask_b32 v{QD+7}, 0, v{QD+7}, vcc")
        a(f"ds_write_b128 v172, {vr(QD,4)} offset:{2048*i}")
        a(f"ds_write_b128 v172, {vr(QD+4,4)} offset:{2048*i+1024}")
    if FT >= 28:
        a("s_waitcnt vmcnt(8)")
        tag_check("L_tagc", 174)
        a("s_waitcnt vmcnt(0)")
        flag_store("s10", 174)
        stamp(4)
    a("""
    s_waitcnt lgkmcnt(0)
    s_barrier
    """)

def tile_addr(t):
    return (VA if t < 2 else VC, (t & 1) * 4096)

def unit(u, kind="loop", side=None, hook=None):
    side = side or {}
    cur = S + 16*(u & 3); nxt = S + 16*((u+1) & 3); prv = S + 16*((u-1) & 3)
    tn = ((u+1) >> 1) & 1; subn = (u+1) & 1
    tp = ((u-1) >> 1) & 1; subp = (u-1) & 1
    kf = KF + 8*tn; vf = VF + 8*tp
    qn = Q + 8*subn; op = O + 16*subp
    M = [f"v_mfma_f32_32x32x16_bf16 {vr(nxt,16)}, {vr(kf,4)}, {vr(qn,4)}, 0",
         f"v_mfma_f32_32x32x16_bf16 {vr(nxt,16)}, {vr(kf+4,4)}, {vr(qn+4,4)}, {vr(nxt,16)}",
         f"v_smfmac_f32_32x32x32_bf16 {vr(op,16)}, {vr(vf,4)}, {vr(prv,8)}, v{IDX}",
         f"v_smfmac_f32_32x32x32_bf16 {vr(op,16)}, {vr(vf+4,4)}, {vr(prv+8,8)}, v{IDX}"]
    E = [f"v_exp_f32 v{cur+e}, v{cur+e}" for e in range(16)]
    t = u >> 1
    if (u & 1) == 0:
        if t < 3 and not (kind == "first" and t == 1):
            va, off = tile_addr(t+1); kb = KF + 8*((t+1) & 1)
            a(f"ds_read_b128 {vr(kb,4)}, v{va} offset:{off}")
            a(f"ds_read_b128 {vr(kb+4,4)}, v{va} offset:{off+1024}")
        va, off = tile_addr(t); vb = VF + 8*(t & 1)
        a(f"ds_read_b128 {vr(vb,4)}, v{va} offset:{off+2048}")
        a(f"ds_read_b128 {vr(vb+4,4)}, v{va} offset:{off+3072}")
    elif not (u == 7 and hook):
        a("s_waitcnt lgkmcnt(0)")
    if kind == "first" and u == 0: M[2] = M[3] = None
    if (kind == "first" and u == 3) or (kind == "last" and u == 7): M[0] = M[1] = None
    if u == 7 and hook:
        H = hook()
        seq = [M[2]] + E[:6] + [M[3]] + E[6:8] + ["s_waitcnt lgkmcnt(0)", M[0]] + E[8:10] + [M[1]]
        k = 0
        for e in range(6):
            n = (len(H) * (e + 1)) // 6
            seq += H[k:n] + [E[10+e]]; k = n
        for l in seq: a(l)
        return
    for m in range(4):
        if M[m]: a(M[m])
        for e in E[4*m:4*m+4]: a(e)
        for l in side.get(m, []): a(l)

def chunk_salu(m0src):
    return ["s_add_u32 s5, s5, 1", "s_and_b32 s5, s5, 15", f"s_cmp_eq_u32 s5, s{sJ}", "s_addc_u32 s5, s5, 0", "s_and_b32 s5, s5, 15",
            "s_lshl_b32 s6, s5, 14", m0src, "s_add_u32 s6, s6, s4"]
def l2pf():
    return []
    return ["s_and_b32 s101, s98, 15", "s_lshl_b32 s101, s101, 14", "s_add_u32 s101, s101, s100", "s_mov_b64 exec, 0xff",
            f"buffer_load_dword v217, v216, {WS_SRD}, s101 offen {SC}", "s_mov_b64 exec, -1", "s_add_u32 s98, s98, 2"]
def win_salu(i, m0src):
    if opt("nowin"): return chunk_salu(m0src)
    return [f"s_add_u32 s6, s{sJ}, {i}", "s_and_b32 s6, s6, 3", f"s_and_b32 s5, s{sJ}, 8", "s_or_b32 s5, s5, s6",
            "s_lshl_b32 s6, s5, 14", m0src, "s_add_u32 s6, s6, s4"]
def after_win(m0src):
    if opt("nowin"): return chunk_salu(m0src)
    return [f"s_and_b32 s6, s{sJ}, 11", f"s_and_b32 s5, s{sJ}, 8", "s_add_u32 s5, s5, 4", f"s_bitcmp1_b32 s{sJ}, 2",
            "s_cselect_b32 s6, s6, s5", "s_subb_u32 s5, s5, 0", "s_lshl_b32 s6, s6, 14", m0src, "s_add_u32 s6, s6, s4"]
def piece(q): return f"buffer_load_dwordx4 v3, {WS_SRD}, s6 offen offset:{q*1024} {SC} lds"

def deadline(lbl, ticks):
    a(f"""
    s_add_u32 s53, s{TAG}, {ticks}
    {lbl}:
    s_memrealtime s[60:61]
    s_waitcnt lgkmcnt(0)
    s_sub_u32 s60, s60, s53
    s_cmp_lt_i32 s60, 0
    s_cbranch_scc1 {lbl}
    """)

def attention():
    PU = val("pu", -1); CU_ = val("cu", 0)
    PR = [3, 2, 2, 1, 1, 0, 0, 3]
    def hook(first=False):
        a(f"""
        v_xor_b32 v{VA}, {C1 ^ C3}, v{VA}
        v_xor_b32 v{VC}, {C0 ^ C2}, v{VC}
        s_waitcnt vmcnt(0) lgkmcnt(0)
        {"" if opt("xnobar") else "s_barrier"}
        ds_read_b128 {vr(KF,4)}, v{VA}
        ds_read_b128 {vr(KF+4,4)}, v{VA} offset:1024
        """)
        return [f"s_xor_b32 s11, s11, {C1 ^ C3}", f"s_xor_b32 s69, s69, {C0 ^ C2}"] + (after_win if first else chunk_salu)("s_mov_b32 m0, s11")
    restart = f"""
    s_waitcnt lgkmcnt(0)
    v_mfma_f32_32x32x16_bf16 {vr(S,16)}, {vr(KF,4)}, {vr(Q,4)}, 0
    v_mfma_f32_32x32x16_bf16 {vr(S,16)}, {vr(KF+4,4)}, {vr(Q+4,4)}, {vr(S,16)}
    s_nop 11
    """
    CLEAN = [f"buffer_store_dwordx4 v[220:223], v3, {WS_SRD}, s14 offen {SC}", f"buffer_store_dwordx4 v[220:223], v3, {WS_SRD}, s14 offen offset:1024 {SC}"]
    a("L_attn:")
    if opt("xd1"): deadline("L_xd1", val("xd1", 0))
    pend = []
    if opt("pre"):
        poll_read(99)
        if opt("stag"):
            a(f"""
            s_cmp_lg_u32 s{sKH}, 0
            s_cbranch_scc1 L_fl2
            s_bitcmp1_b32 s{sJ}, 2
            s_cbranch_scc0 L_fl2
            """)
            flag_store("s10")
            a("L_fl2:")
        need_bits("L_pre", 99, 7, "s9", 0xffff)
        for l in win_salu(1, f"s_add_u32 m0, s8, {C0}") + [piece(q) for q in range(4)]: a(l)
        pend = win_salu(2, "s_mov_b32 m0, s11") + [piece(q) for q in range(4)] + win_salu(3, "s_mov_b32 m0, s69") + [piece(q) for q in range(4)]
        if (not opt("cleanlate")): pend += CLEAN
        PU = CU_ = 99
    if PU < 0: poll_issue("s9", 0xffff)
    a(f"""
    ds_read_b128 {vr(KF,4)}, v{VA}
    ds_read_b128 {vr(KF+4,4)}, v{VA} offset:1024
    """)
    a(restart)
    stamp(5)
    for u in range(4):
        a(f"s_setprio {3-u}")
        sd = {}
        if opt("c2at") and pend and u == val("c2at", 3):
            n2 = len(win_salu(2, "x")) + 4
            first, pend = pend[:n2], pend[n2:]
            sd = {0: first[:-4], 1: first[-4:-2], 2: first[-2:]}
        elif pend and not opt("c23late"):
            left = (4 - u) * 4
            for m in range(4):
                n = -(-len(pend) // left); sd[m] = pend[:n]; pend = pend[n:]; left -= 1
        unit(u, "first", side=sd)
        if opt("lazy") and not opt("pre") and u == val("cu2", 1):
            a("s_mov_b32 s68, 0xffff")
            need_bits("L_call", 99, 68, "s9", 0xffff)
            a("s_mov_b32 s68, 0")
            pend = pend2
        if u == PU: poll_issue("s9", 0xffff)
        if u == CU_:
            if not opt("lazy"):
                poll_check("L_kvp", "s9", 0xffff)
                for l in win_salu(1, f"s_add_u32 m0, s8, {C0}") + [piece(q) for q in range(4)]: a(l)
            else:
                poll_read(99)
                if opt("pre"):
                    a("""
                    s_cmp_lg_u32 s98, 0
                    s_cbranch_scc1 L_f1b
                    """)
                else:
                    for l in win_salu(1, f"s_add_u32 m0, s8, {C0}"): a(l)
                    a("s_lshl_b32 s68, 1, s5")
                need_bits("L_c1", 99, 68, "s9", 0xffff)
                for q in range(4): a(piece(q))
                a("L_f1b:")
                if opt("repoll"): poll_issue("s9", 0xffff)
            if not opt("c3late"):
                pend = win_salu(2, "s_mov_b32 m0, s11") + [piece(q) for q in range(4)] + win_salu(3, "s_mov_b32 m0, s69") + [piece(q) for q in range(4)]
                if (not opt("cleanlate")): pend += CLEAN
                if opt("lazy"): pend2, pend = pend, []
            else:
                for l in chunk_salu("s_mov_b32 m0, s11") + [piece(q) for q in range(4)]: a(l)
    a(f"""
    s_waitcnt vmcnt({4 if opt("c2at") else 0 if opt("c23late") else (10 if (not opt("cleanlate")) else 8)})
    s_barrier
    ds_read_b128 {vr(KF,4)}, v{VC}
    ds_read_b128 {vr(KF+4,4)}, v{VC} offset:1024
    """)
    if opt("c3late"):
        for l in chunk_salu("s_mov_b32 m0, s69") + [piece(q) for q in range(4)]: a(l)
        if not opt("oflags"):
            a(f"buffer_store_dwordx4 v[220:223], v3, {WS_SRD}, s14 offen {SC}")
            a(f"buffer_store_dwordx4 v[220:223], v3, {WS_SRD}, s14 offen offset:1024 {SC}")
    for l in l2pf(): a(l)
    a(restart)
    stamp(6)
    for u in range(4, 8):
        a(f"s_setprio {[2,1,0,3][u-4]}")
        sd = {}
        if pend and opt("c23late"):
            left = (4 + val("c23n", 1) - u) * 4
            for m in range(4):
                n = -(-len(pend) // left); sd[m] = pend[:n]; pend = pend[n:]; left -= 1
        unit(u, "second", side=sd, hook=lambda: hook(True))
        if opt("pre") and u == val("pall", 5): poll_issue("s9", 0xffff)
    if (not opt("cleanlate")):
        a(f"""
        s_cmp_lg_u32 s{sW}, 0
        s_cbranch_scc1 L_noclean
        """)
        flag_store("s15")
        a("L_noclean:")
    else:
        for l in CLEAN: a(l)
        a(f"""
        s_cmp_eq_u32 s{sW}, 0
        s_cselect_b32 s98, 1, 99
        """)
    if opt("pre"):
        a(f"""
        v_cmp_eq_u64 vcc, s[{TAG}:{TAG+1}], v[{TMP}:{TMP+1}]
        s_mov_b32 s68, 0xffff
        s_nop 0
        s_mov_b32 s99, vcc_lo
        """)
        need_bits("L_call", 99, 68, "s9", 0xffff)
        a("s_mov_b32 s68, 0")
    stamp(7)
    DM = val("dm", 0)
    P = [piece(q) for q in range(4)]
    C2S = chunk_salu("s_mov_b32 m0, s69")
    if DM == 0:
        sides = {0: {0: [P[0]], 1: [P[1]], 2: [P[2]]}, 1: {0: [P[3]], 1: C2S + [P[0]], 2: [P[1]]}, 2: {0: [P[2]], 1: [P[3]]}}
    elif DM == 1:
        sides = {0: {0: [P[0]], 2: [P[1]]}, 1: {0: [P[2]], 2: [P[3]]}, 2: {0: C2S + [P[0]], 2: [P[1]]}, 3: {0: [P[2]], 2: [P[3]]}}
    else:
        sides = {0: {m: [P[m]] for m in range(4)}, 1: {0: C2S + [P[0]], 1: [P[1]], 2: [P[2]], 3: [P[3]]}}
    sides.setdefault(4 if DM == 1 else 3, {}).setdefault(0, []).extend(l2pf())
    PM = val("pm", 0)
    PRS = {0: {(1,-1): 2, (3,-1): 1, (5,-1): 0, (7,-1): 3},
           1: {(4,-1): 2, (5,-1): 1, (6,-1): 0, (7,-1): 3},
           2: {(5,-1): 2, (6,-1): 1, (6,1): 0, (7,-1): 3},
           3: {(5,1): 2, (6,0): 1, (6,2): 0, (7,-1): 3},
           4: {(6,0): 2, (6,1): 1, (6,2): 0, (7,-1): 3},
           5: {(3,-1): 2, (5,-1): 1, (6,1): 0, (7,-1): 3}}[PM]
    def with_prio(u, sd):
        sd = {m: list(v) for m, v in (sd or {}).items()}
        if (u, -1) in PRS and not opt("noprio"): a(f"s_setprio {PRS[(u,-1)]}")
        for m in range(4):
            if (u, m) in PRS: sd.setdefault(m, []).append(f"s_setprio {PRS[(u,m)]}")
        return sd
    a(".p2align 6")
    for _ in range(val("shift", 0)): a("s_nop 0")
    LOOP0 = len(a.L)
    a("L_loop:")
    for u in range(8):
        unit(u, side=with_prio(u, sides.get(u)), hook=hook)
        if u == 3 and not (not opt("cleanlate")):
            a("""
            s_cmp_lg_u32 s68, s98
            s_cbranch_scc1 L_noclean
            """)
            flag_store("s15")
            a("L_noclean:")
    if opt("al8"):
        def size(l):
            t = l.strip().split()[0]
            if t.endswith(":"): return 0
            if t.startswith(("v_mfma", "v_smfmac", "ds_", "buffer_")) or t.endswith("_e64"): return 8
            if t.startswith("v_xor") : return 8
            if t.startswith("s_xor"): return 8
            return 4
        off = 0; last_exp = None
        for i in range(LOOP0, len(a.L)):
            l = a.L[i]; z = size(l)
            if z == 8 and off % 8 == 4 and last_exp is not None:
                a.L[last_exp] = a.L[last_exp].replace("v_exp_f32", "v_exp_f32_e64"); off += 4
            if z == 8: last_exp = None
            if l.strip().startswith("v_exp_f32 "): last_exp = i
            off += z
    a(f"""
    s_add_u32 s68, s68, 1
    s_cmp_lt_u32 s68, 6
    s_cbranch_scc1 L_loop
    """)
    if opt("xdummy"):
        a(f"s_mov_b32 s68, {val('xdummy', 4)}")
        a("L_dummy:")
        for u in range(8):
            d = 224 + 16*(u & 1); e = 224 + 16*((u+1) & 1)
            a(f"v_mfma_f32_32x32x16_bf16 {vr(e,16)}, {vr(KF,4)}, {vr(Q,4)}, 0")
            for k in range(4): a(f"v_exp_f32 v{d+k}, v{d+k}")
            a(f"v_mfma_f32_32x32x16_bf16 {vr(e,16)}, {vr(KF+4,4)}, {vr(Q+4,4)}, {vr(e,16)}")
            for k in range(4, 8): a(f"v_exp_f32 v{d+k}, v{d+k}")
            a(f"v_smfmac_f32_32x32x32_bf16 {vr(32,16)}, {vr(VF,4)}, {vr(S+48,8)}, v{IDX}")
            for k in range(8, 12): a(f"v_exp_f32 v{d+k}, v{d+k}")
            a(f"v_smfmac_f32_32x32x32_bf16 {vr(32,16)}, {vr(VF+4,4)}, {vr(S+56,8)}, v{IDX}")
            for k in range(12, 16): a(f"v_exp_f32 v{d+k}, v{d+k}")
        a("""
        s_sub_u32 s68, s68, 1
        s_cmp_lg_u32 s68, 0
        s_cbranch_scc1 L_dummy
        """)
    if opt("xspin"):
        a(f"""
        s_memrealtime s[60:61]
        s_waitcnt lgkmcnt(0)
        s_add_u32 s68, s60, {val('xspin', 500)}
        L_xspin:
        s_memrealtime s[60:61]
        s_waitcnt lgkmcnt(0)
        s_cmp_lt_u32 s60, s68
        s_cbranch_scc1 L_xspin
        """)
    WP = []
    for i in range(8):
        WP.append([f"s_add_u32 m0, s13, {i*4096}", f"s_mov_b32 s6, {i*32*896}", f"buffer_load_dwordx4 v{WOA}, {WO_SRD}, s6 offen {SC} lds"])
    def norm(B, own, lblfail):
        for q in range(4): a(f"ds_read_b128 {vr(B+16+4*q,4)}, v{EXB} offset:{q*1024}")
        for q in range(4):
            a(f"s_waitcnt lgkmcnt({3-q})")
            for r in range(2): a(f"v_pk_add_f32 {vr(B+4*q+2*r,2)}, {vr(own+4*q+2*r,2)}, {vr(B+16+4*q+2*r,2)}")
        a(f"""
        v_mov_b32 v{B+32}, v{B+12}
        v_mov_b32 v{B+33}, v{B+12}
        s_mov_b32 s54, 0x2f800000        ; 2^-32
        s_mov_b32 s62, 0x57800000        ; 2^48
        v_permlane32_swap_b32 v{B+32}, v{B+33}
        v_pk_mul_f32 {vr(B+36,2)}, {vr(B,2)}, 0 op_sel_hi:[1,0]
        v_pk_mul_f32 {vr(B+38,2)}, {vr(B+2,2)}, 0 op_sel_hi:[1,0]
        v_rcp_f32 v{B+34}, v{B+33}
        """)
        for r in range(2, 8): a(f"v_pk_fma_f32 {vr(B+36+2*(r&1),2)}, {vr(B+2*r,2)}, 0, {vr(B+36+2*(r&1),2)} op_sel_hi:[1,0,1]")
        a(f"""
        v_pk_add_f32 {vr(B+36,2)}, {vr(B+36,2)}, {vr(B+38,2)}
        v_add_f32 v{B+36}, v{B+36}, v{B+37}
        v_add_f32 v{B+36}, v{B+36}, v{B+33}
        v_cmp_ge_f32 vcc, v{B+36}, s54
        v_cmp_le_f32 s[56:57], v{B+36}, s62
        s_nop 1
        s_and_b64 s[56:57], s[56:57], vcc
        s_cmp_eq_u64 s[56:57], -1
        s_cbranch_scc0 {lblfail}
        """)
    def norm2(B):
        a("v_cmp_gt_u32 vcc, 32, v2")
        for r in range(8): a(f"v_pk_mul_f32 {vr(B+2*r,2)}, {vr(B+2*r,2)}, {vr(B+34,2)} op_sel_hi:[1,0]")
        for i in range(4): a(f"v_cvt_pk_bf16_f32 v{B+16+i}, v{B+2*i}, v{B+2*i+1}")
        a(f"buffer_store_dwordx4 {vr(B+16,4)}, v3, {WS_SRD}, s14 offen {SC}")
        for i in range(4, 8): a(f"v_cvt_pk_bf16_f32 v{B+16+i}, v{B+2*i}, v{B+2*i+1}")
        a(f"v_cndmask_b32 v{B+22}, 0, v{B+22}, vcc")
        a(f"v_cndmask_b32 v{B+23}, 0, v{B+23}, vcc")
        a(f"buffer_store_dwordx4 {vr(B+20,4)}, v3, {WS_SRD}, s14 offen offset:1024 {SC}")
    def kread(v):
        va, off = tile_addr(v & 3); kb = KF + 8*(v & 1)
        a(f"ds_read_b128 {vr(kb,4)}, v{va} offset:{off}")
        a(f"ds_read_b128 {vr(kb+4,4)}, v{va} offset:{off+1024}")
    LP = {1: 2, 3: 1, 4: 0, 5: 2, 6: 1, 7: 0}
    a("s_mov_b32 s98, 0")
    for v in range(8):
        cur = S + 16*(v & 3); nxt = S + 16*((v+1) & 3); prv = S + 16*((v-1) & 3)
        kf = KF + 8*((v+1) & 1); vf = VF + 8*((v-1) & 1)
        qn = Q + 8*((v+1) >> 2); op = O + 16*(1 if v == 0 else ((v-1) >> 2))
        if v < 7:
            M = [f"v_mfma_f32_32x32x16_bf16 {vr(nxt,16)}, {vr(kf,4)}, {vr(qn,4)}, 0",
                 f"v_mfma_f32_32x32x16_bf16 {vr(nxt,16)}, {vr(kf+4,4)}, {vr(qn+4,4)}, {vr(nxt,16)}"]
        else: M = [None, None]
        M += [f"v_smfmac_f32_32x32x32_bf16 {vr(op,16)}, {vr(vf,4)}, {vr(prv,8)}, v{IDX}",
              f"v_smfmac_f32_32x32x32_bf16 {vr(op,16)}, {vr(vf+4,4)}, {vr(prv+8,8)}, v{IDX}"]
        E = [f"v_exp_f32 v{cur+e}, v{cur+e}" for e in range(16)]
        if v in LP: a(f"s_setprio {LP[v]}")
        if v == 5:
            a(f"""
            s_setprio 3
            s_cmp_eq_u32 s{sKH}, 0
            s_cbranch_scc1 L_mid1
            s_nop 4
            """)
            for q in range(4): a(f"ds_write_b128 v{EXA}, {vr(O+4*q,4)} offset:{q*1024}")
            a(f"""
            L_mid1:
            s_waitcnt lgkmcnt(0)
            s_barrier
            s_cmp_lg_u32 s{sKH}, 0
            s_cbranch_scc1 L_mid2
            """)
            norm(24, O, "L_midfail")
            norm2(24)
            a("L_mid2:")
            a("s_setprio 2")
        elif v: a("s_waitcnt lgkmcnt(0)")
        if v == 0: kread(1)
        va, off = tile_addr(v & 3); vb = VF + 8*(v & 1)
        if v == 0:
            a(f"ds_read_b128 {vr(vb,4)}, v{va} offset:{off+2048}")
            a(f"ds_read_b128 {vr(vb+4,4)}, v{va} offset:{off+3072}")
            seq = [M[2]] + E[:6] + [M[3]] + E[6:8] + ["s_waitcnt lgkmcnt(2)", M[0]] + E[8:10] + [M[1], "KREAD"] + E[10:13] + WP[0] + E[13:] + WP[1]
            for l in seq:
                if l == "KREAD": kread(2)
                else: a(l)
            continue
        if v + 2 < 8: kread(v + 2)
        a(f"ds_read_b128 {vr(vb,4)}, v{va} offset:{off+2048}")
        a(f"ds_read_b128 {vr(vb+4,4)}, v{va} offset:{off+3072}")
        sd = {1: {0: WP[2], 1: WP[3], 2: WP[4]}, 2: {0: WP[5], 1: WP[6], 2: WP[7]}}.get(v, {})
        for m in range(4):
            if M[m]: a(M[m])
            for e in E[4*m:4*m+4]: a(e)
            for l in sd.get(m, []): a(l)
    a("s_setprio 0")
    stamp(8)
    poll_issue("s16", 0xff)
    a(f"""
    s_waitcnt lgkmcnt(0)
    v_smfmac_f32_32x32x32_bf16 {vr(O+16,16)}, {vr(VF+8,4)}, {vr(S+48,8)}, v{IDX}
    v_smfmac_f32_32x32x32_bf16 {vr(O+16,16)}, {vr(VF+12,4)}, {vr(S+56,8)}, v{IDX}
    s_cmp_lg_u32 s{sKH}, 0
    s_cbranch_scc1 L_end1
    s_nop 9
    """)
    for q in range(4): a(f"ds_write_b128 v{EXA}, {vr(O+16+4*q,4)} offset:{q*1024}")
    a(f"""
    s_waitcnt vmcnt(3) lgkmcnt(0)
    s_barrier
    s_cmp_eq_u32 s98, 0
    s_cbranch_scc1 L_p3
    s_branch L_fallbackA
    L_midfail:
    s_mov_b32 s98, 1
    s_waitcnt vmcnt(0)
    s_branch L_mid2
    L_end1:
    s_waitcnt vmcnt(1)
    s_barrier
    """)
    norm(S, O+16, "L_fallbackB")
    a("L_norm2:")
    norm2(S)
    a("L_p3:")

def p3():
    OFR = 96; ACC = 16
    quads = list(range(48, 80, 4)) + list(range(88, 96, 4)) + list(range(164, 208, 4)) + list(range(220, 256, 4)) + [80, 84]
    assert len(quads) == 32
    def WQ(t, c): return quads[2*t + c]
    for i in range(8):
        a(f"""
        s_add_u32 s62, s3, {i}
        s_and_b32 s62, s62, 7
        s_lshl_b32 s{54+i}, s62, 11
        s_add_u32 s{54+i}, s{54+i}, s17
        """)
    stamp(9)
    a(f"""
    s_cmp_ge_u32 s23, 28
    s_cbranch_scc1 L_fin
    """)
    def rd(i):
        a(f"""
        s_add_u32 s62, s3, {i}
        s_and_b32 s62, s62, 7
        s_mul_i32 s62, s62, {28*128}
        v_add_u32 v14, s62, v{P3A}
        v_xor_b32 v15, 64, v14
        """)
        for s_ in range(2):
            for c in range(2):
                for eh in range(2):
                    a(f"ds_read_b64_tr_b16 {vr(WQ(2*i+s_, c)+2*eh,2)}, v{14+c} offset:{(16*s_+8*eh)*128}")
    def ld(t): a(f"buffer_load_dwordx4 {vr(OFR+4*t,4)}, v3, {WS_SRD}, s{54+t//2} offen offset:{(t%2)*1024} {SC}")
    NE = val("nearly", 7)
    NF = val("nfirst", 0)
    def cleaned(lbl):
        a(f"""
        s_waitcnt vmcnt(0)
        v_cmp_eq_u64 vcc, s[{TAG}:{TAG+1}], v[{TMP}:{TMP+1}]
        s_nop 1
        s_and_b32 s63, vcc_lo, 0xff
        s_cmp_eq_u32 s63, 0xff
        s_cbranch_scc1 {lbl}_ok
        """)
        poll_check(lbl, "s16", 0xff, 62, 63)
    if NF == 0:
        for i in range(NE): rd(i)
        cleaned("L_op")
        stamp(10)
        for t in range(16): ld(t)
        for i in range(NE, 8): rd(i)
    else:
        a(f"""
        s_cmp_lg_u32 s{sKH}, 0
        s_cbranch_scc1 L_p3b
        """)
        cleaned("L_opa")
        for t in range(NF): ld(t)
        a("L_p3b:")
        for i in range(NE): rd(i)
        a(f"""
        s_cmp_eq_u32 s{sKH}, 0
        s_cbranch_scc1 L_p3c
        """)
        cleaned("L_opb")
        for t in range(NF): ld(t)
        a("L_p3c:")
        if not opt("nosbar"): a("s_barrier")
        stamp(10)
        for t in range(NF, 16): ld(t)
        for i in range(NE, 8): rd(i)
    for r in range(ACC, ACC+32): a(f"v_mov_b32 v{r}, 0")
    for k in range(1, 4): a(f"v_xor_b32 v{8+k}, {32*k}, v{PWA}")
    a(f"""
    v_xor_b32 v12, 16, v{PRA}
    s_mov_b32 s62, {SPIN_MAX}
    s_movk_i32 s63, 0xff
    s_mov_b64 s[98:99], -1
    s_waitcnt lgkmcnt(0)
    {"s_mov_b32 s76, 0" if opt("diag") else ""}
    L_pass:
    """)
    for i in range(8):
        B = OFR + 8*i
        a(f"""
        s_bitcmp0_b32 s63, {i}
        s_cbranch_scc1 L_next{i}
        s_waitcnt vmcnt({14-2*i})
        v_max3_u32 v13, v{B}, v{B+3}, v{B+4}
        v_max_u32 v13, v13, v{B+7}
        v_cmp_eq_u32 vcc, -1, v13
        s_nop 1
        s_and_b64 vcc, vcc, s[98:99]
        s_cbranch_scc0 L_go{i}
        """)
        ld(2*i); ld(2*i+1)
        if opt("anyorder"):
            a(f"""
            s_branch L_next{i}
            L_go{i}:
            s_bitset0_b32 s63, {i}
            """)
        else:
            a(f"""
            s_branch L_next{i}
            L_go{i}:
            """)
            if i:
                a(f"""
                s_and_b32 s53, s63, {(1 << i) - 1}
                s_cbranch_scc1 L_next{i}
                """)
            a(f"s_bitset0_b32 s63, {i}")
        for s_ in range(2):
            for c in range(2):
                acc = vr(ACC+16*c, 16)
                a(f"v_mfma_f32_32x32x16_bf16 {acc}, {vr(WQ(2*i+s_, c),4)}, {vr(B+4*s_,4)}, {acc}")
        a(f"L_next{i}:")
    if opt("diag"):
        a("""
        s_cmp_lg_u32 s76, 0
        s_cbranch_scc1 L_diag1
        """)
        stamp(1)
        a("""
        s_bcnt1_i32_b32 s78, s63
        L_diag1:
        s_add_u32 s76, s76, 1
        """)
    a(f"""
    s_cmp_eq_u32 s63, 0
    s_cbranch_scc1 L_passed
    s_sub_u32 s62, s62, 1
    s_cselect_b64 s[98:99], 0, s[98:99]
    s_waitcnt vmcnt(0)
    s_branch L_pass
    L_passed:
    s_mov_b32 s62, {8*1792}
    """)
    stamp(11)
    if opt("xd2"): deadline("L_xd2", val("xd2", 0))
    a("s_nop 10")
    for c in range(2):
        for g in range(4):
            ad = PWA if g == 0 else 8+g
            a(f"ds_write_b128 v{ad}, {vr(ACC+16*c+4*g,4)} offset:{c*128}")
    a("s_waitcnt lgkmcnt(0)")
    a("s_barrier")
    for h8 in range(2):
        for p in range(2):
            for i in range(2):
                a(f"ds_read_b128 {vr(64+16*h8+8*p+4*i,4)}, v{PRA if i == 0 else 12} offset:{h8*2048+p*32768}")
    OS = "" if opt("outplain") else "sc1"
    for h8 in range(2):
        B = 64 + 16*h8
        a(f"s_waitcnt lgkmcnt({4 if h8 == 0 else 0})")
        for r in range(4): a(f"v_pk_add_f32 {vr(B+2*r,2)}, {vr(B+2*r,2)}, {vr(B+8+2*r,2)}")
        for r in range(4): a(f"v_cvt_pk_bf16_f32 v{96+4*h8+r}, v{B+2*r}, v{B+2*r+1}")
        a(f"buffer_store_dwordx4 {vr(96+4*h8,4)}, v{OUTA}, {OUT_SRD}, {'0' if h8 == 0 else 's62'} offen {OS}")
    a("L_fin:")
    if STAMP: a("s_waitcnt vmcnt(0)")
    stamp(12)
    stamp_flush(13)
    a("L_end:")
    a("s_endpgm")

def fallback():
    T = S + 16; K0 = KF; M = S + 35; Q = 16
    a("L_fallbackA:")
    for r in range(8): a(f"v_mov_b32 v{16+r}, v{8+r}")
    a("L_fallbackB:")
    a(f"""
    s_lshl_b32 s58, s{sHD}, 18
    s_mov_b32 s59, 64
    v_mov_b32 v{M}, 0xff800000
    L_fb1:
    buffer_load_dwordx4 {vr(K0,4)}, v3, {WS_SRD}, s58 offen {SC}
    buffer_load_dwordx4 {vr(K0+4,4)}, v3, {WS_SRD}, s58 offen offset:1024 {SC}
    s_waitcnt vmcnt(0)
    v_mfma_f32_32x32x16_bf16 {vr(T,16)}, {vr(K0,4)}, {vr(Q,4)}, 0
    v_mfma_f32_32x32x16_bf16 {vr(T,16)}, {vr(K0+4,4)}, {vr(Q+4,4)}, {vr(T,16)}
    s_add_u32 s58, s58, 4096
    s_sub_u32 s59, s59, 1
    s_nop 15
    """)
    for i in range(8): a(f"v_max3_f32 v{M}, v{M}, v{T+2*i}, v{T+2*i+1}")
    a(f"""
    s_cmp_lg_u32 s59, 0
    s_cbranch_scc1 L_fb1
    v_mov_b32 v{M+1}, v{M}
    s_nop 1
    v_permlane32_swap_b32 v{M}, v{M+1}
    s_nop 1
    v_max_f32 v{M}, v{M}, v{M+1}
    v_sub_f32 v{M}, 0, v{M}
    v_and_b32 v{M+1}, 0xffff0000, v{M}
    v_sub_f32 v{M+2}, v{M}, v{M+1}
    v_and_b32 v{M+3}, 0xffff0000, v{M+2}
    v_sub_f32 v{M+2}, v{M+2}, v{M+3}
    v_lshrrev_b32 v{M+1}, 16, v{M+1}
    v_or_b32 v{M+1}, v{M+1}, v{M+3}
    v_lshrrev_b32 v{M+2}, 16, v{M+2}
    v_cmp_gt_u32 vcc, 32, v2
    s_lshl_b32 s58, s{sHD}, 18
    s_mov_b32 s59, 64
    v_cndmask_b32 v{Q+6}, v{M+1}, v{Q+6}, vcc
    v_cndmask_b32 v{Q+7}, v{M+2}, v{Q+7}, vcc
    """)
    for r in range(16): a(f"v_mov_b32 v{S+r}, 0")
    a(f"""
    L_fb2:
    buffer_load_dwordx4 {vr(K0,4)}, v3, {WS_SRD}, s58 offen {SC}
    buffer_load_dwordx4 {vr(K0+4,4)}, v3, {WS_SRD}, s58 offen offset:1024 {SC}
    buffer_load_dwordx4 {vr(K0+8,4)}, v3, {WS_SRD}, s58 offen offset:2048 {SC}
    buffer_load_dwordx4 {vr(K0+12,4)}, v3, {WS_SRD}, s58 offen offset:3072 {SC}
    s_waitcnt vmcnt(0)
    v_mfma_f32_32x32x16_bf16 {vr(T,16)}, {vr(K0,4)}, {vr(Q,4)}, 0
    v_mfma_f32_32x32x16_bf16 {vr(T,16)}, {vr(K0+4,4)}, {vr(Q+4,4)}, {vr(T,16)}
    s_add_u32 s58, s58, 4096
    s_sub_u32 s59, s59, 1
    s_nop 15
    """)
    for i in range(16): a(f"v_exp_f32 v{T+i}, v{T+i}")
    a(f"""
    s_nop 1
    v_smfmac_f32_32x32x32_bf16 {vr(S,16)}, {vr(K0+8,4)}, {vr(T,8)}, v{IDX}
    v_smfmac_f32_32x32x32_bf16 {vr(S,16)}, {vr(K0+12,4)}, {vr(T+8,8)}, v{IDX}
    s_cmp_lg_u32 s59, 0
    s_cbranch_scc1 L_fb2
    s_nop 15
    v_mov_b32 v{S+32}, v{S+12}
    v_mov_b32 v{S+33}, v{S+12}
    s_nop 1
    v_permlane32_swap_b32 v{S+32}, v{S+33}
    s_nop 1
    v_rcp_f32 v{S+34}, v{S+33}
    s_branch L_norm2
    """)

prologue(); loader(); compute(); attention(); p3(); fallback()
a("L_code_end:")
a(kdesc(N, NV, 102))
hdr = f"""; @launch grid=(256,1,1) block=(512,1,1) lds={LDS_BYTES}
; Two independent MHA blocks (S=2048, D=448, 16 heads of 28), fused into one launch of 256 co-resident workgroups.
; Workgroup = (block, head pair, 128 tokens), 8 waves.
;  1. projection: waves 4-7 stream x and the weight columns into LDS, waves 0-3 run the MFMAs (K,V first, then Q).
;     K,V go to d_ws in MFMA fragment order (write-through), announced by flags that carry a per-launch tag
;     (a clock value workgroup 0 puts into d_debug), so stale words in d_ws are never taken for a hand-off.
;  2. attention: S^T = K Q^T (Q pre-scaled by log2(e)/sqrt(28)), P = exp2(S), O^T += V^T P^T with the sparse MFMA,
;     which picks the high (bf16) half of every fp32 P. A ones column in V gives the row sums.
;     Softmax guard: the shift is first taken as 0; every row sum is then checked to lie in [2^-32, 2^48] and every
;     accumulator to be finite. If not, the wave recomputes its rows with the true row maximum (L_fallback*).
;  3. output projection: O tiles are exchanged through d_ws; each slot is first filled with a marker
;     (announced by a tagged flag), readers reload a tile until no marker is left.
; All spin waits are bounded.
""" + '.amdgcn_target "amdgcn-amd-amdhsa--gfx950"\n'
open(sys.argv[1], "w").write(hdr + a.text())
```

```python
import sys, struct
from asmlib import *

KV_OFF = 0
OF_OFF = 8 << 20
FL_OFF = 12 << 20
FO_OFF = (12 << 20) + (256 << 10)
WS_USED = 13 << 20
ST_OFF = 32 << 20
CSCALE = 28 ** -0.5 * 1.4426950408889634
def f2u(x): return struct.unpack("<I", struct.pack("<f", x))[0]
ARGS = sys.argv[2:]
def opt(name): return ("--" + name) in ARGS
def val(name, d): return int(ARGS[ARGS.index("--" + name) + 1]) if opt(name) else d
STAMP = opt("stamp")
N = "concat_heads__softmax_full_mha__mha_block__prompt_kernel"
SC = "sc1"
SPIN_MAX = 100000
SLEEP = val("sleep", 2)

FL2 = val("fl2", 4)
FSH = 3
WR0 = 114688
C0, C1, C2, C3 = 32768, 65536, 98304, 131072
A2 = C3
LDS_BYTES = 163840
def wslot(i): return WR0 + ((i + 2) % 3) * 16384

a = Asm()
def stamp(idx):
    if not STAMP: return
    a(f"""
    s_memtime s[64:65]
    s_memrealtime s[66:67]
    s_waitcnt lgkmcnt(0)
    s_mov_b32 s{70+2*idx}, s64
    s_mov_b32 s{71+2*idx}, s66
    """)
def stamp_flush(n):
    if not STAMP: return
    a(f"""
    s_lshl_b32 s66, s2, 4
    s_add_u32 s66, s66, s27
    s_lshl_b32 s66, s66, 7
    s_add_u32 s66, s66, {ST_OFF}
    s_add_u32 s64, s20, s66
    s_addc_u32 s65, s21, 0
    v_mov_b32 v0, 0
    s_mov_b64 exec, 1
    """)
    for i in range(n):
        a(f"""
        v_mov_b32 v4, s{70+2*i}
        v_mov_b32 v5, s{71+2*i}
        global_store_dwordx2 v0, v[4:5], s[64:65] offset:{8*i}
        s_nop 1
        """)

sB, sJ, sHP, sW, sG, sKH, sHD = 24, 25, 26, 27, 48, 49, 52
X_SRD, W_SRD, WS_SRD, WO_SRD, OUT_SRD = "s[28:31]", "s[32:35]", "s[36:39]", "s[40:43]", "s[44:47]"
TAG = 50
IDX, VA, VC = 4, 5, 6
Q, O, S, KF, VF = 8, 176, 64, 128, 144
TMP = 160
PA, WOA, EXA, EXB, P3A, OUTA, PWA, PRA = 208, 209, 210, 211, 212, 213, 214, 215
NV = 256

def tag_check(lbl, v):
    a(f"""
    s_mov_b32 s53, {SPIN_MAX}
    {lbl}_chk:
    v_readfirstlane_b32 s{TAG}, v{v}
    v_readfirstlane_b32 s{TAG+1}, v{v+1}
    s_nop 1
    s_cmp_lg_u64 s[{TAG}:{TAG+1}], 0
    s_cbranch_scc1 {lbl}_ok
    s_sub_u32 s53, s53, 1
    s_cbranch_scc1 {lbl}_ok
    global_load_dwordx2 v[{v}:{v+1}], v7, s[18:19] {SC}
    s_waitcnt vmcnt(0)
    s_branch {lbl}_chk
    {lbl}_ok:
    """)
def poll_issue(soff, mask):
    a(f"""
    s_mov_b64 exec, {hex(mask)}
    buffer_load_dwordx2 v[{TMP}:{TMP+1}], v{216 if mask == 0xffff else PA}, {WS_SRD}, {soff} offen {SC}
    s_mov_b64 exec, -1
    """)
def prepoll():
    if not opt("pre"): return
    a(f"""
    s_mov_b32 exec_lo, s7
    s_mov_b32 exec_hi, 0
    buffer_load_dwordx2 v[{TMP}:{TMP+1}], v216, {WS_SRD}, s9 offen {SC}
    s_mov_b64 exec, -1
    """)
def poll_read(dst):
    a(f"""
    s_waitcnt vmcnt(0)
    v_cmp_eq_u64 vcc, s[{TAG}:{TAG+1}], v[{TMP}:{TMP+1}]
    s_nop 1
    s_mov_b32 s{dst}, vcc_lo
    """)
def need_bits(lbl, mreg, nreg, soff, mask, va=None):
    a(f"""
    s_and_b32 s53, s{mreg}, s{nreg}
    s_cmp_eq_u32 s53, s{nreg}
    s_cbranch_scc1 {lbl}_ok
    s_mov_b32 s54, {SPIN_MAX}
    {lbl}_spin:
    """)
    poll_issue(soff, mask)
    poll_read(mreg)
    a(f"""
    s_and_b32 s53, s{mreg}, s{nreg}
    s_cmp_eq_u32 s53, s{nreg}
    s_cbranch_scc1 {lbl}_ok
    s_sleep {SLEEP}
    s_sub_u32 s54, s54, 1
    s_cbranch_scc0 {lbl}_spin
    {lbl}_ok:
    """)
def poll_check(lbl, soff, mask, t0=53, t1=54):
    a(f"""
    s_mov_b32 s{t0}, {SPIN_MAX}
    {lbl}_chk:
    s_waitcnt vmcnt(0)
    v_cmp_eq_u64 vcc, s[{TAG}:{TAG+1}], v[{TMP}:{TMP+1}]
    s_nop 1
    s_and_b32 s{t1}, vcc_lo, {hex(mask)}
    s_cmp_eq_u32 s{t1}, {hex(mask)}
    s_cbranch_scc1 {lbl}_ok
    s_sub_u32 s{t0}, s{t0}, 1
    s_cbranch_scc1 {lbl}_ok
    s_sleep {SLEEP}
    """)
    poll_issue(soff, mask)
    a(f"""
    s_branch {lbl}_chk
    {lbl}_ok:
    """)
def flag_store(soff, v=TMP+2):
    a(f"""
    v_mov_b32 v{v}, s{TAG}
    v_mov_b32 v{v+1}, s{TAG+1}
    s_mov_b64 exec, 1
    buffer_store_dwordx2 v[{v}:{v+1}], v7, {WS_SRD}, {soff} offen {SC}
    s_mov_b64 exec, -1
    """)

def prologue():
    a(khead(N))
    a(f"""
    s_cmp_ge_u32 s2, 256
    s_cbranch_scc1 L_end
    """)
    stamp(0)
    if opt("tag0"): a("s_memrealtime s[98:99]")
    for _ in range(val("xpad", 0)): a("s_mov_b32 s3, 0x12345678")
    a(f"""
    s_load_dwordx16 s[4:19], s[0:1], 0
    s_load_dwordx2 s[20:21], s[0:1], 64
    s_and_b32 s22, s2, 7          ; xcd
    s_lshr_b32 s23, s2, 3         ; r
    s_lshr_b32 s{sB}, s22, 2
    s_bfe_u32 s25, s22, 0x10001
    s_lshl_b32 s25, s25, 3
    s_and_b32 s53, s23, 7
    s_add_u32 s{sJ}, s25, s53     ; jj
    s_and_b32 s26, s22, 1
    s_lshl_b32 s26, s26, 2
    s_lshr_b32 s54, s23, 3
    s_add_u32 s{sHP}, s26, s54    ; hp
    s_lshl_b32 s54, s54, 1
    s_add_u32 s54, s54, s53       ; 0..13
    s_sub_u32 s53, s54, 7
    s_cmp_ge_u32 s54, 7
    s_cselect_b32 s54, s53, s54   ; first K chunk
    """)
    RM = val("rotm", 1)
    if RM:
        a("""
        s_lshr_b32 s54, s23, 3
        s_add_u32 s54, s54, s23
        """)
        if RM == 1: a("s_and_b32 s54, s54, 3\ns_lshl_b32 s54, s54, 1")
        if RM == 3: a("s_and_b32 s54, s54, 1\ns_lshl_b32 s54, s54, 2")
        if RM == 2: a("s_and_b32 s54, s54, 3\ns_lshl_b32 s54, s54, 2\ns_lshr_b32 s54, 0x2520, s54\ns_and_b32 s54, s54, 15")
        if RM == 4: a("s_and_b32 s54, s54, 7\ns_lshl_b32 s54, s54, 2\ns_lshr_b32 s54, 0x53164200, s54\ns_and_b32 s54, s54, 15")
    a(f"""
    v_lshrrev_b32 v1, 6, v0
    v_and_b32 v2, 63, v0          ; lane
    v_mov_b32 v7, 0
    v_readfirstlane_b32 s{sW}, v1
    v_lshlrev_b32 v3, 4, v2       ; lane*16
    s_and_b32 s{sG}, s{sW}, 3
    s_lshr_b32 s{sKH}, s{sW}, 2
    s_cmp_eq_u32 s{sKH}, 0
    s_cbranch_scc1 L_compute
    """)

def srd_in():
    a(f"""
    s_waitcnt lgkmcnt(0)
    s_cmp_eq_u32 s{sB}, 0
    s_cselect_b32 s28, s4, s10
    s_cselect_b32 s29, s5, s11
    s_cselect_b32 s32, s6, s12
    s_cselect_b32 s33, s7, s13
    """)
def srd_const():
    a(f"""
    s_mov_b32 s30, 1835008
    s_mov_b32 s31, 0x20000
    s_mov_b32 s34, 1204224
    s_mov_b32 s35, 0x20000
    """)
def srd_rest():
    a(f"""
    s_cmp_eq_u32 s{sB}, 0
    s_mov_b32 s36, s20
    s_mov_b32 s37, s21
    s_mov_b32 s38, {WS_USED}
    s_mov_b32 s39, 0x20000
    s_cselect_b32 s40, s8, s14
    s_cselect_b32 s41, s9, s15
    s_mov_b32 s42, 401408
    s_mov_b32 s43, 0x20000
    s_mov_b32 s44, s16
    s_mov_b32 s45, s17
    s_mov_b32 s46, 3670016
    s_mov_b32 s47, 0x20000
    """)

def setup():
    srd_rest()
    a(f"""
    v_mov_b32 v{IDX}, 0xdddddddd
    s_lshl_b32 s62, s{sB}, 3
    s_add_u32 s62, s62, s{sHP}            ; b*8+hp
    s_lshl_b32 s9, s62, 11
    s_add_u32 s9, s9, {FL_OFF}
    s_lshl_b32 s62, s62, 1                ; b*16 + 2hp
    s_lshr_b32 s63, s{sG}, 1              ; hd
    s_add_u32 s{sHD}, s62, s63
    s_lshl_b32 s7, s63, 14
    s_lshl_b32 s63, s{sKH}, 13
    s_add_u32 s7, s7, s63
    s_add_u32 s7, s7, {C0}
    v_add_u32 v{VC}, s7, v3
    v_add_u32 v{VA}, {C3-C0}, v{VC}
    s_add_u32 s62, s62, s{sKH}
    s_lshl_b32 s4, s62, 6
    s_add_u32 s4, s4, s{sG}
    s_lshl_b32 s4, s4, 12
    s_and_b32 s5, s{sJ}, 8
    s_sub_u32 s5, s5, 1
    {f"s_mov_b32 s5, s{sJ}" if opt("ownrot") else ""}
    s_lshl_b32 s8, s{sW}, 12
    s_lshl_b32 s10, s{sG}, 9
    s_add_u32 s10, s10, s9
    s_lshr_b32 s62, s{sJ}, {FL2}
    s_lshl_b32 s62, s62, {FL2+5}
    s_add_u32 s10, s10, s62
    s_and_b32 s62, s{sJ}, {(1<<FL2)-1}
    s_lshl_b32 s62, s62, 3
    s_add_u32 s10, s10, s62
    s_lshr_b32 s62, s{sW}, 1
    s_lshl_b32 s62, s62, 9
    s_add_u32 s9, s9, s62
    v_lshlrev_b32 v{PA}, 3, v2
    s_mul_i32 s62, s23, 37
    s_lshr_b32 s62, s62, 8                ; r/7
    s_mul_i32 s3, s62, 7
    s_sub_u32 s3, s23, s3                 ; ct
    s_lshl_b32 s12, s22, 2
    s_add_u32 s12, s12, s62
    s_lshl_b32 s12, s12, 2
    s_and_b32 s100, s{sG}, 1
    s_lshl_b32 s100, s100, 1
    s_add_u32 s100, s100, s{sKH}
    s_lshr_b32 s101, s{sG}, 1
    s_add_u32 s12, s12, s100
    v_lshrrev_b32 v{WOA}, 3, v2
    v_and_b32 v{EXA}, 7, v2
    v_bfe_u32 v{EXB}, v2, 4, 1
    v_lshlrev_b32 v{EXB}, 2, v{EXB}
    v_xor_b32 v{EXA}, v{EXA}, v{EXB}
    v_mul_u32_u24 v{WOA}, 896, v{WOA}
    v_lshl_add_u32 v{WOA}, v{EXA}, 4, v{WOA}
    s_mul_i32 s62, s{sG}, {8*896}
    s_mul_i32 s63, s{sKH}, {224*896}
    s_add_u32 s62, s62, s63
    s_lshl_b32 s63, s3, 7
    s_add_u32 s62, s62, s63
    v_add_u32 v{WOA}, s62, v{WOA}
    s_mul_i32 s13, s{sKH}, {C3-C0}
    s_lshl_b32 s62, s{sG}, 10
    s_add_u32 s13, s13, s62
    s_add_u32 s13, s13, {C0}
    s_lshl_b32 s62, s{sW}, 12
    v_add_u32 v{EXA}, s62, v3
    s_xor_b32 s62, s62, 16384
    v_add_u32 v{EXB}, s62, v3
    s_add_u32 s11, s8, {C1}
    s_add_u32 s69, s8, {C2}
    s_lshl_b32 s62, s{sB}, 4
    s_add_u32 s62, s62, s{sJ}
    s_lshl_b32 s62, s62, 1
    s_and_b32 s63, s{sG}, 1
    s_add_u32 s62, s62, s63
    s_lshl_b32 s62, s62, 1
    s_add_u32 s62, s62, s{sKH}
    s_lshl_b32 s62, s62, 4
    s_and_b32 s63, s{sHD}, 15
    s_add_u32 s62, s62, s63
    s_lshl_b32 s15, s62, 3
    s_add_u32 s15, s15, {FO_OFF}
    s_lshl_b32 s14, s62, 11
    s_add_u32 s14, s14, {OF_OFF}
    s_lshl_b32 s16, s12, 7
    s_lshl_b32 s62, s{sKH}, 6
    s_add_u32 s16, s16, s62
    s_add_u32 s16, s16, {FO_OFF}
    s_lshl_b32 s17, s12, 15
    s_lshl_b32 s62, s101, 14
    s_add_u32 s17, s17, s62
    s_add_u32 s17, s17, {OF_OFF}
    v_lshrrev_b32 v216, 5, v2             ; hh
    v_bfe_u32 v217, v2, 2, 2
    v_lshl_add_u32 v{P3A}, v216, 2, v217
    v_lshlrev_b32 v{P3A}, 7, v{P3A}
    v_bfe_u32 v217, v2, 4, 1
    v_lshl_add_u32 v{P3A}, v217, 5, v{P3A}
    v_and_b32 v217, 3, v2
    v_lshl_add_u32 v{P3A}, v217, 3, v{P3A}
    v_bfe_u32 v217, v2, 3, 1
    v_lshl_add_u32 v{P3A}, v217, 6, v{P3A}
    s_mul_i32 s62, s101, {C3-C0}
    s_add_u32 s62, s62, {C0}
    v_add_u32 v{P3A}, s62, v{P3A}
    v_and_b32 v217, 31, v2
    v_and_b32 v218, 7, v2
    v_xor_b32 v218, v216, v218
    v_lshlrev_b32 v218, 4, v218
    v_lshl_add_u32 v{PWA}, v217, 8, v218
    s_lshl_b32 s62, s101, 15
    s_lshl_b32 s63, s100, 13
    s_add_u32 s62, s62, s63
    s_add_u32 s62, s62, {C1}
    v_add_u32 v{PWA}, s62, v{PWA}
    v_lshrrev_b32 v217, 3, v2
    v_and_b32 v218, 7, v2
    v_lshlrev_b32 v219, 1, v218
    v_xor_b32 v219, v219, v217
    v_lshlrev_b32 v219, 4, v219
    v_lshl_add_u32 v{PRA}, v217, 8, v219
    s_lshl_b32 s62, s100, 13
    s_lshl_b32 s63, s101, 12
    s_add_u32 s62, s62, s63
    s_add_u32 s62, s62, {C1}
    v_add_u32 v{PRA}, s62, v{PRA}
    s_and_b32 s62, s12, 63
    s_lshl_b32 s62, s62, 5
    s_lshl_b32 s63, s101, 4
    s_add_u32 s62, s62, s63
    v_add_u32 v217, s62, v217
    v_mul_u32_u24 v217, 1792, v217
    v_lshl_add_u32 v{OUTA}, v218, 4, v217
    s_mul_i32 s62, s{sB}, 896
    s_lshl_b32 s63, s3, 7
    s_add_u32 s62, s62, s63
    v_add_u32 v{OUTA}, s62, v{OUTA}
    s_mov_b32 s68, 0
    v_lshrrev_b32 v217, {FL2}, v2
    v_and_b32 v218, {(1<<FL2)-1}, v2
    v_lshlrev_b32 v218, 3, v218
    v_lshl_add_u32 v216, v217, {FL2+5}, v218
    s_and_b32 s62, s{sJ}, 8
    s_lshl_b32 s7, 15, s62                ; lanes of the flags of the first foreign chunks
    """)
    if not opt("oflags"):
        a(f"""
        s_lshl_b32 s15, s{sB}, 4
        s_add_u32 s15, s15, s{sJ}
        s_lshl_b32 s15, s15, 7
        s_lshl_b32 s62, s{sHP}, 3
        s_add_u32 s15, s15, s62
        s_add_u32 s15, s15, {FO_OFF}
        s_lshr_b32 s16, s12, 2
        s_lshl_b32 s16, s16, 7
        s_add_u32 s16, s16, {FO_OFF}
        v_mov_b32 v220, -1
        v_mov_b32 v221, -1
        v_mov_b32 v222, -1
        v_mov_b32 v223, -1
        """)
    for r in range(O, O+32): a(f"v_mov_b32 v{r}, 0")

def loader():
    a(f"""
    v_lshrrev_b32 v8, 3, v2       ; lane/8
    v_and_b32 v9, 7, v2
    v_lshrrev_b32 v14, 4, v2
    v_xor_b32 v9, v9, v14
    v_xor_b32 v14, 4, v9
    s_lshl_b32 s55, s{sJ}, 7
    s_lshl_b32 s56, s{sG}, 5
    s_add_u32 s55, s55, s56
    s_mul_i32 s55, s55, 896
    v_mul_u32_u24 v8, 896, v8
    v_add_u32 v8, s55, v8
    v_lshl_add_u32 v10, v9, 4, v8
    v_lshl_add_u32 v11, v14, 4, v8
    v_add_u32 v12, {2*6144}, v10
    v_add_u32 v13, {3*6144}, v11
    v_add_u32 v11, {6144}, v11
    s_lshl_b32 s55, s{sG}, 12              ; g*4096
    s_lshl_b32 s57, s54, 7
    s_mov_b32 m0, s55
    s_mul_i32 s58, s54, {64*2688}
    """)
    srd_const()
    a(f"""
    v_lshrrev_b32 v8, 4, v2
    v_and_b32 v9, 15, v2
    v_lshlrev_b32 v20, 2, v8
    v_xor_b32 v9, v9, v20         ; P
    v_lshrrev_b32 v20, 3, v9      ; seg
    v_and_b32 v9, 7, v9
    v_min_u32 v9, 6, v9
    v_mul_u32_u24 v8, 2688, v8
    v_mul_u32_u24 v20, 896, v20
    v_lshlrev_b32 v9, 4, v9
    v_add3_u32 v8, v8, v9, v20
    s_mul_i32 s59, s{sG}, {16*2688}
    s_mul_i32 s60, s{sHP}, 112
    s_add_u32 s59, s59, s60
    s_add_u32 s60, s59, 896
    v_add_u32 v14, s60, v8
    v_add_u32 v15, {4*2688-1024}, v14
    v_add_u32 v16, {2*(4*2688-1024)}, v14
    v_add_u32 v17, {3*(4*2688-1024)}, v14
    """)
    srd_in()
    for q in range(4): a(f"buffer_load_dwordx4 v{10+q}, {X_SRD}, s57 offen offset:{q*1024} {SC} lds")
    def next_c():
        a("""
        s_add_u32 s54, s54, 1
        s_cmp_eq_u32 s54, 7
        s_cselect_b32 s54, 0, s54
        """)
    def item(i):
        if i < 7:
            if i:
                a(f"""
                s_lshl_b32 s57, s54, 7
                s_add_u32 m0, s55, {i*16384}
                s_mul_i32 s58, s54, {64*2688}
                """)
                for q in range(4): a(f"buffer_load_dwordx4 v{10+q}, {X_SRD}, s57 offen offset:{q*1024} {SC} lds")
            a(f"s_add_u32 m0, s55, {wslot(i)}")
            a("s_nop 0")
            for q in range(4): a(f"buffer_load_dwordx4 v{14+q}, {W_SRD}, s58 offen offset:{q*1024} {SC} lds")
            next_c()
        else:
            for d in range(2):
                if 2*(i-7)+d > 6: break
                a(f"""
                s_add_u32 m0, s56, {wslot(i) + d*8192}
                s_mul_i32 s58, s54, {64*2688}
                """)
                for q in range(2): a(f"buffer_load_dwordx4 v{18+q}, {W_SRD}, s58 offen offset:{q*1024} {SC} lds")
                next_c()
    item(0); item(1)
    a(f"""
    v_lshrrev_b32 v8, 3, v2
    v_and_b32 v9, 7, v2
    v_bfe_u32 v20, v2, 4, 1
    v_lshlrev_b32 v20, 2, v20
    v_xor_b32 v9, v9, v20
    v_min_u32 v9, 6, v9
    v_mul_u32_u24 v8, 2688, v8
    v_lshl_add_u32 v8, v9, 4, v8
    v_add_u32 v18, s59, v8
    v_add_u32 v19, {8*2688-1024}, v18
    s_lshl_b32 s56, s{sG}, 11
    """)
    stamp(1)
    cnt = lambda i: 8 if i < 7 else (4 if i < 10 else (2 if i == 10 else 0))
    for k in range(11):
        a(f"s_waitcnt vmcnt({0 if (opt('sfirst') and k == 7) else cnt(k+1)})")
        a("s_barrier")
        if k == 0: stamp(2)
        if opt("sfirst"):
            if k + 2 <= 7: item(k+2)
            if k == 7:
                a("s_barrier")
                item(8); item(9)
            if k == 8: item(10)
        elif k + 2 <= 10: item(k+2)
        if k == 8: setup()
        if k == 9: a(f"global_load_dwordx2 v[{TMP}:{TMP+1}], v7, s[18:19] {SC}")
    tag_check("L_tagl", TMP)
    stamp(3); stamp(4)
    if opt("pre"):
        for _ in range(val("ldelay", 0)): a("s_sleep 2")
    prepoll()
    a(f"""
    s_lshl_b32 s55, s{sG}, 12
    v_add_u32 v{TMP+4}, s55, v3
    s_barrier
    """)
    for i in range(4): a(f"ds_read_b128 {vr(Q+4*i,4)}, v{TMP+4} offset:{i*1024}")
    a("s_branch L_attn")

def compute():
    XA = 24
    WK, WV, WQ = 28, 168, 169
    AK, AV, AQ = (32, 64), (48, 80), (96, 112)
    FB = 128
    PK = 32
    a("L_compute:")
    srd_const(); srd_in()
    if not opt("nocodepf"):
        a(f"""
        s_getpc_b64 s[62:63]
        L_pc:
        s_and_b32 s55, s23, 7
        s_lshl_b32 s55, s55, 2
        s_add_u32 s55, s55, s{sW}
        s_lshl_b32 s55, s55, 10
        v_add_u32 v8, s55, v3
        v_min_u32 v8, L_code_end - L_pc - 16, v8
        global_load_dwordx4 v[164:167], v8, s[62:63]
        """)
    a(f"""
    s_cmp_lg_u32 s2, 0
    s_cbranch_scc1 L_notag
    s_cmp_lg_u32 s{sW}, 0
    s_cbranch_scc1 L_notag
    {"s_mov_b64 s[60:61], s[98:99]" if opt("tag0") else "s_memrealtime s[60:61]"}
    s_waitcnt lgkmcnt(0)
    s_or_b32 s60, s60, 1
    v_mov_b32 v18, s60
    v_mov_b32 v19, s61
    s_mov_b64 exec, 1
    global_store_dwordx2 v7, v[18:19], s[18:19] {SC}
    s_mov_b64 exec, -1
    L_notag:
    v_and_b32 v8, 31, v2          ; m
    v_lshrrev_b32 v9, 5, v2       ; hh
    v_bfe_u32 v10, v2, 1, 3       ; z
    v_xor_b32 v10, v9, v10
    s_and_b32 s55, s{sG}, 1
    s_lshl_b32 s55, s55, 13
    v_lshlrev_b32 v11, 7, v8
    v_add_u32 v11, s55, v11
    v_lshl_add_u32 v{XA}, v10, 4, v11
    v_xor_b32 v12, 2, v10
    v_lshl_add_u32 v{XA+1}, v12, 4, v11
    v_xor_b32 v12, 4, v10
    v_lshl_add_u32 v{XA+2}, v12, 4, v11
    v_xor_b32 v12, 6, v10
    v_lshl_add_u32 v{XA+3}, v12, 4, v11
    v_bfe_u32 v10, v2, 2, 2       ; r
    v_bfe_u32 v11, v2, 4, 1       ; nhalf
    v_and_b32 v12, 3, v2          ; c4
    v_lshl_add_u32 v11, v11, 2, v12
    s_lshr_b32 s55, s{sG}, 1
    s_mul_i32 s55, s55, 7
    v_add_u32 v11, s55, v11       ; u
    v_lshrrev_b32 v12, 1, v11     ; piece
    v_and_b32 v11, 1, v11
    v_lshlrev_b32 v11, 3, v11     ; half*8
    v_lshl_add_u32 v13, v9, 3, v10      ; 8hh + r
    v_lshlrev_b32 v14, 2, v10
    v_xor_b32 v14, v12, v14             ; piece ^ (r<<2)
    v_lshl_add_u32 v14, v14, 4, v11
    v_lshl_add_u32 v14, v13, 8, v14
    v_add_u32 v{WK}, {WR0}, v14
    v_xor_b32 v{WV}, 128, v{WK}
    v_lshrrev_b32 v14, 1, v10
    v_lshlrev_b32 v14, 2, v14
    v_xor_b32 v14, v12, v14             ; piece ^ ((r>>1)<<2)
    v_lshl_add_u32 v14, v14, 4, v11
    v_lshl_add_u32 v14, v13, 7, v14
    v_add_u32 v{WQ}, {WR0}, v14
    v_and_b32 v29, 0x33, v2
    v_bfe_u32 v10, v2, 2, 1
    v_bfe_u32 v11, v2, 3, 1
    v_lshl_or_b32 v29, v10, 3, v29
    v_lshl_or_b32 v29, v11, 2, v29
    v_lshlrev_b32 v29, 4, v29     ; swap23(lane)*16
    v_cmp_gt_u32 s[56:57], 28, v8
    v_cmp_eq_u32 s[58:59], 28, v8
    v_mov_b32 v30, 0x3f803f80
    v_mov_b32 v31, 0x00003f80
    v_cndmask_b32 v1, 0, v30, s[58:59]
    s_lshl_b32 s60, s{sG}, 13
    s_add_u32 s60, s60, {A2}
    v_add_u32 v170, s60, v29
    v_add_u32 v171, s60, v3
    s_lshl_b32 s60, s{sG}, 12
    v_add_u32 v172, s60, v3
    """)
    PT = val("pretouch", 0)
    if PT:
        srd_rest()
        if PT == 1:
            a(f"""
            s_cmp_lg_u32 s{sW}, 1
            s_cbranch_scc1 L_nopt
            s_lshl_b32 s55, s23, 19
            v_lshlrev_b32 v8, 16, v2
            s_mov_b64 exec, 0xff
            buffer_load_dword v224, v8, {WS_SRD}, s55 offen {SC}
            s_lshl_b32 s55, s23, 17
            s_mov_b64 exec, 3
            buffer_load_dword v225, v8, {OUT_SRD}, s55 offen {SC}
            s_mov_b64 exec, -1
            L_nopt:
            """)
        else:
            a(f"""
            s_cmp_lg_u32 s{sW}, 1
            s_cbranch_scc1 L_nopt
            s_lshl_b32 s55, s23, 19
            v_lshlrev_b32 v8, 13, v2
            buffer_load_dword v224, v8, {WS_SRD}, s55 offen {SC}
            s_lshl_b32 s55, s23, 17
            v_lshlrev_b32 v8, 12, v2
            s_mov_b64 exec, 0xffffffff
            buffer_load_dword v225, v8, {OUT_SRD}, s55 offen {SC}
            s_mov_b64 exec, -1
            L_nopt:
            """)
    setup()
    a(f"""
    s_lshl_b32 s55, s{sHD}, 6
    s_lshl_b32 s60, s{sJ}, 2
    s_add_u32 s55, s55, s60
    s_and_b32 s60, s{sG}, 1
    s_lshl_b32 s60, s60, 1
    s_add_u32 s55, s55, s60
    s_lshl_b32 s55, s55, 12       ; KV global offset of this wave's first tile
    s_mov_b32 s60, {hex(f2u(CSCALE))}
    s_mov_b32 s61, s60
    v_cmp_gt_u32 vcc, 32, v2
    """)
    def FB2(t): return (128, 140, 152)[t % 3] if t else 128
    def xoff(i): return (i if i < 4 else i-4) * 16384
    def reads1(t):
        i, s = divmod(t, 4); b = FB + 16*(t & 1); wo = wslot(i) - WR0
        R = [f"ds_read_b128 {vr(b,4)}, v{XA+s} offset:{xoff(i)}"]
        for rd in range(2): R.append(f"ds_read_b64_tr_b16 {vr(b+8+2*rd,2)}, v{WK} offset:{wo+(16*s+4*rd)*256}")
        for rd in range(2): R.append(f"ds_read_b64_tr_b16 {vr(b+12+2*rd,2)}, v{WV} offset:{wo+(16*s+4*rd)*256}")
        R.append(f"ds_read_b128 {vr(b+4,4)}, v{XA+s} offset:{xoff(i)+4096}")
        return R
    def reads2(t):
        i, s = divmod(t, 4); b = FB2(t); wo = wslot(7 + i//2) - WR0 + (i & 1)*8192
        R = [f"ds_read_b128 {vr(b,4)}, v{XA+s} offset:{xoff(i)}"]
        for rd in range(2): R.append(f"ds_read_b64_tr_b16 {vr(b+8+2*rd,2)}, v{WQ} offset:{wo+(16*s+4*rd)*128}")
        R.append(f"ds_read_b128 {vr(b+4,4)}, v{XA+s} offset:{xoff(i)+4096}")
        return R
    def shift(d): return [f"v_add_u32 v{XA+k}, {d & 0xffffffff}, v{XA+k}" for k in range(4)]
    stamp(1)
    a("s_barrier")
    stamp(2)
    for r in reads1(0): a(r)
    for t in range(28):
        i, s = divmod(t, 4); b = FB + 16*(t & 1)
        cin = lambda r: ("0" if t == 0 else vr(r, 16))
        M = [f"v_mfma_f32_32x32x16_bf16 {vr(AK[0],16)}, {vr(b+8,4)}, {vr(b,4)}, {cin(AK[0])}",
             f"v_mfma_f32_32x32x16_bf16 {vr(AV[0],16)}, {vr(b,4)}, {vr(b+12,4)}, {cin(AV[0])}",
             f"v_mfma_f32_32x32x16_bf16 {vr(AK[1],16)}, {vr(b+8,4)}, {vr(b+4,4)}, {cin(AK[1])}",
             f"v_mfma_f32_32x32x16_bf16 {vr(AV[1],16)}, {vr(b+4,4)}, {vr(b+12,4)}, {cin(AV[1])}"]
        R = reads1(t+1) if t < 27 else reads2(0)
        a("s_waitcnt lgkmcnt(0)")
        if s == 3:
            a(M[0])
            if i == 3:
                for l in shift(65536): a(l)
            if i == 6:
                for l in shift(-65536): a(l)
            a("s_barrier")
            per = val("p1r", 3)
            for m in range(1, 4):
                for r in R[per*(m-1):per*(m-1)+per]: a(r)
                a(M[m])
        else:
            per = val("p1r", 3)
            for m in range(4):
                a(M[m])
                for r in R[per*m:per*m+per]: a(r)
        if t == 17: a(f"global_load_dwordx2 v[174:175], v7, s[18:19] {SC}")
    stamp(3)
    side = []
    for i in range(2):
        for k in range(8): side.append(f"v_cvt_pk_bf16_f32 v{AK[i]+k}, v{AK[i]+2*k}, v{AK[i]+2*k+1}")
        side.append(f"v_cndmask_b32 v{AK[i]+6}, v30, v{AK[i]+6}, vcc")
        side.append(f"v_cndmask_b32 v{AK[i]+7}, v31, v{AK[i]+7}, vcc")
        side.append(f"buffer_store_dwordx4 {vr(AK[i],4)}, v29, {WS_SRD}, s55 offen {SC}")
        side.append(f"buffer_store_dwordx4 {vr(AK[i]+4,4)}, v29, {WS_SRD}, s55 offen offset:1024 {SC}")
        for k in range(8): side.append(f"v_cvt_pk_bf16_f32 v{AV[i]+k}, v{AV[i]+2*k}, v{AV[i]+2*k+1}")
        for k in range(8): side.append(f"v_cndmask_b32 v{AV[i]+k}, v1, v{AV[i]+k}, s[56:57]")
        side.append(f"buffer_store_dwordx4 {vr(AV[i],4)}, v3, {WS_SRD}, s55 offen offset:2048 {SC}")
        side.append(f"buffer_store_dwordx4 {vr(AV[i]+4,4)}, v3, {WS_SRD}, s55 offen offset:3072 {SC}")
        if i == 0: side.append("s_add_u32 s55, s55, 4096")
    stores = []
    if opt("stag"):
        stores = [l.replace("s55", "s62") if k >= 4 else l for k, l in enumerate(l for l in side if l.startswith("buffer_store"))]
        side = [l for l in side if not l.startswith("buffer_store") and not l.startswith("s_add")]
        a("s_add_u32 s62, s55, 4096")
    def store_block(lbl, early):
        a(f"""
        s_bitcmp1_b32 s{sJ}, 2
        s_cbranch_scc{1 if early else 0} {lbl}
        """)
        for l in stores: a(l)
        a(f"{lbl}:")
    PER = val("side", 8)
    ST1 = (len(side) + PER - 1) // PER - 1
    ST2 = val("st2", 22)
    if PER >= 100:
        a("s_nop 7")
        for l in side: a(l)
        side = []
        if opt("sfirst"): a("s_barrier")
    lw = []
    for i in range(2):
        lw += [f"ds_write_b128 v170, {vr(AK[i],4)} offset:{4096*i}", f"ds_write_b128 v170, {vr(AK[i]+4,4)} offset:{4096*i+1024}",
               f"ds_write_b128 v171, {vr(AV[i],4)} offset:{4096*i+2048}", f"ds_write_b128 v171, {vr(AV[i]+4,4)} offset:{4096*i+3072}"]
    FT = val("flagt", 22)
    for r in reads2(1): a(r)
    for t in range(28):
        i, s = divmod(t, 4); b = FB2(t)
        cin = lambda r: ("0" if t == 0 else vr(r, 16))
        M = [f"v_mfma_f32_32x32x16_bf16 {vr(AQ[0],16)}, {vr(b+8,4)}, {vr(b,4)}, {cin(AQ[0])}",
             f"v_mfma_f32_32x32x16_bf16 {vr(AQ[1],16)}, {vr(b+8,4)}, {vr(b+4,4)}, {cin(AQ[1])}"]
        R = reads2(t+2) if t+2 < 28 else []
        bar = (t+2) in (8, 16, 24)
        nw = 2 if t >= 25 else 0
        if bar: a("s_waitcnt lgkmcnt(0)")
        else: a(f"s_waitcnt lgkmcnt({(4 if t < 27 else 0) + nw})")
        a(M[0])
        if t+2 == 16:
            for l in shift(65536): a(l)
        if bar: a("s_barrier")
        for r in R: a(r)
        for l in side[:PER//2]: a(l)
        side = side[PER//2:]
        a(M[1])
        for l in side[:PER//2]: a(l)
        side = side[PER//2:]
        if t >= 24:
            for l in lw[2*(t-24):2*(t-24)+2]: a(l)
        if opt("stag") and t == ST1: store_block("L_st1", True)
        if opt("stag") and t == ST2: store_block("L_st2", False)
        if t == FT:
            assert not side
            if opt("stag"):
                assert FT < ST2
                a("s_waitcnt vmcnt(0)")
                tag_check("L_tagc", 174)
                a(f"""
                s_bitcmp1_b32 s{sJ}, 2
                s_cbranch_scc1 L_fl1
                """)
                flag_store("s10", 174)
                a("L_fl1:")
            else:
                a("s_waitcnt vmcnt(8)")
                tag_check("L_tagc", 174)
                a("s_waitcnt vmcnt(0)")
                flag_store("s10", 174)
            stamp(4)
    prepoll()
    a("s_nop 7")
    a("s_nop 1")
    for i in range(2):
        A = AQ[i]
        for k in range(8): a(f"v_pk_mul_f32 {vr(A+2*k,2)}, {vr(A+2*k,2)}, s[60:61]")
        QD = Q + 8*i
        for k in range(8): a(f"v_cvt_pk_bf16_f32 v{QD+k}, v{A+2*k}, v{A+2*k+1}")
        a(f"v_cndmask_b32 v{QD+6}, 0, v{QD+6}, vcc")
        a(f"v_cndmask_b32 v{QD+7}, 0, v{QD+7}, vcc")
        a(f"ds_write_b128 v172, {vr(QD,4)} offset:{2048*i}")
        a(f"ds_write_b128 v172, {vr(QD+4,4)} offset:{2048*i+1024}")
    if FT >= 28:
        a("s_waitcnt vmcnt(8)")
        tag_check("L_tagc", 174)
        a("s_waitcnt vmcnt(0)")
        flag_store("s10", 174)
        stamp(4)
    a("""
    s_waitcnt lgkmcnt(0)
    s_barrier
    """)

def tile_addr(t):
    return (VA if t < 2 else VC, (t & 1) * 4096)

def unit(u, kind="loop", side=None, hook=None):
    side = side or {}
    cur = S + 16*(u & 3); nxt = S + 16*((u+1) & 3); prv = S + 16*((u-1) & 3)
    tn = ((u+1) >> 1) & 1; subn = (u+1) & 1
    tp = ((u-1) >> 1) & 1; subp = (u-1) & 1
    kf = KF + 8*tn; vf = VF + 8*tp
    qn = Q + 8*subn; op = O + 16*subp
    M = [f"v_mfma_f32_32x32x16_bf16 {vr(nxt,16)}, {vr(kf,4)}, {vr(qn,4)}, 0",
         f"v_mfma_f32_32x32x16_bf16 {vr(nxt,16)}, {vr(kf+4,4)}, {vr(qn+4,4)}, {vr(nxt,16)}",
         f"v_smfmac_f32_32x32x32_bf16 {vr(op,16)}, {vr(vf,4)}, {vr(prv,8)}, v{IDX}",
         f"v_smfmac_f32_32x32x32_bf16 {vr(op,16)}, {vr(vf+4,4)}, {vr(prv+8,8)}, v{IDX}"]
    E = [f"v_exp_f32 v{cur+e}, v{cur+e}" for e in range(16)]
    t = u >> 1
    if (u & 1) == 0:
        if t < 3 and not (kind == "first" and t == 1):
            va, off = tile_addr(t+1); kb = KF + 8*((t+1) & 1)
            a(f"ds_read_b128 {vr(kb,4)}, v{va} offset:{off}")
            a(f"ds_read_b128 {vr(kb+4,4)}, v{va} offset:{off+1024}")
        va, off = tile_addr(t); vb = VF + 8*(t & 1)
        a(f"ds_read_b128 {vr(vb,4)}, v{va} offset:{off+2048}")
        a(f"ds_read_b128 {vr(vb+4,4)}, v{va} offset:{off+3072}")
    elif not (u == 7 and hook):
        a("s_waitcnt lgkmcnt(0)")
    if kind == "first" and u == 0: M[2] = M[3] = None
    if (kind == "first" and u == 3) or (kind == "last" and u == 7): M[0] = M[1] = None
    if u == 7 and hook:
        H = hook()
        seq = [M[2]] + E[:6] + [M[3]] + E[6:8] + ["s_waitcnt lgkmcnt(0)", M[0]] + E[8:10] + [M[1]]
        k = 0
        for e in range(6):
            n = (len(H) * (e + 1)) // 6
            seq += H[k:n] + [E[10+e]]; k = n
        for l in seq: a(l)
        return
    for m in range(4):
        if M[m]: a(M[m])
        for e in E[4*m:4*m+4]: a(e)
        for l in side.get(m, []): a(l)

def chunk_salu(m0src):
    return ["s_add_u32 s5, s5, 1", "s_and_b32 s5, s5, 15", f"s_cmp_eq_u32 s5, s{sJ}", "s_addc_u32 s5, s5, 0", "s_and_b32 s5, s5, 15",
            "s_lshl_b32 s6, s5, 14", m0src, "s_add_u32 s6, s6, s4"]
def l2pf():
    return []
    return ["s_and_b32 s101, s98, 15", "s_lshl_b32 s101, s101, 14", "s_add_u32 s101, s101, s100", "s_mov_b64 exec, 0xff",
            f"buffer_load_dword v217, v216, {WS_SRD}, s101 offen {SC}", "s_mov_b64 exec, -1", "s_add_u32 s98, s98, 2"]
def win_salu(i, m0src):
    if opt("nowin"): return chunk_salu(m0src)
    return [f"s_add_u32 s6, s{sJ}, {i}", "s_and_b32 s6, s6, 3", f"s_and_b32 s5, s{sJ}, 8", "s_or_b32 s5, s5, s6",
            "s_lshl_b32 s6, s5, 14", m0src, "s_add_u32 s6, s6, s4"]
def after_win(m0src):
    if opt("nowin"): return chunk_salu(m0src)
    return [f"s_and_b32 s6, s{sJ}, 11", f"s_and_b32 s5, s{sJ}, 8", "s_add_u32 s5, s5, 4", f"s_bitcmp1_b32 s{sJ}, 2",
            "s_cselect_b32 s6, s6, s5", "s_subb_u32 s5, s5, 0", "s_lshl_b32 s6, s6, 14", m0src, "s_add_u32 s6, s6, s4"]
def piece(q): return f"buffer_load_dwordx4 v3, {WS_SRD}, s6 offen offset:{q*1024} {SC} lds"

def deadline(lbl, ticks):
    a(f"""
    s_add_u32 s53, s{TAG}, {ticks}
    {lbl}:
    s_memrealtime s[60:61]
    s_waitcnt lgkmcnt(0)
    s_sub_u32 s60, s60, s53
    s_cmp_lt_i32 s60, 0
    s_cbranch_scc1 {lbl}
    """)

def attention():
    PU = val("pu", -1); CU_ = val("cu", 0)
    PR = [3, 2, 2, 1, 1, 0, 0, 3]
    def hook(first=False):
        a(f"""
        v_xor_b32 v{VA}, {C1 ^ C3}, v{VA}
        v_xor_b32 v{VC}, {C0 ^ C2}, v{VC}
        s_waitcnt vmcnt(0) lgkmcnt(0)
        {"" if opt("xnobar") else "s_barrier"}
        ds_read_b128 {vr(KF,4)}, v{VA}
        ds_read_b128 {vr(KF+4,4)}, v{VA} offset:1024
        """)
        return [f"s_xor_b32 s11, s11, {C1 ^ C3}", f"s_xor_b32 s69, s69, {C0 ^ C2}"] + (after_win if first else chunk_salu)("s_mov_b32 m0, s11")
    restart = f"""
    s_waitcnt lgkmcnt(0)
    v_mfma_f32_32x32x16_bf16 {vr(S,16)}, {vr(KF,4)}, {vr(Q,4)}, 0
    v_mfma_f32_32x32x16_bf16 {vr(S,16)}, {vr(KF+4,4)}, {vr(Q+4,4)}, {vr(S,16)}
    s_nop 11
    """
    CLEAN = [f"buffer_store_dwordx4 v[220:223], v3, {WS_SRD}, s14 offen {SC}", f"buffer_store_dwordx4 v[220:223], v3, {WS_SRD}, s14 offen offset:1024 {SC}"]
    a("L_attn:")
    if opt("xd1"): deadline("L_xd1", val("xd1", 0))
    pend = []
    if opt("pre"):
        poll_read(99)
        if opt("stag"):
            a(f"""
            s_cmp_lg_u32 s{sKH}, 0
            s_cbranch_scc1 L_fl2
            s_bitcmp1_b32 s{sJ}, 2
            s_cbranch_scc0 L_fl2
            """)
            flag_store("s10")
            a("L_fl2:")
        need_bits("L_pre", 99, 7, "s9", 0xffff)
        for l in win_salu(1, f"s_add_u32 m0, s8, {C0}") + [piece(q) for q in range(4)]: a(l)
        pend = win_salu(2, "s_mov_b32 m0, s11") + [piece(q) for q in range(4)] + win_salu(3, "s_mov_b32 m0, s69") + [piece(q) for q in range(4)]
        if (not opt("cleanlate")): pend += CLEAN
        PU = CU_ = 99
    if PU < 0: poll_issue("s9", 0xffff)
    a(f"""
    ds_read_b128 {vr(KF,4)}, v{VA}
    ds_read_b128 {vr(KF+4,4)}, v{VA} offset:1024
    """)
    a(restart)
    stamp(5)
    for u in range(4):
        a(f"s_setprio {3-u}")
        sd = {}
        if opt("c2at") and pend and u == val("c2at", 3):
            n2 = len(win_salu(2, "x")) + 4
            first, pend = pend[:n2], pend[n2:]
            sd = {0: first[:-4], 1: first[-4:-2], 2: first[-2:]}
        elif pend and not opt("c23late"):
            left = (4 - u) * 4
            for m in range(4):
                n = -(-len(pend) // left); sd[m] = pend[:n]; pend = pend[n:]; left -= 1
        unit(u, "first", side=sd)
        if opt("lazy") and not opt("pre") and u == val("cu2", 1):
            a("s_mov_b32 s68, 0xffff")
            need_bits("L_call", 99, 68, "s9", 0xffff)
            a("s_mov_b32 s68, 0")
            pend = pend2
        if u == PU: poll_issue("s9", 0xffff)
        if u == CU_:
            if not opt("lazy"):
                poll_check("L_kvp", "s9", 0xffff)
                for l in win_salu(1, f"s_add_u32 m0, s8, {C0}") + [piece(q) for q in range(4)]: a(l)
            else:
                poll_read(99)
                if opt("pre"):
                    a("""
                    s_cmp_lg_u32 s98, 0
                    s_cbranch_scc1 L_f1b
                    """)
                else:
                    for l in win_salu(1, f"s_add_u32 m0, s8, {C0}"): a(l)
                    a("s_lshl_b32 s68, 1, s5")
                need_bits("L_c1", 99, 68, "s9", 0xffff)
                for q in range(4): a(piece(q))
                a("L_f1b:")
                if opt("repoll"): poll_issue("s9", 0xffff)
            if not opt("c3late"):
                pend = win_salu(2, "s_mov_b32 m0, s11") + [piece(q) for q in range(4)] + win_salu(3, "s_mov_b32 m0, s69") + [piece(q) for q in range(4)]
                if (not opt("cleanlate")): pend += CLEAN
                if opt("lazy"): pend2, pend = pend, []
            else:
                for l in chunk_salu("s_mov_b32 m0, s11") + [piece(q) for q in range(4)]: a(l)
    a(f"""
    s_waitcnt vmcnt({4 if opt("c2at") else 0 if opt("c23late") else (10 if (not opt("cleanlate")) else 8)})
    s_barrier
    ds_read_b128 {vr(KF,4)}, v{VC}
    ds_read_b128 {vr(KF+4,4)}, v{VC} offset:1024
    """)
    if opt("c3late"):
        for l in chunk_salu("s_mov_b32 m0, s69") + [piece(q) for q in range(4)]: a(l)
        if not opt("oflags"):
            a(f"buffer_store_dwordx4 v[220:223], v3, {WS_SRD}, s14 offen {SC}")
            a(f"buffer_store_dwordx4 v[220:223], v3, {WS_SRD}, s14 offen offset:1024 {SC}")
    for l in l2pf(): a(l)
    a(restart)
    stamp(6)
    for u in range(4, 8):
        a(f"s_setprio {[2,1,0,3][u-4]}")
        sd = {}
        if pend and opt("c23late"):
            left = (4 + val("c23n", 1) - u) * 4
            for m in range(4):
                n = -(-len(pend) // left); sd[m] = pend[:n]; pend = pend[n:]; left -= 1
        unit(u, "second", side=sd, hook=lambda: hook(True))
        if opt("pre") and u == val("pall", 5): poll_issue("s9", 0xffff)
    if (not opt("cleanlate")):
        a(f"""
        s_cmp_lg_u32 s{sW}, 0
        s_cbranch_scc1 L_noclean
        """)
        flag_store("s15")
        a("L_noclean:")
    else:
        for l in CLEAN: a(l)
        a(f"""
        s_cmp_eq_u32 s{sW}, 0
        s_cselect_b32 s98, 1, 99
        """)
    if opt("pre"):
        a(f"""
        v_cmp_eq_u64 vcc, s[{TAG}:{TAG+1}], v[{TMP}:{TMP+1}]
        s_mov_b32 s68, 0xffff
        s_nop 0
        s_mov_b32 s99, vcc_lo
        """)
        need_bits("L_call", 99, 68, "s9", 0xffff)
        a("s_mov_b32 s68, 0")
    stamp(7)
    DM = val("dm", 0)
    P = [piece(q) for q in range(4)]
    C2S = chunk_salu("s_mov_b32 m0, s69")
    if DM == 0:
        sides = {0: {0: [P[0]], 1: [P[1]], 2: [P[2]]}, 1: {0: [P[3]], 1: C2S + [P[0]], 2: [P[1]]}, 2: {0: [P[2]], 1: [P[3]]}}
    elif DM == 1:
        sides = {0: {0: [P[0]], 2: [P[1]]}, 1: {0: [P[2]], 2: [P[3]]}, 2: {0: C2S + [P[0]], 2: [P[1]]}, 3: {0: [P[2]], 2: [P[3]]}}
    else:
        sides = {0: {m: [P[m]] for m in range(4)}, 1: {0: C2S + [P[0]], 1: [P[1]], 2: [P[2]], 3: [P[3]]}}
    sides.setdefault(4 if DM == 1 else 3, {}).setdefault(0, []).extend(l2pf())
    PM = val("pm", 0)
    PRS = {0: {(1,-1): 2, (3,-1): 1, (5,-1): 0, (7,-1): 3},
           1: {(4,-1): 2, (5,-1): 1, (6,-1): 0, (7,-1): 3},
           2: {(5,-1): 2, (6,-1): 1, (6,1): 0, (7,-1): 3},
           3: {(5,1): 2, (6,0): 1, (6,2): 0, (7,-1): 3},
           4: {(6,0): 2, (6,1): 1, (6,2): 0, (7,-1): 3},
           5: {(3,-1): 2, (5,-1): 1, (6,1): 0, (7,-1): 3}}[PM]
    def with_prio(u, sd):
        sd = {m: list(v) for m, v in (sd or {}).items()}
        if (u, -1) in PRS and not opt("noprio"): a(f"s_setprio {PRS[(u,-1)]}")
        for m in range(4):
            if (u, m) in PRS: sd.setdefault(m, []).append(f"s_setprio {PRS[(u,m)]}")
        return sd
    a(".p2align 6")
    for _ in range(val("shift", 0)): a("s_nop 0")
    LOOP0 = len(a.L)
    a("L_loop:")
    for u in range(8):
        unit(u, side=with_prio(u, sides.get(u)), hook=hook)
        if u == 3 and not (not opt("cleanlate")):
            a("""
            s_cmp_lg_u32 s68, s98
            s_cbranch_scc1 L_noclean
            """)
            flag_store("s15")
            a("L_noclean:")
    if opt("al8"):
        def size(l):
            t = l.strip().split()[0]
            if t.endswith(":"): return 0
            if t.startswith(("v_mfma", "v_smfmac", "ds_", "buffer_")) or t.endswith("_e64"): return 8
            if t.startswith("v_xor") : return 8
            if t.startswith("s_xor"): return 8
            return 4
        off = 0; last_exp = None
        for i in range(LOOP0, len(a.L)):
            l = a.L[i]; z = size(l)
            if z == 8 and off % 8 == 4 and last_exp is not None:
                a.L[last_exp] = a.L[last_exp].replace("v_exp_f32", "v_exp_f32_e64"); off += 4
            if z == 8: last_exp = None
            if l.strip().startswith("v_exp_f32 "): last_exp = i
            off += z
    a(f"""
    s_add_u32 s68, s68, 1
    s_cmp_lt_u32 s68, 6
    s_cbranch_scc1 L_loop
    """)
    if opt("xdummy"):
        a(f"s_mov_b32 s68, {val('xdummy', 4)}")
        a("L_dummy:")
        for u in range(8):
            d = 224 + 16*(u & 1); e = 224 + 16*((u+1) & 1)
            a(f"v_mfma_f32_32x32x16_bf16 {vr(e,16)}, {vr(KF,4)}, {vr(Q,4)}, 0")
            for k in range(4): a(f"v_exp_f32 v{d+k}, v{d+k}")
            a(f"v_mfma_f32_32x32x16_bf16 {vr(e,16)}, {vr(KF+4,4)}, {vr(Q+4,4)}, {vr(e,16)}")
            for k in range(4, 8): a(f"v_exp_f32 v{d+k}, v{d+k}")
            a(f"v_smfmac_f32_32x32x32_bf16 {vr(32,16)}, {vr(VF,4)}, {vr(S+48,8)}, v{IDX}")
            for k in range(8, 12): a(f"v_exp_f32 v{d+k}, v{d+k}")
            a(f"v_smfmac_f32_32x32x32_bf16 {vr(32,16)}, {vr(VF+4,4)}, {vr(S+56,8)}, v{IDX}")
            for k in range(12, 16): a(f"v_exp_f32 v{d+k}, v{d+k}")
        a("""
        s_sub_u32 s68, s68, 1
        s_cmp_lg_u32 s68, 0
        s_cbranch_scc1 L_dummy
        """)
    if opt("xspin"):
        a(f"""
        s_memrealtime s[60:61]
        s_waitcnt lgkmcnt(0)
        s_add_u32 s68, s60, {val('xspin', 500)}
        L_xspin:
        s_memrealtime s[60:61]
        s_waitcnt lgkmcnt(0)
        s_cmp_lt_u32 s60, s68
        s_cbranch_scc1 L_xspin
        """)
    WP = []
    for i in range(8):
        WP.append([f"s_add_u32 m0, s13, {i*4096}", f"s_mov_b32 s6, {i*32*896}", f"buffer_load_dwordx4 v{WOA}, {WO_SRD}, s6 offen {SC} lds"])
    def norm(B, own, lblfail):
        for q in range(4): a(f"ds_read_b128 {vr(B+16+4*q,4)}, v{EXB} offset:{q*1024}")
        for q in range(4):
            a(f"s_waitcnt lgkmcnt({3-q})")
            for r in range(2): a(f"v_pk_add_f32 {vr(B+4*q+2*r,2)}, {vr(own+4*q+2*r,2)}, {vr(B+16+4*q+2*r,2)}")
        a(f"""
        v_mov_b32 v{B+32}, v{B+12}
        v_mov_b32 v{B+33}, v{B+12}
        s_mov_b32 s54, 0x2f800000        ; 2^-32
        s_mov_b32 s62, 0x57800000        ; 2^48
        v_permlane32_swap_b32 v{B+32}, v{B+33}
        v_pk_mul_f32 {vr(B+36,2)}, {vr(B,2)}, 0 op_sel_hi:[1,0]
        v_pk_mul_f32 {vr(B+38,2)}, {vr(B+2,2)}, 0 op_sel_hi:[1,0]
        v_rcp_f32 v{B+34}, v{B+33}
        """)
        for r in range(2, 8): a(f"v_pk_fma_f32 {vr(B+36+2*(r&1),2)}, {vr(B+2*r,2)}, 0, {vr(B+36+2*(r&1),2)} op_sel_hi:[1,0,1]")
        a(f"""
        v_pk_add_f32 {vr(B+36,2)}, {vr(B+36,2)}, {vr(B+38,2)}
        v_add_f32 v{B+36}, v{B+36}, v{B+37}
        v_add_f32 v{B+36}, v{B+36}, v{B+33}
        v_cmp_ge_f32 vcc, v{B+36}, s54
        v_cmp_le_f32 s[56:57], v{B+36}, s62
        s_nop 1
        s_and_b64 s[56:57], s[56:57], vcc
        s_cmp_eq_u64 s[56:57], -1
        s_cbranch_scc0 {lblfail}
        """)
    def norm2(B):
        a("v_cmp_gt_u32 vcc, 32, v2")
        for r in range(8): a(f"v_pk_mul_f32 {vr(B+2*r,2)}, {vr(B+2*r,2)}, {vr(B+34,2)} op_sel_hi:[1,0]")
        for i in range(4): a(f"v_cvt_pk_bf16_f32 v{B+16+i}, v{B+2*i}, v{B+2*i+1}")
        a(f"buffer_store_dwordx4 {vr(B+16,4)}, v3, {WS_SRD}, s14 offen {SC}")
        for i in range(4, 8): a(f"v_cvt_pk_bf16_f32 v{B+16+i}, v{B+2*i}, v{B+2*i+1}")
        a(f"v_cndmask_b32 v{B+22}, 0, v{B+22}, vcc")
        a(f"v_cndmask_b32 v{B+23}, 0, v{B+23}, vcc")
        a(f"buffer_store_dwordx4 {vr(B+20,4)}, v3, {WS_SRD}, s14 offen offset:1024 {SC}")
    def kread(v):
        va, off = tile_addr(v & 3); kb = KF + 8*(v & 1)
        a(f"ds_read_b128 {vr(kb,4)}, v{va} offset:{off}")
        a(f"ds_read_b128 {vr(kb+4,4)}, v{va} offset:{off+1024}")
    LP = {1: 2, 3: 1, 4: 0, 5: 2, 6: 1, 7: 0}
    a("s_mov_b32 s98, 0")
    for v in range(8):
        cur = S + 16*(v & 3); nxt = S + 16*((v+1) & 3); prv = S + 16*((v-1) & 3)
        kf = KF + 8*((v+1) & 1); vf = VF + 8*((v-1) & 1)
        qn = Q + 8*((v+1) >> 2); op = O + 16*(1 if v == 0 else ((v-1) >> 2))
        if v < 7:
            M = [f"v_mfma_f32_32x32x16_bf16 {vr(nxt,16)}, {vr(kf,4)}, {vr(qn,4)}, 0",
                 f"v_mfma_f32_32x32x16_bf16 {vr(nxt,16)}, {vr(kf+4,4)}, {vr(qn+4,4)}, {vr(nxt,16)}"]
        else: M = [None, None]
        M += [f"v_smfmac_f32_32x32x32_bf16 {vr(op,16)}, {vr(vf,4)}, {vr(prv,8)}, v{IDX}",
              f"v_smfmac_f32_32x32x32_bf16 {vr(op,16)}, {vr(vf+4,4)}, {vr(prv+8,8)}, v{IDX}"]
        E = [f"v_exp_f32 v{cur+e}, v{cur+e}" for e in range(16)]
        if v in LP: a(f"s_setprio {LP[v]}")
        if v == 5:
            a(f"""
            s_setprio 3
            s_cmp_eq_u32 s{sKH}, 0
            s_cbranch_scc1 L_mid1
            s_nop 4
            """)
            for q in range(4): a(f"ds_write_b128 v{EXA}, {vr(O+4*q,4)} offset:{q*1024}")
            a(f"""
            L_mid1:
            s_waitcnt lgkmcnt(0)
            s_barrier
            s_cmp_lg_u32 s{sKH}, 0
            s_cbranch_scc1 L_mid2
            """)
            norm(24, O, "L_midfail")
            norm2(24)
            a("L_mid2:")
            a("s_setprio 2")
        elif v: a("s_waitcnt lgkmcnt(0)")
        if v == 0: kread(1)
        va, off = tile_addr(v & 3); vb = VF + 8*(v & 1)
        if v == 0:
            a(f"ds_read_b128 {vr(vb,4)}, v{va} offset:{off+2048}")
            a(f"ds_read_b128 {vr(vb+4,4)}, v{va} offset:{off+3072}")
            seq = [M[2]] + E[:6] + [M[3]] + E[6:8] + ["s_waitcnt lgkmcnt(2)", M[0]] + E[8:10] + [M[1], "KREAD"] + E[10:13] + WP[0] + E[13:] + WP[1]
            for l in seq:
                if l == "KREAD": kread(2)
                else: a(l)
            continue
        if v + 2 < 8: kread(v + 2)
        a(f"ds_read_b128 {vr(vb,4)}, v{va} offset:{off+2048}")
        a(f"ds_read_b128 {vr(vb+4,4)}, v{va} offset:{off+3072}")
        sd = {1: {0: WP[2], 1: WP[3], 2: WP[4]}, 2: {0: WP[5], 1: WP[6], 2: WP[7]}}.get(v, {})
        for m in range(4):
            if M[m]: a(M[m])
            for e in E[4*m:4*m+4]: a(e)
            for l in sd.get(m, []): a(l)
    a("s_setprio 0")
    stamp(8)
    poll_issue("s16", 0xff)
    a(f"""
    s_waitcnt lgkmcnt(0)
    v_smfmac_f32_32x32x32_bf16 {vr(O+16,16)}, {vr(VF+8,4)}, {vr(S+48,8)}, v{IDX}
    v_smfmac_f32_32x32x32_bf16 {vr(O+16,16)}, {vr(VF+12,4)}, {vr(S+56,8)}, v{IDX}
    s_cmp_lg_u32 s{sKH}, 0
    s_cbranch_scc1 L_end1
    s_nop 9
    """)
    for q in range(4): a(f"ds_write_b128 v{EXA}, {vr(O+16+4*q,4)} offset:{q*1024}")
    a(f"""
    s_waitcnt vmcnt(3) lgkmcnt(0)
    s_barrier
    s_cmp_eq_u32 s98, 0
    s_cbranch_scc1 L_p3
    s_branch L_fallbackA
    L_midfail:
    s_mov_b32 s98, 1
    s_waitcnt vmcnt(0)
    s_branch L_mid2
    L_end1:
    s_nop 2
    s_waitcnt vmcnt(1)
    s_barrier
    """)
    norm(S, O+16, "L_fallbackB")
    a("L_norm2:")
    norm2(S)
    a("L_p3:")

def p3():
    OFR = 96; ACC = 16
    quads = list(range(48, 80, 4)) + list(range(88, 96, 4)) + list(range(164, 208, 4)) + list(range(220, 256, 4)) + [80, 84]
    assert len(quads) == 32
    def WQ(t, c): return quads[2*t + c]
    for i in range(8):
        a(f"""
        s_add_u32 s62, s3, {i}
        s_and_b32 s62, s62, 7
        s_lshl_b32 s{54+i}, s62, 11
        s_add_u32 s{54+i}, s{54+i}, s17
        """)
    stamp(9)
    a(f"""
    s_cmp_ge_u32 s23, 28
    s_cbranch_scc1 L_fin
    """)
    def rd(i):
        a(f"""
        s_add_u32 s62, s3, {i}
        s_and_b32 s62, s62, 7
        s_mul_i32 s62, s62, {28*128}
        v_add_u32 v14, s62, v{P3A}
        v_xor_b32 v15, 64, v14
        """)
        for s_ in range(2):
            for c in range(2):
                for eh in range(2):
                    a(f"ds_read_b64_tr_b16 {vr(WQ(2*i+s_, c)+2*eh,2)}, v{14+c} offset:{(16*s_+8*eh)*128}")
    def ld(t): a(f"buffer_load_dwordx4 {vr(OFR+4*t,4)}, v3, {WS_SRD}, s{54+t//2} offen offset:{(t%2)*1024} {SC}")
    NE = val("nearly", 7)
    NF = val("nfirst", 0)
    def cleaned(lbl):
        a(f"""
        s_waitcnt vmcnt(0)
        v_cmp_eq_u64 vcc, s[{TAG}:{TAG+1}], v[{TMP}:{TMP+1}]
        s_nop 1
        s_and_b32 s63, vcc_lo, 0xff
        s_cmp_eq_u32 s63, 0xff
        s_cbranch_scc1 {lbl}_ok
        """)
        poll_check(lbl, "s16", 0xff, 62, 63)
    if NF == 0:
        for i in range(NE): rd(i)
        cleaned("L_op")
        stamp(10)
        for t in range(16): ld(t)
        for i in range(NE, 8): rd(i)
    else:
        a(f"""
        s_cmp_lg_u32 s{sKH}, 0
        s_cbranch_scc1 L_p3b
        """)
        cleaned("L_opa")
        for t in range(NF): ld(t)
        a("L_p3b:")
        for i in range(NE): rd(i)
        a(f"""
        s_cmp_eq_u32 s{sKH}, 0
        s_cbranch_scc1 L_p3c
        """)
        cleaned("L_opb")
        for t in range(NF): ld(t)
        a("L_p3c:")
        if not opt("nosbar"): a("s_barrier")
        stamp(10)
        for t in range(NF, 16): ld(t)
        for i in range(NE, 8): rd(i)
    for r in range(ACC, ACC+32): a(f"v_mov_b32 v{r}, 0")
    for k in range(1, 4): a(f"v_xor_b32 v{8+k}, {32*k}, v{PWA}")
    a(f"""
    v_xor_b32 v12, 16, v{PRA}
    s_mov_b32 s62, {SPIN_MAX}
    s_movk_i32 s63, 0xff
    s_mov_b64 s[98:99], -1
    s_waitcnt lgkmcnt(0)
    {"s_mov_b32 s76, 0" if opt("diag") else ""}
    L_pass:
    """)
    for i in range(8):
        B = OFR + 8*i
        a(f"""
        s_bitcmp0_b32 s63, {i}
        s_cbranch_scc1 L_next{i}
        s_waitcnt vmcnt({14-2*i})
        v_max3_u32 v13, v{B}, v{B+3}, v{B+4}
        v_max_u32 v13, v13, v{B+7}
        v_cmp_eq_u32 vcc, -1, v13
        s_nop 1
        s_and_b64 vcc, vcc, s[98:99]
        s_cbranch_scc0 L_go{i}
        """)
        ld(2*i); ld(2*i+1)
        if opt("anyorder"):
            a(f"""
            s_branch L_next{i}
            L_go{i}:
            s_bitset0_b32 s63, {i}
            """)
        else:
            a(f"""
            s_branch L_next{i}
            L_go{i}:
            """)
            if i:
                a(f"""
                s_and_b32 s53, s63, {(1 << i) - 1}
                s_cbranch_scc1 L_next{i}
                """)
            a(f"s_bitset0_b32 s63, {i}")
        for s_ in range(2):
            for c in range(2):
                acc = vr(ACC+16*c, 16)
                a(f"v_mfma_f32_32x32x16_bf16 {acc}, {vr(WQ(2*i+s_, c),4)}, {vr(B+4*s_,4)}, {acc}")
        a(f"L_next{i}:")
    if opt("diag"):
        a("""
        s_cmp_lg_u32 s76, 0
        s_cbranch_scc1 L_diag1
        """)
        stamp(1)
        a("""
        s_bcnt1_i32_b32 s78, s63
        L_diag1:
        s_add_u32 s76, s76, 1
        """)
    a(f"""
    s_cmp_eq_u32 s63, 0
    s_cbranch_scc1 L_passed
    s_sub_u32 s62, s62, 1
    s_cselect_b64 s[98:99], 0, s[98:99]
    s_waitcnt vmcnt(0)
    s_branch L_pass
    L_passed:
    s_mov_b32 s62, {8*1792}
    """)
    stamp(11)
    if opt("xd2"): deadline("L_xd2", val("xd2", 0))
    a("s_nop 10")
    for c in range(2):
        for g in range(4):
            ad = PWA if g == 0 else 8+g
            a(f"ds_write_b128 v{ad}, {vr(ACC+16*c+4*g,4)} offset:{c*128}")
    a("s_waitcnt lgkmcnt(0)")
    a("s_barrier")
    for h8 in range(2):
        for p in range(2):
            for i in range(2):
                a(f"ds_read_b128 {vr(64+16*h8+8*p+4*i,4)}, v{PRA if i == 0 else 12} offset:{h8*2048+p*32768}")
    OS = "" if opt("outplain") else "sc1"
    for h8 in range(2):
        B = 64 + 16*h8
        a(f"s_waitcnt lgkmcnt({4 if h8 == 0 else 0})")
        for r in range(4): a(f"v_pk_add_f32 {vr(B+2*r,2)}, {vr(B+2*r,2)}, {vr(B+8+2*r,2)}")
        for r in range(4): a(f"v_cvt_pk_bf16_f32 v{96+4*h8+r}, v{B+2*r}, v{B+2*r+1}")
        a(f"buffer_store_dwordx4 {vr(96+4*h8,4)}, v{OUTA}, {OUT_SRD}, {'0' if h8 == 0 else 's62'} offen {OS}")
    a("L_fin:")
    if STAMP: a("s_waitcnt vmcnt(0)")
    stamp(12)
    stamp_flush(13)
    a("L_end:")
    a("s_endpgm")

def fallback():
    T = S + 16; K0 = KF; M = S + 35; Q = 16
    a("L_fallbackA:")
    for r in range(8): a(f"v_mov_b32 v{16+r}, v{8+r}")
    a("L_fallbackB:")
    a(f"""
    s_lshl_b32 s58, s{sHD}, 18
    s_mov_b32 s59, 64
    v_mov_b32 v{M}, 0xff800000
    L_fb1:
    buffer_load_dwordx4 {vr(K0,4)}, v3, {WS_SRD}, s58 offen {SC}
    buffer_load_dwordx4 {vr(K0+4,4)}, v3, {WS_SRD}, s58 offen offset:1024 {SC}
    s_waitcnt vmcnt(0)
    v_mfma_f32_32x32x16_bf16 {vr(T,16)}, {vr(K0,4)}, {vr(Q,4)}, 0
    v_mfma_f32_32x32x16_bf16 {vr(T,16)}, {vr(K0+4,4)}, {vr(Q+4,4)}, {vr(T,16)}
    s_add_u32 s58, s58, 4096
    s_sub_u32 s59, s59, 1
    s_nop 15
    """)
    for i in range(8): a(f"v_max3_f32 v{M}, v{M}, v{T+2*i}, v{T+2*i+1}")
    a(f"""
    s_cmp_lg_u32 s59, 0
    s_cbranch_scc1 L_fb1
    v_mov_b32 v{M+1}, v{M}
    s_nop 1
    v_permlane32_swap_b32 v{M}, v{M+1}
    s_nop 1
    v_max_f32 v{M}, v{M}, v{M+1}
    v_sub_f32 v{M}, 0, v{M}
    v_and_b32 v{M+1}, 0xffff0000, v{M}
    v_sub_f32 v{M+2}, v{M}, v{M+1}
    v_and_b32 v{M+3}, 0xffff0000, v{M+2}
    v_sub_f32 v{M+2}, v{M+2}, v{M+3}
    v_lshrrev_b32 v{M+1}, 16, v{M+1}
    v_or_b32 v{M+1}, v{M+1}, v{M+3}
    v_lshrrev_b32 v{M+2}, 16, v{M+2}
    v_cmp_gt_u32 vcc, 32, v2
    s_lshl_b32 s58, s{sHD}, 18
    s_mov_b32 s59, 64
    v_cndmask_b32 v{Q+6}, v{M+1}, v{Q+6}, vcc
    v_cndmask_b32 v{Q+7}, v{M+2}, v{Q+7}, vcc
    """)
    for r in range(16): a(f"v_mov_b32 v{S+r}, 0")
    a(f"""
    L_fb2:
    buffer_load_dwordx4 {vr(K0,4)}, v3, {WS_SRD}, s58 offen {SC}
    buffer_load_dwordx4 {vr(K0+4,4)}, v3, {WS_SRD}, s58 offen offset:1024 {SC}
    buffer_load_dwordx4 {vr(K0+8,4)}, v3, {WS_SRD}, s58 offen offset:2048 {SC}
    buffer_load_dwordx4 {vr(K0+12,4)}, v3, {WS_SRD}, s58 offen offset:3072 {SC}
    s_waitcnt vmcnt(0)
    v_mfma_f32_32x32x16_bf16 {vr(T,16)}, {vr(K0,4)}, {vr(Q,4)}, 0
    v_mfma_f32_32x32x16_bf16 {vr(T,16)}, {vr(K0+4,4)}, {vr(Q+4,4)}, {vr(T,16)}
    s_add_u32 s58, s58, 4096
    s_sub_u32 s59, s59, 1
    s_nop 15
    """)
    for i in range(16): a(f"v_exp_f32 v{T+i}, v{T+i}")
    a(f"""
    s_nop 1
    v_smfmac_f32_32x32x32_bf16 {vr(S,16)}, {vr(K0+8,4)}, {vr(T,8)}, v{IDX}
    v_smfmac_f32_32x32x32_bf16 {vr(S,16)}, {vr(K0+12,4)}, {vr(T+8,8)}, v{IDX}
    s_cmp_lg_u32 s59, 0
    s_cbranch_scc1 L_fb2
    s_nop 15
    v_mov_b32 v{S+32}, v{S+12}
    v_mov_b32 v{S+33}, v{S+12}
    s_nop 1
    v_permlane32_swap_b32 v{S+32}, v{S+33}
    s_nop 1
    v_rcp_f32 v{S+34}, v{S+33}
    s_branch L_norm2
    """)

prologue(); loader(); compute(); attention(); p3(); fallback()
a("L_code_end:")
a(kdesc(N, NV, 102))
hdr = f"""; @launch grid=(256,1,1) block=(512,1,1) lds={LDS_BYTES}
; Two independent MHA blocks (S=2048, D=448, 16 heads of 28), fused into one launch of 256 co-resident workgroups.
; Workgroup = (block, head pair, 128 tokens), 8 waves.
;  1. projection: waves 4-7 stream x and the weight columns into LDS, waves 0-3 run the MFMAs (K,V first, then Q).
;     K,V go to d_ws in MFMA fragment order (write-through), announced by flags that carry a per-launch tag
;     (a clock value workgroup 0 puts into d_debug), so stale words in d_ws are never taken for a hand-off.
;  2. attention: S^T = K Q^T (Q pre-scaled by log2(e)/sqrt(28)), P = exp2(S), O^T += V^T P^T with the sparse MFMA,
;     which picks the high (bf16) half of every fp32 P. A ones column in V gives the row sums.
;     Softmax guard: the shift is first taken as 0; every row sum is then checked to lie in [2^-32, 2^48] and every
;     accumulator to be finite. If not, the wave recomputes its rows with the true row maximum (L_fallback*).
;  3. output projection: O tiles are exchanged through d_ws; each slot is first filled with a marker
;     (announced by a tagged flag), readers reload a tile until no marker is left.
; All spin waits are bounded.
""" + '.amdgcn_target "amdgcn-amd-amdhsa--gfx950"\n'
open(sys.argv[1], "w").write(hdr + a.text())
```

```python
import sys, struct
from asmlib import *

KV_OFF = 0
OF_OFF = 8 << 20
FL_OFF = 12 << 20
FO_OFF = (12 << 20) + (256 << 10)
WS_USED = 13 << 20
ST_OFF = 32 << 20
CSCALE = 28 ** -0.5 * 1.4426950408889634
def f2u(x): return struct.unpack("<I", struct.pack("<f", x))[0]
ARGS = sys.argv[2:]
def opt(name): return ("--" + name) in ARGS
def val(name, d): return int(ARGS[ARGS.index("--" + name) + 1]) if opt(name) else d
STAMP = opt("stamp")
N = "concat_heads__softmax_full_mha__mha_block__prompt_kernel"
SC = "sc1"
SPIN_MAX = 100000
SLEEP = val("sleep", 2)

FL2 = val("fl2", 4)
FSH = 3
WR0 = 114688
C0, C1, C2, C3 = 32768, 65536, 98304, 131072
A2 = C3
LDS_BYTES = 163840
def wslot(i): return WR0 + ((i + 2) % 3) * 16384

a = Asm()
def stamp(idx):
    if not STAMP: return
    a(f"""
    s_memtime s[64:65]
    s_memrealtime s[66:67]
    s_waitcnt lgkmcnt(0)
    s_mov_b32 s{70+2*idx}, s64
    s_mov_b32 s{71+2*idx}, s66
    """)
def stamp_flush(n):
    if not STAMP: return
    a(f"""
    s_lshl_b32 s66, s2, 4
    s_add_u32 s66, s66, s27
    s_lshl_b32 s66, s66, 7
    s_add_u32 s66, s66, {ST_OFF}
    s_add_u32 s64, s20, s66
    s_addc_u32 s65, s21, 0
    v_mov_b32 v0, 0
    s_mov_b64 exec, 1
    """)
    for i in range(n):
        a(f"""
        v_mov_b32 v4, s{70+2*i}
        v_mov_b32 v5, s{71+2*i}
        global_store_dwordx2 v0, v[4:5], s[64:65] offset:{8*i}
        s_nop 1
        """)

sB, sJ, sHP, sW, sG, sKH, sHD = 24, 25, 26, 27, 48, 49, 52
X_SRD, W_SRD, WS_SRD, WO_SRD, OUT_SRD = "s[28:31]", "s[32:35]", "s[36:39]", "s[40:43]", "s[44:47]"
TAG = 50
IDX, VA, VC = 4, 5, 6
Q, O, S, KB, VB = 8, 176, 64, 128, 152
KF = KB
TMP = 250
PA, WOA, EXA, EXB, P3A, OUTA, PWA, PRA, FLA = 240, 241, 242, 243, 244, 245, 246, 247, 248
EX0 = 65536
NV = 256

JN = [0]
def jitter(maxlog=5):
    if not opt("jitter"): return
    JN[0] += 1
    a(f"""
    s_memrealtime s[64:65]
    s_waitcnt lgkmcnt(0)
    s_mul_i32 s66, s2, 2654435761
    s_mul_i32 s67, s27, 40503
    s_add_u32 s66, s66, s67
    s_mul_i32 s64, s64, 2246822519
    s_add_u32 s66, s66, s64
    s_lshr_b32 s66, s66, {32-maxlog}
    s_mul_i32 s66, s66, s66
    L_jit{JN[0]}:
    s_cmp_eq_u32 s66, 0
    s_cbranch_scc1 L_jit{JN[0]}_done
    s_sleep 1
    s_sub_u32 s66, s66, 1
    s_branch L_jit{JN[0]}
    L_jit{JN[0]}_done:
    """)

def tag_check(lbl, v):
    a(f"""
    s_mov_b32 s53, {SPIN_MAX}
    {lbl}_chk:
    v_readfirstlane_b32 s{TAG}, v{v}
    v_readfirstlane_b32 s{TAG+1}, v{v+1}
    s_nop 1
    s_cmp_lg_u64 s[{TAG}:{TAG+1}], 0
    s_cbranch_scc1 {lbl}_ok
    s_sub_u32 s53, s53, 1
    s_cbranch_scc1 {lbl}_ok
    global_load_dwordx2 v[{v}:{v+1}], v7, s[18:19] {SC}
    s_waitcnt vmcnt(0)
    s_branch {lbl}_chk
    {lbl}_ok:
    """)
def poll_issue(soff, mask):
    a(f"""
    s_mov_b64 exec, {hex(mask)}
    buffer_load_dwordx2 v[{TMP}:{TMP+1}], v{FLA if mask == 0xffff else PA}, {WS_SRD}, {soff} offen {SC}
    s_mov_b64 exec, -1
    """)
def prepoll():
    if not opt("pre"): return
    a(f"""
    s_mov_b32 exec_lo, s7
    s_mov_b32 exec_hi, 0
    buffer_load_dwordx2 v[{TMP}:{TMP+1}], v216, {WS_SRD}, s9 offen {SC}
    s_mov_b64 exec, -1
    """)
def poll_read(dst):
    a(f"""
    s_waitcnt vmcnt(0)
    v_cmp_eq_u64 vcc, s[{TAG}:{TAG+1}], v[{TMP}:{TMP+1}]
    s_nop 1
    s_mov_b32 s{dst}, vcc_lo
    """)
def need_bits(lbl, mreg, nreg, soff, mask, va=None):
    a(f"""
    s_and_b32 s53, s{mreg}, s{nreg}
    s_cmp_eq_u32 s53, s{nreg}
    s_cbranch_scc1 {lbl}_ok
    s_mov_b32 s54, {SPIN_MAX}
    {lbl}_spin:
    """)
    poll_issue(soff, mask)
    poll_read(mreg)
    a(f"""
    s_and_b32 s53, s{mreg}, s{nreg}
    s_cmp_eq_u32 s53, s{nreg}
    s_cbranch_scc1 {lbl}_ok
    s_sleep {SLEEP}
    s_sub_u32 s54, s54, 1
    s_cbranch_scc0 {lbl}_spin
    {lbl}_ok:
    """)
def poll_check(lbl, soff, mask, t0=53, t1=54):
    a(f"""
    s_mov_b32 s{t0}, {SPIN_MAX}
    {lbl}_chk:
    s_waitcnt vmcnt(0)
    v_cmp_eq_u64 vcc, s[{TAG}:{TAG+1}], v[{TMP}:{TMP+1}]
    s_nop 1
    s_and_b32 s{t1}, vcc_lo, {hex(mask)}
    s_cmp_eq_u32 s{t1}, {hex(mask)}
    s_cbranch_scc1 {lbl}_ok
    s_sub_u32 s{t0}, s{t0}, 1
    s_cbranch_scc1 {lbl}_ok
    s_sleep {SLEEP}
    """)
    poll_issue(soff, mask)
    a(f"""
    s_branch {lbl}_chk
    {lbl}_ok:
    """)
def flag_store(soff, v=TMP+2):
    a(f"""
    v_mov_b32 v{v}, s{TAG}
    v_mov_b32 v{v+1}, s{TAG+1}
    s_mov_b64 exec, 1
    buffer_store_dwordx2 v[{v}:{v+1}], v7, {WS_SRD}, {soff} offen {SC}
    s_mov_b64 exec, -1
    """)

def prologue():
    a(khead(N))
    a(f"""
    s_cmp_ge_u32 s2, 256
    s_cbranch_scc1 L_end
    """)
    stamp(0)
    if opt("tag0"): a("s_memrealtime s[98:99]")
    for _ in range(val("xpad", 0)): a("s_mov_b32 s3, 0x12345678")
    a(f"""
    s_load_dwordx16 s[4:19], s[0:1], 0
    s_load_dwordx2 s[20:21], s[0:1], 64
    s_and_b32 s22, s2, 7          ; xcd
    s_lshr_b32 s23, s2, 3         ; r
    s_lshr_b32 s{sB}, s22, 2
    s_bfe_u32 s25, s22, 0x10001
    s_lshl_b32 s25, s25, 3
    s_and_b32 s53, s23, 7
    s_add_u32 s{sJ}, s25, s53     ; jj
    s_and_b32 s26, s22, 1
    s_lshl_b32 s26, s26, 2
    s_lshr_b32 s54, s23, 3
    s_add_u32 s{sHP}, s26, s54    ; hp
    s_lshl_b32 s54, s54, 1
    s_add_u32 s54, s54, s53       ; 0..13
    s_sub_u32 s53, s54, 7
    s_cmp_ge_u32 s54, 7
    s_cselect_b32 s54, s53, s54
    """)
    RM = val("rotm", 1)
    if RM:
        a("""
        s_lshr_b32 s54, s23, 3
        s_add_u32 s54, s54, s23
        """)
        if RM == 1: a("s_and_b32 s54, s54, 3\ns_lshl_b32 s54, s54, 1")
        if RM == 3: a("s_and_b32 s54, s54, 1\ns_lshl_b32 s54, s54, 2")
        if RM == 2: a("s_and_b32 s54, s54, 3\ns_lshl_b32 s54, s54, 2\ns_lshr_b32 s54, 0x2520, s54\ns_and_b32 s54, s54, 15")
        if RM == 4: a("s_and_b32 s54, s54, 7\ns_lshl_b32 s54, s54, 2\ns_lshr_b32 s54, 0x53164200, s54\ns_and_b32 s54, s54, 15")
    a(f"""
    v_lshrrev_b32 v1, 6, v0
    v_and_b32 v2, 63, v0          ; lane
    v_mov_b32 v7, 0
    v_readfirstlane_b32 s{sW}, v1
    v_lshlrev_b32 v3, 4, v2       ; lane*16
    s_and_b32 s{sG}, s{sW}, 3
    s_lshr_b32 s{sKH}, s{sW}, 2
    s_cmp_eq_u32 s{sKH}, 0
    s_cbranch_scc1 L_compute
    """)

def srd_in():
    a(f"""
    s_waitcnt lgkmcnt(0)
    s_cmp_eq_u32 s{sB}, 0
    s_cselect_b32 s28, s4, s10
    s_cselect_b32 s29, s5, s11
    s_cselect_b32 s32, s6, s12
    s_cselect_b32 s33, s7, s13
    """)
def srd_const():
    a(f"""
    s_mov_b32 s30, 1835008
    s_mov_b32 s31, 0x20000
    s_mov_b32 s34, 1204224
    s_mov_b32 s35, 0x20000
    """)
def srd_rest():
    a(f"""
    s_cmp_eq_u32 s{sB}, 0
    s_mov_b32 s36, s20
    s_mov_b32 s37, s21
    s_mov_b32 s38, {WS_USED}
    s_mov_b32 s39, 0x20000
    s_cselect_b32 s40, s8, s14
    s_cselect_b32 s41, s9, s15
    s_mov_b32 s42, 401408
    s_mov_b32 s43, 0x20000
    s_mov_b32 s44, s16
    s_mov_b32 s45, s17
    s_mov_b32 s46, 3670016
    s_mov_b32 s47, 0x20000
    """)

def setup():
    srd_rest()
    a(f"""
    v_mov_b32 v{IDX}, 0xdddddddd
    s_lshl_b32 s62, s{sB}, 3
    s_add_u32 s62, s62, s{sHP}            ; b*8+hp
    s_lshl_b32 s9, s62, 9
    s_add_u32 s9, s9, {FL_OFF}
    s_lshl_b32 s63, s{sG}, 7
    s_add_u32 s10, s9, s63
    s_lshl_b32 s63, s{sJ}, 3
    s_add_u32 s10, s10, s63
    s_and_b32 s63, s{sG}, 2
    s_add_u32 s63, s63, s{sKH}
    s_lshl_b32 s63, s63, 7
    s_add_u32 s9, s9, s63
    s_lshl_b32 s62, s62, 1
    s_lshr_b32 s101, s{sG}, 1
    s_add_u32 s{sHD}, s62, s101
    s_and_b32 s100, s{sG}, 1
    s_lshl_b32 s63, s{sKH}, 1
    s_add_u32 s100, s100, s63
    s_lshl_b32 s4, s{sHD}, 6
    s_add_u32 s4, s4, s100
    s_lshl_b32 s4, s4, 12
    s_lshl_b32 s62, s101, 14
    s_lshl_b32 s63, s100, 12
    s_add_u32 s63, s63, s62
    s_add_u32 s63, s63, {A2}
    v_add_u32 v5, s63, v3
    s_mul_i32 s62, s101, 24576
    s_add_u32 s62, s62, {EX0}
    v_add_u32 v{EXB}, s62, v3
    s_lshl_b32 s8, s100, 12
    s_mul_i32 s7, s{sKH}, 49152
    s_and_b32 s63, s{sG}, 1
    s_mul_i32 s63, s63, 12288
    s_add_u32 s7, s7, s63
    s_add_u32 s7, s7, {EX0}
    s_lshl_b32 s62, s101, 13
    s_add_u32 s62, s62, {EX0}
    v_add_u32 v6, s62, v3
    v_lshlrev_b32 v{PA}, 3, v2
    v_mov_b32 v{FLA}, v{PA}
    s_mul_i32 s62, s23, 37
    s_lshr_b32 s62, s62, 8                ; r/7
    s_mul_i32 s3, s62, 7
    s_sub_u32 s3, s23, s3                 ; ct
    s_lshl_b32 s12, s22, 2
    s_add_u32 s12, s12, s62
    s_lshl_b32 s12, s12, 2
    s_add_u32 s12, s12, s100
    v_lshrrev_b32 v{WOA}, 3, v2
    v_and_b32 v{P3A}, 7, v2
    v_bfe_u32 v{OUTA}, v2, 4, 1
    v_lshlrev_b32 v{OUTA}, 2, v{OUTA}
    v_xor_b32 v{P3A}, v{P3A}, v{OUTA}
    v_mul_u32_u24 v{WOA}, 896, v{WOA}
    v_lshl_add_u32 v{WOA}, v{P3A}, 4, v{WOA}
    s_mul_i32 s62, s{sW}, {8*896}
    s_lshl_b32 s63, s3, 7
    s_add_u32 s62, s62, s63
    v_add_u32 v{WOA}, s62, v{WOA}
    s_lshl_b32 s13, s{sW}, 10
    s_mov_b32 s11, 0
    s_lshl_b32 s62, s{sB}, 4
    s_add_u32 s62, s62, s{sJ}
    s_lshl_b32 s62, s62, 2
    s_add_u32 s62, s62, s100
    s_lshl_b32 s62, s62, 4
    s_and_b32 s63, s{sHD}, 15
    s_add_u32 s62, s62, s63
    s_lshl_b32 s15, s62, 3
    s_add_u32 s15, s15, {FO_OFF}
    s_lshl_b32 s14, s62, 11
    s_add_u32 s14, s14, {OF_OFF}
    s_lshl_b32 s16, s12, 7
    s_lshl_b32 s62, s101, 6
    s_add_u32 s16, s16, s62
    s_add_u32 s16, s16, {FO_OFF}
    s_lshl_b32 s17, s12, 15
    s_lshl_b32 s62, s101, 14
    s_add_u32 s17, s17, s62
    s_add_u32 s17, s17, {OF_OFF}
    v_lshrrev_b32 v252, 5, v2             ; hh
    v_bfe_u32 v253, v2, 2, 2
    v_lshl_add_u32 v{P3A}, v252, 2, v253
    v_lshlrev_b32 v{P3A}, 7, v{P3A}
    v_bfe_u32 v253, v2, 4, 1
    v_lshl_add_u32 v{P3A}, v253, 5, v{P3A}
    v_and_b32 v253, 3, v2
    v_lshl_add_u32 v{P3A}, v253, 3, v{P3A}
    v_bfe_u32 v253, v2, 3, 1
    v_lshl_add_u32 v{P3A}, v253, 6, v{P3A}
    s_mul_i32 s62, s101, {8*28*128}
    v_add_u32 v{P3A}, s62, v{P3A}
    v_and_b32 v253, 31, v2
    v_and_b32 v254, 7, v2
    v_xor_b32 v255, v252, v254
    v_lshlrev_b32 v255, 4, v255
    v_lshl_add_u32 v{PWA}, v253, 8, v255
    s_mul_i32 s62, s101, 24576
    s_add_u32 s62, s62, s7
    v_add_u32 v{PWA}, s62, v{PWA}
    v_lshrrev_b32 v253, 3, v2
    v_lshlrev_b32 v255, 1, v254
    v_xor_b32 v255, v255, v253
    v_lshlrev_b32 v255, 4, v255
    v_lshl_add_u32 v{PRA}, v253, 8, v255
    s_lshl_b32 s62, s101, 12
    s_add_u32 s62, s62, s7
    v_add_u32 v{PRA}, s62, v{PRA}
    s_and_b32 s62, s12, 63
    s_lshl_b32 s62, s62, 5
    s_lshl_b32 s63, s101, 4
    s_add_u32 s62, s62, s63
    v_add_u32 v253, s62, v253
    v_mul_u32_u24 v253, 1792, v253
    v_lshl_add_u32 v{OUTA}, v254, 4, v253
    s_mul_i32 s62, s{sB}, 896
    s_lshl_b32 s63, s3, 7
    s_add_u32 s62, s62, s63
    v_add_u32 v{OUTA}, s62, v{OUTA}
    s_mov_b32 s68, 0
    """)
    for r in range(O, O+64): a(f"v_mov_b32 v{r}, 0")

def loader():
    a(f"""
    v_lshrrev_b32 v8, 3, v2       ; lane/8
    v_and_b32 v9, 7, v2
    v_lshrrev_b32 v14, 4, v2
    v_xor_b32 v9, v9, v14
    v_xor_b32 v14, 4, v9
    s_lshl_b32 s55, s{sJ}, 7
    s_lshl_b32 s56, s{sG}, 5
    s_add_u32 s55, s55, s56
    s_mul_i32 s55, s55, 896
    v_mul_u32_u24 v8, 896, v8
    v_add_u32 v8, s55, v8
    v_lshl_add_u32 v10, v9, 4, v8
    v_lshl_add_u32 v11, v14, 4, v8
    v_add_u32 v12, {2*6144}, v10
    v_add_u32 v13, {3*6144}, v11
    v_add_u32 v11, {6144}, v11
    s_lshl_b32 s55, s{sG}, 12              ; g*4096
    s_lshl_b32 s57, s54, 7
    s_mov_b32 m0, s55
    s_mul_i32 s58, s54, {64*2688}
    """)
    srd_const()
    a(f"""
    v_lshrrev_b32 v8, 4, v2
    v_and_b32 v9, 15, v2
    v_lshlrev_b32 v20, 2, v8
    v_xor_b32 v9, v9, v20         ; P
    v_lshrrev_b32 v20, 3, v9      ; seg
    v_and_b32 v9, 7, v9
    v_add_u32 v21, 1, v9
    v_lshlrev_b32 v21, 27, v21
    v_and_b32 v21, 0x40000000, v21
    v_mul_u32_u24 v8, 2688, v8
    v_mul_u32_u24 v20, 896, v20
    v_lshl_add_u32 v9, v9, 4, v21
    v_add3_u32 v8, v8, v9, v20
    s_mul_i32 s59, s{sG}, {16*2688}
    s_mul_i32 s60, s{sHP}, 112
    s_add_u32 s59, s59, s60
    s_add_u32 s60, s59, 896
    v_add_u32 v14, s60, v8
    v_add_u32 v15, {4*2688-1024}, v14
    v_add_u32 v16, {2*(4*2688-1024)}, v14
    v_add_u32 v17, {3*(4*2688-1024)}, v14
    """)
    srd_in()
    for q in range(4): a(f"buffer_load_dwordx4 v{10+q}, {X_SRD}, s57 offen offset:{q*1024} {SC} lds")
    def next_c():
        a("""
        s_add_u32 s54, s54, 1
        s_cmp_eq_u32 s54, 7
        s_cselect_b32 s54, 0, s54
        """)
    def item(i):
        if i < 7:
            if i:
                a(f"""
                s_lshl_b32 s57, s54, 7
                s_add_u32 m0, s55, {i*16384}
                s_mul_i32 s58, s54, {64*2688}
                """)
                for q in range(4): a(f"buffer_load_dwordx4 v{10+q}, {X_SRD}, s57 offen offset:{q*1024} {SC} lds")
            a(f"s_add_u32 m0, s55, {wslot(i)}")
            a("s_nop 0")
            for q in range(4): a(f"buffer_load_dwordx4 v{14+q}, {W_SRD}, s58 offen offset:{q*1024} {SC} lds")
            next_c()
        else:
            for d in range(2):
                if 2*(i-7)+d > 6: break
                a(f"""
                s_add_u32 m0, s56, {wslot(i) + d*8192}
                s_mul_i32 s58, s54, {64*2688}
                """)
                for q in range(2): a(f"buffer_load_dwordx4 v{18+q}, {W_SRD}, s58 offen offset:{q*1024} {SC} lds")
                next_c()
    jitter()
    item(0); item(1)
    a(f"""
    v_lshrrev_b32 v8, 3, v2
    v_and_b32 v9, 7, v2
    v_bfe_u32 v20, v2, 4, 1
    v_lshlrev_b32 v20, 2, v20
    v_xor_b32 v9, v9, v20
    v_add_u32 v21, 1, v9
    v_lshlrev_b32 v21, 27, v21
    v_and_b32 v21, 0x40000000, v21
    v_mul_u32_u24 v8, 2688, v8
    v_lshl_add_u32 v8, v9, 4, v8
    v_add_u32 v8, v8, v21
    v_add_u32 v18, s59, v8
    v_add_u32 v19, {8*2688-1024}, v18
    s_lshl_b32 s56, s{sG}, 11
    """)
    stamp(1)
    cnt = lambda i: 8 if i < 7 else (4 if i < 10 else (2 if i == 10 else 0))
    for k in range(11):
        a(f"s_waitcnt vmcnt({0 if (opt('sfirst') and k == 7) else cnt(k+1)})")
        a("s_barrier")
        if k == 0: stamp(2)
        if k in (3, 7, 9): jitter(4)
        if opt("sfirst"):
            if k + 2 <= 7: item(k+2)
            if k == 7:
                a("s_barrier")
                item(8); item(9)
            if k == 8: item(10)
        elif k + 2 <= 10: item(k+2)
        if k == 8: setup()
        if k == 9: a(f"global_load_dwordx2 v[{TMP}:{TMP+1}], v7, s[18:19] {SC}")
    tag_check("L_tagl", TMP)
    stamp(3); stamp(4)
    a("s_barrier")
    a("s_branch L_attn")

def compute():
    XA = 24
    WK, WV, WQ = 28, 168, 169
    AK, AV, AQ = (32, 64), (48, 80), (96, 112)
    FB = 128
    PK = 32
    a("L_compute:")
    srd_const(); srd_in()
    if not opt("nocodepf"):
        a(f"""
        s_getpc_b64 s[62:63]
        L_pc:
        s_and_b32 s55, s23, 7
        s_lshl_b32 s55, s55, 2
        s_add_u32 s55, s55, s{sW}
        s_lshl_b32 s55, s55, 10
        v_add_u32 v8, s55, v3
        v_min_u32 v8, L_code_end - L_pc - 16, v8
        global_load_dwordx4 v[164:167], v8, s[62:63]
        """)
    a(f"""
    s_cmp_lg_u32 s2, 0
    s_cbranch_scc1 L_notag
    s_cmp_lg_u32 s{sW}, 0
    s_cbranch_scc1 L_notag
    {"s_mov_b64 s[60:61], s[98:99]" if opt("tag0") else "s_memrealtime s[60:61]"}
    s_waitcnt lgkmcnt(0)
    s_or_b32 s60, s60, 1
    v_mov_b32 v18, s60
    v_mov_b32 v19, s61
    s_mov_b64 exec, 1
    global_store_dwordx2 v7, v[18:19], s[18:19] {SC}
    s_mov_b64 exec, -1
    L_notag:
    v_and_b32 v8, 31, v2          ; m
    v_lshrrev_b32 v9, 5, v2       ; hh
    v_bfe_u32 v10, v2, 1, 3       ; z
    v_xor_b32 v10, v9, v10
    s_and_b32 s55, s{sG}, 1
    s_lshl_b32 s55, s55, 13
    v_lshlrev_b32 v11, 7, v8
    v_add_u32 v11, s55, v11
    v_lshl_add_u32 v{XA}, v10, 4, v11
    v_xor_b32 v12, 2, v10
    v_lshl_add_u32 v{XA+1}, v12, 4, v11
    v_xor_b32 v12, 4, v10
    v_lshl_add_u32 v{XA+2}, v12, 4, v11
    v_xor_b32 v12, 6, v10
    v_lshl_add_u32 v{XA+3}, v12, 4, v11
    v_bfe_u32 v10, v2, 2, 2       ; r
    v_bfe_u32 v11, v2, 4, 1       ; nhalf
    v_and_b32 v12, 3, v2          ; c4
    v_lshl_add_u32 v11, v11, 2, v12
    s_lshr_b32 s55, s{sG}, 1
    s_mul_i32 s55, s55, 7
    v_add_u32 v11, s55, v11       ; u
    v_lshrrev_b32 v12, 1, v11     ; piece
    v_and_b32 v11, 1, v11
    v_lshlrev_b32 v11, 3, v11     ; half*8
    v_lshl_add_u32 v13, v9, 3, v10      ; 8hh + r
    v_lshlrev_b32 v14, 2, v10
    v_xor_b32 v14, v12, v14             ; piece ^ (r<<2)
    v_lshl_add_u32 v14, v14, 4, v11
    v_lshl_add_u32 v14, v13, 8, v14
    v_add_u32 v{WK}, {WR0}, v14
    v_xor_b32 v{WV}, 128, v{WK}
    v_lshrrev_b32 v14, 1, v10
    v_lshlrev_b32 v14, 2, v14
    v_xor_b32 v14, v12, v14             ; piece ^ ((r>>1)<<2)
    v_lshl_add_u32 v14, v14, 4, v11
    v_lshl_add_u32 v14, v13, 7, v14
    v_add_u32 v{WQ}, {WR0}, v14
    v_and_b32 v29, 0x33, v2
    v_bfe_u32 v10, v2, 2, 1
    v_bfe_u32 v11, v2, 3, 1
    v_lshl_or_b32 v29, v10, 3, v29
    v_lshl_or_b32 v29, v11, 2, v29
    v_lshlrev_b32 v29, 4, v29     ; swap23(lane)*16
    v_cmp_gt_u32 s[56:57], 28, v8
    v_cmp_eq_u32 s[58:59], 28, v8
    v_mov_b32 v30, 0x3f803f80
    v_mov_b32 v31, 0x00003f80
    v_cndmask_b32 v1, 0, v30, s[58:59]
    s_lshl_b32 s60, s{sG}, 13
    s_add_u32 s60, s60, {A2}
    v_add_u32 v170, s60, v29
    v_add_u32 v171, s60, v3
    s_lshl_b32 s60, s{sG}, 12
    s_add_u32 s60, s60, {EX0}
    v_add_u32 v172, s60, v3
    """)
    PT = val("pretouch", 0)
    if PT:
        srd_rest()
        if PT == 1:
            a(f"""
            s_cmp_lg_u32 s{sW}, 1
            s_cbranch_scc1 L_nopt
            s_lshl_b32 s55, s23, 19
            v_lshlrev_b32 v8, 16, v2
            s_mov_b64 exec, 0xff
            buffer_load_dword v224, v8, {WS_SRD}, s55 offen {SC}
            s_lshl_b32 s55, s23, 17
            s_mov_b64 exec, 3
            buffer_load_dword v225, v8, {OUT_SRD}, s55 offen {SC}
            s_mov_b64 exec, -1
            L_nopt:
            """)
        else:
            a(f"""
            s_cmp_lg_u32 s{sW}, 1
            s_cbranch_scc1 L_nopt
            s_lshl_b32 s55, s23, 19
            v_lshlrev_b32 v8, 13, v2
            buffer_load_dword v224, v8, {WS_SRD}, s55 offen {SC}
            s_lshl_b32 s55, s23, 17
            v_lshlrev_b32 v8, 12, v2
            s_mov_b64 exec, 0xffffffff
            buffer_load_dword v225, v8, {OUT_SRD}, s55 offen {SC}
            s_mov_b64 exec, -1
            L_nopt:
            """)
    setup()
    a(f"""
    s_lshl_b32 s55, s{sHD}, 6
    s_lshl_b32 s60, s{sJ}, 2
    s_add_u32 s55, s55, s60
    s_and_b32 s60, s{sG}, 1
    s_lshl_b32 s60, s60, 1
    s_add_u32 s55, s55, s60
    s_lshl_b32 s55, s55, 12
    s_mov_b32 s60, {hex(f2u(CSCALE))}
    s_mov_b32 s61, s60
    v_cmp_gt_u32 vcc, 32, v2
    """)
    def FB2(t): return (128, 140, 152)[t % 3] if t else 128
    def xoff(i): return (i if i < 4 else i-4) * 16384
    def reads1(t):
        i, s = divmod(t, 4); b = FB + 16*(t & 1); wo = wslot(i) - WR0
        R = [f"ds_read_b128 {vr(b,4)}, v{XA+s} offset:{xoff(i)}"]
        for rd in range(2): R.append(f"ds_read_b64_tr_b16 {vr(b+8+2*rd,2)}, v{WK} offset:{wo+(16*s+4*rd)*256}")
        for rd in range(2): R.append(f"ds_read_b64_tr_b16 {vr(b+12+2*rd,2)}, v{WV} offset:{wo+(16*s+4*rd)*256}")
        R.append(f"ds_read_b128 {vr(b+4,4)}, v{XA+s} offset:{xoff(i)+4096}")
        return R
    def reads2(t):
        i, s = divmod(t, 4); b = FB2(t); wo = wslot(7 + i//2) - WR0 + (i & 1)*8192
        R = [f"ds_read_b128 {vr(b,4)}, v{XA+s} offset:{xoff(i)}"]
        for rd in range(2): R.append(f"ds_read_b64_tr_b16 {vr(b+8+2*rd,2)}, v{WQ} offset:{wo+(16*s+4*rd)*128}")
        R.append(f"ds_read_b128 {vr(b+4,4)}, v{XA+s} offset:{xoff(i)+4096}")
        return R
    def shift(d): return [f"v_add_u32 v{XA+k}, {d & 0xffffffff}, v{XA+k}" for k in range(4)]
    stamp(1)
    a("s_barrier")
    stamp(2)
    for r in reads1(0): a(r)
    for t in range(28):
        i, s = divmod(t, 4); b = FB + 16*(t & 1)
        cin = lambda r: ("0" if t == 0 else vr(r, 16))
        M = [f"v_mfma_f32_32x32x16_bf16 {vr(AK[0],16)}, {vr(b+8,4)}, {vr(b,4)}, {cin(AK[0])}",
             f"v_mfma_f32_32x32x16_bf16 {vr(AV[0],16)}, {vr(b,4)}, {vr(b+12,4)}, {cin(AV[0])}",
             f"v_mfma_f32_32x32x16_bf16 {vr(AK[1],16)}, {vr(b+8,4)}, {vr(b+4,4)}, {cin(AK[1])}",
             f"v_mfma_f32_32x32x16_bf16 {vr(AV[1],16)}, {vr(b+4,4)}, {vr(b+12,4)}, {cin(AV[1])}"]
        R = reads1(t+1) if t < 27 else reads2(0)
        a("s_waitcnt lgkmcnt(0)")
        if s == 3:
            a(M[0])
            if i == 3:
                for l in shift(65536): a(l)
            if i == 6:
                for l in shift(-65536): a(l)
            a("s_barrier")
            per = val("p1r", 3)
            for m in range(1, 4):
                for r in R[per*(m-1):per*(m-1)+per]: a(r)
                a(M[m])
        else:
            per = val("p1r", 3)
            for m in range(4):
                a(M[m])
                for r in R[per*m:per*m+per]: a(r)
        if t == 17: a(f"global_load_dwordx2 v[174:175], v7, s[18:19] {SC}")
    stamp(3)
    jitter()
    side = []
    for i in range(2):
        for k in range(8): side.append(f"v_cvt_pk_bf16_f32 v{AK[i]+k}, v{AK[i]+2*k}, v{AK[i]+2*k+1}")
        side.append(f"v_cndmask_b32 v{AK[i]+6}, v30, v{AK[i]+6}, vcc")
        side.append(f"v_cndmask_b32 v{AK[i]+7}, v31, v{AK[i]+7}, vcc")
        side.append(f"buffer_store_dwordx4 {vr(AK[i],4)}, v29, {WS_SRD}, s55 offen {SC}")
        side.append(f"buffer_store_dwordx4 {vr(AK[i]+4,4)}, v29, {WS_SRD}, s55 offen offset:1024 {SC}")
        for k in range(8): side.append(f"v_cvt_pk_bf16_f32 v{AV[i]+k}, v{AV[i]+2*k}, v{AV[i]+2*k+1}")
        for k in range(8): side.append(f"v_cndmask_b32 v{AV[i]+k}, v1, v{AV[i]+k}, s[56:57]")
        side.append(f"buffer_store_dwordx4 {vr(AV[i],4)}, v3, {WS_SRD}, s55 offen offset:2048 {SC}")
        side.append(f"buffer_store_dwordx4 {vr(AV[i]+4,4)}, v3, {WS_SRD}, s55 offen offset:3072 {SC}")
        if i == 0: side.append("s_add_u32 s55, s55, 4096")
    stores = []
    if opt("stag"):
        stores = [l.replace("s55", "s62") if k >= 4 else l for k, l in enumerate(l for l in side if l.startswith("buffer_store"))]
        side = [l for l in side if not l.startswith("buffer_store") and not l.startswith("s_add")]
        a("s_add_u32 s62, s55, 4096")
    def store_block(lbl, early):
        a(f"""
        s_bitcmp1_b32 s{sJ}, 2
        s_cbranch_scc{1 if early else 0} {lbl}
        """)
        for l in stores: a(l)
        a(f"{lbl}:")
    PER = val("side", 16)
    ST1 = (len(side) + PER - 1) // PER - 1
    ST2 = val("st2", 22)
    if PER >= 100:
        a("s_nop 7")
        for l in side: a(l)
        side = []
        if opt("sfirst"): a("s_barrier")
    lw = []
    for i in range(2):
        lw += [f"ds_write_b128 v170, {vr(AK[i],4)} offset:{4096*i}", f"ds_write_b128 v170, {vr(AK[i]+4,4)} offset:{4096*i+1024}",
               f"ds_write_b128 v171, {vr(AV[i],4)} offset:{4096*i+2048}", f"ds_write_b128 v171, {vr(AV[i]+4,4)} offset:{4096*i+3072}"]
    FT = val("flagt", 20)
    for r in reads2(1): a(r)
    for t in range(28):
        i, s = divmod(t, 4); b = FB2(t)
        cin = lambda r: ("0" if t == 0 else vr(r, 16))
        M = [f"v_mfma_f32_32x32x16_bf16 {vr(AQ[0],16)}, {vr(b+8,4)}, {vr(b,4)}, {cin(AQ[0])}",
             f"v_mfma_f32_32x32x16_bf16 {vr(AQ[1],16)}, {vr(b+8,4)}, {vr(b+4,4)}, {cin(AQ[1])}"]
        R = reads2(t+2) if t+2 < 28 else []
        bar = (t+2) in (8, 16, 24)
        nw = 2 if t >= 25 else 0
        if bar: a("s_waitcnt lgkmcnt(0)")
        else: a(f"s_waitcnt lgkmcnt({(4 if t < 27 else 0) + nw})")
        a(M[0])
        if t+2 == 16:
            for l in shift(65536): a(l)
        if bar: a("s_barrier")
        for r in R: a(r)
        for l in side[:PER//2]: a(l)
        side = side[PER//2:]
        a(M[1])
        for l in side[:PER//2]: a(l)
        side = side[PER//2:]
        if t >= 24:
            for l in lw[2*(t-24):2*(t-24)+2]: a(l)
        if opt("stag") and t == ST1: store_block("L_st1", True)
        if opt("stag") and t == ST2: store_block("L_st2", False)
        if t == FT:
            assert not side
            if opt("stag"):
                assert FT < ST2
                a("s_waitcnt vmcnt(0)")
                tag_check("L_tagc", 174)
                a(f"""
                s_bitcmp1_b32 s{sJ}, 2
                s_cbranch_scc1 L_fl1
                """)
                flag_store("s10", 174)
                a("L_fl1:")
            else:
                a("s_waitcnt vmcnt(8)")
                tag_check("L_tagc", 174)
                a("s_waitcnt vmcnt(0)")
                flag_store("s10", 174)
            stamp(4)
    a("s_nop 7")
    a("s_nop 1")
    for i in range(2):
        A = AQ[i]
        for k in range(8): a(f"v_pk_mul_f32 {vr(A+2*k,2)}, {vr(A+2*k,2)}, s[60:61]")
        QD = Q + 8*i
        for k in range(8): a(f"v_cvt_pk_bf16_f32 v{QD+k}, v{A+2*k}, v{A+2*k+1}")
        a(f"v_cndmask_b32 v{QD+6}, 0, v{QD+6}, vcc")
        a(f"v_cndmask_b32 v{QD+7}, 0, v{QD+7}, vcc")
        a(f"ds_write_b128 v172, {vr(QD,4)} offset:{2048*i}")
        a(f"ds_write_b128 v172, {vr(QD+4,4)} offset:{2048*i+1024}")
    if FT >= 28:
        a("s_waitcnt vmcnt(8)")
        tag_check("L_tagc", 174)
        a("s_waitcnt vmcnt(0)")
        flag_store("s10", 174)
        stamp(4)
    a("""
    s_waitcnt lgkmcnt(0)
    s_barrier
    """)

def chunk_salu():
    return ["s_add_u32 s5, s5, 1", "s_and_b32 s5, s5, 15", f"s_cmp_eq_u32 s5, s{sJ}", "s_addc_u32 s5, s5, 0", "s_and_b32 s5, s5, 15",
            "s_lshl_b32 s6, s5, 14", "s_add_u32 s6, s6, s69"]
def win_salu(i):
    return [f"s_add_u32 s6, s{sJ}, {i}", "s_and_b32 s6, s6, 3", f"s_and_b32 s5, s{sJ}, 8", "s_or_b32 s5, s5, s6",
            "s_lshl_b32 s6, s5, 14", "s_add_u32 s6, s6, s4"]
def after_win():
    return [f"s_and_b32 s6, s{sJ}, 11", f"s_and_b32 s5, s{sJ}, 8", "s_add_u32 s5, s5, 4", f"s_bitcmp1_b32 s{sJ}, 2",
            "s_cselect_b32 s6, s6, s5", "s_subb_u32 s5, s5, 0", "s_lshl_b32 s6, s6, 14", "s_add_u32 s6, s6, s4"]
def kb(n): return KB + 8*(n % 3)
def vb(n): return VB + 8*(n % 3)
def kload(n): return [f"buffer_load_dwordx4 {vr(kb(n)+4*q,4)}, v3, {WS_SRD}, s6 offen offset:{q*1024} {SC}" for q in range(2)]
def vload(n): return [f"buffer_load_dwordx4 {vr(vb(n)+4*q,4)}, v3, {WS_SRD}, s6 offen offset:{2048+q*1024} {SC}" for q in range(2)]

def unit(cur, qk, pv, side=None, pre=None, late=None):
    side = side or {}
    M = [None]*4
    if qk:
        d, n, q = qk
        M[0] = f"v_mfma_f32_32x32x16_bf16 {vr(S+16*d,16)}, {vr(kb(n),4)}, {vr(Q+8*q,4)}, 0"
        M[1] = f"v_mfma_f32_32x32x16_bf16 {vr(S+16*d,16)}, {vr(kb(n)+4,4)}, {vr(Q+8*q+4,4)}, {vr(S+16*d,16)}"
    if pv:
        p, n, q = pv
        M[2] = f"v_smfmac_f32_32x32x32_bf16 {vr(O+16*q,16)}, {vr(vb(n),4)}, {vr(S+16*p,8)}, v{IDX}"
        M[3] = f"v_smfmac_f32_32x32x32_bf16 {vr(O+16*q,16)}, {vr(vb(n)+4,4)}, {vr(S+16*p+8,8)}, v{IDX}"
    E = [f"v_exp_f32 v{S+16*cur+e}, v{S+16*cur+e}" for e in range(16)]
    for l in pre or []: a(l)
    for m in range(4):
        if M[m]: a(M[m])
        for e in E[4*m:4*m+4]: a(e)
        for l in side.get(m, []):
            l() if callable(l) else a(l)

def tile_units(n, sides=None, pres=None, first=False, noqk=False):
    for q in range(4):
        qk = ((q+1) & 3, n + (q == 3), (q+1) & 3)
        pv = ((q-1) & 3, n - (q == 0), (q-1) & 3)
        if first and q == 0: pv = None
        if noqk and q == 3: qk = None
        unit(q, qk, pv, (sides or {}).get(q), (pres or {}).get(q))

def attention():
    a("L_attn:")
    poll_issue("s9", 0xffff)
    for q in range(2): a(f"ds_read_b128 {vr(Q+4*q,4)}, v6 offset:{q*1024}")
    for q in range(2): a(f"ds_read_b128 {vr(kb(0)+4*q,4)}, v5 offset:{q*1024}")
    for q in range(2, 8): a(f"ds_read_b128 {vr(Q+4*q,4)}, v6 offset:{q*1024}")
    for q in range(2): a(f"ds_read_b128 {vr(vb(0)+4*q,4)}, v5 offset:{2048+q*1024}")
    def restart(n):
        a(f"""
        v_mfma_f32_32x32x16_bf16 {vr(S,16)}, {vr(kb(n),4)}, {vr(Q,4)}, 0
        v_mfma_f32_32x32x16_bf16 {vr(S,16)}, {vr(kb(n)+4,4)}, {vr(Q+4,4)}, {vr(S,16)}
        s_nop 10
        """)
    a("s_waitcnt lgkmcnt(8)")
    restart(0)
    a("s_waitcnt lgkmcnt(0)")
    if val("a2", 1) == 0: a("s_barrier")
    stamp(5); jitter(4)
    unit(0, (1, 0, 1), None, pre=["s_setprio 3"])
    if val("a2", 1) == 2: a("s_barrier")
    poll_check("L_kvp", "s9", 0xffff)
    for l in win_salu(1) + kload(1) + vload(1): a(l)
    unit(1, (2, 0, 2), (0, 0, 0), pre=["s_setprio 2"])
    unit(2, (3, 0, 3), (1, 0, 1), pre=["s_setprio 1"], side={0: win_salu(2), 1: kload(2), 2: vload(2)})
    unit(3, None, (2, 0, 2), pre=["s_setprio 0"])
    a("s_waitcnt vmcnt(6)")
    restart(1)
    a("s_nop 0")
    stamp(6); jitter(4)
    CLEAN = [f"v_mov_b32 v{40+k}, -1" for k in range(4)] + [f"buffer_store_dwordx4 v[40:43], v3, {WS_SRD}, s14 offen {SC}", f"buffer_store_dwordx4 v[40:43], v3, {WS_SRD}, s14 offen offset:1024 {SC}"]
    tile_units(1, sides={0: {0: win_salu(3) + kload(3), 3: vload(3)}, 2: {2: after_win(), 3: kload(4)}},
               pres={0: ["s_setprio 3"], 1: ["s_setprio 2", "s_waitcnt vmcnt(8)"], 2: ["s_setprio 1"], 3: ["s_setprio 0", "s_waitcnt vmcnt(8)"]})
    for l in CLEAN: a(l)
    if val("a2", 1) == 1: a("s_barrier")
    a("s_mov_b32 s69, s4")
    stamp(6 if opt("st7late") else 7)
    a(".p2align 6")
    a("L_loop:")
    jitter(3)
    WO = ["s_mov_b32 m0, s13", "s_add_u32 s13, s13, 8192", f"buffer_load_dwordx4 v{WOA}, {WO_SRD}, s11 offen {SC} lds", f"s_add_u32 s11, s11, {64*896}"]
    PRI = [{0: 3, 3: 2, 6: 1, 9: 0}, {0: 3, 1: 2, 2: 1, 3: 0, 4: 3, 5: 2, 6: 1, 7: 0, 8: 3, 9: 2, 10: 1, 11: 0},
           {0: 1, 2: 0, 4: 1, 6: 0, 8: 1, 10: 0}, {0: 3, 2: 2, 4: 1, 6: 0, 8: 2, 10: 0}, {0: 1, 6: 0}][val("pm", 1)]
    for k in range(3):
        n = 2 + k
        sides = {0: {3: vload(n+2)}, 2: {1: chunk_salu(), 3: kload(n+3)}}
        if k < 2: sides[1] = {1: WO}
        if k == 2: sides[1] = {1: ["s_cmp_eq_u32 s68, 3", f"s_cselect_b32 s69, {0x40000000}, s4"]}
        pres = {1: ["s_waitcnt vmcnt(8)"], 3: ["s_waitcnt vmcnt(8)"]}
        for q in range(4):
            if 4*k+q in PRI and not opt("noprio"): pres[q] = [f"s_setprio {PRI[4*k+q]}"] + pres.get(q, [])
        tile_units(n, sides, pres)
    a(f"""
    s_add_u32 s68, s68, 1
    s_cmp_lt_u32 s68, 4
    s_cbranch_scc1 L_loop
    """)
    if opt("st7late"): stamp(7)
    T1 = 40; T2 = [136, 140, 160, 164]; SC8 = 56
    def norm(ph):
        B = O + 16*ph
        ex = (ph >> 1)*49152 + (ph & 1)*12288
        if ph >= 2:
            TT = [T1, O, O+16]
            for k in range(3):
                if ph == 3 and k == 1: a(f"v_add_u32 v{EXB}, 8192, v{EXB}")
                o = ex + 4096*k - (8192 if ph == 3 and k else 0)
                for q in range(4): a(f"ds_read_b128 {vr(TT[k]+4*q,4)}, v{EXB} offset:{o+q*1024}")
            for k in range(3):
                a(f"s_waitcnt lgkmcnt({8-4*k})")
                for r in range(8): a(f"v_pk_add_f32 {vr(B+2*r,2)}, {vr(B+2*r,2)}, {vr(TT[k]+2*r,2)}")
        else: norm_rd(ph)
        norm_tail(ph)
    def norm_rd(ph):
        B = O + 16*ph
        ex = (ph >> 1)*49152 + (ph & 1)*12288
        for q in range(4): a(f"ds_read_b128 {vr(T1+4*q,4)}, v{EXB} offset:{ex+q*1024}")
        if ph == 3: a(f"v_add_u32 v{EXB}, 8192, v{EXB}")
        o2 = ex + (4096 if ph != 3 else -4096)
        for q in range(4): a(f"ds_read_b128 {vr(T2[q],4)}, v{EXB} offset:{o2+q*1024}")
        a("s_waitcnt lgkmcnt(4)")
        for r in range(8): a(f"v_pk_add_f32 {vr(B+2*r,2)}, {vr(B+2*r,2)}, {vr(T1+2*r,2)}")
        for q in range(4): a(f"ds_read_b128 {vr(T1+4*q,4)}, v{EXB} offset:{o2+4096+q*1024}")
        a("s_waitcnt lgkmcnt(4)")
        for r in range(8): a(f"v_pk_add_f32 {vr(B+2*r,2)}, {vr(B+2*r,2)}, {vr(T2[r//2]+2*(r&1),2)}")
        a("s_waitcnt lgkmcnt(0)")
        for r in range(8): a(f"v_pk_add_f32 {vr(B+2*r,2)}, {vr(B+2*r,2)}, {vr(T1+2*r,2)}")
    def norm_tail(ph):
        B = O + 16*ph
        a(f"""
        v_mov_b32 v{SC8}, v{B+12}
        v_mov_b32 v{SC8+1}, v{B+12}
        s_mov_b32 s54, 0x2f800000        ; 2^-32
        s_mov_b32 s62, 0x57800000        ; 2^48
        v_permlane32_swap_b32 v{SC8}, v{SC8+1}
        v_pk_mul_f32 {vr(SC8+4,2)}, {vr(B,2)}, 0 op_sel_hi:[1,0]
        v_pk_mul_f32 {vr(SC8+6,2)}, {vr(B+2,2)}, 0 op_sel_hi:[1,0]
        v_rcp_f32 v{SC8+2}, v{SC8+1}
        """)
        for r in range(2, 8): a(f"v_pk_fma_f32 {vr(SC8+4+2*(r&1),2)}, {vr(B+2*r,2)}, 0, {vr(SC8+4+2*(r&1),2)} op_sel_hi:[1,0,1]")
        a(f"""
        v_pk_add_f32 {vr(SC8+4,2)}, {vr(SC8+4,2)}, {vr(SC8+6,2)}
        v_add_f32 v{SC8+4}, v{SC8+4}, v{SC8+5}
        v_add_f32 v{SC8+4}, v{SC8+4}, v{SC8+1}
        v_cmp_ge_f32 vcc, v{SC8+4}, s54
        v_cmp_le_f32 s[56:57], v{SC8+4}, s62
        s_nop 1
        s_and_b64 s[56:57], s[56:57], vcc
        s_cmp_eq_u64 s[56:57], -1
        s_cselect_b32 s98, 0, 1
        s_cbranch_scc0 L_x{ph >> 1}_done
        """)
        norm2(B, SC8+2)
    def send(T):
        a(f"""
        s_cmp_eq_u32 s100, {T}
        s_cbranch_scc1 L_ns{T}
        s_sub_u32 s53, s8, 4096
        s_cmp_lt_u32 s100, {T}
        s_cselect_b32 s53, s8, s53
        v_add_u32 v{EXA}, s53, v{EXB}
        """)
        for q in range(4): a(f"ds_write_b128 v{EXA}, {vr(O+16*T+4*q,4)} offset:{(T >> 1)*49152+(T & 1)*12288+q*1024}")
        a(f"L_ns{T}:")
    def collect(p):
        a(f"""
        s_waitcnt {"vmcnt(0) " if p == 0 else ""}lgkmcnt(0)
        s_barrier
        """)
        jitter(4)
        a(f"""
        s_cmp_eq_u32 s100, {2*p}
        s_cbranch_scc1 L_k{2*p}
        s_cmp_eq_u32 s100, {2*p+1}
        s_cbranch_scc0 L_x{p}_done
        """)
        norm(2*p+1)
        a(f"s_branch L_x{p}_done")
        a(f"L_k{2*p}:")
        norm(2*p)
        a(f"L_x{p}_done:")
    seq = [(14 + (v & 1), v >> 1) for v in range(8)]
    LP = {0: 3, 2: 2, 3: 1, 4: 0, 6: 1, 7: 0}
    for v in range(8):
        qk = ((v+1) & 3,) + seq[v+1] if v < 7 else None
        pv = ((v-1) & 3,) + (seq[v-1] if v else (13, 3))
        pre = [f"s_setprio {LP[v]}"] if v in LP else []
        side = {}
        if v == 0: pre += ["s_waitcnt vmcnt(4)"]
        if v == 2: pre += ["s_waitcnt vmcnt(3)"]
        if v == 3: side = {1: [lambda: send(0)]}
        if v == 7: side = {1: [lambda: send(2)]}
        if v == 5:
            a("s_setprio 3")
            a("s_nop 0")
            send(1)
            collect(0)
            a("s_setprio 2")
        unit(v & 3, qk, pv, pre=pre, side=side)
        if v == 0: flag_store("s15")
    stamp(8); jitter()
    poll_issue("s16", 0xff)
    a(f"""
    v_smfmac_f32_32x32x32_bf16 {vr(O+48,16)}, {vr(vb(15),4)}, {vr(S+48,8)}, v{IDX}
    v_smfmac_f32_32x32x32_bf16 {vr(O+48,16)}, {vr(vb(15)+4,4)}, {vr(S+56,8)}, v{IDX}
    s_nop 5
    """)
    send(3)
    collect(1)
    a("""
    s_setprio 0
    s_cmp_lg_u32 s98, 0
    s_cbranch_scc1 L_fallback
    L_p3:
    """)

def norm2(B, R):
    T1 = 40
    a("v_cmp_gt_u32 vcc, 32, v2")
    for r in range(8): a(f"v_pk_mul_f32 {vr(B+2*r,2)}, {vr(B+2*r,2)}, {vr(R,2)} op_sel_hi:[1,0]")
    for i in range(4): a(f"v_cvt_pk_bf16_f32 v{T1+i}, v{B+2*i}, v{B+2*i+1}")
    a(f"buffer_store_dwordx4 {vr(T1,4)}, v3, {WS_SRD}, s14 offen {SC}")
    for i in range(4, 8): a(f"v_cvt_pk_bf16_f32 v{T1+i}, v{B+2*i}, v{B+2*i+1}")
    a(f"v_cndmask_b32 v{T1+6}, 0, v{T1+6}, vcc")
    a(f"v_cndmask_b32 v{T1+7}, 0, v{T1+7}, vcc")
    a(f"buffer_store_dwordx4 {vr(T1+4,4)}, v3, {WS_SRD}, s14 offen offset:1024 {SC}")

def p3():
    OFR = 96; ACC = 16
    quads = list(range(48, 96, 4)) + list(range(160, 240, 4))
    assert len(quads) == 32
    def WQ(t, c): return quads[2*t + c]
    for i in range(8):
        a(f"""
        s_add_u32 s62, s3, {i}
        s_and_b32 s62, s62, 7
        s_lshl_b32 s{54+i}, s62, 11
        s_add_u32 s{54+i}, s{54+i}, s17
        """)
    stamp(9)
    jitter()
    a(f"""
    s_cmp_ge_u32 s23, 28
    s_cbranch_scc1 L_fin
    """)
    def rd(i):
        a(f"""
        s_add_u32 s62, s3, {i}
        s_and_b32 s62, s62, 7
        s_mul_i32 s62, s62, {28*128}
        v_add_u32 v14, s62, v{P3A}
        v_xor_b32 v15, 64, v14
        """)
        for s_ in range(2):
            for c in range(2):
                for eh in range(2):
                    a(f"ds_read_b64_tr_b16 {vr(WQ(2*i+s_, c)+2*eh,2)}, v{14+c} offset:{(16*s_+8*eh)*128}")
    def ld(t): a(f"buffer_load_dwordx4 {vr(OFR+4*t,4)}, v3, {WS_SRD}, s{54+t//2} offen offset:{(t%2)*1024} {SC}")
    NE = val("nearly", 8)
    NF = val("nfirst", 0)
    def cleaned(lbl):
        a(f"""
        s_waitcnt vmcnt(0)
        v_cmp_eq_u64 vcc, s[{TAG}:{TAG+1}], v[{TMP}:{TMP+1}]
        s_nop 1
        s_and_b32 s63, vcc_lo, 0xff
        s_cmp_eq_u32 s63, 0xff
        s_cbranch_scc1 {lbl}_ok
        """)
        poll_check(lbl, "s16", 0xff, 62, 63)
    if NF == 0:
        for i in range(NE): rd(i)
        cleaned("L_op")
        stamp(10)
        for t in range(16): ld(t)
        for i in range(NE, 8): rd(i)
    else:
        a(f"""
        s_cmp_lg_u32 s{sKH}, 0
        s_cbranch_scc1 L_p3b
        """)
        cleaned("L_opa")
        for t in range(NF): ld(t)
        a("L_p3b:")
        for i in range(NE): rd(i)
        a(f"""
        s_cmp_eq_u32 s{sKH}, 0
        s_cbranch_scc1 L_p3c
        """)
        cleaned("L_opb")
        for t in range(NF): ld(t)
        a("L_p3c:")
        if not opt("nosbar"): a("s_barrier")
        stamp(10)
        for t in range(NF, 16): ld(t)
        for i in range(NE, 8): rd(i)
    for r in range(ACC, ACC+32): a(f"v_mov_b32 v{r}, 0")
    for k in range(1, 4): a(f"v_xor_b32 v{8+k}, {32*k}, v{PWA}")
    a(f"""
    v_xor_b32 v12, 16, v{PRA}
    s_mov_b32 s62, {SPIN_MAX}
    s_movk_i32 s63, 0xff
    s_mov_b64 s[98:99], -1
    s_waitcnt lgkmcnt(0)
    {"s_mov_b32 s76, 0" if opt("diag") else ""}
    L_pass:
    """)
    for i in range(8):
        B = OFR + 8*i
        a(f"""
        s_bitcmp0_b32 s63, {i}
        s_cbranch_scc1 L_next{i}
        s_waitcnt vmcnt({14-2*i})
        v_max3_u32 v13, v{B}, v{B+3}, v{B+4}
        v_max_u32 v13, v13, v{B+7}
        v_cmp_eq_u32 vcc, -1, v13
        s_nop 1
        s_and_b64 vcc, vcc, s[98:99]
        s_cbranch_scc0 L_go{i}
        """)
        ld(2*i); ld(2*i+1)
        if opt("anyorder"):
            a(f"""
            s_branch L_next{i}
            L_go{i}:
            s_bitset0_b32 s63, {i}
            """)
        else:
            a(f"""
            s_branch L_next{i}
            L_go{i}:
            """)
            if i:
                a(f"""
                s_and_b32 s53, s63, {(1 << i) - 1}
                s_cbranch_scc1 L_next{i}
                """)
            a(f"s_bitset0_b32 s63, {i}")
        for s_ in range(2):
            for c in range(2):
                acc = vr(ACC+16*c, 16)
                a(f"v_mfma_f32_32x32x16_bf16 {acc}, {vr(WQ(2*i+s_, c),4)}, {vr(B+4*s_,4)}, {acc}")
        a(f"L_next{i}:")
    if opt("diag"):
        a("""
        s_cmp_lg_u32 s76, 0
        s_cbranch_scc1 L_diag1
        """)
        stamp(1)
        a("""
        s_bcnt1_i32_b32 s78, s63
        L_diag1:
        s_add_u32 s76, s76, 1
        """)
    a(f"""
    s_cmp_eq_u32 s63, 0
    s_cbranch_scc1 L_passed
    s_sub_u32 s62, s62, 1
    s_cselect_b64 s[98:99], 0, s[98:99]
    s_waitcnt vmcnt(0)
    s_branch L_pass
    L_passed:
    s_mov_b32 s62, {8*1792}
    """)
    stamp(11)
    jitter(4)
    if opt("xd2"): deadline("L_xd2", val("xd2", 0))
    a("s_nop 10")
    for c in range(2):
        for g in range(4):
            ad = PWA if g == 0 else 8+g
            a(f"ds_write_b128 v{ad}, {vr(ACC+16*c+4*g,4)} offset:{c*128}")
    a("s_waitcnt lgkmcnt(0)")
    a("s_barrier")
    for h8 in range(2):
        for p in range(2):
            for i in range(2):
                a(f"ds_read_b128 {vr(64+16*h8+8*p+4*i,4)}, v{PRA if i == 0 else 12} offset:{h8*2048+p*24576}")
    OS = "" if opt("outplain") else "sc1"
    for h8 in range(2):
        B = 64 + 16*h8
        a(f"s_waitcnt lgkmcnt({4 if h8 == 0 else 0})")
        for r in range(4): a(f"v_pk_add_f32 {vr(B+2*r,2)}, {vr(B+2*r,2)}, {vr(B+8+2*r,2)}")
        for r in range(4): a(f"v_cvt_pk_bf16_f32 v{96+4*h8+r}, v{B+2*r}, v{B+2*r+1}")
        a(f"buffer_store_dwordx4 {vr(96+4*h8,4)}, v{OUTA}, {OUT_SRD}, {'0' if h8 == 0 else 's62'} offen {OS}")
    a("L_fin:")
    if STAMP: a("s_waitcnt vmcnt(0)")
    stamp(12)
    stamp_flush(13)
    a("L_end:")
    a("s_endpgm")

def fallback():
    T = S + 16; K0 = KF; M = S + 35; Q = 48
    a("L_fallback:")
    for k in range(4):
        a(f"""
        s_cmp_lg_u32 s100, {k}
        s_cbranch_scc1 L_fbq{k}
        """)
        for r in range(8): a(f"v_mov_b32 v{Q+r}, v{8+8*k+r}")
        a(f"L_fbq{k}:")
    a(f"""
    s_lshl_b32 s58, s{sHD}, 18
    s_mov_b32 s59, 64
    v_mov_b32 v{M}, 0xff800000
    L_fb1:
    buffer_load_dwordx4 {vr(K0,4)}, v3, {WS_SRD}, s58 offen {SC}
    buffer_load_dwordx4 {vr(K0+4,4)}, v3, {WS_SRD}, s58 offen offset:1024 {SC}
    s_waitcnt vmcnt(0)
    v_mfma_f32_32x32x16_bf16 {vr(T,16)}, {vr(K0,4)}, {vr(Q,4)}, 0
    v_mfma_f32_32x32x16_bf16 {vr(T,16)}, {vr(K0+4,4)}, {vr(Q+4,4)}, {vr(T,16)}
    s_add_u32 s58, s58, 4096
    s_sub_u32 s59, s59, 1
    s_nop 15
    """)
    for i in range(8): a(f"v_max3_f32 v{M}, v{M}, v{T+2*i}, v{T+2*i+1}")
    a(f"""
    s_cmp_lg_u32 s59, 0
    s_cbranch_scc1 L_fb1
    v_mov_b32 v{M+1}, v{M}
    s_nop 1
    v_permlane32_swap_b32 v{M}, v{M+1}
    s_nop 1
    v_max_f32 v{M}, v{M}, v{M+1}
    v_sub_f32 v{M}, 0, v{M}
    v_and_b32 v{M+1}, 0xffff0000, v{M}
    v_sub_f32 v{M+2}, v{M}, v{M+1}
    v_and_b32 v{M+3}, 0xffff0000, v{M+2}
    v_sub_f32 v{M+2}, v{M+2}, v{M+3}
    v_lshrrev_b32 v{M+1}, 16, v{M+1}
    v_or_b32 v{M+1}, v{M+1}, v{M+3}
    v_lshrrev_b32 v{M+2}, 16, v{M+2}
    v_cmp_gt_u32 vcc, 32, v2
    s_lshl_b32 s58, s{sHD}, 18
    s_mov_b32 s59, 64
    v_cndmask_b32 v{Q+6}, v{M+1}, v{Q+6}, vcc
    v_cndmask_b32 v{Q+7}, v{M+2}, v{Q+7}, vcc
    """)
    for r in range(16): a(f"v_mov_b32 v{S+r}, 0")
    a(f"""
    L_fb2:
    buffer_load_dwordx4 {vr(K0,4)}, v3, {WS_SRD}, s58 offen {SC}
    buffer_load_dwordx4 {vr(K0+4,4)}, v3, {WS_SRD}, s58 offen offset:1024 {SC}
    buffer_load_dwordx4 {vr(K0+8,4)}, v3, {WS_SRD}, s58 offen offset:2048 {SC}
    buffer_load_dwordx4 {vr(K0+12,4)}, v3, {WS_SRD}, s58 offen offset:3072 {SC}
    s_waitcnt vmcnt(0)
    v_mfma_f32_32x32x16_bf16 {vr(T,16)}, {vr(K0,4)}, {vr(Q,4)}, 0
    v_mfma_f32_32x32x16_bf16 {vr(T,16)}, {vr(K0+4,4)}, {vr(Q+4,4)}, {vr(T,16)}
    s_add_u32 s58, s58, 4096
    s_sub_u32 s59, s59, 1
    s_nop 15
    """)
    for i in range(16): a(f"v_exp_f32 v{T+i}, v{T+i}")
    a(f"""
    s_nop 1
    v_smfmac_f32_32x32x32_bf16 {vr(S,16)}, {vr(K0+8,4)}, {vr(T,8)}, v{IDX}
    v_smfmac_f32_32x32x32_bf16 {vr(S,16)}, {vr(K0+12,4)}, {vr(T+8,8)}, v{IDX}
    s_cmp_lg_u32 s59, 0
    s_cbranch_scc1 L_fb2
    s_nop 15
    v_mov_b32 v{S+32}, v{S+12}
    v_mov_b32 v{S+33}, v{S+12}
    s_nop 1
    v_permlane32_swap_b32 v{S+32}, v{S+33}
    s_nop 1
    v_rcp_f32 v{S+34}, v{S+33}
    s_nop 0
    """)
    norm2(S, S+34)
    a("s_branch L_p3")

prologue(); loader(); compute(); attention(); p3(); fallback()
a("L_code_end:")
a(kdesc(N, NV, 102))
hdr = f"""; @launch grid=(256,1,1) block=(512,1,1) lds={LDS_BYTES}
; Two independent MHA blocks (S=2048, D=448, 16 heads of 28), fused into one launch of 256 co-resident workgroups.
; Workgroup = (block, head pair, 128 tokens), 8 waves.
;  1. projection: waves 4-7 stream x and the weight columns into LDS, waves 0-3 run the MFMAs (K,V first, then Q).
;     K,V go to d_ws in MFMA fragment order (write-through), announced by flags that carry a per-launch tag
;     (a clock value workgroup 0 puts into d_debug), so stale words in d_ws are never taken for a hand-off.
;  2. attention: S^T = K Q^T (Q pre-scaled by log2(e)/sqrt(28)), P = exp2(S), O^T += V^T P^T with the sparse MFMA,
;     which picks the high (bf16) half of every fp32 P. A ones column in V gives the row sums.
;     Softmax guard: the shift is first taken as 0; every row sum is then checked to lie in [2^-32, 2^48] and every
;     accumulator to be finite. If not, the wave recomputes its rows with the true row maximum (L_fallback*).
;  3. output projection: O tiles are exchanged through d_ws; each slot is first filled with a marker
;     (announced by a tagged flag), readers reload a tile until no marker is left.
; All spin waits are bounded.
""" + '.amdgcn_target "amdgcn-amd-amdhsa--gfx950"\n'
open(sys.argv[1], "w").write(hdr + a.text())
```

```python
import sys, struct
from asmlib import *

KV_OFF = 0
OF_OFF = 8 << 20
FL_OFF = 12 << 20
FO_OFF = (12 << 20) + (256 << 10)
WS_USED = 13 << 20
ST_OFF = 32 << 20
CSCALE = 28 ** -0.5 * 1.4426950408889634
def f2u(x): return struct.unpack("<I", struct.pack("<f", x))[0]
ARGS = sys.argv[2:]
def opt(name): return ("--" + name) in ARGS
def val(name, d): return int(ARGS[ARGS.index("--" + name) + 1]) if opt(name) else d
STAMP = opt("stamp")
N = "concat_heads__softmax_full_mha__mha_block__prompt_kernel"
SC = "sc1"
SPIN_MAX = 100000
SLEEP = val("sleep", 2)

FL2 = val("fl2", 4)
FSH = 3
WR0 = 114688
C0, C1, C2, C3 = 32768, 65536, 98304, 131072
A2 = C3
LDS_BYTES = 163840
def wslot(i): return WR0 + ((i + 2) % 3) * 16384

a = Asm()
def stamp(idx):
    if not STAMP: return
    a(f"""
    s_memtime s[64:65]
    s_memrealtime s[66:67]
    s_waitcnt lgkmcnt(0)
    s_mov_b32 s{70+2*idx}, s64
    s_mov_b32 s{71+2*idx}, s66
    """)
def stamp_flush(n):
    if not STAMP: return
    a(f"""
    s_lshl_b32 s66, s2, 4
    s_add_u32 s66, s66, s27
    s_lshl_b32 s66, s66, 7
    s_add_u32 s66, s66, {ST_OFF}
    s_add_u32 s64, s20, s66
    s_addc_u32 s65, s21, 0
    v_mov_b32 v0, 0
    s_mov_b64 exec, 1
    """)
    for i in range(n):
        a(f"""
        v_mov_b32 v4, s{70+2*i}
        v_mov_b32 v5, s{71+2*i}
        global_store_dwordx2 v0, v[4:5], s[64:65] offset:{8*i}
        s_nop 1
        """)

sB, sJ, sHP, sW, sG, sKH, sHD = 24, 25, 26, 27, 48, 49, 52
X_SRD, W_SRD, WS_SRD, WO_SRD, OUT_SRD = "s[28:31]", "s[32:35]", "s[36:39]", "s[40:43]", "s[44:47]"
TAG = 50
IDX, VA, VC = 4, 5, 6
Q, O, S, KB, VB = 8, 176, 64, 128, 152
KF = KB
TMP = 250
PA, WOA, EXA, EXB, P3A, OUTA, PWA, PRA, FLA = 240, 241, 242, 243, 244, 245, 246, 247, 248
EX0 = 65536
NV = 256

JN = [0]
def jitter(maxlog=5):
    if not opt("jitter"): return
    JN[0] += 1
    a(f"""
    s_memrealtime s[64:65]
    s_waitcnt lgkmcnt(0)
    s_mul_i32 s66, s2, 2654435761
    s_mul_i32 s67, s27, 40503
    s_add_u32 s66, s66, s67
    s_mul_i32 s64, s64, 2246822519
    s_add_u32 s66, s66, s64
    s_lshr_b32 s66, s66, {32-maxlog}
    s_mul_i32 s66, s66, s66
    L_jit{JN[0]}:
    s_cmp_eq_u32 s66, 0
    s_cbranch_scc1 L_jit{JN[0]}_done
    s_sleep 1
    s_sub_u32 s66, s66, 1
    s_branch L_jit{JN[0]}
    L_jit{JN[0]}_done:
    """)

def tag_check(lbl, v):
    a(f"""
    s_mov_b32 s53, {SPIN_MAX}
    {lbl}_chk:
    v_readfirstlane_b32 s{TAG}, v{v}
    v_readfirstlane_b32 s{TAG+1}, v{v+1}
    s_nop 1
    s_cmp_lg_u64 s[{TAG}:{TAG+1}], 0
    s_cbranch_scc1 {lbl}_ok
    s_sub_u32 s53, s53, 1
    s_cbranch_scc1 {lbl}_ok
    global_load_dwordx2 v[{v}:{v+1}], v7, s[18:19] {SC}
    s_waitcnt vmcnt(0)
    s_branch {lbl}_chk
    {lbl}_ok:
    """)
def poll_issue(soff, mask):
    a(f"""
    s_mov_b64 exec, {hex(mask)}
    buffer_load_dwordx2 v[{TMP}:{TMP+1}], v{FLA if mask == 0xffff else PA}, {WS_SRD}, {soff} offen {SC}
    s_mov_b64 exec, -1
    """)
def prepoll():
    if not opt("pre"): return
    a(f"""
    s_mov_b32 exec_lo, s7
    s_mov_b32 exec_hi, 0
    buffer_load_dwordx2 v[{TMP}:{TMP+1}], v216, {WS_SRD}, s9 offen {SC}
    s_mov_b64 exec, -1
    """)
def poll_read(dst):
    a(f"""
    s_waitcnt vmcnt(0)
    v_cmp_eq_u64 vcc, s[{TAG}:{TAG+1}], v[{TMP}:{TMP+1}]
    s_nop 1
    s_mov_b32 s{dst}, vcc_lo
    """)
def need_bits(lbl, mreg, nreg, soff, mask, va=None):
    a(f"""
    s_and_b32 s53, s{mreg}, s{nreg}
    s_cmp_eq_u32 s53, s{nreg}
    s_cbranch_scc1 {lbl}_ok
    s_mov_b32 s54, {SPIN_MAX}
    {lbl}_spin:
    """)
    poll_issue(soff, mask)
    poll_read(mreg)
    a(f"""
    s_and_b32 s53, s{mreg}, s{nreg}
    s_cmp_eq_u32 s53, s{nreg}
    s_cbranch_scc1 {lbl}_ok
    s_sleep {SLEEP}
    s_sub_u32 s54, s54, 1
    s_cbranch_scc0 {lbl}_spin
    {lbl}_ok:
    """)
def poll_check(lbl, soff, mask, t0=53, t1=54):
    a(f"""
    s_mov_b32 s{t0}, {SPIN_MAX}
    {lbl}_chk:
    s_waitcnt vmcnt(0)
    v_cmp_eq_u64 vcc, s[{TAG}:{TAG+1}], v[{TMP}:{TMP+1}]
    s_nop 1
    s_and_b32 s{t1}, vcc_lo, {hex(mask)}
    s_cmp_eq_u32 s{t1}, {hex(mask)}
    s_cbranch_scc1 {lbl}_ok
    s_sub_u32 s{t0}, s{t0}, 1
    s_cbranch_scc1 {lbl}_ok
    s_sleep {SLEEP}
    """)
    poll_issue(soff, mask)
    a(f"""
    s_branch {lbl}_chk
    {lbl}_ok:
    """)
def flag_store(soff, v=TMP+2):
    a(f"""
    v_mov_b32 v{v}, s{TAG}
    v_mov_b32 v{v+1}, s{TAG+1}
    s_mov_b64 exec, 1
    buffer_store_dwordx2 v[{v}:{v+1}], v7, {WS_SRD}, {soff} offen {SC}
    s_mov_b64 exec, -1
    """)

def prologue():
    a(khead(N))
    a(f"""
    s_cmp_ge_u32 s2, 256
    s_cbranch_scc1 L_end
    """)
    stamp(0)
    if opt("tag0"): a("s_memrealtime s[98:99]")
    for _ in range(val("xpad", 0)): a("s_mov_b32 s3, 0x12345678")
    a(f"""
    s_load_dwordx16 s[4:19], s[0:1], 0
    s_load_dwordx2 s[20:21], s[0:1], 64
    s_and_b32 s22, s2, 7          ; xcd
    s_lshr_b32 s23, s2, 3         ; r
    s_lshr_b32 s{sB}, s22, 2
    s_bfe_u32 s25, s22, 0x10001
    s_lshl_b32 s25, s25, 3
    s_and_b32 s53, s23, 7
    s_add_u32 s{sJ}, s25, s53     ; jj
    s_and_b32 s26, s22, 1
    s_lshl_b32 s26, s26, 2
    s_lshr_b32 s54, s23, 3
    s_add_u32 s{sHP}, s26, s54    ; hp
    s_lshl_b32 s54, s54, 1
    s_add_u32 s54, s54, s53       ; 0..13
    s_sub_u32 s53, s54, 7
    s_cmp_ge_u32 s54, 7
    s_cselect_b32 s54, s53, s54
    """)
    RM = val("rotm", 1)
    if RM:
        a("""
        s_lshr_b32 s54, s23, 3
        s_add_u32 s54, s54, s23
        """)
        if RM == 1: a("s_and_b32 s54, s54, 3\ns_lshl_b32 s54, s54, 1")
        if RM == 3: a("s_and_b32 s54, s54, 1\ns_lshl_b32 s54, s54, 2")
        if RM == 2: a("s_and_b32 s54, s54, 3\ns_lshl_b32 s54, s54, 2\ns_lshr_b32 s54, 0x2520, s54\ns_and_b32 s54, s54, 15")
        if RM == 4: a("s_and_b32 s54, s54, 7\ns_lshl_b32 s54, s54, 2\ns_lshr_b32 s54, 0x53164200, s54\ns_and_b32 s54, s54, 15")
    a(f"""
    v_lshrrev_b32 v1, 6, v0
    v_and_b32 v2, 63, v0          ; lane
    v_mov_b32 v7, 0
    v_readfirstlane_b32 s{sW}, v1
    v_lshlrev_b32 v3, 4, v2       ; lane*16
    s_and_b32 s{sG}, s{sW}, 3
    s_lshr_b32 s{sKH}, s{sW}, 2
    s_cmp_eq_u32 s{sKH}, 0
    s_cbranch_scc1 L_compute
    """)

def srd_in():
    a(f"""
    s_waitcnt lgkmcnt(0)
    s_cmp_eq_u32 s{sB}, 0
    s_cselect_b32 s28, s4, s10
    s_cselect_b32 s29, s5, s11
    s_cselect_b32 s32, s6, s12
    s_cselect_b32 s33, s7, s13
    """)
def srd_const():
    a(f"""
    s_mov_b32 s30, 1835008
    s_mov_b32 s31, 0x20000
    s_mov_b32 s34, 1204224
    s_mov_b32 s35, 0x20000
    """)
def srd_rest():
    a(f"""
    s_cmp_eq_u32 s{sB}, 0
    s_mov_b32 s36, s20
    s_mov_b32 s37, s21
    s_mov_b32 s38, {WS_USED}
    s_mov_b32 s39, 0x20000
    s_cselect_b32 s40, s8, s14
    s_cselect_b32 s41, s9, s15
    s_mov_b32 s42, 401408
    s_mov_b32 s43, 0x20000
    s_mov_b32 s44, s16
    s_mov_b32 s45, s17
    s_mov_b32 s46, 3670016
    s_mov_b32 s47, 0x20000
    """)

def setup():
    srd_rest()
    a(f"""
    v_mov_b32 v{IDX}, 0xdddddddd
    s_lshl_b32 s62, s{sB}, 3
    s_add_u32 s62, s62, s{sHP}            ; b*8+hp
    s_lshl_b32 s9, s62, 9
    s_add_u32 s9, s9, {FL_OFF}
    s_lshl_b32 s63, s{sG}, 7
    s_add_u32 s10, s9, s63
    s_lshl_b32 s63, s{sJ}, 3
    s_add_u32 s10, s10, s63
    s_and_b32 s63, s{sG}, 2
    s_add_u32 s63, s63, s{sKH}
    s_lshl_b32 s63, s63, 7
    s_add_u32 s9, s9, s63
    s_lshl_b32 s62, s62, 1
    s_lshr_b32 s101, s{sG}, 1
    s_add_u32 s{sHD}, s62, s101
    s_and_b32 s100, s{sG}, 1
    s_lshl_b32 s63, s{sKH}, 1
    s_add_u32 s100, s100, s63
    s_lshl_b32 s4, s{sHD}, 6
    s_add_u32 s4, s4, s100
    s_lshl_b32 s4, s4, 12
    s_lshl_b32 s62, s101, 14
    s_lshl_b32 s63, s100, 12
    s_add_u32 s63, s63, s62
    s_add_u32 s63, s63, {A2}
    v_add_u32 v5, s63, v3
    s_mul_i32 s62, s101, 24576
    s_add_u32 s62, s62, {EX0}
    v_add_u32 v{EXB}, s62, v3
    s_lshl_b32 s8, s100, 12
    s_mul_i32 s7, s{sKH}, 49152
    s_and_b32 s63, s{sG}, 1
    s_mul_i32 s63, s63, 12288
    s_add_u32 s7, s7, s63
    s_add_u32 s7, s7, {EX0}
    s_lshl_b32 s62, s101, 13
    s_add_u32 s62, s62, {EX0}
    v_add_u32 v6, s62, v3
    v_lshlrev_b32 v{PA}, 3, v2
    v_mov_b32 v{FLA}, v{PA}
    s_mul_i32 s62, s23, 37
    s_lshr_b32 s62, s62, 8                ; r/7
    s_mul_i32 s3, s62, 7
    s_sub_u32 s3, s23, s3                 ; ct
    s_lshl_b32 s12, s22, 2
    s_add_u32 s12, s12, s62
    s_lshl_b32 s12, s12, 2
    s_add_u32 s12, s12, s100
    v_lshrrev_b32 v{WOA}, 3, v2
    v_and_b32 v{P3A}, 7, v2
    v_bfe_u32 v{OUTA}, v2, 4, 1
    v_lshlrev_b32 v{OUTA}, 2, v{OUTA}
    v_xor_b32 v{P3A}, v{P3A}, v{OUTA}
    v_mul_u32_u24 v{WOA}, 896, v{WOA}
    v_lshl_add_u32 v{WOA}, v{P3A}, 4, v{WOA}
    s_mul_i32 s62, s{sW}, {8*896}
    s_lshl_b32 s63, s3, 7
    s_add_u32 s62, s62, s63
    v_add_u32 v{WOA}, s62, v{WOA}
    s_lshl_b32 s13, s{sW}, 10
    s_mov_b32 s11, 0
    s_lshl_b32 s62, s{sB}, 4
    s_add_u32 s62, s62, s{sJ}
    s_lshl_b32 s62, s62, 2
    s_add_u32 s62, s62, s100
    s_lshl_b32 s62, s62, 4
    s_and_b32 s63, s{sHD}, 15
    s_add_u32 s62, s62, s63
    s_lshl_b32 s15, s62, 3
    s_add_u32 s15, s15, {FO_OFF}
    s_lshl_b32 s14, s62, 11
    s_add_u32 s14, s14, {OF_OFF}
    s_lshl_b32 s16, s12, 7
    s_lshl_b32 s62, s101, 6
    s_add_u32 s16, s16, s62
    s_add_u32 s16, s16, {FO_OFF}
    s_lshl_b32 s17, s12, 15
    s_lshl_b32 s62, s101, 14
    s_add_u32 s17, s17, s62
    s_add_u32 s17, s17, {OF_OFF}
    v_lshrrev_b32 v252, 5, v2             ; hh
    v_bfe_u32 v253, v2, 2, 2
    v_lshl_add_u32 v{P3A}, v252, 2, v253
    v_lshlrev_b32 v{P3A}, 7, v{P3A}
    v_bfe_u32 v253, v2, 4, 1
    v_lshl_add_u32 v{P3A}, v253, 5, v{P3A}
    v_and_b32 v253, 3, v2
    v_lshl_add_u32 v{P3A}, v253, 3, v{P3A}
    v_bfe_u32 v253, v2, 3, 1
    v_lshl_add_u32 v{P3A}, v253, 6, v{P3A}
    s_mul_i32 s62, s101, {8*28*128}
    v_add_u32 v{P3A}, s62, v{P3A}
    v_and_b32 v253, 31, v2
    v_and_b32 v254, 7, v2
    v_xor_b32 v255, v252, v254
    v_lshlrev_b32 v255, 4, v255
    v_lshl_add_u32 v{PWA}, v253, 8, v255
    s_mul_i32 s62, s101, 24576
    s_add_u32 s62, s62, s7
    v_add_u32 v{PWA}, s62, v{PWA}
    v_lshrrev_b32 v253, 3, v2
    v_lshlrev_b32 v255, 1, v254
    v_xor_b32 v255, v255, v253
    v_lshlrev_b32 v255, 4, v255
    v_lshl_add_u32 v{PRA}, v253, 8, v255
    s_lshl_b32 s62, s101, 12
    s_add_u32 s62, s62, s7
    v_add_u32 v{PRA}, s62, v{PRA}
    s_and_b32 s62, s12, 63
    s_lshl_b32 s62, s62, 5
    s_lshl_b32 s63, s101, 4
    s_add_u32 s62, s62, s63
    v_add_u32 v253, s62, v253
    v_mul_u32_u24 v253, 1792, v253
    v_lshl_add_u32 v{OUTA}, v254, 4, v253
    s_mul_i32 s62, s{sB}, 896
    s_lshl_b32 s63, s3, 7
    s_add_u32 s62, s62, s63
    v_add_u32 v{OUTA}, s62, v{OUTA}
    s_mov_b32 s68, 0
    """)
    for r in range(O, O+64): a(f"v_mov_b32 v{r}, 0")

def loader():
    a(f"""
    v_lshrrev_b32 v8, 3, v2       ; lane/8
    v_and_b32 v9, 7, v2
    v_lshrrev_b32 v14, 4, v2
    v_xor_b32 v9, v9, v14
    v_xor_b32 v14, 4, v9
    s_lshl_b32 s55, s{sJ}, 7
    s_lshl_b32 s56, s{sG}, 5
    s_add_u32 s55, s55, s56
    s_mul_i32 s55, s55, 896
    v_mul_u32_u24 v8, 896, v8
    v_add_u32 v8, s55, v8
    v_lshl_add_u32 v10, v9, 4, v8
    v_lshl_add_u32 v11, v14, 4, v8
    v_add_u32 v12, {2*6144}, v10
    v_add_u32 v13, {3*6144}, v11
    v_add_u32 v11, {6144}, v11
    s_lshl_b32 s55, s{sG}, 12              ; g*4096
    s_lshl_b32 s57, s54, 7
    s_mov_b32 m0, s55
    s_mul_i32 s58, s54, {64*2688}
    """)
    srd_const()
    a(f"""
    v_lshrrev_b32 v8, 4, v2
    v_and_b32 v9, 15, v2
    v_lshlrev_b32 v20, 2, v8
    v_xor_b32 v9, v9, v20         ; P
    v_lshrrev_b32 v20, 3, v9      ; seg
    v_and_b32 v9, 7, v9
    v_add_u32 v21, 1, v9
    v_lshlrev_b32 v21, 27, v21
    v_and_b32 v21, 0x40000000, v21
    v_mul_u32_u24 v8, 2688, v8
    v_mul_u32_u24 v20, 896, v20
    v_lshl_add_u32 v9, v9, 4, v21
    v_add3_u32 v8, v8, v9, v20
    s_mul_i32 s59, s{sG}, {16*2688}
    s_mul_i32 s60, s{sHP}, 112
    s_add_u32 s59, s59, s60
    s_add_u32 s60, s59, 896
    v_add_u32 v14, s60, v8
    v_add_u32 v15, {4*2688-1024}, v14
    v_add_u32 v16, {2*(4*2688-1024)}, v14
    v_add_u32 v17, {3*(4*2688-1024)}, v14
    """)
    srd_in()
    for q in range(4): a(f"buffer_load_dwordx4 v{10+q}, {X_SRD}, s57 offen offset:{q*1024} {SC} lds")
    def next_c():
        a("""
        s_add_u32 s54, s54, 1
        s_cmp_eq_u32 s54, 7
        s_cselect_b32 s54, 0, s54
        """)
    def item(i):
        if i < 7:
            if i:
                a(f"""
                s_lshl_b32 s57, s54, 7
                s_add_u32 m0, s55, {i*16384}
                s_mul_i32 s58, s54, {64*2688}
                """)
                for q in range(4): a(f"buffer_load_dwordx4 v{10+q}, {X_SRD}, s57 offen offset:{q*1024} {SC} lds")
            a(f"s_add_u32 m0, s55, {wslot(i)}")
            a("s_nop 0")
            for q in range(4): a(f"buffer_load_dwordx4 v{14+q}, {W_SRD}, s58 offen offset:{q*1024} {SC} lds")
            next_c()
        else:
            for d in range(2):
                if 2*(i-7)+d > 6: break
                a(f"""
                s_add_u32 m0, s56, {wslot(i) + d*8192}
                s_mul_i32 s58, s54, {64*2688}
                """)
                for q in range(2): a(f"buffer_load_dwordx4 v{18+q}, {W_SRD}, s58 offen offset:{q*1024} {SC} lds")
                next_c()
    jitter()
    item(0); item(1)
    a(f"""
    v_lshrrev_b32 v8, 3, v2
    v_and_b32 v9, 7, v2
    v_bfe_u32 v20, v2, 4, 1
    v_lshlrev_b32 v20, 2, v20
    v_xor_b32 v9, v9, v20
    v_add_u32 v21, 1, v9
    v_lshlrev_b32 v21, 27, v21
    v_and_b32 v21, 0x40000000, v21
    v_mul_u32_u24 v8, 2688, v8
    v_lshl_add_u32 v8, v9, 4, v8
    v_add_u32 v8, v8, v21
    v_add_u32 v18, s59, v8
    v_add_u32 v19, {8*2688-1024}, v18
    s_lshl_b32 s56, s{sG}, 11
    """)
    stamp(1)
    cnt = lambda i: 8 if i < 7 else (4 if i < 10 else (2 if i == 10 else 0))
    for k in range(11):
        a(f"s_waitcnt vmcnt({0 if (opt('sfirst') and k == 7) else cnt(k+1)})")
        a("s_barrier")
        if k == 0: stamp(2)
        if k in (3, 7, 9): jitter(4)
        if opt("sfirst"):
            if k + 2 <= 7: item(k+2)
            if k == 7:
                a("s_barrier")
                item(8); item(9)
            if k == 8: item(10)
        elif k + 2 <= 10: item(k+2)
        if k == 8: setup()
        if k == 9: a(f"global_load_dwordx2 v[{TMP}:{TMP+1}], v7, s[18:19] {SC}")
    tag_check("L_tagl", TMP)
    stamp(3); stamp(4)
    a("s_barrier")
    a("s_branch L_attn")

def compute():
    XA = 24
    WK, WV, WQ = 28, 168, 169
    AK, AV, AQ = (32, 64), (48, 80), (96, 112)
    FB = 128
    PK = 32
    a("L_compute:")
    srd_const(); srd_in()
    if not opt("nocodepf"):
        a(f"""
        s_getpc_b64 s[62:63]
        L_pc:
        s_and_b32 s55, s23, 7
        s_lshl_b32 s55, s55, 2
        s_add_u32 s55, s55, s{sW}
        s_lshl_b32 s55, s55, 10
        v_add_u32 v8, s55, v3
        v_min_u32 v8, L_code_end - L_pc - 16, v8
        global_load_dwordx4 v[164:167], v8, s[62:63]
        """)
    a(f"""
    s_cmp_lg_u32 s2, 0
    s_cbranch_scc1 L_notag
    s_cmp_lg_u32 s{sW}, 0
    s_cbranch_scc1 L_notag
    {"s_mov_b64 s[60:61], s[98:99]" if opt("tag0") else "s_memrealtime s[60:61]"}
    s_waitcnt lgkmcnt(0)
    s_or_b32 s60, s60, 1
    v_mov_b32 v18, s60
    v_mov_b32 v19, s61
    s_mov_b64 exec, 1
    global_store_dwordx2 v7, v[18:19], s[18:19] {SC}
    s_mov_b64 exec, -1
    L_notag:
    v_and_b32 v8, 31, v2          ; m
    v_lshrrev_b32 v9, 5, v2       ; hh
    v_bfe_u32 v10, v2, 1, 3       ; z
    v_xor_b32 v10, v9, v10
    s_and_b32 s55, s{sG}, 1
    s_lshl_b32 s55, s55, 13
    v_lshlrev_b32 v11, 7, v8
    v_add_u32 v11, s55, v11
    v_lshl_add_u32 v{XA}, v10, 4, v11
    v_xor_b32 v12, 2, v10
    v_lshl_add_u32 v{XA+1}, v12, 4, v11
    v_xor_b32 v12, 4, v10
    v_lshl_add_u32 v{XA+2}, v12, 4, v11
    v_xor_b32 v12, 6, v10
    v_lshl_add_u32 v{XA+3}, v12, 4, v11
    v_bfe_u32 v10, v2, 2, 2       ; r
    v_bfe_u32 v11, v2, 4, 1       ; nhalf
    v_and_b32 v12, 3, v2          ; c4
    v_lshl_add_u32 v11, v11, 2, v12
    s_lshr_b32 s55, s{sG}, 1
    s_mul_i32 s55, s55, 7
    v_add_u32 v11, s55, v11       ; u
    v_lshrrev_b32 v12, 1, v11     ; piece
    v_and_b32 v11, 1, v11
    v_lshlrev_b32 v11, 3, v11     ; half*8
    v_lshl_add_u32 v13, v9, 3, v10      ; 8hh + r
    v_lshlrev_b32 v14, 2, v10
    v_xor_b32 v14, v12, v14             ; piece ^ (r<<2)
    v_lshl_add_u32 v14, v14, 4, v11
    v_lshl_add_u32 v14, v13, 8, v14
    v_add_u32 v{WK}, {WR0}, v14
    v_xor_b32 v{WV}, 128, v{WK}
    v_lshrrev_b32 v14, 1, v10
    v_lshlrev_b32 v14, 2, v14
    v_xor_b32 v14, v12, v14             ; piece ^ ((r>>1)<<2)
    v_lshl_add_u32 v14, v14, 4, v11
    v_lshl_add_u32 v14, v13, 7, v14
    v_add_u32 v{WQ}, {WR0}, v14
    v_and_b32 v29, 0x33, v2
    v_bfe_u32 v10, v2, 2, 1
    v_bfe_u32 v11, v2, 3, 1
    v_lshl_or_b32 v29, v10, 3, v29
    v_lshl_or_b32 v29, v11, 2, v29
    v_lshlrev_b32 v29, 4, v29     ; swap23(lane)*16
    v_cmp_gt_u32 s[56:57], 28, v8
    v_cmp_eq_u32 s[58:59], 28, v8
    v_mov_b32 v30, 0x3f803f80
    v_mov_b32 v31, 0x00003f80
    v_cndmask_b32 v1, 0, v30, s[58:59]
    s_lshl_b32 s60, s{sG}, 13
    s_add_u32 s60, s60, {A2}
    v_add_u32 v170, s60, v29
    v_add_u32 v171, s60, v3
    s_lshl_b32 s60, s{sG}, 12
    s_add_u32 s60, s60, {EX0}
    v_add_u32 v172, s60, v3
    """)
    PT = val("pretouch", 0)
    if PT:
        srd_rest()
        if PT == 1:
            a(f"""
            s_cmp_lg_u32 s{sW}, 1
            s_cbranch_scc1 L_nopt
            s_lshl_b32 s55, s23, 19
            v_lshlrev_b32 v8, 16, v2
            s_mov_b64 exec, 0xff
            buffer_load_dword v224, v8, {WS_SRD}, s55 offen {SC}
            s_lshl_b32 s55, s23, 17
            s_mov_b64 exec, 3
            buffer_load_dword v225, v8, {OUT_SRD}, s55 offen {SC}
            s_mov_b64 exec, -1
            L_nopt:
            """)
        else:
            a(f"""
            s_cmp_lg_u32 s{sW}, 1
            s_cbranch_scc1 L_nopt
            s_lshl_b32 s55, s23, 19
            v_lshlrev_b32 v8, 13, v2
            buffer_load_dword v224, v8, {WS_SRD}, s55 offen {SC}
            s_lshl_b32 s55, s23, 17
            v_lshlrev_b32 v8, 12, v2
            s_mov_b64 exec, 0xffffffff
            buffer_load_dword v225, v8, {OUT_SRD}, s55 offen {SC}
            s_mov_b64 exec, -1
            L_nopt:
            """)
    setup()
    a(f"""
    s_lshl_b32 s55, s{sHD}, 6
    s_lshl_b32 s60, s{sJ}, 2
    s_add_u32 s55, s55, s60
    s_and_b32 s60, s{sG}, 1
    s_lshl_b32 s60, s60, 1
    s_add_u32 s55, s55, s60
    s_lshl_b32 s55, s55, 12
    s_mov_b32 s60, {hex(f2u(CSCALE))}
    s_mov_b32 s61, s60
    v_cmp_gt_u32 vcc, 32, v2
    """)
    def FB2(t): return (128, 140, 152)[t % 3] if t else 128
    def xoff(i): return (i if i < 4 else i-4) * 16384
    def reads1(t):
        i, s = divmod(t, 4); b = FB + 16*(t & 1); wo = wslot(i) - WR0
        R = [f"ds_read_b128 {vr(b,4)}, v{XA+s} offset:{xoff(i)}"]
        for rd in range(2): R.append(f"ds_read_b64_tr_b16 {vr(b+8+2*rd,2)}, v{WK} offset:{wo+(16*s+4*rd)*256}")
        for rd in range(2): R.append(f"ds_read_b64_tr_b16 {vr(b+12+2*rd,2)}, v{WV} offset:{wo+(16*s+4*rd)*256}")
        R.append(f"ds_read_b128 {vr(b+4,4)}, v{XA+s} offset:{xoff(i)+4096}")
        return R
    def reads2(t):
        i, s = divmod(t, 4); b = FB2(t); wo = wslot(7 + i//2) - WR0 + (i & 1)*8192
        R = [f"ds_read_b128 {vr(b,4)}, v{XA+s} offset:{xoff(i)}"]
        for rd in range(2): R.append(f"ds_read_b64_tr_b16 {vr(b+8+2*rd,2)}, v{WQ} offset:{wo+(16*s+4*rd)*128}")
        R.append(f"ds_read_b128 {vr(b+4,4)}, v{XA+s} offset:{xoff(i)+4096}")
        return R
    def shift(d): return [f"v_add_u32 v{XA+k}, {d & 0xffffffff}, v{XA+k}" for k in range(4)]
    stamp(1)
    a("s_barrier")
    stamp(2)
    for r in reads1(0): a(r)
    for t in range(28):
        i, s = divmod(t, 4); b = FB + 16*(t & 1)
        cin = lambda r: ("0" if t == 0 else vr(r, 16))
        M = [f"v_mfma_f32_32x32x16_bf16 {vr(AK[0],16)}, {vr(b+8,4)}, {vr(b,4)}, {cin(AK[0])}",
             f"v_mfma_f32_32x32x16_bf16 {vr(AV[0],16)}, {vr(b,4)}, {vr(b+12,4)}, {cin(AV[0])}",
             f"v_mfma_f32_32x32x16_bf16 {vr(AK[1],16)}, {vr(b+8,4)}, {vr(b+4,4)}, {cin(AK[1])}",
             f"v_mfma_f32_32x32x16_bf16 {vr(AV[1],16)}, {vr(b+4,4)}, {vr(b+12,4)}, {cin(AV[1])}"]
        R = reads1(t+1) if t < 27 else reads2(0)
        a("s_waitcnt lgkmcnt(0)")
        if s == 3:
            a(M[0])
            if i == 3:
                for l in shift(65536): a(l)
            if i == 6:
                for l in shift(-65536): a(l)
            a("s_barrier")
            per = val("p1r", 3)
            for m in range(1, 4):
                for r in R[per*(m-1):per*(m-1)+per]: a(r)
                a(M[m])
        else:
            per = val("p1r", 3)
            for m in range(4):
                a(M[m])
                for r in R[per*m:per*m+per]: a(r)
        if t == 17: a(f"global_load_dwordx2 v[174:175], v7, s[18:19] {SC}")
    stamp(3)
    jitter()
    side = []
    for i in range(2):
        if opt("kscale"):
            for k in range(8): side.append(f"v_pk_mul_f32 {vr(AK[i]+2*k,2)}, {vr(AK[i]+2*k,2)}, s[60:61]")
        for k in range(8): side.append(f"v_cvt_pk_bf16_f32 v{AK[i]+k}, v{AK[i]+2*k}, v{AK[i]+2*k+1}")
        side.append(f"v_cndmask_b32 v{AK[i]+6}, v30, v{AK[i]+6}, vcc")
        side.append(f"v_cndmask_b32 v{AK[i]+7}, v31, v{AK[i]+7}, vcc")
        side.append(f"buffer_store_dwordx4 {vr(AK[i],4)}, v29, {WS_SRD}, s55 offen {SC}")
        side.append(f"buffer_store_dwordx4 {vr(AK[i]+4,4)}, v29, {WS_SRD}, s55 offen offset:1024 {SC}")
        for k in range(8): side.append(f"v_cvt_pk_bf16_f32 v{AV[i]+k}, v{AV[i]+2*k}, v{AV[i]+2*k+1}")
        for k in range(8): side.append(f"v_cndmask_b32 v{AV[i]+k}, v1, v{AV[i]+k}, s[56:57]")
        side.append(f"buffer_store_dwordx4 {vr(AV[i],4)}, v3, {WS_SRD}, s55 offen offset:2048 {SC}")
        side.append(f"buffer_store_dwordx4 {vr(AV[i]+4,4)}, v3, {WS_SRD}, s55 offen offset:3072 {SC}")
        if i == 0: side.append("s_add_u32 s55, s55, 4096")
    stores = []
    if opt("stag"):
        stores = [l.replace("s55", "s62") if k >= 4 else l for k, l in enumerate(l for l in side if l.startswith("buffer_store"))]
        side = [l for l in side if not l.startswith("buffer_store") and not l.startswith("s_add")]
        a("s_add_u32 s62, s55, 4096")
    def store_block(lbl, early):
        a(f"""
        s_bitcmp1_b32 s{sJ}, 2
        s_cbranch_scc{1 if early else 0} {lbl}
        """)
        for l in stores: a(l)
        a(f"{lbl}:")
    PER = val("side", 16)
    ST1 = (len(side) + PER - 1) // PER - 1
    ST2 = val("st2", 22)
    if PER >= 100:
        a("s_nop 7")
        for l in side: a(l)
        side = []
        if opt("sfirst"): a("s_barrier")
    lw = []
    for i in range(2):
        lw += [f"ds_write_b128 v170, {vr(AK[i],4)} offset:{4096*i}", f"ds_write_b128 v170, {vr(AK[i]+4,4)} offset:{4096*i+1024}",
               f"ds_write_b128 v171, {vr(AV[i],4)} offset:{4096*i+2048}", f"ds_write_b128 v171, {vr(AV[i]+4,4)} offset:{4096*i+3072}"]
    FT = val("flagt", 20)
    for r in reads2(1): a(r)
    NEWT = not opt("oldtail")
    XL = [40, 44, 56, 60, 72, 76, 88, 92]
    for t in range(24 if NEWT else 28):
        i, s = divmod(t, 4); b = FB2(t)
        cin = lambda r: ("0" if t == 0 else vr(r, 16))
        M = [f"v_mfma_f32_32x32x16_bf16 {vr(AQ[0],16)}, {vr(b+8,4)}, {vr(b,4)}, {cin(AQ[0])}",
             f"v_mfma_f32_32x32x16_bf16 {vr(AQ[1],16)}, {vr(b+8,4)}, {vr(b+4,4)}, {cin(AQ[1])}"]
        R = reads2(t+2) if t+2 < 28 else []
        bar = (t+2) in (8, 16, 24)
        if NEWT and t >= 22:
            bar = False
            R = [f"ds_read_b128 {vr(XL[4*(t-22)+2*k+e],4)}, v{XA+2*(t-22)+k} offset:{xoff(6)+4096*e}" for k in range(2) for e in range(2)]
        nw = 2 if t >= 25 else 0
        if bar: a("s_waitcnt lgkmcnt(0)")
        else: a(f"s_waitcnt lgkmcnt({(4 if t < 27 else 0) + nw})")
        a(M[0])
        if t+2 == 16:
            for l in shift(65536): a(l)
        if bar: a("s_barrier")
        for r in R: a(r)
        for l in side[:PER//2]: a(l)
        side = side[PER//2:]
        a(M[1])
        for l in side[:PER//2]: a(l)
        side = side[PER//2:]
        if t >= 24:
            for l in lw[2*(t-24):2*(t-24)+2]: a(l)
        if opt("stag") and t == ST1: store_block("L_st1", True)
        if opt("stag") and t == ST2: store_block("L_st2", False)
        if t == FT:
            assert not side
            if opt("stag"):
                assert FT < ST2
                a("s_waitcnt vmcnt(0)")
                tag_check("L_tagc", 174)
                a(f"""
                s_bitcmp1_b32 s{sJ}, 2
                s_cbranch_scc1 L_fl1
                """)
                flag_store("s10", 174)
                a("L_fl1:")
            else:
                a("s_waitcnt vmcnt(8)")
                tag_check("L_tagc", 174)
                a("s_waitcnt vmcnt(0)")
                flag_store("s10", 174)
            stamp(4)
    def qpack(i):
        A = AQ[i]; QD = Q + 8*i; L = []
        if not opt("kscale"): L += [f"v_pk_mul_f32 {vr(A+2*k,2)}, {vr(A+2*k,2)}, s[60:61]" for k in range(8)]
        L += [f"v_cvt_pk_bf16_f32 v{QD+k}, v{A+2*k}, v{A+2*k+1}" for k in range(8)]
        L += [f"v_cndmask_b32 v{QD+6}, 0, v{QD+6}, vcc", f"v_cndmask_b32 v{QD+7}, 0, v{QD+7}, vcc",
              f"ds_write_b128 v172, {vr(QD,4)} offset:{2048*i}", f"ds_write_b128 v172, {vr(QD+4,4)} offset:{2048*i+1024}"]
        return L
    if NEWT:
        a("s_waitcnt lgkmcnt(0)")
        a("s_barrier")
        wo = wslot(10) - WR0
        WL = [164, 128, 132, 136]
        for s_ in range(4):
            for rd in range(2): a(f"ds_read_b64_tr_b16 {vr(WL[s_]+2*rd,2)}, v{WQ} offset:{wo+(16*s_+4*rd)*128}")
        for i in range(2):
            for s_ in range(4):
                if i == 0: a("s_waitcnt lgkmcnt(6)")
                a(f"v_mfma_f32_32x32x16_bf16 {vr(AQ[i],16)}, {vr(WL[s_],4)}, {vr(XL[2*s_+i],4)}, {vr(AQ[i],16)}")
                if i == 0:
                    for l in lw[2*s_:2*s_+2]: a(l)
        a("s_nop 7")
        for l in qpack(0): a(l)
        for l in qpack(1): a(l)
    else:
        a("s_nop 7")
        a("s_nop 1")
        for i in range(2):
            for l in qpack(i): a(l)
    if FT >= 28:
        a("s_waitcnt vmcnt(8)")
        tag_check("L_tagc", 174)
        a("s_waitcnt vmcnt(0)")
        flag_store("s10", 174)
        stamp(4)
    a("""
    s_waitcnt lgkmcnt(0)
    s_barrier
    """)

def chunk_salu():
    return ["s_add_u32 s5, s5, 1", "s_and_b32 s5, s5, 15", f"s_cmp_eq_u32 s5, s{sJ}", "s_addc_u32 s5, s5, 0", "s_and_b32 s5, s5, 15",
            "s_lshl_b32 s6, s5, 14", "s_add_u32 s6, s6, s69"]
def win_salu(i):
    return [f"s_add_u32 s6, s{sJ}, {i}", "s_and_b32 s6, s6, 3", f"s_and_b32 s5, s{sJ}, 8", "s_or_b32 s5, s5, s6",
            "s_lshl_b32 s6, s5, 14", "s_add_u32 s6, s6, s4"]
def after_win():
    return [f"s_and_b32 s6, s{sJ}, 11", f"s_and_b32 s5, s{sJ}, 8", "s_add_u32 s5, s5, 4", f"s_bitcmp1_b32 s{sJ}, 2",
            "s_cselect_b32 s6, s6, s5", "s_subb_u32 s5, s5, 0", "s_lshl_b32 s6, s6, 14", "s_add_u32 s6, s6, s4"]
def kb(n): return KB + 8*(n % 3)
def vb(n): return VB + 8*(n % 3)
def kload(n): return [f"buffer_load_dwordx4 {vr(kb(n)+4*q,4)}, v3, {WS_SRD}, s6 offen offset:{q*1024} {SC}" for q in range(2)]
def vload(n): return [f"buffer_load_dwordx4 {vr(vb(n)+4*q,4)}, v3, {WS_SRD}, s6 offen offset:{2048+q*1024} {SC}" for q in range(2)]

def unit(cur, qk, pv, side=None, pre=None, late=None):
    side = side or {}
    M = [None]*4
    if qk:
        d, n, q = qk
        M[0] = f"v_mfma_f32_32x32x16_bf16 {vr(S+16*d,16)}, {vr(kb(n),4)}, {vr(Q+8*q,4)}, 0"
        M[1] = f"v_mfma_f32_32x32x16_bf16 {vr(S+16*d,16)}, {vr(kb(n)+4,4)}, {vr(Q+8*q+4,4)}, {vr(S+16*d,16)}"
    if pv:
        p, n, q = pv
        M[2] = f"v_smfmac_f32_32x32x32_bf16 {vr(O+16*q,16)}, {vr(vb(n),4)}, {vr(S+16*p,8)}, v{IDX}"
        M[3] = f"v_smfmac_f32_32x32x32_bf16 {vr(O+16*q,16)}, {vr(vb(n)+4,4)}, {vr(S+16*p+8,8)}, v{IDX}"
    E = [f"v_exp_f32 v{S+16*cur+e}, v{S+16*cur+e}" for e in range(16)]
    for l in pre or []: a(l)
    for m in range(4):
        if M[m]: a(M[m])
        for e in E[4*m:4*m+4]: a(e)
        for l in side.get(m, []):
            l() if callable(l) else a(l)

def tile_units(n, sides=None, pres=None, first=False, noqk=False):
    for q in range(4):
        qk = ((q+1) & 3, n + (q == 3), (q+1) & 3)
        pv = ((q-1) & 3, n - (q == 0), (q-1) & 3)
        if first and q == 0: pv = None
        if noqk and q == 3: qk = None
        unit(q, qk, pv, (sides or {}).get(q), (pres or {}).get(q))

def attention():
    a("L_attn:")
    poll_issue("s9", 0xffff)
    for q in range(2): a(f"ds_read_b128 {vr(Q+4*q,4)}, v6 offset:{q*1024}")
    for q in range(2): a(f"ds_read_b128 {vr(kb(0)+4*q,4)}, v5 offset:{q*1024}")
    for q in range(2, 8): a(f"ds_read_b128 {vr(Q+4*q,4)}, v6 offset:{q*1024}")
    for q in range(2): a(f"ds_read_b128 {vr(vb(0)+4*q,4)}, v5 offset:{2048+q*1024}")
    def restart(n):
        a(f"""
        v_mfma_f32_32x32x16_bf16 {vr(S,16)}, {vr(kb(n),4)}, {vr(Q,4)}, 0
        v_mfma_f32_32x32x16_bf16 {vr(S,16)}, {vr(kb(n)+4,4)}, {vr(Q+4,4)}, {vr(S,16)}
        s_nop 10
        """)
    a("s_waitcnt lgkmcnt(8)")
    restart(0)
    a("s_waitcnt lgkmcnt(0)")
    if val("a2", 1) == 0: a("s_barrier")
    stamp(5); jitter(4)
    def first():
        poll_check("L_kvp", "s9", 0xffff)
        for l in win_salu(1) + kload(1) + vload(1): a(l)
    CK = val("ck", 3)
    unit(0, (1, 0, 1), None, pre=["s_setprio 3"], side={CK: [first]})
    T2U = val("t2u", 2)
    t2 = {0: win_salu(2), 1: kload(2), 2: vload(2)}
    unit(1, (2, 0, 2), (0, 0, 0), pre=["s_setprio 2"], side=t2 if T2U == 1 else None)
    unit(2, (3, 0, 3), (1, 0, 1), pre=["s_setprio 1"], side=t2 if T2U == 2 else None)
    unit(3, None, (2, 0, 2), pre=["s_setprio 0"], side=t2 if T2U == 3 else None)
    a("s_waitcnt vmcnt(6)")
    restart(1)
    a("s_nop 0")
    stamp(6); jitter(4)
    CLEAN = [f"v_mov_b32 v{40+k}, -1" for k in range(4)] + [f"buffer_store_dwordx4 v[40:43], v3, {WS_SRD}, s14 offen {SC}", f"buffer_store_dwordx4 v[40:43], v3, {WS_SRD}, s14 offen offset:1024 {SC}"]
    tile_units(1, sides={0: {0: win_salu(3) + kload(3), 3: vload(3)}, 2: {2: after_win(), 3: kload(4)}},
               pres={0: ["s_setprio 3"], 1: ["s_setprio 2", "s_waitcnt vmcnt(8)"], 2: ["s_setprio 1"], 3: ["s_setprio 0", "s_waitcnt vmcnt(8)"]})
    if not opt("cleanloop"):
        for l in CLEAN: a(l)
    else:
        for l in CLEAN[:4]: a(l)
        a("s_mov_b32 s99, s14")
    if val("a2", 1) == 1: a("s_barrier")
    a("s_mov_b32 s69, s4")
    stamp(6 if opt("st7late") else 7)
    a(".p2align 6")
    a("L_loop:")
    jitter(3)
    WO = ["s_mov_b32 m0, s13", "s_add_u32 s13, s13, 8192", f"buffer_load_dwordx4 v{WOA}, {WO_SRD}, s11 offen {SC} lds", f"s_add_u32 s11, s11, {64*896}"]
    PRI = [{0: 3, 3: 2, 6: 1, 9: 0}, {0: 3, 1: 2, 2: 1, 3: 0, 4: 3, 5: 2, 6: 1, 7: 0, 8: 3, 9: 2, 10: 1, 11: 0},
           {0: 1, 2: 0, 4: 1, 6: 0, 8: 1, 10: 0}, {0: 3, 2: 2, 4: 1, 6: 0, 8: 2, 10: 0}, {0: 1, 6: 0}][val("pm", 1)]
    for k in range(3):
        n = 2 + k
        sides = {0: {3: vload(n+2)}, 2: {1: chunk_salu(), 3: kload(n+3)}}
        if k < 2: sides[1] = {1: WO}
        if k == 2: sides[1] = {1: ["s_cmp_eq_u32 s68, 3", f"s_cselect_b32 s69, {0x40000000}, s4"]}
        if k == 2 and opt("cleanloop"):
            sides[3] = {0: [l.replace("s14", "s99") for l in CLEAN[4:]] + [f"s_mov_b32 s99, {0x40000000}"]}
        pres = {1: ["s_waitcnt vmcnt(8)"], 3: ["s_waitcnt vmcnt(8)"]}
        for q in range(4):
            if 4*k+q in PRI and not opt("noprio"): pres[q] = [f"s_setprio {PRI[4*k+q]}"] + pres.get(q, [])
        tile_units(n, sides, pres)
    a(f"""
    s_add_u32 s68, s68, 1
    s_cmp_lt_u32 s68, 4
    s_cbranch_scc1 L_loop
    """)
    if opt("st7late"): stamp(7)
    T1 = 40; T2 = [136, 140, 160, 164]; SC8 = 56
    def norm(ph):
        B = O + 16*ph
        ex = (ph >> 1)*49152 + (ph & 1)*12288
        if ph >= 2:
            TT = [T1, O, O+16]
            for k in range(3):
                if ph == 3 and k == 1: a(f"v_add_u32 v{EXB}, 8192, v{EXB}")
                o = ex + 4096*k - (8192 if ph == 3 and k else 0)
                for q in range(4): a(f"ds_read_b128 {vr(TT[k]+4*q,4)}, v{EXB} offset:{o+q*1024}")
            for k in range(3):
                a(f"s_waitcnt lgkmcnt({8-4*k})")
                for r in range(8): a(f"v_pk_add_f32 {vr(B+2*r,2)}, {vr(B+2*r,2)}, {vr(TT[k]+2*r,2)}")
        else: norm_rd(ph)
        norm_tail(ph)
    def norm_rd(ph):
        B = O + 16*ph
        ex = (ph >> 1)*49152 + (ph & 1)*12288
        for q in range(4): a(f"ds_read_b128 {vr(T1+4*q,4)}, v{EXB} offset:{ex+q*1024}")
        if ph == 3: a(f"v_add_u32 v{EXB}, 8192, v{EXB}")
        o2 = ex + (4096 if ph != 3 else -4096)
        for q in range(4): a(f"ds_read_b128 {vr(T2[q],4)}, v{EXB} offset:{o2+q*1024}")
        a("s_waitcnt lgkmcnt(4)")
        for r in range(8): a(f"v_pk_add_f32 {vr(B+2*r,2)}, {vr(B+2*r,2)}, {vr(T1+2*r,2)}")
        for q in range(4): a(f"ds_read_b128 {vr(T1+4*q,4)}, v{EXB} offset:{o2+4096+q*1024}")
        a("s_waitcnt lgkmcnt(4)")
        for r in range(8): a(f"v_pk_add_f32 {vr(B+2*r,2)}, {vr(B+2*r,2)}, {vr(T2[r//2]+2*(r&1),2)}")
        a("s_waitcnt lgkmcnt(0)")
        for r in range(8): a(f"v_pk_add_f32 {vr(B+2*r,2)}, {vr(B+2*r,2)}, {vr(T1+2*r,2)}")
    def norm_tail(ph):
        B = O + 16*ph
        a(f"""
        v_mov_b32 v{SC8}, v{B+12}
        v_mov_b32 v{SC8+1}, v{B+12}
        s_mov_b32 s54, 0x2f800000        ; 2^-32
        s_mov_b32 s62, 0x57800000        ; 2^48
        v_permlane32_swap_b32 v{SC8}, v{SC8+1}
        v_pk_mul_f32 {vr(SC8+4,2)}, {vr(B,2)}, 0 op_sel_hi:[1,0]
        v_pk_mul_f32 {vr(SC8+6,2)}, {vr(B+2,2)}, 0 op_sel_hi:[1,0]
        v_rcp_f32 v{SC8+2}, v{SC8+1}
        """)
        for r in range(2, 8): a(f"v_pk_fma_f32 {vr(SC8+4+2*(r&1),2)}, {vr(B+2*r,2)}, 0, {vr(SC8+4+2*(r&1),2)} op_sel_hi:[1,0,1]")
        a(f"""
        v_pk_add_f32 {vr(SC8+4,2)}, {vr(SC8+4,2)}, {vr(SC8+6,2)}
        v_add_f32 v{SC8+4}, v{SC8+4}, v{SC8+5}
        v_add_f32 v{SC8+4}, v{SC8+4}, v{SC8+1}
        v_cmp_ge_f32 vcc, v{SC8+4}, s54
        v_cmp_le_f32 s[56:57], v{SC8+4}, s62
        s_nop 1
        s_and_b64 s[56:57], s[56:57], vcc
        s_cmp_eq_u64 s[56:57], -1
        s_cselect_b32 s98, 0, 1
        s_cbranch_scc0 L_x{ph >> 1}_done
        """)
        norm2(B, SC8+2)
    def send(T):
        a(f"""
        s_cmp_eq_u32 s100, {T}
        s_cbranch_scc1 L_ns{T}
        s_sub_u32 s53, s8, 4096
        s_cmp_lt_u32 s100, {T}
        s_cselect_b32 s53, s8, s53
        v_add_u32 v{EXA}, s53, v{EXB}
        """)
        for q in range(4): a(f"ds_write_b128 v{EXA}, {vr(O+16*T+4*q,4)} offset:{(T >> 1)*49152+(T & 1)*12288+q*1024}")
        a(f"L_ns{T}:")
    def collect(p):
        a(f"""
        s_waitcnt {"vmcnt(0) " if p == 0 else ""}lgkmcnt(0)
        s_barrier
        """)
        jitter(4)
        a(f"""
        s_cmp_eq_u32 s100, {2*p}
        s_cbranch_scc1 L_k{2*p}
        s_cmp_eq_u32 s100, {2*p+1}
        s_cbranch_scc0 L_x{p}_done
        """)
        norm(2*p+1)
        a(f"s_branch L_x{p}_done")
        a(f"L_k{2*p}:")
        norm(2*p)
        a(f"L_x{p}_done:")
    seq = [(14 + (v & 1), v >> 1) for v in range(8)]
    LP = [{0: 3, 2: 2, 3: 1, 4: 0, 6: 1, 7: 0}, {0: 3, 1: 2, 2: 1, 3: 0, 6: 1, 7: 0}, {0: 3, 2: 2, 3: 1, 4: 0}, {0: 3, 1: 2, 3: 1, 4: 0, 6: 1, 7: 0}][val("lp", 0)]
    for v in range(8):
        qk = ((v+1) & 3,) + seq[v+1] if v < 7 else None
        pv = ((v-1) & 3,) + (seq[v-1] if v else (13, 3))
        pre = [f"s_setprio {LP[v]}"] if v in LP else []
        side = {}
        if v == 0: pre += ["s_waitcnt vmcnt(4)"]
        if v == 2: pre += ["s_waitcnt vmcnt(3)"]
        if v == 3: side = {1: [lambda: send(0)]}
        if v == 7: side = {1: [lambda: send(2)]}
        if v == 5:
            a("s_setprio 3")
            a("s_nop 0")
            send(1)
            collect(0)
            a("s_setprio 2")
        unit(v & 3, qk, pv, pre=pre, side=side)
        if v == 0: flag_store("s15")
    stamp(8); jitter()
    poll_issue("s16", 0xff)
    a(f"""
    v_smfmac_f32_32x32x32_bf16 {vr(O+48,16)}, {vr(vb(15),4)}, {vr(S+48,8)}, v{IDX}
    v_smfmac_f32_32x32x32_bf16 {vr(O+48,16)}, {vr(vb(15)+4,4)}, {vr(S+56,8)}, v{IDX}
    s_nop 5
    """)
    send(3)
    collect(1)
    a("""
    s_setprio 0
    s_cmp_lg_u32 s98, 0
    s_cbranch_scc1 L_fallback
    L_p3:
    """)

def norm2(B, R):
    T1 = 40
    a("v_cmp_gt_u32 vcc, 32, v2")
    for r in range(8): a(f"v_pk_mul_f32 {vr(B+2*r,2)}, {vr(B+2*r,2)}, {vr(R,2)} op_sel_hi:[1,0]")
    for i in range(4): a(f"v_cvt_pk_bf16_f32 v{T1+i}, v{B+2*i}, v{B+2*i+1}")
    a(f"buffer_store_dwordx4 {vr(T1,4)}, v3, {WS_SRD}, s14 offen {SC}")
    for i in range(4, 8): a(f"v_cvt_pk_bf16_f32 v{T1+i}, v{B+2*i}, v{B+2*i+1}")
    a(f"v_cndmask_b32 v{T1+6}, 0, v{T1+6}, vcc")
    a(f"v_cndmask_b32 v{T1+7}, 0, v{T1+7}, vcc")
    a(f"buffer_store_dwordx4 {vr(T1+4,4)}, v3, {WS_SRD}, s14 offen offset:1024 {SC}")

def p3():
    OFR = 96; ACC = 16
    quads = list(range(48, 96, 4)) + list(range(160, 240, 4))
    assert len(quads) == 32
    def WQ(t, c): return quads[2*t + c]
    for i in range(8):
        a(f"""
        s_add_u32 s62, s3, {i}
        s_and_b32 s62, s62, 7
        s_lshl_b32 s{54+i}, s62, 11
        s_add_u32 s{54+i}, s{54+i}, s17
        """)
    stamp(9)
    jitter()
    a(f"""
    s_cmp_ge_u32 s23, 28
    s_cbranch_scc1 L_fin
    """)
    def rd(i):
        a(f"""
        s_add_u32 s62, s3, {i}
        s_and_b32 s62, s62, 7
        s_mul_i32 s62, s62, {28*128}
        v_add_u32 v14, s62, v{P3A}
        v_xor_b32 v15, 64, v14
        """)
        for s_ in range(2):
            for c in range(2):
                for eh in range(2):
                    a(f"ds_read_b64_tr_b16 {vr(WQ(2*i+s_, c)+2*eh,2)}, v{14+c} offset:{(16*s_+8*eh)*128}")
    def ld(t): a(f"buffer_load_dwordx4 {vr(OFR+4*t,4)}, v3, {WS_SRD}, s{54+t//2} offen offset:{(t%2)*1024} {SC}")
    NE = val("nearly", 8)
    NF = val("nfirst", 4)
    def cleaned(lbl):
        a(f"""
        s_waitcnt vmcnt(0)
        v_cmp_eq_u64 vcc, s[{TAG}:{TAG+1}], v[{TMP}:{TMP+1}]
        s_nop 1
        s_and_b32 s63, vcc_lo, 0xff
        s_cmp_eq_u32 s63, 0xff
        s_cbranch_scc1 {lbl}_ok
        """)
        poll_check(lbl, "s16", 0xff, 62, 63)
    if NF == 0:
        for i in range(NE): rd(i)
        cleaned("L_op")
        stamp(10)
        for t in range(16): ld(t)
        for i in range(NE, 8): rd(i)
    else:
        a(f"""
        s_cmp_lg_u32 s{sKH}, 0
        s_cbranch_scc1 L_p3b
        """)
        cleaned("L_opa")
        for t in range(NF): ld(t)
        a("L_p3b:")
        for i in range(NE): rd(i)
        a(f"""
        s_cmp_eq_u32 s{sKH}, 0
        s_cbranch_scc1 L_p3c
        """)
        cleaned("L_opb")
        for t in range(NF): ld(t)
        a("L_p3c:")
        if opt("sbar"): a("s_barrier")
        stamp(10)
        for t in range(NF, 16): ld(t)
        for i in range(NE, 8): rd(i)
    for r in range(ACC, ACC+32): a(f"v_mov_b32 v{r}, 0")
    for k in range(1, 4): a(f"v_xor_b32 v{8+k}, {32*k}, v{PWA}")
    a(f"""
    v_xor_b32 v12, 16, v{PRA}
    s_mov_b32 s62, {SPIN_MAX}
    s_movk_i32 s63, 0xff
    s_mov_b64 s[98:99], -1
    s_waitcnt lgkmcnt(0)
    {"s_mov_b32 s76, 0" if opt("diag") else ""}
    L_pass:
    """)
    for i in range(8):
        B = OFR + 8*i
        a(f"""
        s_bitcmp0_b32 s63, {i}
        s_cbranch_scc1 L_next{i}
        s_waitcnt vmcnt({14-2*i})
        v_max3_u32 v13, v{B}, v{B+3}, v{B+4}
        v_max_u32 v13, v13, v{B+7}
        v_cmp_eq_u32 vcc, -1, v13
        s_nop 1
        s_and_b64 vcc, vcc, s[98:99]
        s_cbranch_scc0 L_go{i}
        """)
        ld(2*i); ld(2*i+1)
        if opt("anyorder"):
            a(f"""
            s_branch L_next{i}
            L_go{i}:
            s_bitset0_b32 s63, {i}
            """)
        else:
            a(f"""
            s_branch L_next{i}
            L_go{i}:
            """)
            if i:
                a(f"""
                s_and_b32 s53, s63, {(1 << i) - 1}
                s_cbranch_scc1 L_next{i}
                """)
            a(f"s_bitset0_b32 s63, {i}")
        for s_ in range(2):
            for c in range(2):
                acc = vr(ACC+16*c, 16)
                a(f"v_mfma_f32_32x32x16_bf16 {acc}, {vr(WQ(2*i+s_, c),4)}, {vr(B+4*s_,4)}, {acc}")
        a(f"L_next{i}:")
    if opt("diag"):
        a("""
        s_cmp_lg_u32 s76, 0
        s_cbranch_scc1 L_diag1
        """)
        stamp(1)
        a("""
        s_bcnt1_i32_b32 s78, s63
        L_diag1:
        s_add_u32 s76, s76, 1
        """)
    a(f"""
    s_cmp_eq_u32 s63, 0
    s_cbranch_scc1 L_passed
    s_sub_u32 s62, s62, 1
    s_cselect_b64 s[98:99], 0, s[98:99]
    s_waitcnt vmcnt(0)
    s_branch L_pass
    L_passed:
    s_mov_b32 s62, {8*1792}
    """)
    stamp(11)
    jitter(4)
    if opt("xd2"): deadline("L_xd2", val("xd2", 0))
    a("s_nop 10")
    for c in range(2):
        for g in range(4):
            ad = PWA if g == 0 else 8+g
            a(f"ds_write_b128 v{ad}, {vr(ACC+16*c+4*g,4)} offset:{c*128}")
    a("s_waitcnt lgkmcnt(0)")
    a("s_barrier")
    for h8 in range(2):
        for p in range(2):
            for i in range(2):
                a(f"ds_read_b128 {vr(64+16*h8+8*p+4*i,4)}, v{PRA if i == 0 else 12} offset:{h8*2048+p*24576}")
    OS = "" if opt("outplain") else "sc1"
    for h8 in range(2):
        B = 64 + 16*h8
        a(f"s_waitcnt lgkmcnt({4 if h8 == 0 else 0})")
        for r in range(4): a(f"v_pk_add_f32 {vr(B+2*r,2)}, {vr(B+2*r,2)}, {vr(B+8+2*r,2)}")
        for r in range(4): a(f"v_cvt_pk_bf16_f32 v{96+4*h8+r}, v{B+2*r}, v{B+2*r+1}")
        a(f"buffer_store_dwordx4 {vr(96+4*h8,4)}, v{OUTA}, {OUT_SRD}, {'0' if h8 == 0 else 's62'} offen {OS}")
    a("L_fin:")
    if STAMP: a("s_waitcnt vmcnt(0)")
    stamp(12)
    stamp_flush(13)
    a("L_end:")
    a("s_endpgm")

def fallback():
    T = S + 16; K0 = KF; M = S + 35; Q = 48
    a("L_fallback:")
    for k in range(4):
        a(f"""
        s_cmp_lg_u32 s100, {k}
        s_cbranch_scc1 L_fbq{k}
        """)
        for r in range(8): a(f"v_mov_b32 v{Q+r}, v{8+8*k+r}")
        a(f"L_fbq{k}:")
    a(f"""
    s_lshl_b32 s58, s{sHD}, 18
    s_mov_b32 s59, 64
    v_mov_b32 v{M}, 0xff800000
    L_fb1:
    buffer_load_dwordx4 {vr(K0,4)}, v3, {WS_SRD}, s58 offen {SC}
    buffer_load_dwordx4 {vr(K0+4,4)}, v3, {WS_SRD}, s58 offen offset:1024 {SC}
    s_waitcnt vmcnt(0)
    v_mfma_f32_32x32x16_bf16 {vr(T,16)}, {vr(K0,4)}, {vr(Q,4)}, 0
    v_mfma_f32_32x32x16_bf16 {vr(T,16)}, {vr(K0+4,4)}, {vr(Q+4,4)}, {vr(T,16)}
    s_add_u32 s58, s58, 4096
    s_sub_u32 s59, s59, 1
    s_nop 15
    """)
    for i in range(8): a(f"v_max3_f32 v{M}, v{M}, v{T+2*i}, v{T+2*i+1}")
    a(f"""
    s_cmp_lg_u32 s59, 0
    s_cbranch_scc1 L_fb1
    v_mov_b32 v{M+1}, v{M}
    s_nop 1
    v_permlane32_swap_b32 v{M}, v{M+1}
    s_nop 1
    v_max_f32 v{M}, v{M}, v{M+1}
    v_sub_f32 v{M}, 0, v{M}
    v_and_b32 v{M+1}, 0xffff0000, v{M}
    v_sub_f32 v{M+2}, v{M}, v{M+1}
    v_and_b32 v{M+3}, 0xffff0000, v{M+2}
    v_sub_f32 v{M+2}, v{M+2}, v{M+3}
    v_lshrrev_b32 v{M+1}, 16, v{M+1}
    v_or_b32 v{M+1}, v{M+1}, v{M+3}
    v_lshrrev_b32 v{M+2}, 16, v{M+2}
    v_cmp_gt_u32 vcc, 32, v2
    s_lshl_b32 s58, s{sHD}, 18
    s_mov_b32 s59, 64
    v_cndmask_b32 v{Q+6}, v{M+1}, v{Q+6}, vcc
    v_cndmask_b32 v{Q+7}, v{M+2}, v{Q+7}, vcc
    """)
    for r in range(16): a(f"v_mov_b32 v{S+r}, 0")
    a(f"""
    L_fb2:
    buffer_load_dwordx4 {vr(K0,4)}, v3, {WS_SRD}, s58 offen {SC}
    buffer_load_dwordx4 {vr(K0+4,4)}, v3, {WS_SRD}, s58 offen offset:1024 {SC}
    buffer_load_dwordx4 {vr(K0+8,4)}, v3, {WS_SRD}, s58 offen offset:2048 {SC}
    buffer_load_dwordx4 {vr(K0+12,4)}, v3, {WS_SRD}, s58 offen offset:3072 {SC}
    s_waitcnt vmcnt(0)
    v_mfma_f32_32x32x16_bf16 {vr(T,16)}, {vr(K0,4)}, {vr(Q,4)}, 0
    v_mfma_f32_32x32x16_bf16 {vr(T,16)}, {vr(K0+4,4)}, {vr(Q+4,4)}, {vr(T,16)}
    s_add_u32 s58, s58, 4096
    s_sub_u32 s59, s59, 1
    s_nop 15
    """)
    for i in range(16): a(f"v_exp_f32 v{T+i}, v{T+i}")
    a(f"""
    s_nop 1
    v_smfmac_f32_32x32x32_bf16 {vr(S,16)}, {vr(K0+8,4)}, {vr(T,8)}, v{IDX}
    v_smfmac_f32_32x32x32_bf16 {vr(S,16)}, {vr(K0+12,4)}, {vr(T+8,8)}, v{IDX}
    s_cmp_lg_u32 s59, 0
    s_cbranch_scc1 L_fb2
    s_nop 15
    v_mov_b32 v{S+32}, v{S+12}
    v_mov_b32 v{S+33}, v{S+12}
    s_nop 1
    v_permlane32_swap_b32 v{S+32}, v{S+33}
    s_nop 1
    v_rcp_f32 v{S+34}, v{S+33}
    s_nop 0
    """)
    norm2(S, S+34)
    a("s_branch L_p3")

prologue(); loader(); compute(); attention(); p3(); fallback()
a("L_code_end:")
a(kdesc(N, NV, 102))
hdr = f"""; @launch grid=(256,1,1) block=(512,1,1) lds={LDS_BYTES}
; Two independent MHA blocks (S=2048, D=448, 16 heads of 28), fused into one launch of 256 co-resident workgroups.
; Workgroup = (block, head pair, 128 tokens), 8 waves.
;  1. projection: waves 4-7 stream x and the weight columns into LDS, waves 0-3 run the MFMAs (K,V first, then Q).
;     K,V go to d_ws in MFMA fragment order (write-through), announced by flags that carry a per-launch tag
;     (a clock value workgroup 0 puts into d_debug), so stale words in d_ws are never taken for a hand-off.
;  2. attention: wave = (head, every fourth key tile, all 128 queries); K,V fragments stream from L2 into registers.
;     S^T = K Q^T (Q pre-scaled by log2(e)/sqrt(28)), P = exp2(S), O^T += V^T P^T with the sparse MFMA,
;     which picks the high (bf16) half of every fp32 P. A ones column in V gives the row sums.
;     Softmax guard: the shift is first taken as 0; every row sum is then checked to lie in [2^-32, 2^48] and every
;     accumulator to be finite. If not, the wave recomputes its rows with the true row maximum (L_fallback*).
;  3. output projection: O tiles are exchanged through d_ws; each slot is first filled with a marker
;     (announced by a tagged flag), readers reload a tile until no marker is left.
; All spin waits are bounded.
""" + '.amdgcn_target "amdgcn-amd-amdhsa--gfx950"\n'
open(sys.argv[1], "w").write(hdr + a.text())
```

```python
import sys, struct
from asmlib import *

KV_OFF = 0
OF_OFF = 8 << 20
FL_OFF = 12 << 20
FO_OFF = (12 << 20) + (256 << 10)
WS_USED = 13 << 20
ST_OFF = 32 << 20
CSCALE = 28 ** -0.5 * 1.4426950408889634
def f2u(x): return struct.unpack("<I", struct.pack("<f", x))[0]
ARGS = sys.argv[2:]
def opt(name): return ("--" + name) in ARGS
def val(name, d): return int(ARGS[ARGS.index("--" + name) + 1]) if opt(name) else d
STAMP = opt("stamp")
N = "concat_heads__softmax_full_mha__mha_block__prompt_kernel"
SC = "sc1"
SPIN_MAX = 1000000
SLEEP = val("sleep", 2)

FL2 = val("fl2", 4)
FSH = 3
WR0 = 114688
C0, C1, C2, C3 = 32768, 65536, 98304, 131072
A2 = C3
LDS_BYTES = 163840
def wslot(i): return WR0 + ((i + 2) % 3) * 16384

a = Asm()
def stamp(idx):
    if not STAMP: return
    a(f"""
    s_memtime s[64:65]
    s_memrealtime s[66:67]
    s_waitcnt lgkmcnt(0)
    s_mov_b32 s{70+2*idx}, s64
    s_mov_b32 s{71+2*idx}, s66
    """)
def stamp_flush(n):
    if not STAMP: return
    a(f"""
    s_lshl_b32 s66, s2, 4
    s_add_u32 s66, s66, s27
    s_lshl_b32 s66, s66, 7
    s_add_u32 s66, s66, {ST_OFF}
    s_add_u32 s64, s20, s66
    s_addc_u32 s65, s21, 0
    v_mov_b32 v0, 0
    s_mov_b64 exec, 1
    """)
    for i in range(n):
        a(f"""
        v_mov_b32 v4, s{70+2*i}
        v_mov_b32 v5, s{71+2*i}
        global_store_dwordx2 v0, v[4:5], s[64:65] offset:{8*i}
        s_nop 1
        """)

sB, sJ, sHP, sW, sG, sKH, sHD = 24, 25, 26, 27, 48, 49, 52
X_SRD, W_SRD, WS_SRD, WO_SRD, OUT_SRD = "s[28:31]", "s[32:35]", "s[36:39]", "s[40:43]", "s[44:47]"
TAG = 50
IDX, VA, VC = 4, 5, 6
Q, O, S, KB, VB = 8, 176, 64, 128, 152
KF = KB
TMP = 250
PA, WOA, EXA, EXB, P3A, OUTA, PWA, PRA, FLA = 240, 241, 242, 243, 244, 245, 246, 247, 248
EX0 = 65536
NV = 256

JN = [0]
def jitter(maxlog=5):
    if not opt("jitter"): return
    JN[0] += 1
    a(f"""
    s_memrealtime s[64:65]
    s_waitcnt lgkmcnt(0)
    s_mul_i32 s66, s2, 2654435761
    s_mul_i32 s67, s27, 40503
    s_add_u32 s66, s66, s67
    s_mul_i32 s64, s64, 2246822519
    s_add_u32 s66, s66, s64
    s_lshr_b32 s66, s66, {32-maxlog}
    s_mul_i32 s66, s66, s66
    L_jit{JN[0]}:
    s_cmp_eq_u32 s66, 0
    s_cbranch_scc1 L_jit{JN[0]}_done
    s_sleep 1
    s_sub_u32 s66, s66, 1
    s_branch L_jit{JN[0]}
    L_jit{JN[0]}_done:
    """)

def tag_check(lbl, v):
    a(f"""
    s_mov_b32 s53, {SPIN_MAX}
    {lbl}_chk:
    v_readfirstlane_b32 s{TAG}, v{v}
    v_readfirstlane_b32 s{TAG+1}, v{v+1}
    s_nop 1
    s_cmp_lg_u64 s[{TAG}:{TAG+1}], 0
    s_cbranch_scc1 {lbl}_ok
    s_sub_u32 s53, s53, 1
    s_cbranch_scc1 {lbl}_ok
    global_load_dwordx2 v[{v}:{v+1}], v7, s[18:19] {SC}
    s_waitcnt vmcnt(0)
    s_branch {lbl}_chk
    {lbl}_ok:
    """)
def poll_issue(soff, mask):
    a(f"""
    s_mov_b64 exec, {hex(mask)}
    buffer_load_dwordx2 v[{TMP}:{TMP+1}], v{FLA if mask == 0xffff else PA}, {WS_SRD}, {soff} offen {SC}
    s_mov_b64 exec, -1
    """)
def prepoll():
    if not opt("pre"): return
    a(f"""
    s_mov_b32 exec_lo, s7
    s_mov_b32 exec_hi, 0
    buffer_load_dwordx2 v[{TMP}:{TMP+1}], v216, {WS_SRD}, s9 offen {SC}
    s_mov_b64 exec, -1
    """)
def poll_read(dst):
    a(f"""
    s_waitcnt vmcnt(0)
    v_cmp_eq_u64 vcc, s[{TAG}:{TAG+1}], v[{TMP}:{TMP+1}]
    s_nop 1
    s_mov_b32 s{dst}, vcc_lo
    """)
def need_bits(lbl, mreg, nreg, soff, mask, va=None):
    a(f"""
    s_and_b32 s53, s{mreg}, s{nreg}
    s_cmp_eq_u32 s53, s{nreg}
    s_cbranch_scc1 {lbl}_ok
    s_mov_b32 s54, {SPIN_MAX}
    {lbl}_spin:
    """)
    poll_issue(soff, mask)
    poll_read(mreg)
    a(f"""
    s_and_b32 s53, s{mreg}, s{nreg}
    s_cmp_eq_u32 s53, s{nreg}
    s_cbranch_scc1 {lbl}_ok
    s_sleep {SLEEP}
    s_sub_u32 s54, s54, 1
    s_cbranch_scc0 {lbl}_spin
    {lbl}_ok:
    """)
def poll_check(lbl, soff, mask, t0=53, t1=54):
    a(f"""
    s_mov_b32 s{t0}, {SPIN_MAX}
    {lbl}_chk:
    s_waitcnt vmcnt(0)
    v_cmp_eq_u64 vcc, s[{TAG}:{TAG+1}], v[{TMP}:{TMP+1}]
    s_nop 1
    s_and_b32 s{t1}, vcc_lo, {hex(mask)}
    s_cmp_eq_u32 s{t1}, {hex(mask)}
    s_cbranch_scc1 {lbl}_ok
    s_sub_u32 s{t0}, s{t0}, 1
    s_cbranch_scc1 {lbl}_ok
    s_sleep {SLEEP}
    """)
    poll_issue(soff, mask)
    a(f"""
    s_branch {lbl}_chk
    {lbl}_ok:
    """)
def flag_store(soff, v=TMP+2):
    a(f"""
    v_mov_b32 v{v}, s{TAG}
    v_mov_b32 v{v+1}, s{TAG+1}
    s_mov_b64 exec, 1
    buffer_store_dwordx2 v[{v}:{v+1}], v7, {WS_SRD}, {soff} offen {SC}
    s_mov_b64 exec, -1
    """)

def prologue():
    a(khead(N))
    a(f"""
    s_cmp_ge_u32 s2, 256
    s_cbranch_scc1 L_end
    """)
    stamp(0)
    if opt("tag0"): a("s_memrealtime s[98:99]")
    for _ in range(val("xpad", 0)): a("s_mov_b32 s3, 0x12345678")
    a(f"""
    s_load_dwordx16 s[4:19], s[0:1], 0
    s_load_dwordx2 s[20:21], s[0:1], 64
    s_and_b32 s22, s2, 7          ; xcd
    s_lshr_b32 s23, s2, 3         ; r
    s_lshr_b32 s{sB}, s22, 2
    s_bfe_u32 s25, s22, 0x10001
    s_lshl_b32 s25, s25, 3
    s_and_b32 s53, s23, 7
    s_add_u32 s{sJ}, s25, s53     ; jj
    s_and_b32 s26, s22, 1
    s_lshl_b32 s26, s26, 2
    s_lshr_b32 s54, s23, 3
    s_add_u32 s{sHP}, s26, s54    ; hp
    """)
    RM = val("rotm", 1)
    if RM == 0:
        a("""
        s_lshl_b32 s54, s54, 1
        s_add_u32 s54, s54, s53
        s_sub_u32 s53, s54, 7
        s_cmp_ge_u32 s54, 7
        s_cselect_b32 s54, s53, s54
        """)
    if RM:
        a("s_add_u32 s54, s54, s23")
        if RM == 1: a("s_and_b32 s54, s54, 3\ns_lshl_b32 s54, s54, 1")
        if RM == 3: a("s_and_b32 s54, s54, 1\ns_lshl_b32 s54, s54, 2")
        if RM == 2: a("s_and_b32 s54, s54, 3\ns_lshl_b32 s54, s54, 2\ns_lshr_b32 s54, 0x2520, s54\ns_and_b32 s54, s54, 15")
        if RM == 4: a("s_and_b32 s54, s54, 7\ns_lshl_b32 s54, s54, 2\ns_lshr_b32 s54, 0x53164200, s54\ns_and_b32 s54, s54, 15")
    a(f"""
    v_lshrrev_b32 v1, 6, v0
    v_and_b32 v2, 63, v0          ; lane
    v_mov_b32 v7, 0
    v_readfirstlane_b32 s{sW}, v1
    v_lshlrev_b32 v3, 4, v2       ; lane*16
    s_and_b32 s{sG}, s{sW}, 3
    s_lshr_b32 s{sKH}, s{sW}, 2
    s_cmp_eq_u32 s{sKH}, 0
    s_cbranch_scc1 L_compute
    """)

def srd_in():
    a(f"""
    s_waitcnt lgkmcnt(0)
    s_cmp_eq_u32 s{sB}, 0
    s_cselect_b32 s28, s4, s10
    s_cselect_b32 s29, s5, s11
    s_cselect_b32 s32, s6, s12
    s_cselect_b32 s33, s7, s13
    """)
def srd_const():
    a(f"""
    s_mov_b32 s30, 1835008
    s_mov_b32 s31, 0x20000
    s_mov_b32 s34, 1204224
    s_mov_b32 s35, 0x20000
    """)
def srd_rest():
    a(f"""
    s_cmp_eq_u32 s{sB}, 0
    s_mov_b32 s36, s20
    s_mov_b32 s37, s21
    s_mov_b32 s38, {WS_USED}
    s_mov_b32 s39, 0x20000
    s_cselect_b32 s40, s8, s14
    s_cselect_b32 s41, s9, s15
    s_mov_b32 s42, 401408
    s_mov_b32 s43, 0x20000
    s_mov_b32 s44, s16
    s_mov_b32 s45, s17
    s_mov_b32 s46, 3670016
    s_mov_b32 s47, 0x20000
    """)

def setup():
    srd_rest()
    a(f"""
    v_mov_b32 v{IDX}, 0xdddddddd
    s_lshl_b32 s62, s{sB}, 3
    s_add_u32 s62, s62, s{sHP}            ; b*8+hp
    s_lshl_b32 s9, s62, 9
    s_add_u32 s9, s9, {FL_OFF}
    s_lshl_b32 s63, s{sG}, 7
    s_add_u32 s10, s9, s63
    s_lshl_b32 s63, s{sJ}, 3
    s_add_u32 s10, s10, s63
    s_and_b32 s63, s{sG}, 2
    s_add_u32 s63, s63, s{sKH}
    s_lshl_b32 s63, s63, 7
    s_add_u32 s9, s9, s63
    s_lshl_b32 s62, s62, 1
    s_lshr_b32 s101, s{sG}, 1
    s_add_u32 s{sHD}, s62, s101
    s_and_b32 s100, s{sG}, 1
    s_lshl_b32 s63, s{sKH}, 1
    s_add_u32 s100, s100, s63
    s_lshl_b32 s4, s{sHD}, 6
    s_add_u32 s4, s4, s100
    s_lshl_b32 s4, s4, 12
    s_lshl_b32 s62, s101, 14
    s_lshl_b32 s63, s100, 12
    s_add_u32 s63, s63, s62
    s_add_u32 s63, s63, {A2}
    v_add_u32 v5, s63, v3
    s_mul_i32 s62, s101, 24576
    s_add_u32 s62, s62, {EX0}
    v_add_u32 v{EXB}, s62, v3
    s_lshl_b32 s8, s100, 12
    s_mul_i32 s7, s{sKH}, 49152
    s_and_b32 s63, s{sG}, 1
    s_mul_i32 s63, s63, 12288
    s_add_u32 s7, s7, s63
    s_add_u32 s7, s7, {EX0}
    s_lshl_b32 s62, s101, 13
    s_add_u32 s62, s62, {EX0}
    v_add_u32 v6, s62, v3
    v_lshlrev_b32 v{PA}, 3, v2
    v_mov_b32 v{FLA}, v{PA}
    s_mul_i32 s62, s23, 37
    s_lshr_b32 s62, s62, 8                ; r/7
    s_mul_i32 s3, s62, 7
    s_sub_u32 s3, s23, s3                 ; ct
    s_lshl_b32 s12, s22, 2
    s_add_u32 s12, s12, s62
    s_lshl_b32 s12, s12, 2
    s_add_u32 s12, s12, s100
    v_lshrrev_b32 v{WOA}, 3, v2
    v_and_b32 v{P3A}, 7, v2
    v_bfe_u32 v{OUTA}, v2, 4, 1
    v_lshlrev_b32 v{OUTA}, 2, v{OUTA}
    v_xor_b32 v{P3A}, v{P3A}, v{OUTA}
    v_mul_u32_u24 v{WOA}, 896, v{WOA}
    v_lshl_add_u32 v{WOA}, v{P3A}, 4, v{WOA}
    s_mul_i32 s62, s{sW}, {8*896}
    s_lshl_b32 s63, s3, 7
    s_add_u32 s62, s62, s63
    v_add_u32 v{WOA}, s62, v{WOA}
    s_lshl_b32 s13, s{sW}, 10
    s_mov_b32 s11, 0
    s_lshl_b32 s62, s{sB}, 4
    s_add_u32 s62, s62, s{sJ}
    s_lshl_b32 s62, s62, 2
    s_add_u32 s62, s62, s100
    s_lshl_b32 s62, s62, 4
    s_and_b32 s63, s{sHD}, 15
    s_add_u32 s62, s62, s63
    s_lshl_b32 s15, s62, 3
    s_add_u32 s15, s15, {FO_OFF}
    s_lshl_b32 s14, s62, 11
    s_add_u32 s14, s14, {OF_OFF}
    s_lshl_b32 s16, s12, 7
    s_lshl_b32 s62, s101, 6
    s_add_u32 s16, s16, s62
    s_add_u32 s16, s16, {FO_OFF}
    s_lshl_b32 s17, s12, 15
    s_lshl_b32 s62, s101, 14
    s_add_u32 s17, s17, s62
    s_add_u32 s17, s17, {OF_OFF}
    v_lshrrev_b32 v252, 5, v2             ; hh
    v_bfe_u32 v253, v2, 2, 2
    v_lshl_add_u32 v{P3A}, v252, 2, v253
    v_lshlrev_b32 v{P3A}, 7, v{P3A}
    v_bfe_u32 v253, v2, 4, 1
    v_lshl_add_u32 v{P3A}, v253, 5, v{P3A}
    v_and_b32 v253, 3, v2
    v_lshl_add_u32 v{P3A}, v253, 3, v{P3A}
    v_bfe_u32 v253, v2, 3, 1
    v_lshl_add_u32 v{P3A}, v253, 6, v{P3A}
    s_mul_i32 s62, s101, {8*28*128}
    v_add_u32 v{P3A}, s62, v{P3A}
    v_and_b32 v253, 31, v2
    v_and_b32 v254, 7, v2
    v_xor_b32 v255, v252, v254
    v_lshlrev_b32 v255, 4, v255
    v_lshl_add_u32 v{PWA}, v253, 8, v255
    s_mul_i32 s62, s101, 24576
    s_add_u32 s62, s62, s7
    v_add_u32 v{PWA}, s62, v{PWA}
    v_lshrrev_b32 v253, 3, v2
    v_lshlrev_b32 v255, 1, v254
    v_xor_b32 v255, v255, v253
    v_lshlrev_b32 v255, 4, v255
    v_lshl_add_u32 v{PRA}, v253, 8, v255
    s_lshl_b32 s62, s101, 12
    s_add_u32 s62, s62, s7
    v_add_u32 v{PRA}, s62, v{PRA}
    s_and_b32 s62, s12, 63
    s_lshl_b32 s62, s62, 5
    s_lshl_b32 s63, s101, 4
    s_add_u32 s62, s62, s63
    v_add_u32 v253, s62, v253
    v_mul_u32_u24 v253, 1792, v253
    v_lshl_add_u32 v{OUTA}, v254, 4, v253
    s_mul_i32 s62, s{sB}, 896
    s_lshl_b32 s63, s3, 7
    s_add_u32 s62, s62, s63
    v_add_u32 v{OUTA}, s62, v{OUTA}
    s_mov_b32 s68, 0
    """)
    for r in range(O, O+64): a(f"v_mov_b32 v{r}, 0")

def loader():
    a(f"""
    v_lshrrev_b32 v8, 3, v2       ; lane/8
    v_and_b32 v9, 7, v2
    v_lshrrev_b32 v14, 4, v2
    v_xor_b32 v9, v9, v14
    v_xor_b32 v14, 4, v9
    s_lshl_b32 s55, s{sJ}, 7
    s_lshl_b32 s56, s{sG}, 5
    s_add_u32 s55, s55, s56
    s_mul_i32 s55, s55, 896
    v_mul_u32_u24 v8, 896, v8
    v_add_u32 v8, s55, v8
    v_lshl_add_u32 v10, v9, 4, v8
    v_lshl_add_u32 v11, v14, 4, v8
    v_add_u32 v12, {2*6144}, v10
    v_add_u32 v13, {3*6144}, v11
    v_add_u32 v11, {6144}, v11
    s_lshl_b32 s55, s{sG}, 12              ; g*4096
    s_lshl_b32 s57, s54, 7
    s_mov_b32 m0, s55
    s_mul_i32 s58, s54, {64*2688}
    """)
    srd_const()
    a(f"""
    v_lshrrev_b32 v8, 4, v2
    v_and_b32 v9, 15, v2
    v_lshlrev_b32 v20, 2, v8
    v_xor_b32 v9, v9, v20         ; P
    v_lshrrev_b32 v20, 3, v9      ; seg
    v_and_b32 v9, 7, v9
    v_add_u32 v21, 1, v9
    v_lshlrev_b32 v21, 27, v21
    v_and_b32 v21, 0x40000000, v21
    v_mul_u32_u24 v8, 2688, v8
    v_mul_u32_u24 v20, 896, v20
    v_lshl_add_u32 v9, v9, 4, v21
    v_add3_u32 v8, v8, v9, v20
    s_mul_i32 s59, s{sG}, {16*2688}
    s_mul_i32 s60, s{sHP}, 112
    s_add_u32 s59, s59, s60
    s_add_u32 s60, s59, 896
    v_add_u32 v14, s60, v8
    v_add_u32 v15, {4*2688-1024}, v14
    v_add_u32 v16, {2*(4*2688-1024)}, v14
    v_add_u32 v17, {3*(4*2688-1024)}, v14
    """)
    srd_in()
    for q in range(4): a(f"buffer_load_dwordx4 v{10+q}, {X_SRD}, s57 offen offset:{q*1024} {SC} lds")
    def next_c():
        a("""
        s_add_u32 s54, s54, 1
        s_cmp_eq_u32 s54, 7
        s_cselect_b32 s54, 0, s54
        """)
    def item(i):
        if i < 7:
            if i:
                a(f"""
                s_lshl_b32 s57, s54, 7
                s_add_u32 m0, s55, {i*16384}
                s_mul_i32 s58, s54, {64*2688}
                """)
                for q in range(4): a(f"buffer_load_dwordx4 v{10+q}, {X_SRD}, s57 offen offset:{q*1024} {SC} lds")
            a(f"s_add_u32 m0, s55, {wslot(i)}")
            a("s_nop 0")
            for q in range(4):
                if opt("xnow") and i >= 2: a(f"buffer_load_dwordx4 v{14+q}, {W_SRD}, s61 offen offset:{q*1024} {SC} lds")
                else: a(f"buffer_load_dwordx4 v{14+q}, {W_SRD}, s58 offen offset:{q*1024} {SC} lds")
            next_c()
        else:
            for d in range(2):
                if 2*(i-7)+d > 6: break
                a(f"""
                s_add_u32 m0, s56, {wslot(i) + d*8192}
                s_mul_i32 s58, s54, {64*2688}
                """)
                for q in range(2): a(f"buffer_load_dwordx4 v{18+q}, {W_SRD}, s58 offen offset:{q*1024} {SC} lds")
                next_c()
    jitter()
    if opt("xnow"): a("s_mov_b32 s61, 0x30000000")
    item(0); item(1)
    a(f"""
    v_lshrrev_b32 v8, 3, v2
    v_and_b32 v9, 7, v2
    v_bfe_u32 v20, v2, 4, 1
    v_lshlrev_b32 v20, 2, v20
    v_xor_b32 v9, v9, v20
    v_add_u32 v21, 1, v9
    v_lshlrev_b32 v21, 27, v21
    v_and_b32 v21, 0x40000000, v21
    v_mul_u32_u24 v8, 2688, v8
    v_lshl_add_u32 v8, v9, 4, v8
    v_add_u32 v8, v8, v21
    v_add_u32 v18, s59, v8
    v_add_u32 v19, {8*2688-1024}, v18
    s_lshl_b32 s56, s{sG}, 11
    """)
    stamp(1)
    cnt = lambda i: 8 if i < 7 else (4 if i < 10 else (2 if i == 10 else 0))
    for k in range(11):
        a(f"s_waitcnt vmcnt({0 if (opt('sfirst') and k == 7) else cnt(k+1)})")
        a("s_barrier")
        if k == 0: stamp(2)
        if k in (3, 7, 9): jitter(4)
        if opt("sfirst"):
            if k + 2 <= 7: item(k+2)
            if k == 7:
                a("s_barrier")
                item(8); item(9)
            if k == 8: item(10)
        elif k + 2 <= 10: item(k+2)
        if k == 8: setup()
        if k == 9: a(f"global_load_dwordx2 v[{TMP}:{TMP+1}], v7, s[18:19] {SC}")
    tag_check("L_tagl", TMP)
    stamp(3); stamp(4)
    a("s_barrier")
    a("s_branch L_attn")

def compute():
    XA = 24
    WK, WV, WQ = 28, 168, 169
    AK, AV, AQ = (32, 64), (48, 80), (96, 112)
    FB = 128
    PK = 32
    a("L_compute:")
    srd_const(); srd_in()
    if opt("codepf"):
        a(f"""
        s_getpc_b64 s[62:63]
        L_pc:
        s_and_b32 s55, s23, 7
        s_lshl_b32 s55, s55, 2
        s_add_u32 s55, s55, s{sW}
        s_lshl_b32 s55, s55, 10
        v_add_u32 v8, s55, v3
        v_min_u32 v8, L_code_end - L_pc - 16, v8
        global_load_dwordx4 v[164:167], v8, s[62:63]
        """)
    a(f"""
    s_cmp_lg_u32 s2, 0
    s_cbranch_scc1 L_notag
    s_cmp_lg_u32 s{sW}, 0
    s_cbranch_scc1 L_notag
    {"s_mov_b64 s[60:61], s[98:99]" if opt("tag0") else "s_memrealtime s[60:61]"}
    s_waitcnt lgkmcnt(0)
    s_or_b32 s60, s60, 1
    v_mov_b32 v18, s60
    v_mov_b32 v19, s61
    s_mov_b64 exec, 1
    global_store_dwordx2 v7, v[18:19], s[18:19] {SC}
    s_mov_b64 exec, -1
    L_notag:
    v_and_b32 v8, 31, v2          ; m
    v_lshrrev_b32 v9, 5, v2       ; hh
    v_bfe_u32 v10, v2, 1, 3       ; z
    v_xor_b32 v10, v9, v10
    s_and_b32 s55, s{sG}, 1
    s_lshl_b32 s55, s55, 13
    v_lshlrev_b32 v11, 7, v8
    v_add_u32 v11, s55, v11
    v_lshl_add_u32 v{XA}, v10, 4, v11
    v_xor_b32 v12, 2, v10
    v_lshl_add_u32 v{XA+1}, v12, 4, v11
    v_xor_b32 v12, 4, v10
    v_lshl_add_u32 v{XA+2}, v12, 4, v11
    v_xor_b32 v12, 6, v10
    v_lshl_add_u32 v{XA+3}, v12, 4, v11
    v_bfe_u32 v10, v2, 2, 2       ; r
    v_bfe_u32 v11, v2, 4, 1       ; nhalf
    v_and_b32 v12, 3, v2          ; c4
    v_lshl_add_u32 v11, v11, 2, v12
    s_lshr_b32 s55, s{sG}, 1
    s_mul_i32 s55, s55, 7
    v_add_u32 v11, s55, v11       ; u
    v_lshrrev_b32 v12, 1, v11     ; piece
    v_and_b32 v11, 1, v11
    v_lshlrev_b32 v11, 3, v11     ; half*8
    v_lshl_add_u32 v13, v9, 3, v10      ; 8hh + r
    v_lshlrev_b32 v14, 2, v10
    v_xor_b32 v14, v12, v14             ; piece ^ (r<<2)
    v_lshl_add_u32 v14, v14, 4, v11
    v_lshl_add_u32 v14, v13, 8, v14
    v_add_u32 v{WK}, {WR0}, v14
    v_xor_b32 v{WV}, 128, v{WK}
    v_lshrrev_b32 v14, 1, v10
    v_lshlrev_b32 v14, 2, v14
    v_xor_b32 v14, v12, v14             ; piece ^ ((r>>1)<<2)
    v_lshl_add_u32 v14, v14, 4, v11
    v_lshl_add_u32 v14, v13, 7, v14
    v_add_u32 v{WQ}, {WR0}, v14
    v_and_b32 v29, 0x33, v2
    v_bfe_u32 v10, v2, 2, 1
    v_bfe_u32 v11, v2, 3, 1
    v_lshl_or_b32 v29, v10, 3, v29
    v_lshl_or_b32 v29, v11, 2, v29
    v_lshlrev_b32 v29, 4, v29     ; swap23(lane)*16
    v_cmp_gt_u32 s[56:57], 28, v8
    v_cmp_eq_u32 s[58:59], 28, v8
    v_mov_b32 v30, 0x3f803f80
    v_mov_b32 v31, 0x00003f80
    v_cndmask_b32 v1, 0, v30, s[58:59]
    s_lshl_b32 s60, s{sG}, 13
    s_add_u32 s60, s60, {A2}
    v_add_u32 v170, s60, v29
    v_add_u32 v171, s60, v3
    s_lshl_b32 s60, s{sG}, 12
    s_add_u32 s60, s60, {EX0}
    v_add_u32 v172, s60, v3
    """)
    PT = val("pretouch", 0)
    if PT:
        srd_rest()
        if PT == 1:
            a(f"""
            s_cmp_lg_u32 s{sW}, 1
            s_cbranch_scc1 L_nopt
            s_lshl_b32 s55, s23, 19
            v_lshlrev_b32 v8, 16, v2
            s_mov_b64 exec, 0xff
            buffer_load_dword v224, v8, {WS_SRD}, s55 offen {SC}
            s_lshl_b32 s55, s23, 17
            s_mov_b64 exec, 3
            buffer_load_dword v225, v8, {OUT_SRD}, s55 offen {SC}
            s_mov_b64 exec, -1
            L_nopt:
            """)
        else:
            a(f"""
            s_cmp_lg_u32 s{sW}, 1
            s_cbranch_scc1 L_nopt
            s_lshl_b32 s55, s23, 19
            v_lshlrev_b32 v8, 13, v2
            buffer_load_dword v224, v8, {WS_SRD}, s55 offen {SC}
            s_lshl_b32 s55, s23, 17
            v_lshlrev_b32 v8, 12, v2
            s_mov_b64 exec, 0xffffffff
            buffer_load_dword v225, v8, {OUT_SRD}, s55 offen {SC}
            s_mov_b64 exec, -1
            L_nopt:
            """)
    setup()
    a(f"""
    s_lshl_b32 s55, s{sHD}, 6
    s_lshl_b32 s60, s{sJ}, 2
    s_add_u32 s55, s55, s60
    s_and_b32 s60, s{sG}, 1
    s_lshl_b32 s60, s60, 1
    s_add_u32 s55, s55, s60
    s_lshl_b32 s55, s55, 12
    s_mov_b32 s60, {hex(f2u(CSCALE))}
    s_mov_b32 s61, s60
    v_cmp_gt_u32 vcc, 32, v2
    """)
    def FB2(t): return (128, 140, 152)[t % 3] if t else 128
    def xoff(i): return (i if i < 4 else i-4) * 16384
    def reads1(t):
        i, s = divmod(t, 4); b = FB + 16*(t & 1); wo = wslot(i) - WR0
        R = [f"ds_read_b128 {vr(b,4)}, v{XA+s} offset:{xoff(i)}"]
        for rd in range(2): R.append(f"ds_read_b64_tr_b16 {vr(b+8+2*rd,2)}, v{WK} offset:{wo+(16*s+4*rd)*256}")
        for rd in range(2): R.append(f"ds_read_b64_tr_b16 {vr(b+12+2*rd,2)}, v{WV} offset:{wo+(16*s+4*rd)*256}")
        R.append(f"ds_read_b128 {vr(b+4,4)}, v{XA+s} offset:{xoff(i)+4096}")
        return R
    def reads2(t):
        i, s = divmod(t, 4); b = FB2(t); wo = wslot(7 + i//2) - WR0 + (i & 1)*8192
        R = [f"ds_read_b128 {vr(b,4)}, v{XA+s} offset:{xoff(i)}"]
        for rd in range(2): R.append(f"ds_read_b64_tr_b16 {vr(b+8+2*rd,2)}, v{WQ} offset:{wo+(16*s+4*rd)*128}")
        R.append(f"ds_read_b128 {vr(b+4,4)}, v{XA+s} offset:{xoff(i)+4096}")
        return R
    def shift(d): return [f"v_add_u32 v{XA+k}, {d & 0xffffffff}, v{XA+k}" for k in range(4)]
    stamp(1)
    a("s_barrier")
    stamp(2)
    for r in reads1(0): a(r)
    for t in range(28):
        i, s = divmod(t, 4); b = FB + 16*(t & 1)
        cin = lambda r: ("0" if t == 0 else vr(r, 16))
        M = [f"v_mfma_f32_32x32x16_bf16 {vr(AK[0],16)}, {vr(b+8,4)}, {vr(b,4)}, {cin(AK[0])}",
             f"v_mfma_f32_32x32x16_bf16 {vr(AV[0],16)}, {vr(b,4)}, {vr(b+12,4)}, {cin(AV[0])}",
             f"v_mfma_f32_32x32x16_bf16 {vr(AK[1],16)}, {vr(b+8,4)}, {vr(b+4,4)}, {cin(AK[1])}",
             f"v_mfma_f32_32x32x16_bf16 {vr(AV[1],16)}, {vr(b+4,4)}, {vr(b+12,4)}, {cin(AV[1])}"]
        R = reads1(t+1) if t < 27 else reads2(0)
        if opt("xnomfma1") and t: M = ["s_nop 0"]*4
        if opt("xnord1") and t < 27: R = []
        a("s_waitcnt lgkmcnt(0)")
        if s == 3:
            a(M[0])
            if i == 3:
                for l in shift(65536): a(l)
            if i == 6:
                for l in shift(-65536): a(l)
            a("s_barrier")
            per = val("p1r", 3)
            for m in range(1, 4):
                for r in R[per*(m-1):per*(m-1)+per]: a(r)
                a(M[m])
        else:
            per = val("p1r", 3)
            for m in range(4):
                a(M[m])
                for r in R[per*m:per*m+per]: a(r)
        if t == val("tagt", 17): a(f"global_load_dwordx2 v[174:175], v7, s[18:19] {SC}")
    stamp(3)
    jitter()
    side = []
    for i in range(2):
        if opt("kscale"):
            for k in range(8): side.append(f"v_pk_mul_f32 {vr(AK[i]+2*k,2)}, {vr(AK[i]+2*k,2)}, s[60:61]")
        for k in range(8): side.append(f"v_cvt_pk_bf16_f32 v{AK[i]+k}, v{AK[i]+2*k}, v{AK[i]+2*k+1}")
        side.append(f"v_cndmask_b32 v{AK[i]+6}, v30, v{AK[i]+6}, vcc")
        side.append(f"v_cndmask_b32 v{AK[i]+7}, v31, v{AK[i]+7}, vcc")
        side.append(f"buffer_store_dwordx4 {vr(AK[i],4)}, v29, {WS_SRD}, s55 offen {SC}")
        side.append(f"buffer_store_dwordx4 {vr(AK[i]+4,4)}, v29, {WS_SRD}, s55 offen offset:1024 {SC}")
        for k in range(8): side.append(f"v_cvt_pk_bf16_f32 v{AV[i]+k}, v{AV[i]+2*k}, v{AV[i]+2*k+1}")
        for k in range(8): side.append(f"v_cndmask_b32 v{AV[i]+k}, v1, v{AV[i]+k}, s[56:57]")
        side.append(f"buffer_store_dwordx4 {vr(AV[i],4)}, v3, {WS_SRD}, s55 offen offset:2048 {SC}")
        side.append(f"buffer_store_dwordx4 {vr(AV[i]+4,4)}, v3, {WS_SRD}, s55 offen offset:3072 {SC}")
        if i == 0: side.append("s_add_u32 s55, s55, 4096")
    stores = []
    if opt("stag"):
        stores = [l.replace("s55", "s62") if k >= 4 else l for k, l in enumerate(l for l in side if l.startswith("buffer_store"))]
        side = [l for l in side if not l.startswith("buffer_store") and not l.startswith("s_add")]
        a("s_add_u32 s62, s55, 4096")
    def store_block(lbl, early):
        a(f"""
        s_bitcmp1_b32 s{sJ}, 2
        s_cbranch_scc{1 if early else 0} {lbl}
        """)
        for l in stores: a(l)
        a(f"{lbl}:")
    PER = val("side", 16)
    ST1 = (len(side) + PER - 1) // PER - 1
    ST2 = val("st2", 22)
    if PER >= 100:
        a("s_nop 7")
        for l in side: a(l)
        side = []
        if opt("sfirst"): a("s_barrier")
    lw = []
    for i in range(2):
        lw += [f"ds_write_b128 v170, {vr(AK[i],4)} offset:{4096*i}", f"ds_write_b128 v170, {vr(AK[i]+4,4)} offset:{4096*i+1024}",
               f"ds_write_b128 v171, {vr(AV[i],4)} offset:{4096*i+2048}", f"ds_write_b128 v171, {vr(AV[i]+4,4)} offset:{4096*i+3072}"]
    FT = val("flagt", 20)
    for r in reads2(1): a(r)
    NEWT = not opt("oldtail")
    XL = [40, 44, 56, 60, 72, 76, 88, 92]
    for t in range(24 if NEWT else 28):
        i, s = divmod(t, 4); b = FB2(t)
        cin = lambda r: ("0" if t == 0 else vr(r, 16))
        M = [f"v_mfma_f32_32x32x16_bf16 {vr(AQ[0],16)}, {vr(b+8,4)}, {vr(b,4)}, {cin(AQ[0])}",
             f"v_mfma_f32_32x32x16_bf16 {vr(AQ[1],16)}, {vr(b+8,4)}, {vr(b+4,4)}, {cin(AQ[1])}"]
        R = reads2(t+2) if t+2 < 28 else []
        bar = (t+2) in (8, 16, 24)
        if NEWT and t >= 22:
            bar = False
            R = [f"ds_read_b128 {vr(XL[4*(t-22)+2*k+e],4)}, v{XA+2*(t-22)+k} offset:{xoff(6)+4096*e}" for k in range(2) for e in range(2)]
        nw = 2 if t >= 25 else 0
        if bar: a("s_waitcnt lgkmcnt(0)")
        else: a(f"s_waitcnt lgkmcnt({(4 if t < 27 else 0) + nw})")
        a(M[0])
        if t+2 == 16:
            for l in shift(65536): a(l)
        if bar: a("s_barrier")
        for r in R: a(r)
        for l in side[:PER//2]: a(l)
        side = side[PER//2:]
        a(M[1])
        for l in side[:PER//2]: a(l)
        side = side[PER//2:]
        if t >= 24:
            for l in lw[2*(t-24):2*(t-24)+2]: a(l)
        if opt("stag") and t == ST1: store_block("L_st1", True)
        if opt("stag") and t == ST2: store_block("L_st2", False)
        if t == FT:
            assert not side
            if opt("stag"):
                assert FT < ST2
                a("s_waitcnt vmcnt(0)")
                tag_check("L_tagc", 174)
                a(f"""
                s_bitcmp1_b32 s{sJ}, 2
                s_cbranch_scc1 L_fl1
                """)
                flag_store("s10", 174)
                a("L_fl1:")
            else:
                a("s_waitcnt vmcnt(8)")
                tag_check("L_tagc", 174)
                a("s_waitcnt vmcnt(0)")
                flag_store("s10", 174)
            stamp(4)
    def qpack(i):
        A = AQ[i]; QD = Q + 8*i; L = []
        if not opt("kscale"): L += [f"v_pk_mul_f32 {vr(A+2*k,2)}, {vr(A+2*k,2)}, s[60:61]" for k in range(8)]
        L += [f"v_cvt_pk_bf16_f32 v{QD+k}, v{A+2*k}, v{A+2*k+1}" for k in range(8)]
        L += [f"v_cndmask_b32 v{QD+6}, 0, v{QD+6}, vcc", f"v_cndmask_b32 v{QD+7}, 0, v{QD+7}, vcc",
              f"ds_write_b128 v172, {vr(QD,4)} offset:{2048*i}", f"ds_write_b128 v172, {vr(QD+4,4)} offset:{2048*i+1024}"]
        return L
    if NEWT:
        a("s_waitcnt lgkmcnt(0)")
        a("s_barrier")
        wo = wslot(10) - WR0
        WL = [164, 128, 132, 136]
        for s_ in range(4):
            for rd in range(2): a(f"ds_read_b64_tr_b16 {vr(WL[s_]+2*rd,2)}, v{WQ} offset:{wo+(16*s_+4*rd)*128}")
        for i in range(2):
            for s_ in range(4):
                if i == 0: a("s_waitcnt lgkmcnt(6)")
                a(f"v_mfma_f32_32x32x16_bf16 {vr(AQ[i],16)}, {vr(WL[s_],4)}, {vr(XL[2*s_+i],4)}, {vr(AQ[i],16)}")
                if i == 0:
                    for l in lw[2*s_:2*s_+2]: a(l)
        a("s_nop 7")
        for l in qpack(0): a(l)
        for l in qpack(1): a(l)
    else:
        a("s_nop 7")
        a("s_nop 1")
        for i in range(2):
            for l in qpack(i): a(l)
    if FT >= 28:
        a("s_waitcnt vmcnt(8)")
        tag_check("L_tagc", 174)
        a("s_waitcnt vmcnt(0)")
        flag_store("s10", 174)
        stamp(4)
    a("""
    s_waitcnt lgkmcnt(0)
    s_barrier
    """)

def chunk_salu():
    return ["s_add_u32 s5, s5, 1", "s_and_b32 s5, s5, 15", f"s_cmp_eq_u32 s5, s{sJ}", "s_addc_u32 s5, s5, 0", "s_and_b32 s5, s5, 15",
            "s_lshl_b32 s6, s5, 14", "s_add_u32 s6, s6, s69"]
def win_salu(i):
    return [f"s_add_u32 s6, s{sJ}, {i}", "s_and_b32 s6, s6, 3", f"s_and_b32 s5, s{sJ}, 8", "s_or_b32 s5, s5, s6",
            "s_lshl_b32 s6, s5, 14", "s_add_u32 s6, s6, s4"]
def after_win():
    return [f"s_and_b32 s6, s{sJ}, 11", f"s_and_b32 s5, s{sJ}, 8", "s_add_u32 s5, s5, 4", f"s_bitcmp1_b32 s{sJ}, 2",
            "s_cselect_b32 s6, s6, s5", "s_subb_u32 s5, s5, 0", "s_lshl_b32 s6, s6, 14", "s_add_u32 s6, s6, s4"]
def kb(n): return KB + 8*(n % 3)
def vb(n): return VB + 8*(n % 3)
def kload(n): return [f"buffer_load_dwordx4 {vr(kb(n)+4*q,4)}, v3, {WS_SRD}, s6 offen offset:{q*1024} {SC}" for q in range(2)]
def vload(n): return [f"buffer_load_dwordx4 {vr(vb(n)+4*q,4)}, v3, {WS_SRD}, s6 offen offset:{2048+q*1024} {SC}" for q in range(2)]

def unit(cur, qk, pv, side=None, pre=None, late=None):
    side = side or {}
    M = [None]*4
    if qk:
        d, n, q = qk
        M[0] = f"v_mfma_f32_32x32x16_bf16 {vr(S+16*d,16)}, {vr(kb(n),4)}, {vr(Q+8*q,4)}, 0"
        M[1] = f"v_mfma_f32_32x32x16_bf16 {vr(S+16*d,16)}, {vr(kb(n)+4,4)}, {vr(Q+8*q+4,4)}, {vr(S+16*d,16)}"
    if pv:
        p, n, q = pv
        M[2] = f"v_smfmac_f32_32x32x32_bf16 {vr(O+16*q,16)}, {vr(vb(n),4)}, {vr(S+16*p,8)}, v{IDX}"
        M[3] = f"v_smfmac_f32_32x32x32_bf16 {vr(O+16*q,16)}, {vr(vb(n)+4,4)}, {vr(S+16*p+8,8)}, v{IDX}"
    E = [f"v_exp_f32 v{S+16*cur+e}, v{S+16*cur+e}" for e in range(16)]
    for l in pre or []: a(l)
    for m in range(4):
        if M[m]: a(M[m])
        for e in E[4*m:4*m+4]: a(e)
        for l in side.get(m, []):
            l() if callable(l) else a(l)

def tile_units(n, sides=None, pres=None, first=False, noqk=False):
    for q in range(4):
        qk = ((q+1) & 3, n + (q == 3), (q+1) & 3)
        pv = ((q-1) & 3, n - (q == 0), (q-1) & 3)
        if first and q == 0: pv = None
        if noqk and q == 3: qk = None
        unit(q, qk, pv, (sides or {}).get(q), (pres or {}).get(q))

def attention():
    a("L_attn:")
    poll_issue("s9", 0xffff)
    for q in range(2): a(f"ds_read_b128 {vr(Q+4*q,4)}, v6 offset:{q*1024}")
    for q in range(2): a(f"ds_read_b128 {vr(kb(0)+4*q,4)}, v5 offset:{q*1024}")
    for q in range(2, 8): a(f"ds_read_b128 {vr(Q+4*q,4)}, v6 offset:{q*1024}")
    for q in range(2): a(f"ds_read_b128 {vr(vb(0)+4*q,4)}, v5 offset:{2048+q*1024}")
    def restart(n):
        a(f"""
        v_mfma_f32_32x32x16_bf16 {vr(S,16)}, {vr(kb(n),4)}, {vr(Q,4)}, 0
        v_mfma_f32_32x32x16_bf16 {vr(S,16)}, {vr(kb(n)+4,4)}, {vr(Q+4,4)}, {vr(S,16)}
        s_nop 10
        """)
    a("s_waitcnt lgkmcnt(8)")
    restart(0)
    a("s_waitcnt lgkmcnt(0)")
    if val("a2", 1) == 0: a("s_barrier")
    stamp(5); jitter(4)
    def first():
        poll_check("L_kvp", "s9", 0xffff)
        for l in win_salu(1) + kload(1) + vload(1): a(l)
    CK = val("ck", 3)
    unit(0, (1, 0, 1), None, pre=["s_setprio 3"], side={CK: [first]})
    T2U = val("t2u", 2)
    t2 = {0: win_salu(2), 1: kload(2), 2: vload(2)}
    unit(1, (2, 0, 2), (0, 0, 0), pre=["s_setprio 2"], side=t2 if T2U == 1 else None)
    unit(2, (3, 0, 3), (1, 0, 1), pre=["s_setprio 1"], side=t2 if T2U == 2 else None)
    if (not opt("nolateqk")):
        E = [f"v_exp_f32 v{S+48+e}, v{S+48+e}" for e in range(16)]
        seq = ["s_setprio 0", f"v_smfmac_f32_32x32x32_bf16 {vr(O+32,16)}, {vr(vb(0),4)}, {vr(S+32,8)}, v{IDX}"] + E[:5] + \
              [f"v_smfmac_f32_32x32x32_bf16 {vr(O+32,16)}, {vr(vb(0)+4,4)}, {vr(S+40,8)}, v{IDX}"] + E[5:9] + ["s_waitcnt vmcnt(6)",
               f"v_mfma_f32_32x32x16_bf16 {vr(S,16)}, {vr(kb(1),4)}, {vr(Q,4)}, 0"] + E[9:11] + \
              [f"v_mfma_f32_32x32x16_bf16 {vr(S,16)}, {vr(kb(1)+4,4)}, {vr(Q+4,4)}, {vr(S,16)}"] + E[11:] + win_salu(3)
        for l in seq: a(l)
    else:
        unit(3, None, (2, 0, 2), pre=["s_setprio 0"], side=t2 if T2U == 3 else None)
        a("s_waitcnt vmcnt(6)")
        restart(1)
        a("s_nop 0")
    stamp(6); jitter(4)
    CLEAN = [f"v_mov_b32 v{40+k}, -1" for k in range(4)] + [f"buffer_store_dwordx4 v[40:43], v3, {WS_SRD}, s14 offen {SC}", f"buffer_store_dwordx4 v[40:43], v3, {WS_SRD}, s14 offen offset:1024 {SC}"]
    tile_units(1, sides={0: {0: ([] if (not opt("nolateqk")) else win_salu(3)) + kload(3), 3: vload(3)}, 2: {2: after_win(), 3: kload(4)}},
               pres={0: ["s_setprio 3"], 1: ["s_setprio 2", "s_waitcnt vmcnt(8)"], 2: ["s_setprio 1"], 3: ["s_setprio 0", "s_waitcnt vmcnt(8)"]})
    if not opt("cleanloop"):
        for l in CLEAN: a(l)
    else:
        for l in CLEAN[:4]: a(l)
        a("s_mov_b32 s99, s14")
    if val("a2", 1) == 1: a("s_barrier")
    a("s_mov_b32 s69, s4")
    stamp(6 if opt("st7late") else 7)
    a(".p2align 6")
    a("L_loop:")
    jitter(3)
    WO = ["s_mov_b32 m0, s13", "s_add_u32 s13, s13, 8192", f"buffer_load_dwordx4 v{WOA}, {WO_SRD}, s11 offen {SC} lds", f"s_add_u32 s11, s11, {64*896}"]
    PRI = [{0: 3, 3: 2, 6: 1, 9: 0}, {0: 3, 1: 2, 2: 1, 3: 0, 4: 3, 5: 2, 6: 1, 7: 0, 8: 3, 9: 2, 10: 1, 11: 0},
           {0: 1, 2: 0, 4: 1, 6: 0, 8: 1, 10: 0}, {0: 3, 2: 2, 4: 1, 6: 0, 8: 2, 10: 0}, {0: 1, 6: 0}][val("pm", 1)]
    for k in range(3):
        n = 2 + k
        sides = {0: {3: vload(n+2)}, 2: {1: chunk_salu(), 3: kload(n+3)}}
        if k < 2: sides[1] = {1: WO}
        if k == 2: sides[1] = {1: ["s_cmp_eq_u32 s68, 3", f"s_cselect_b32 s69, {0x40000000}, s4"]}
        if k == 2 and opt("cleanloop"):
            sides[3] = {0: [l.replace("s14", "s99") for l in CLEAN[4:]] + [f"s_mov_b32 s99, {0x40000000}"]}
        pres = {1: ["s_waitcnt vmcnt(8)"], 3: ["s_waitcnt vmcnt(8)"]}
        for q in range(4):
            if 4*k+q in PRI and not opt("noprio"): pres[q] = [f"s_setprio {PRI[4*k+q]}"] + pres.get(q, [])
        tile_units(n, sides, pres)
    a(f"""
    s_add_u32 s68, s68, 1
    s_cmp_lt_u32 s68, 4
    s_cbranch_scc1 L_loop
    """)
    if opt("st7late"): stamp(7)
    T1 = 40; T2 = [136, 140, 160, 164]; SC8 = 56
    def norm(ph):
        B = O + 16*ph
        ex = (ph >> 1)*49152 + (ph & 1)*12288
        if ph >= 2:
            TT = [T1, O, O+16]
            for k in range(3):
                if ph == 3 and k == 1: a(f"v_add_u32 v{EXB}, 8192, v{EXB}")
                o = ex + 4096*k - (8192 if ph == 3 and k else 0)
                for q in range(4): a(f"ds_read_b128 {vr(TT[k]+4*q,4)}, v{EXB} offset:{o+q*1024}")
            for k in range(3):
                a(f"s_waitcnt lgkmcnt({8-4*k})")
                for r in range(8): a(f"v_pk_add_f32 {vr(B+2*r,2)}, {vr(B+2*r,2)}, {vr(TT[k]+2*r,2)}")
        else: norm_rd(ph)
        norm_tail(ph)
    def norm_rd(ph):
        B = O + 16*ph
        ex = (ph >> 1)*49152 + (ph & 1)*12288
        for q in range(4): a(f"ds_read_b128 {vr(T1+4*q,4)}, v{EXB} offset:{ex+q*1024}")
        if ph == 3: a(f"v_add_u32 v{EXB}, 8192, v{EXB}")
        o2 = ex + (4096 if ph != 3 else -4096)
        for q in range(4): a(f"ds_read_b128 {vr(T2[q],4)}, v{EXB} offset:{o2+q*1024}")
        a("s_waitcnt lgkmcnt(4)")
        for r in range(8): a(f"v_pk_add_f32 {vr(B+2*r,2)}, {vr(B+2*r,2)}, {vr(T1+2*r,2)}")
        for q in range(4): a(f"ds_read_b128 {vr(T1+4*q,4)}, v{EXB} offset:{o2+4096+q*1024}")
        a("s_waitcnt lgkmcnt(4)")
        for r in range(8): a(f"v_pk_add_f32 {vr(B+2*r,2)}, {vr(B+2*r,2)}, {vr(T2[r//2]+2*(r&1),2)}")
        a("s_waitcnt lgkmcnt(0)")
        for r in range(8): a(f"v_pk_add_f32 {vr(B+2*r,2)}, {vr(B+2*r,2)}, {vr(T1+2*r,2)}")
    def norm_tail(ph):
        B = O + 16*ph
        a(f"""
        v_mov_b32 v{SC8}, v{B+12}
        v_mov_b32 v{SC8+1}, v{B+12}
        s_mov_b32 s54, 0x2f800000        ; 2^-32
        s_mov_b32 s62, 0x57800000        ; 2^48
        v_permlane32_swap_b32 v{SC8}, v{SC8+1}
        v_pk_mul_f32 {vr(SC8+4,2)}, {vr(B,2)}, 0 op_sel_hi:[1,0]
        v_pk_mul_f32 {vr(SC8+6,2)}, {vr(B+2,2)}, 0 op_sel_hi:[1,0]
        v_rcp_f32 v{SC8+2}, v{SC8+1}
        """)
        for r in range(2, 8): a(f"v_pk_fma_f32 {vr(SC8+4+2*(r&1),2)}, {vr(B+2*r,2)}, 0, {vr(SC8+4+2*(r&1),2)} op_sel_hi:[1,0,1]")
        a(f"""
        v_pk_add_f32 {vr(SC8+4,2)}, {vr(SC8+4,2)}, {vr(SC8+6,2)}
        v_add_f32 v{SC8+4}, v{SC8+4}, v{SC8+5}
        v_add_f32 v{SC8+4}, v{SC8+4}, v{SC8+1}
        v_cmp_ge_f32 vcc, v{SC8+4}, s54
        v_cmp_le_f32 s[56:57], v{SC8+4}, s62
        s_nop 1
        s_and_b64 s[56:57], s[56:57], vcc
        s_cmp_eq_u64 s[56:57], -1
        s_cselect_b32 s98, 0, 1
        s_cbranch_scc0 L_x{ph >> 1}_done
        """)
        norm2(B, SC8+2)
    def send(T):
        a(f"""
        s_cmp_eq_u32 s100, {T}
        s_cbranch_scc1 L_ns{T}
        s_sub_u32 s53, s8, 4096
        s_cmp_lt_u32 s100, {T}
        s_cselect_b32 s53, s8, s53
        v_add_u32 v{EXA}, s53, v{EXB}
        """)
        for q in range(4): a(f"ds_write_b128 v{EXA}, {vr(O+16*T+4*q,4)} offset:{(T >> 1)*49152+(T & 1)*12288+q*1024}")
        a(f"L_ns{T}:")
    def collect(p):
        a(f"""
        s_waitcnt {"vmcnt(0) " if p == 0 else ""}lgkmcnt(0)
        s_barrier
        """)
        jitter(4)
        a(f"""
        s_cmp_eq_u32 s100, {2*p}
        s_cbranch_scc1 L_k{2*p}
        s_cmp_eq_u32 s100, {2*p+1}
        s_cbranch_scc0 L_x{p}_done
        """)
        norm(2*p+1)
        a(f"s_branch L_x{p}_done")
        a(f"L_k{2*p}:")
        norm(2*p)
        a(f"L_x{p}_done:")
    seq = [(14 + (v & 1), v >> 1) for v in range(8)]
    LP = [{0: 3, 2: 2, 3: 1, 4: 0, 6: 1, 7: 0}, {0: 3, 1: 2, 2: 1, 3: 0, 6: 1, 7: 0}, {0: 3, 2: 2, 3: 1, 4: 0}, {0: 3, 1: 2, 3: 1, 4: 0, 6: 1, 7: 0}][val("lp", 0)]
    for v in range(8):
        qk = ((v+1) & 3,) + seq[v+1] if v < 7 else None
        pv = ((v-1) & 3,) + (seq[v-1] if v else (13, 3))
        pre = [f"s_setprio {LP[v]}"] if v in LP else []
        side = {}
        if v == 0: pre += ["s_waitcnt vmcnt(4)"]
        if v == 2: pre += ["s_waitcnt vmcnt(3)"]
        if v == 3: side = {1: [lambda: send(0)]}
        if v == 7: side = {1: [lambda: send(2)]}
        if v == 5:
            a("s_setprio 3")
            a("s_nop 0")
            send(1)
            collect(0)
            a("s_setprio 2")
        unit(v & 3, qk, pv, pre=pre, side=side)
        if v == 0: flag_store("s15")
    stamp(8); jitter()
    poll_issue("s16", 0xff)
    a(f"""
    v_smfmac_f32_32x32x32_bf16 {vr(O+48,16)}, {vr(vb(15),4)}, {vr(S+48,8)}, v{IDX}
    v_smfmac_f32_32x32x32_bf16 {vr(O+48,16)}, {vr(vb(15)+4,4)}, {vr(S+56,8)}, v{IDX}
    s_nop 5
    """)
    send(3)
    collect(1)
    a("""
    s_setprio 0
    s_cmp_lg_u32 s98, 0
    s_cbranch_scc1 L_fallback
    L_p3:
    """)

def norm2(B, R):
    T1 = 40
    a("v_cmp_gt_u32 vcc, 32, v2")
    for r in range(8): a(f"v_pk_mul_f32 {vr(B+2*r,2)}, {vr(B+2*r,2)}, {vr(R,2)} op_sel_hi:[1,0]")
    for i in range(4): a(f"v_cvt_pk_bf16_f32 v{T1+i}, v{B+2*i}, v{B+2*i+1}")
    a(f"buffer_store_dwordx4 {vr(T1,4)}, v3, {WS_SRD}, s14 offen {SC}")
    for i in range(4, 8): a(f"v_cvt_pk_bf16_f32 v{T1+i}, v{B+2*i}, v{B+2*i+1}")
    a(f"v_cndmask_b32 v{T1+6}, 0, v{T1+6}, vcc")
    a(f"v_cndmask_b32 v{T1+7}, 0, v{T1+7}, vcc")
    a(f"buffer_store_dwordx4 {vr(T1+4,4)}, v3, {WS_SRD}, s14 offen offset:1024 {SC}")

def p3():
    OFR = 96; ACC = 16
    quads = list(range(48, 96, 4)) + list(range(160, 240, 4))
    assert len(quads) == 32
    def WQ(t, c): return quads[2*t + c]
    for i in range(8):
        a(f"""
        s_add_u32 s62, s3, {i}
        s_and_b32 s62, s62, 7
        s_lshl_b32 s{54+i}, s62, 11
        s_add_u32 s{54+i}, s{54+i}, s17
        """)
    stamp(9)
    jitter()
    a(f"""
    s_cmp_ge_u32 s23, 28
    s_cbranch_scc1 L_fin
    """)
    def rd(i):
        a(f"""
        s_add_u32 s62, s3, {i}
        s_and_b32 s62, s62, 7
        s_mul_i32 s62, s62, {28*128}
        v_add_u32 v14, s62, v{P3A}
        v_xor_b32 v15, 64, v14
        """)
        for s_ in range(2):
            for c in range(2):
                for eh in range(2):
                    a(f"ds_read_b64_tr_b16 {vr(WQ(2*i+s_, c)+2*eh,2)}, v{14+c} offset:{(16*s_+8*eh)*128}")
    def ld(t): a(f"buffer_load_dwordx4 {vr(OFR+4*t,4)}, v3, {WS_SRD}, s{54+t//2} offen offset:{(t%2)*1024} {SC}")
    NE = val("nearly", 8)
    NF = val("nfirst", 2)
    def cleaned(lbl):
        a(f"""
        s_waitcnt vmcnt({2 if (opt("nodelay") and lbl == "L_opb") else 0})
        v_cmp_eq_u64 vcc, s[{TAG}:{TAG+1}], v[{TMP}:{TMP+1}]
        s_nop 1
        s_and_b32 s63, vcc_lo, 0xff
        s_cmp_eq_u32 s63, 0xff
        s_cbranch_scc1 {lbl}_ok
        """)
        poll_check(lbl, "s16", 0xff, 62, 63)
    if NF == 0:
        for i in range(NE): rd(i)
        cleaned("L_op")
        stamp(10)
        for t in range(16): ld(t)
        for i in range(NE, 8): rd(i)
    else:
        a(f"""
        s_cmp_lg_u32 s{sKH}, 0
        s_cbranch_scc1 L_p3b
        """)
        cleaned("L_opa")
        for t in range(NF): ld(t)
        a("L_p3b:")
        for i in range(NE): rd(i)
        a(f"""
        s_cmp_eq_u32 s{sKH}, 0
        s_cbranch_scc1 L_p3c
        """)
        cleaned("L_opb")
        for t in range(NF): ld(t)
        a("L_p3c:")
        if opt("sbar"): a("s_barrier")
        stamp(10)
        for t in range(NF, 16): ld(t)
        for i in range(NE, 8): rd(i)
    for r in range(ACC, ACC+32): a(f"v_mov_b32 v{r}, 0")
    for k in range(1, 4): a(f"v_xor_b32 v{8+k}, {32*k}, v{PWA}")
    a(f"""
    v_xor_b32 v12, 16, v{PRA}
    s_mov_b32 s62, {SPIN_MAX}
    s_movk_i32 s63, 0xff
    s_mov_b64 s[98:99], -1
    s_waitcnt lgkmcnt(0)
    {"s_mov_b32 s76, 0" if opt("diag") else ""}
    L_pass:
    """)
    for i in range(8):
        B = OFR + 8*i
        a(f"""
        s_bitcmp0_b32 s63, {i}
        s_cbranch_scc1 L_next{i}
        s_waitcnt vmcnt({14-2*i})
        v_max3_u32 v13, v{B}, v{B+3}, v{B+4}
        v_max_u32 v13, v13, v{B+7}
        v_cmp_eq_u32 vcc, -1, v13
        s_nop 1
        s_and_b64 vcc, vcc, s[98:99]
        s_cbranch_scc0 L_go{i}
        """)
        ld(2*i); ld(2*i+1)
        if opt("anyorder"):
            a(f"""
            s_branch L_next{i}
            L_go{i}:
            s_bitset0_b32 s63, {i}
            """)
        else:
            a(f"""
            s_branch L_next{i}
            L_go{i}:
            """)
            if i:
                a(f"""
                s_and_b32 s53, s63, {(1 << i) - 1}
                s_cbranch_scc1 L_next{i}
                """)
            a(f"s_bitset0_b32 s63, {i}")
        for s_ in range(2):
            for c in range(2):
                acc = vr(ACC+16*c, 16)
                a(f"v_mfma_f32_32x32x16_bf16 {acc}, {vr(WQ(2*i+s_, c),4)}, {vr(B+4*s_,4)}, {acc}")
        a(f"L_next{i}:")
    if opt("diag"):
        a("""
        s_cmp_lg_u32 s76, 0
        s_cbranch_scc1 L_diag1
        """)
        stamp(1)
        a("""
        s_bcnt1_i32_b32 s78, s63
        L_diag1:
        s_add_u32 s76, s76, 1
        """)
    a(f"""
    s_cmp_eq_u32 s63, 0
    s_cbranch_scc1 L_passed
    s_sub_u32 s62, s62, 1
    s_cselect_b64 s[98:99], 0, s[98:99]
    s_waitcnt vmcnt(0)
    s_branch L_pass
    L_passed:
    s_mov_b32 s62, {8*1792}
    """)
    stamp(11)
    jitter(4)
    if opt("xd2"): deadline("L_xd2", val("xd2", 0))
    a("s_nop 10")
    for c in range(2):
        for g in range(4):
            ad = PWA if g == 0 else 8+g
            a(f"ds_write_b128 v{ad}, {vr(ACC+16*c+4*g,4)} offset:{c*128}")
    a("s_waitcnt lgkmcnt(0)")
    a("s_barrier")
    for h8 in range(2):
        for p in range(2):
            for i in range(2):
                a(f"ds_read_b128 {vr(64+16*h8+8*p+4*i,4)}, v{PRA if i == 0 else 12} offset:{h8*2048+p*24576}")
    OS = "" if opt("outplain") else "sc1"
    for h8 in range(2):
        B = 64 + 16*h8
        a(f"s_waitcnt lgkmcnt({4 if h8 == 0 else 0})")
        for r in range(4): a(f"v_pk_add_f32 {vr(B+2*r,2)}, {vr(B+2*r,2)}, {vr(B+8+2*r,2)}")
        for r in range(4): a(f"v_cvt_pk_bf16_f32 v{96+4*h8+r}, v{B+2*r}, v{B+2*r+1}")
        a(f"buffer_store_dwordx4 {vr(96+4*h8,4)}, v{OUTA}, {OUT_SRD}, {'0' if h8 == 0 else 's62'} offen {OS}")
    a("L_fin:")
    if STAMP: a("s_waitcnt vmcnt(0)")
    stamp(12)
    stamp_flush(13)
    a("L_end:")
    a("s_endpgm")

def fallback():
    T = S + 16; K0 = KF; M = S + 35; Q = 48
    a("L_fallback:")
    for k in range(4):
        a(f"""
        s_cmp_lg_u32 s100, {k}
        s_cbranch_scc1 L_fbq{k}
        """)
        for r in range(8): a(f"v_mov_b32 v{Q+r}, v{8+8*k+r}")
        a(f"L_fbq{k}:")
    a(f"""
    s_lshl_b32 s58, s{sHD}, 18
    s_mov_b32 s59, 64
    v_mov_b32 v{M}, 0xff800000
    L_fb1:
    buffer_load_dwordx4 {vr(K0,4)}, v3, {WS_SRD}, s58 offen {SC}
    buffer_load_dwordx4 {vr(K0+4,4)}, v3, {WS_SRD}, s58 offen offset:1024 {SC}
    s_waitcnt vmcnt(0)
    v_mfma_f32_32x32x16_bf16 {vr(T,16)}, {vr(K0,4)}, {vr(Q,4)}, 0
    v_mfma_f32_32x32x16_bf16 {vr(T,16)}, {vr(K0+4,4)}, {vr(Q+4,4)}, {vr(T,16)}
    s_add_u32 s58, s58, 4096
    s_sub_u32 s59, s59, 1
    s_nop 15
    """)
    for i in range(8): a(f"v_max3_f32 v{M}, v{M}, v{T+2*i}, v{T+2*i+1}")
    a(f"""
    s_cmp_lg_u32 s59, 0
    s_cbranch_scc1 L_fb1
    v_mov_b32 v{M+1}, v{M}
    s_nop 1
    v_permlane32_swap_b32 v{M}, v{M+1}
    s_nop 1
    v_max_f32 v{M}, v{M}, v{M+1}
    v_sub_f32 v{M}, 0, v{M}
    v_and_b32 v{M+1}, 0xffff0000, v{M}
    v_sub_f32 v{M+2}, v{M}, v{M+1}
    v_and_b32 v{M+3}, 0xffff0000, v{M+2}
    v_sub_f32 v{M+2}, v{M+2}, v{M+3}
    v_lshrrev_b32 v{M+1}, 16, v{M+1}
    v_or_b32 v{M+1}, v{M+1}, v{M+3}
    v_lshrrev_b32 v{M+2}, 16, v{M+2}
    v_cmp_gt_u32 vcc, 32, v2
    s_lshl_b32 s58, s{sHD}, 18
    s_mov_b32 s59, 64
    v_cndmask_b32 v{Q+6}, v{M+1}, v{Q+6}, vcc
    v_cndmask_b32 v{Q+7}, v{M+2}, v{Q+7}, vcc
    """)
    for r in range(16): a(f"v_mov_b32 v{S+r}, 0")
    a(f"""
    L_fb2:
    buffer_load_dwordx4 {vr(K0,4)}, v3, {WS_SRD}, s58 offen {SC}
    buffer_load_dwordx4 {vr(K0+4,4)}, v3, {WS_SRD}, s58 offen offset:1024 {SC}
    buffer_load_dwordx4 {vr(K0+8,4)}, v3, {WS_SRD}, s58 offen offset:2048 {SC}
    buffer_load_dwordx4 {vr(K0+12,4)}, v3, {WS_SRD}, s58 offen offset:3072 {SC}
    s_waitcnt vmcnt(0)
    v_mfma_f32_32x32x16_bf16 {vr(T,16)}, {vr(K0,4)}, {vr(Q,4)}, 0
    v_mfma_f32_32x32x16_bf16 {vr(T,16)}, {vr(K0+4,4)}, {vr(Q+4,4)}, {vr(T,16)}
    s_add_u32 s58, s58, 4096
    s_sub_u32 s59, s59, 1
    s_nop 15
    """)
    for i in range(16): a(f"v_exp_f32 v{T+i}, v{T+i}")
    a(f"""
    s_nop 1
    v_smfmac_f32_32x32x32_bf16 {vr(S,16)}, {vr(K0+8,4)}, {vr(T,8)}, v{IDX}
    v_smfmac_f32_32x32x32_bf16 {vr(S,16)}, {vr(K0+12,4)}, {vr(T+8,8)}, v{IDX}
    s_cmp_lg_u32 s59, 0
    s_cbranch_scc1 L_fb2
    s_nop 15
    v_mov_b32 v{S+32}, v{S+12}
    v_mov_b32 v{S+33}, v{S+12}
    s_nop 1
    v_permlane32_swap_b32 v{S+32}, v{S+33}
    s_nop 1
    v_rcp_f32 v{S+34}, v{S+33}
    s_nop 0
    """)
    norm2(S, S+34)
    a("s_branch L_p3")

prologue(); loader(); compute(); attention(); p3(); fallback()
a("L_code_end:")
a(kdesc(N, NV, 102))
hdr = f"""; @launch grid=(256,1,1) block=(512,1,1) lds={LDS_BYTES}
; Two independent MHA blocks (S=2048, D=448, 16 heads of 28), fused into one launch of 256 co-resident workgroups.
; Workgroup = (block, head pair, 128 tokens), 8 waves.
;  1. projection: waves 4-7 stream x and the weight columns into LDS, waves 0-3 run the MFMAs (K,V first, then Q).
;     K,V go to d_ws in MFMA fragment order (write-through), announced by flags that carry a per-launch tag
;     (a clock value workgroup 0 puts into d_debug), so stale words in d_ws are never taken for a hand-off.
;  2. attention: wave = (head, every fourth key tile, all 128 queries); K,V fragments stream from L2 into registers.
;     S^T = K Q^T (Q pre-scaled by log2(e)/sqrt(28)), P = exp2(S), O^T += V^T P^T with the sparse MFMA,
;     which picks the high (bf16) half of every fp32 P. A ones column in V gives the row sums.
;     Softmax guard: the shift is first taken as 0; every row sum is then checked to lie in [2^-32, 2^48] and every
;     accumulator to be finite. If not, the wave recomputes its rows with the true row maximum (L_fallback*).
;  3. output projection: O tiles are exchanged through d_ws; each slot is first filled with a marker
;     (announced by a tagged flag), readers reload a tile until no marker is left.
; All spin waits are bounded.
""" + '.amdgcn_target "amdgcn-amd-amdhsa--gfx950"\n'
open(sys.argv[1], "w").write(hdr + a.text())
```
